```python
import torch

def _softmax(x, axis=-1):
    return torch.softmax(x, dim=axis)
def _gelu(x):
    return torch.nn.functional.gelu(x, approximate="tanh")
def _silu(x):
    return torch.nn.functional.silu(x)
def _sigmoid(x):
    return torch.sigmoid(x)
def _layernorm(x, axis=-1, eps=1e-5):
    m = x.mean(dim=axis, keepdim=True)
    v = x.var(dim=axis, keepdim=True, unbiased=False)
    return (x - m) / torch.sqrt(v + eps)
def _scatter_add(tgt, idx, src, axis=0):
    return tgt.clone().index_add_(axis, idx, src)
def _segment_sum(src, seg, n):
    out = torch.zeros((n,) + src.shape[1:], dtype=src.dtype)
    return out.index_add_(0, seg, src)
def _pad(x, pw):
    flat = tuple(v for pair in reversed(pw) for v in pair)
    return torch.nn.functional.pad(x, flat)

kernel_name = 'recurrent_scan__spectral_gfnet__geglu_ffn__prompt'

def setup_inputs():

    _w = (lambda a: (lambda t: t.to(torch.bfloat16) if t.is_floating_point() else t)(torch.as_tensor(a)))
    def _A_setup():
        B, S, D = 1, 2048, 512
        Df = D // 2 + 1
        return {
            "x": _w((lambda *s: torch.randn(*s, dtype=torch.bfloat16) * 0.05)(B, S, D)),
            "w_r": _w((lambda *s: torch.randn(*s, dtype=torch.bfloat16) * 0.1)(S, Df) * 0.02),
            "w_i": _w((lambda *s: torch.randn(*s, dtype=torch.bfloat16) * 0.1)(S, Df) * 0.02),
        }
    _A_in = _A_setup()

    def _B_setup():
        B, S, D, F = 1, 2048, 512, 1792
        return {
            "x": _w((lambda *s: torch.randn(*s, dtype=torch.bfloat16) * 0.05)(B, S, D)),
            "w_gate": _w((lambda *s: torch.randn(*s, dtype=torch.bfloat16) * 0.05)(D, F)),
            "w_up": _w((lambda *s: torch.randn(*s, dtype=torch.bfloat16) * 0.05)(D, F)),
            "w_down": _w((lambda *s: torch.randn(*s, dtype=torch.bfloat16) * 0.05)(F, D)),
        }
    _B_in = _B_setup()

    return {
        "A_x": _A_in["x"],
        "A_w_r": _A_in["w_r"],
        "A_w_i": _A_in["w_i"],
        "B_x": _B_in["x"],
        "B_w_gate": _B_in["w_gate"],
        "B_w_up": _B_in["w_up"],
        "B_w_down": _B_in["w_down"],
    }

def reference(A_x, A_w_r, A_w_i, B_x, B_w_gate, B_w_up, B_w_down):
    def _A_ref(x, w_r, w_i):
        B, S, D = x.shape
        X = (lambda x, axes=(-2,-1): torch.fft.rfft2(x.float(), dim=axes))(x, axes=(-2, -1))
        W = w_r + 1j * w_i
        X = X * W
        y = (lambda x, s, axes=(-2,-1): torch.fft.irfft2(x, s=s, dim=axes).to(torch.bfloat16))(X, (S, D), axes=(-2, -1))
        return y

    def _B_ref(x, w_gate, w_up, w_down):
        return (_gelu(x @ w_gate) * (x @ w_up)) @ w_down

    x = A_x
    xn = _layernorm(x, axis=-1)
    s = _A_ref(xn, A_w_r, A_w_i)
    g = _silu(_B_ref(xn, B_w_gate, B_w_up, B_w_down))
    return x + s * g
```

```python
KN = "recurrent_scan__spectral_gfnet__geglu_ffn__prompt_kernel"
class Asm:
    def __init__(self):
        self.lines = []
        self.uid = 0
    def __call__(self, s=""):
        for l in s.split("\n"):
            self.lines.append(l)
    def label(self, base):
        self.uid += 1
        return f"{base}_{self.uid}"
    def text(self):
        return "\n".join(self.lines) + "\n"
def vr(a, n=1):
    return f"v{a}" if n == 1 else f"v[{a}:{a+n-1}]"
def ar(a, n=1):
    return f"a{a}" if n == 1 else f"a[{a}:{a+n-1}]"
def sr(a, n=1):
    return f"s{a}" if n == 1 else f"s[{a}:{a+n-1}]"
def kernel_begin(A, name):
    A(f".globl {name}\n.p2align 8\n.type {name},@function\n{name}:")
def descriptor(name, vgpr, sgpr, accum, extra=""):
    return f""".amdhsa_kernel {name}
  .amdhsa_next_free_vgpr {vgpr}
  .amdhsa_next_free_sgpr {sgpr}
  .amdhsa_accum_offset {accum}
  .amdhsa_group_segment_fixed_size 0
  .amdhsa_kernarg_size 80
  .amdhsa_user_sgpr_count 2
  .amdhsa_user_sgpr_kernarg_segment_ptr 1
  .amdhsa_system_sgpr_workgroup_id_x 1
{extra}.end_amdhsa_kernel"""
```

```python
import re
TRANS = ("v_exp_f32","v_log_f32","v_rcp_f32","v_rsq_f32","v_sqrt_f32","v_sin_f32","v_cos_f32","v_rcp_iflag_f32")
def regs_of(tok):
    tok = tok.strip()
    neg = tok.lstrip("-")
    m = re.fullmatch(r"(?:abs\()?([vas])(\d+)\)?", neg) or re.fullmatch(r"\|([vas])(\d+)\|", neg)
    if m: return [(m.group(1), int(m.group(2)))]
    m = re.fullmatch(r"([vas])\[(\d+):(\d+)\]", neg)
    if m: return [(m.group(1), i) for i in range(int(m.group(2)), int(m.group(3)) + 1)]
    if neg == "vcc": return [("s", "vcc")]
    if neg in ("vcc_lo", "vcc_hi"): return [("s", "vcc")]
    if neg == "exec": return [("s", "exec")]
    if neg == "m0": return [("s", "m0")]
    return []
class Ins:
    def __init__(self, text):
        self.text = text
        t = text.split(";")[0].strip()
        self.label = None; self.mn = None
        if not t or t.startswith("."):
            return
        if t.endswith(":"):
            self.label = t[:-1]; return
        parts = t.split(None, 1)
        self.mn = mn = parts[0]
        rest = parts[1] if len(parts) > 1 else ""
        ops = [o.strip() for o in rest.split(",")] if rest else []
        self.mods = ""
        if ops:
            last = ops[-1].split(None, 1)
            ops[-1] = last[0]
            self.mods = last[1] if len(last) > 1 else ""
        clean = re.sub(r"\b(op_sel|op_sel_hi|neg_lo|neg_hi|quad_perm):\[[^\]]*\]", "", rest)
        ops = [o.strip() for o in clean.split(",")] if clean.strip() else []
        if ops:
            last = ops[-1].split(None, 1); ops[-1] = last[0]
        self.ops = ops
        self.full = rest
        R = lambda i: regs_of(ops[i]) if i < len(ops) else []
        self.w = []; self.r = []
        self.kind = "other"
        base = re.sub(r"_(e32|e64|dpp|sdwa)$", "", mn)
        self.base = base
        if base.startswith("v_mfma"):
            self.kind = "mfma"
            self.w = R(0); self.A = R(1); self.B = R(2); self.C = R(3); self.r = self.A + self.B + self.C
            self.passes = 8 if "32x32x16" in base else 4 if "16x16x32" in base else None
            assert self.passes, base
        elif base.startswith("v_"):
            self.kind = "valu"
            if base.startswith("v_cmpx"):
                self.w = R(0) + [("s", "exec")]; self.r = sum((R(i) for i in range(1, len(ops))), [])
            elif base.startswith("v_permlane") and "swap" in base:
                self.w = R(0) + R(1); self.r = R(0) + R(1)
            elif base in ("v_add_co_u32", "v_sub_co_u32", "v_addc_co_u32", "v_subb_co_u32", "v_mad_u64_u32"):
                self.w = R(0) + R(1); self.r = sum((R(i) for i in range(2, len(ops))), [])
            elif base == "v_nop":
                pass
            else:
                self.w = R(0); self.r = sum((R(i) for i in range(1, len(ops))), [])
                if base in ("v_fmac_f32", "v_pk_fmac_f16", "v_dot2c_f32_bf16", "v_writelane_b32") or "dpp" in mn or "row_" in rest or "quad_perm" in rest or "sdwa" in mn:
                    self.r += R(0)
                if base == "v_cndmask_b32" and len(ops) == 3:
                    self.r += [("s", "vcc")]
            self.dpp = ("row_" in rest or "quad_perm" in rest or "wave_" in rest)
            self.trans = base in TRANS
        elif base.startswith("ds_"):
            self.kind = "ds"
            if "read" in base or "bpermute" in base or "permute" in base or "swizzle" in base:
                self.w = R(0); self.r = sum((R(i) for i in range(1, len(ops))), [])
            else:
                self.r = sum((R(i) for i in range(len(ops))), [])
        elif base.startswith("buffer_") or base.startswith("global_"):
            self.kind = "vmem"
            self.lds = bool(re.search(r"\blds\b", rest)) or "_lds_" in base
            allr = sum((R(i) for i in range(len(ops))), [])
            if "load" in base and not self.lds:
                self.w = R(0); self.r = sum((R(i) for i in range(1, len(ops))), [])
            elif "atomic" in base and re.search(r"\bsc0\b", rest):
                self.w = R(0); self.r = allr
            else:
                self.r = allr
            self.wide_store = ("store" in base and ("x4" in base or "x3" in base))
            if self.wide_store:
                self.sdata = R(0) if base.startswith("buffer_") else R(1)
        elif base.startswith("s_"):
            self.kind = "salu"
            if base in ("s_nop", "s_waitcnt", "s_barrier", "s_endpgm", "s_setprio", "s_sleep", "s_branch") or base.startswith("s_cbranch") or base.startswith("s_cmp") or base.startswith("s_bitcmp"):
                self.r = sum((R(i) for i in range(len(ops))), [])
            else:
                self.w = R(0); self.r = sum((R(i) for i in range(1, len(ops))), [])
                if "saveexec" in base: self.w += [("s", "exec")]
    def states(self):
        if self.mn is None: return 0
        if self.base == "s_nop": return int(self.ops[0], 0) + 1
        return 1
def need(ev, ins):
    _, k, regs, px = ev
    rs, ws = set(ins.r), set(ins.w)
    n = 0
    if k == "valu_v":
        hit = regs & rs
        if hit:
            if ins.kind == "mfma": n = max(n, 2)
            if ins.kind == "valu":
                if ins.dpp: n = max(n, 2)
                if ins.base.startswith("v_permlane"): n = max(n, 2)
                if ins.base in ("v_readlane_b32", "v_readfirstlane_b32"): n = max(n, 1)
                if px and not ins.trans: n = max(n, 1)
            if px and ins.kind in ("ds", "vmem"): n = max(n, 1)
    elif k == "valu_s":
        if regs & rs:
            if ins.kind == "valu":
                n = max(n, 4 if ins.base in ("v_readlane_b32", "v_writelane_b32") else 2)
            if ins.kind == "vmem": n = max(n, 5)
            if ins.kind == "salu": n = max(n, 1)
            if ins.kind == "mfma": n = max(n, 2)
        if ("s", "exec") in regs:
            if ins.kind == "mfma": n = max(n, 4)
            if ins.kind == "valu" and (ins.dpp): n = max(n, 5)
            if ins.kind == "valu" and (ins.base.startswith("v_read") or ins.base.startswith("v_permlane")): n = max(n, 4)
    elif k == "mfma_d":
        p, dt = px
        big = {4: 8, 8: 12}[p]; ovl = {4: 6, 8: 10}[p]
        if ins.kind == "mfma":
            if regs & (set(ins.A) | set(ins.B)): n = max(n, big)
            if regs & set(ins.C):
                if not (tuple(ins.C) == dt and ins.passes == p): n = max(n, ovl)
            elif regs & ws: n = max(n, big)
        else:
            if regs & (rs | ws): n = max(n, big)
    elif k == "mfma_c":
        if ins.kind == "valu" and (regs & ws): n = max(n, {4: 3, 8: 7}[px])
    elif k == "m0":
        if ins.kind == "vmem" and ins.lds: n = max(n, 1)
    elif k == "store":
        if regs & ws: n = max(n, 2 if ins.kind == "valu" else 1)
    return n
def events_of(ins, t):
    ev = []
    if ins.kind == "valu":
        v = {r for r in ins.w if r[0] in "va"}; s = {r for r in ins.w if r[0] == "s"}
        if v: ev.append((t, "valu_v", v, ins.trans))
        if s: ev.append((t, "valu_s", s, None))
    elif ins.kind == "mfma":
        ev.append((t, "mfma_d", set(ins.w), (ins.passes, tuple(ins.w))))
        if ins.C: ev.append((t, "mfma_c", set(ins.C), ins.passes))
    elif ins.kind == "salu" and ("s", "m0") in ins.w:
        ev.append((t, "m0", set(), None))
    elif ins.kind == "vmem" and ins.wide_store:
        ev.append((t, "store", set(ins.sdata), None))
    return ev
WINDOW = 24
def fix(text, verbose=False):
    lines = text.split("\n")
    ins = [Ins(l) for l in lines]
    labels = {x.label: i for i, x in enumerate(ins) if x.label}
    out = []; t = 0; evs = []; pend = {}; nops = 0
    def required(x, evs, t):
        d = 0
        for ev in evs:
            n = need(ev, x)
            if n: d = max(d, n - (t - ev[0] - 1))
        return d
    for i, x in enumerate(ins):
        if x.label:
            if x.label in pend:
                for (age, ev) in pend.pop(x.label):
                    evs.append((t - age, ev[1], ev[2], ev[3]))
            out.append(x.text); continue
        if x.mn is None:
            out.append(x.text); continue
        d = required(x, evs, t)
        is_br = x.base == "s_branch" or x.base.startswith("s_cbranch")
        if is_br:
            tgt = x.ops[0]
            if labels[tgt] < i:
                tt = t + max(d, 0) + 1; e2 = list(evs); extra = 0
                for y in ins[labels[tgt]:labels[tgt] + 60]:
                    if y.mn is None: continue
                    dd = required(y, e2, tt + extra)
                    if dd > 0: extra += dd
                    tt += y.states()
                    if tt - t > WINDOW: break
                d = max(d, 0) + extra
        while d > 0:
            k = min(d, 16)
            out.append(f"    s_nop {k-1}   ; auto"); t += k; d -= k; nops += 1
        if is_br and labels[x.ops[0]] > i:
            pend.setdefault(x.ops[0], []).extend([(t + 1 - ev[0], ev) for ev in evs])
        evs += events_of(x, t)
        out.append(x.text)
        t += x.states()
        evs = [e for e in evs if t - e[0] <= WINDOW]
        if x.base in ("s_endpgm", "s_branch"): evs = []
    if verbose: print("hazard pass: inserted", nops, "s_nop")
    return "\n".join(out)
```

```python
import struct
from asmgen import *

WS_XN = 0x0000000
WS_Z  = 0x0200000
WS_WP = 0x0400000
WS_G  = 0x0600000
WS_ZP = 0x0700000
WS_H  = 0x0A00000
WS_FL = 0x1200000
WS_SIZE = 0x1400000

def fhex(x):
    return "0x%08x" % struct.unpack("<I", struct.pack("<f", x))[0]

S_WS = 4
S_X = 8
S_A = 12
S_B = 16
S_WAVE = 20
S_WG = 21
S_PTR = 24
P_X, P_WR, P_WI, P_BX, P_WG, P_WU, P_WD, P_OUT, P_DBG, P_WS = [S_PTR + 2 * i for i in range(10)]

def srd(A, s, ptr, nbytes):
    A(f"s_mov_b32 s{s}, s{ptr}\ns_and_b32 s{s+1}, s{ptr+1}, 0xffff\ns_mov_b32 s{s+2}, {nbytes}\ns_mov_b32 s{s+3}, 0x00020000")

def prologue(A, nwg, done):
    A(f"s_cmp_ge_u32 s2, {nwg}\ns_cbranch_scc1 {done}")
    A(f"s_load_dwordx16 s[{S_PTR}:{S_PTR+15}], s[0:1], 0")
    A(f"s_load_dwordx4 s[{S_PTR+16}:{S_PTR+19}], s[0:1], 64")
    A("v_lshrrev_b32 v2, 6, v0")
    A("v_and_b32 v1, 63, v0")
    A(f"v_readfirstlane_b32 s{S_WAVE}, v2")
    A(f"s_mov_b32 s{S_WG}, s2")
    A("s_waitcnt lgkmcnt(0)")
    srd(A, S_WS, P_WS, WS_SIZE)

def cosrev(A, dst, idx, mask, scale):
    A(f"v_and_b32 v{dst}, {mask}, v{idx}")
    A(f"v_cvt_f32_u32 v{dst}, v{dst}")
    A(f"v_mul_f32 v{dst}, {fhex(scale)}, v{dst}")
    A(f"v_cos_f32 v{dst}, v{dst}")

def cos_batch(A, regs, mask, scale):
    for r in regs: A(f"v_and_b32 v{r}, {mask}, v{r}")
    for r in regs: A(f"v_cvt_f32_u32 v{r}, v{r}")
    for r in regs: A(f"v_mul_f32 v{r}, {fhex(scale)}, v{r}")
    for r in regs: A(f"v_cos_f32 v{r}, v{r}")

def wave_sum(A, v, sdst):
    for mod in ("row_shr:1 row_mask:0xf", "row_shr:2 row_mask:0xf", "row_shr:4 row_mask:0xf", "row_shr:8 row_mask:0xf",
                "row_bcast:15 row_mask:0xa", "row_bcast:31 row_mask:0xc"):
        A(f"v_add_f32_dpp v{v}, v{v}, v{v} {mod} bank_mask:0xf")
    A(f"v_readlane_b32 s{sdst}, v{v}, 63")

def phase_p0(A, sc="", lds0=0):
    XNL = lds0
    ZL = lds0 + 8704
    W = S_WAVE
    srd(A, S_X, P_X, 2097152)
    srd(A, S_A, P_WR, 2048 * 514)
    srd(A, S_B, P_WI, 2048 * 514)
    A(f"s_lshr_b32 s44, s{S_WG}, 2          ; r2")
    A(f"s_and_b32 s45, s{S_WG}, 3           ; mh")
    A(f"s_lshr_b32 s46, s45, 1\ns_lshl_b32 s46, s46, 4           ; 16m")
    A(f"s_and_b32 s47, s45, 1\ns_lshl_b32 s47, s47, 2\ns_add_u32 s46, s46, s47   ; +4h")
    A(f"s_lshr_b32 s47, s{W}, 2\ns_lshl_b32 s47, s47, 3\ns_add_u32 s46, s46, s47  ; +8(j>>2)")
    A(f"s_and_b32 s47, s{W}, 3\ns_add_u32 s46, s46, s47     ; r1")
    A("s_lshl_b32 s46, s46, 6\ns_add_u32 s46, s46, s44\ns_lshl_b32 s46, s46, 10")
    A("v_lshlrev_b32 v2, 4, v1")
    A(f"buffer_load_dwordx4 v[4:7], v2, s[{S_X}:{S_X+3}], s46 offen")
    A(f"s_and_b32 s47, s{S_WG}, 3\ns_lshl_b32 s47, s47, 6\ns_lshl_b32 s48, s{W}, 3\ns_add_u32 s47, s47, s48")
    A("v_lshrrev_b32 v8, 3, v1\nv_add_u32 v8, s47, v8          ; slot")
    A("v_and_b32 v9, 15, v8                 ; k1")
    A("v_lshrrev_b32 v10, 4, v8             ; k2")
    A("v_lshl_add_u32 v11, v10, 5, v9       ; lo = k1 + 32 k2")
    A("v_cmp_eq_u32 vcc, 0, v9")
    A("v_cndmask_b32 v12, v9, 16, vcc       ; k1 ? k1 : 16")
    A("v_lshl_add_u32 v12, v10, 5, v12")
    A("v_sub_u32 v12, 0x200, v12            ; hi")
    A("v_cmp_gt_u32 vcc, 8, v10")
    A("v_cndmask_b32 v11, v12, v11, vcc")
    A("v_mov_b32 v12, 0x100")
    A("v_cmp_eq_u32 vcc, 0, v8")
    A("v_cndmask_b32 v11, v11, v12, vcc     ; bin")
    A(f"s_lshr_b32 s48, s{S_WG}, 4          ; eah")
    A(f"s_lshr_b32 s49, s{S_WG}, 2\ns_and_b32 s49, s49, 3\ns_lshl_b32 s49, s49, 3   ; 8*s1blk")
    A("v_and_b32 v12, 7, v1\nv_add_u32 v12, s49, v12     ; s1")
    A("s_and_b32 s50, s48, 7\ns_lshl_b32 s50, s50, 8\ns_lshr_b32 s51, s48, 3\ns_lshl_b32 s51, s51, 5\ns_add_u32 s50, s50, s51")
    A("v_add_u32 v13, s50, v12              ; s (b=0)")
    A("v_mul_u32_u24 v13, 514, v13")
    A("v_lshl_add_u32 v13, v11, 1, v13")
    for b in range(4):
        A(f"s_mov_b32 s51, {b*64*514}")
        A(f"buffer_load_ushort v{16+b}, v13, s[{S_A}:{S_A+3}], s51 offen")
        A(f"buffer_load_ushort v{20+b}, v13, s[{S_B}:{S_B+3}], s51 offen")
    A("v_lshlrev_b32 v14, 13, v8\nv_lshl_add_u32 v14, v12, 4, v14   ; slot*8192 + s1*16")
    A(f"s_lshl_b32 s52, s48, 9\ns_add_u32 s52, s52, {WS_WP}")
    A(f"s_lshl_b32 s53, s{S_WG}, 1\ns_lshr_b32 s54, s{W}, 2\ns_add_u32 s53, s53, s54   ; rho'")
    A("s_lshr_b32 s54, s53, 4")
    A("s_lshl_b32 s54, s54, 3")
    A("s_lshr_b32 s55, s53, 1\ns_and_b32 s55, s55, 4\ns_add_u32 s54, s54, s55   ; + 4*jhi")
    A("s_and_b32 s55, s53, 3\ns_add_u32 s54, s54, s55    ; slot")
    A("s_and_b32 s55, s54, 15\ns_lshr_b32 s56, s54, 4\ns_lshl_b32 s57, s56, 5   ; k1, k2, 32k2")
    A("s_add_u32 s58, s57, s55             ; lo")
    A("s_cmp_eq_u32 s55, 0\ns_cselect_b32 s59, 16, s55\ns_add_u32 s59, s59, s57\ns_sub_u32 s59, 0x200, s59")
    A("s_cmp_lt_u32 s56, 8\ns_cselect_b32 s58, s58, s59")
    A("s_cmp_eq_u32 s54, 0\ns_cselect_b32 s58, 0x100, s58    ; bin")
    A(f"s_mov_b32 s59, {fhex(2.0**-19)}\ns_cselect_b32 s59, {fhex(2.0**-20)}, s59")
    A("s_lshl_b32 s60, s53, 5\ns_and_b32 s60, s60, 128       ; 128*c")
    A("v_and_b32 v24, 255, v0\nv_lshlrev_b32 v24, 1, v24      ; d")
    A("v_mul_u32_u24 v25, s58, v24\nv_add_u32 v25, s60, v25\nv_add_u32 v26, s58, v25")
    cos_batch(A, [25, 26], 511, 1.0 / 512)
    A("v_mul_f32 v25, s59, v25\nv_mul_f32 v26, s59, v26")
    A("v_cvt_pk_bf16_f32 v25, v25, v26")
    A("v_lshlrev_b32 v24, 1, v24")
    A(f"s_lshl_b32 s53, s53, 10\ns_add_u32 s53, s53, {WS_G}")
    A(f"buffer_store_dword v25, v24, s[{S_WS}:{S_WS+3}], s53 offen {sc}")
    A("v_and_b32 v30, 15, v1\nv_lshrrev_b32 v31, 4, v1\nv_lshlrev_b32 v31, 2, v31")
    B1RE, B1IM, TWC, TWS, A2RE, A2IM, S2RE, S2IM = 64, 68, 72, 76, 80, 84, 88, 92
    T = 32
    A("v_cmp_eq_u32 s[62:63], 0, v30        ; k1 == 0")
    A("v_cndmask_b32 v28, v30, 16, s[62:63]    ; k1'")
    A("v_cndmask_b32 v29, 8, 0, s[62:63]       ; offset")
    for j in range(8):
        n1off = j if j < 4 else 16 + j - 4
        A(f"v_add_u32 v27, {n1off}, v31")
        A(f"v_mul_u32_u24 v{T+j}, v27, v30")
        A(f"v_mad_u32_u24 v{T+8+j}, v27, v28, v29")
    cos_batch(A, range(T, T + 16), 31, 1.0 / 32)
    for q in range(4):
        A(f"v_cvt_pk_bf16_f32 v{B1RE+q}, v{T+2*q}, v{T+2*q+1}")
        A(f"v_cvt_pk_bf16_f32 v{B1IM+q}, v{T+8+2*q}, v{T+8+2*q+1}")
    A("v_lshlrev_b32 v28, 1, v30            ; 2*k2")
    A("v_cndmask_b32 v28, v28, 16, s[62:63]    ; k2==0 -> 16")
    A("v_lshlrev_b32 v29, 1, v30\nv_sub_u32 v29, 31, v29        ; 31-2k2")
    A("v_cmp_gt_u32 s[64:65], 8, v30        ; k2 < 8")
    A("v_cndmask_b32 v28, v29, v28, s[64:65]")
    for i in range(4):
        A(f"v_add_u32 v27, {i}, v31")
        A(f"v_mul_u32_u24 v{TWC+i}, v27, v30")
        A(f"v_add_u32 v{TWS+i}, 384, v{TWC+i}")
        A(f"v_lshlrev_b32 v{T+i}, 5, v{TWC+i}")
        A(f"v_add_u32 v{T+4+i}, 384, v{T+i}")
        A(f"v_mul_u32_u24 v{T+8+i}, v27, v28")
        A(f"v_lshlrev_b32 v{T+8+i}, 4, v{T+8+i}")
        A(f"v_add_u32 v{T+12+i}, 128, v{T+8+i}        ; -sin")
    cos_batch(A, list(range(TWC, TWC + 8)) + list(range(T, T + 16)), 511, 1.0 / 512)
    A(f"v_cvt_pk_bf16_f32 v{A2RE}, v{T}, v{T+1}\nv_cvt_pk_bf16_f32 v{A2RE+1}, v{T+2}, v{T+3}")
    A(f"v_cvt_pk_bf16_f32 v{A2RE+2}, v{T+4}, v{T+5}\nv_cvt_pk_bf16_f32 v{A2RE+3}, v{T+6}, v{T+7}")
    A("v_mov_b32 v27, 0x80008000")
    A("v_cndmask_b32 v28, 0, v27, s[64:65]     ; k2<8: negate")
    A("v_xor_b32 v29, v27, v28              ; k2>=8: negate")
    A(f"v_xor_b32 v{A2IM}, v28, v{A2RE+2}\nv_xor_b32 v{A2IM+1}, v28, v{A2RE+3}")
    A(f"v_xor_b32 v{A2IM+2}, v29, v{A2RE}\nv_xor_b32 v{A2IM+3}, v29, v{A2RE+1}")
    A(f"v_cvt_pk_bf16_f32 v{T}, v{T+8}, v{T+9}\nv_cvt_pk_bf16_f32 v{T+1}, v{T+10}, v{T+11}")
    A(f"v_cvt_pk_bf16_f32 v{T+2}, v{T+12}, v{T+13}\nv_cvt_pk_bf16_f32 v{T+3}, v{T+14}, v{T+15}")
    for (dst, src) in ((S2RE, T), (S2IM, T + 2)):
        A(f"v_cndmask_b32 v{dst}, 0, v{src}, s[64:65]\nv_cndmask_b32 v{dst+1}, 0, v{src+1}, s[64:65]")
        A(f"v_cndmask_b32 v{dst+2}, v{src}, 0, s[64:65]\nv_cndmask_b32 v{dst+3}, v{src+1}, 0, s[64:65]")
    A(f"s_mul_i32 s61, s{W}, 1040\ns_add_u32 s61, s61, {XNL}")
    A("v_add_u32 v96, s61, v2")
    A("v_lshl_add_u32 v97, v1, 3, s61")
    A(f"v_and_b32 v98, 7, v1\nv_mul_u32_u24 v98, 1040, v98\nv_lshrrev_b32 v99, 3, v1")
    A(f"s_lshl_b32 s61, s{W}, 3\nv_add_u32 v99, s61, v99     ; line")
    A(f"v_lshl_add_u32 v98, v99, 4, v98")
    if XNL: A(f"v_add_u32 v98, {XNL}, v98")
    A("v_and_b32 v100, 7, v1\nv_lshlrev_b32 v100, 4, v100\nv_lshl_add_u32 v99, v99, 9, v100")
    A(f"s_lshl_b32 s66, s44, 15\ns_lshl_b32 s67, s45, 7\ns_add_u32 s66, s66, s67\ns_add_u32 s66, s66, {WS_XN}")
    A(f"v_lshlrev_b32 v100, 9, v31\nv_lshl_add_u32 v100, v30, 5, v100\ns_lshl_b32 s61, s{W}, 1\ns_add_u32 s61, s61, {ZL}")
    A("v_add_u32 v100, s61, v100")
    A(f"v_lshlrev_b32 v101, 4, v0\nv_add_u32 v101, {ZL}, v101")
    A("s_and_b32 s61, s44, 15\nv_and_b32 v102, 15, v0\nv_xor_b32 v102, s61, v102\nv_lshlrev_b32 v102, 4, v102")
    A("v_lshrrev_b32 v103, 4, v0\nv_lshl_add_u32 v102, v103, 16, v102")
    A(f"s_lshl_b32 s67, s44, 10\ns_lshl_b32 s68, s45, 8\ns_add_u32 s67, s67, s68\ns_add_u32 s67, s67, {WS_Z}")
    A("; ---- P0: layernorm")
    A("s_waitcnt vmcnt(9)")
    for q in range(4):
        A(f"v_lshlrev_b32 v{T+2*q}, 16, v{4+q}\nv_and_b32 v{T+2*q+1}, 0xffff0000, v{4+q}")
    A(f"v_add_f32 v{T+8}, v{T}, v{T+1}\nv_add_f32 v{T+9}, v{T+2}, v{T+3}\nv_add_f32 v{T+10}, v{T+4}, v{T+5}\nv_add_f32 v{T+11}, v{T+6}, v{T+7}")
    A(f"v_add_f32 v{T+8}, v{T+8}, v{T+9}\nv_add_f32 v{T+10}, v{T+10}, v{T+11}\nv_add_f32 v{T+8}, v{T+8}, v{T+10}")
    wave_sum(A, T + 8, 69)
    A(f"v_mov_b32 v{T+9}, s69\nv_mul_f32 v{T+9}, {fhex(1.0/512)}, v{T+9}      ; mean")
    A(f"v_cvt_pk_bf16_f32 v{T+10}, v{T+9}, v{T+9}\nv_lshlrev_b32 v{T+10}, 16, v{T+10}     ; bf16(mean)")
    for q in range(8):
        A(f"v_sub_f32 v{T+16+q}, v{T+q}, v{T+9}")
    A(f"v_mul_f32 v{T+8}, v{T+16}, v{T+16}\nv_mul_f32 v{T+11}, v{T+17}, v{T+17}")
    for q in range(2, 8, 2):
        A(f"v_fmac_f32 v{T+8}, v{T+16+q}, v{T+16+q}\nv_fmac_f32 v{T+11}, v{T+17+q}, v{T+17+q}")
    A(f"v_add_f32 v{T+8}, v{T+8}, v{T+11}")
    for q in range(8):
        A(f"v_sub_f32 v{T+q}, v{T+q}, v{T+10}")
    wave_sum(A, T + 8, 69)
    for q in range(4):
        A(f"v_cvt_pk_bf16_f32 v{T+16+q}, v{T+2*q}, v{T+2*q+1}")
    A(f"v_mov_b32 v{T+9}, s69\nv_mul_f32 v{T+9}, {fhex(1.0/512)}, v{T+9}      ; var")
    A(f"v_cvt_pk_bf16_f32 v{T+9}, v{T+9}, v{T+9}\nv_lshlrev_b32 v{T+9}, 16, v{T+9}")
    A(f"v_add_f32 v{T+9}, {fhex(1e-5)}, v{T+9}")
    A(f"v_cvt_pk_bf16_f32 v{T+9}, v{T+9}, v{T+9}\nv_lshlrev_b32 v{T+9}, 16, v{T+9}")
    A(f"v_sqrt_f32 v{T+9}, v{T+9}")
    A(f"v_cvt_pk_bf16_f32 v{T+9}, v{T+9}, v{T+9}\nv_lshlrev_b32 v{T+9}, 16, v{T+9}")
    A(f"v_rcp_f32 v{T+9}, v{T+9}")
    for q in range(4):
        A(f"v_lshlrev_b32 v{T+2*q}, 16, v{T+16+q}\nv_and_b32 v{T+2*q+1}, 0xffff0000, v{T+16+q}")
    for q in range(8):
        A(f"v_mul_f32 v{T+q}, v{T+9}, v{T+q}")
    for q in range(4):
        A(f"v_cvt_pk_bf16_f32 v{4+q}, v{T+2*q}, v{T+2*q+1}")
    A("ds_write_b128 v96, v[4:7]")
    A("s_waitcnt lgkmcnt(0)")
    A("ds_read_b64_tr_b16 v[8:9], v97\nds_read_b64_tr_b16 v[10:11], v97 offset:512")
    A("s_barrier")
    A("ds_read_b128 v[4:7], v98")
    A("s_waitcnt vmcnt(0)")
    for b in range(4):
        A(f"v_lshl_or_b32 v{16+b}, v{20+b}, 16, v{16+b}")
    A(f"buffer_store_dwordx4 v[16:19], v14, s[{S_WS}:{S_WS+3}], s52 offen {sc}")
    A("s_waitcnt lgkmcnt(1)")
    A(f"v_mfma_f32_16x16x32_bf16 v[{T}:{T+3}], v[8:11], v[{B1RE}:{B1RE+3}], 0")
    A(f"v_mfma_f32_16x16x32_bf16 v[{T+4}:{T+7}], v[8:11], v[{B1IM}:{B1IM+3}], 0")
    A("s_waitcnt lgkmcnt(0)")
    A(f"buffer_store_dwordx4 v[4:7], v99, s[{S_WS}:{S_WS+3}], s66 offen {sc}")
    for i in range(4):
        A(f"v_mul_f32 v{T+8+i}, v{T+i}, v{TWC+i}")
        A(f"v_mul_f32 v{T+12+i}, v{T+4+i}, v{TWC+i}")
    for i in range(4):
        A(f"v_fmac_f32 v{T+8+i}, v{T+4+i}, v{TWS+i}")
        A(f"v_fma_f32 v{T+12+i}, -v{T+i}, v{TWS+i}, v{T+12+i}")
    for q in range(4):
        A(f"v_cvt_pk_bf16_f32 v{8+q}, v{T+8+2*q}, v{T+9+2*q}")
    A(f"v_mfma_f32_16x16x32_bf16 v[{T}:{T+3}], v[{A2RE}:{A2RE+3}], v[8:11], 0")
    A(f"v_mfma_f32_16x16x32_bf16 v[{T+4}:{T+7}], v[{A2IM}:{A2IM+3}], v[8:11], 0")
    A(f"v_mfma_f32_16x16x32_bf16 v[{T+8}:{T+11}], v[{S2RE}:{S2RE+3}], v[8:11], 0")
    A(f"v_mfma_f32_16x16x32_bf16 v[{T+12}:{T+15}], v[{S2IM}:{S2IM+3}], v[8:11], 0")
    for i in range(8):
        A(f"v_cndmask_b32 v{T+i}, v{T+i}, v{T+8+i}, s[62:63]")
    for i in range(4):
        A(f"v_cvt_pk_bf16_f32 v{T+i}, v{T+i}, v{T+4+i}")
    for i in range(4):
        A(f"ds_write_b16 v100, v{T+i} offset:{512*i}")
        A(f"ds_write_b16_d16_hi v100, v{T+i} offset:{512*i+16}")
    A("s_waitcnt lgkmcnt(0)\ns_barrier")
    A("ds_read_b128 v[4:7], v101")
    A("s_waitcnt lgkmcnt(0)")
    A(f"buffer_store_dwordx4 v[4:7], v102, s[{S_WS}:{S_WS+3}], s67 offen {sc}")

def g1_map(A):
    A(f"s_and_b32 s47, s{S_WG}, 7\ns_lshr_b32 s46, s{S_WG}, 3")
    A("s_and_b32 s44, s47, 1\ns_lshl_b32 s44, s44, 2\ns_and_b32 s48, s46, 3\ns_add_u32 s44, s44, s48    ; rt")
    A("s_lshr_b32 s45, s47, 1\ns_mul_i32 s45, s45, 7\ns_lshr_b32 s48, s46, 2\ns_add_u32 s45, s45, s48   ; ct")

G1_ACT = 128
G1_ACC = 0
def phase_g1(A, sc_ld="", sc_st=""):
    W = S_WAVE
    ACC = 64; ACT = 128; WF = 32
    srd(A, S_A, P_WG, 512 * 3584)
    srd(A, S_B, P_WU, 512 * 3584)
    A("v_lshrrev_b32 v2, 3, v1")
    A("v_lshrrev_b32 v3, 1, v2\nv_and_b32 v3, 1, v3\nv_lshlrev_b32 v3, 2, v3\nv_and_b32 v4, 7, v1\nv_xor_b32 v3, v3, v4   ; chunk")
    A("v_mul_u32_u24 v2, 3584, v2\nv_lshl_add_u32 v2, v3, 4, v2")
    A(f"s_mul_i32 s48, s{W}, {8*3584}\ns_lshl_b32 s49, s45, 7\ns_add_u32 s48, s48, s49")
    A(f"s_lshl_b32 s49, s{W}, 10")
    A("v_lshlrev_b32 v3, 4, v1")
    A(f"s_lshl_b32 s50, s44, 3\ns_add_u32 s50, s50, s{W}\ns_lshl_b32 s51, s50, 15\ns_add_u32 s51, s51, {WS_XN}")
    for s in range(8):
        A(f"s_add_u32 m0, s49, {s*8192}")
        A(f"buffer_load_dwordx4 v2, s[{S_A}:{S_A+3}], s48 offen lds")
        A(f"s_add_u32 m0, s49, {65536+s*8192}")
        A(f"buffer_load_dwordx4 v2, s[{S_B}:{S_B+3}], s48 offen lds")
        if s < 7: A(f"s_add_u32 s48, s48, {64*3584}")
        for k in range(4):
            kk = 4 * s + k
            A(f"buffer_load_dwordx4 v[{ACT+4*kk}:{ACT+4*kk+3}], v3, s[{S_WS}:{S_WS+3}], s51 offen offset:{1024*k} {sc_ld}")
        if s < 7: A("s_add_u32 s51, s51, 4096")
    A("v_lshrrev_b32 v8, 5, v1\nv_lshlrev_b32 v8, 3, v8\nv_bfe_u32 v9, v1, 2, 2\nv_add_u32 v8, v8, v9\nv_lshlrev_b32 v8, 7, v8   ; (8h+rho)*128")
    A("v_and_b32 v10, 3, v1\nv_lshl_add_u32 v8, v10, 3, v8\nv_bfe_u32 v10, v1, 4, 1\nv_lshl_add_u32 v8, v10, 5, v8")
    A("v_lshrrev_b32 v9, 1, v9\nv_lshl_add_u32 v4, v9, 6, v8\nv_xor_b32 v5, 64, v4")
    A("v_add_u32 v6, 0x10000, v4\nv_add_u32 v7, 0x10000, v5")
    A("v_and_b32 v10, 15, v1\nv_lshlrev_b32 v10, 4, v10\nv_lshrrev_b32 v11, 5, v1\nv_lshl_add_u32 v10, v11, 8, v10")
    A("v_bfe_u32 v11, v1, 4, 1\nv_mul_u32_u24 v11, 57344, v11\nv_add_u32 v10, v10, v11")
    A(f"s_mul_i32 s52, s50, {2*57344}\ns_lshl_b32 s53, s45, 11\ns_add_u32 s52, s52, s53\ns_add_u32 s52, s52, {WS_H}")
    def reads(kk, st):
        for f in range(4):
            va = (4, 6, 5, 7)[f]
            d = WF + 16 * st + 4 * f
            yield f"ds_read_b64_tr_b16 v[{d}:{d+1}], v{va} offset:{kk*2048}"
            yield f"ds_read_b64_tr_b16 v[{d+2}:{d+3}], v{va} offset:{kk*2048+512}"
    for kk in range(32):
        st = kk & 1
        if kk == 0:
            A("s_waitcnt vmcnt(42)\ns_barrier")
            for r in reads(0, 0): A(r)
        nxt = list(reads(kk + 1, st ^ 1)) if kk < 31 else []
        if kk % 4 == 3 and kk < 31:
            s = kk // 4 + 1
            A(f"s_waitcnt vmcnt({42-6*s})\ns_barrier")
        for f in range(4):
            if f == 0:
                for r in nxt[0:2]: A(r)
                A(f"s_waitcnt lgkmcnt({6 + len(nxt[0:2])})")
            else:
                for r in nxt[2*f:2*f+2]: A(r)
                A(f"s_waitcnt lgkmcnt({6 - 2*f + len(nxt[0:2*f+2])})")
            d = WF + 16 * st + 4 * f
            c = f"v[{ACC+16*f}:{ACC+16*f+15}]"
            A(f"v_mfma_f32_32x32x16_bf16 {c}, v[{d}:{d+3}], v[{ACT+4*kk}:{ACT+4*kk+3}], {c if kk else 0}")
    A("; ---- G1: epilogue")
    K1 = -2.0 * 0.7978845608028654 * 1.4426950408889634
    K3 = K1 * 0.044715
    A(f"s_mov_b32 s54, {fhex(K1)}\nv_mov_b32 v12, {fhex(K3)}")
    for blk in range(2):
        g = ACC + 32 * blk; u = g + 16
        for half in range(2):
            idx = range(8 * half, 8 * half + 8)
            T = 128 + 16 * (2 * blk + half)
            for n, i in enumerate(idx): A(f"v_mul_f32 v{T+n}, v{g+i}, v{g+i}")
            for n, i in enumerate(idx): A(f"v_fma_f32 v{T+n}, v{T+n}, v12, s54")
            for n, i in enumerate(idx): A(f"v_mul_f32 v{T+n}, v{T+n}, v{g+i}")
            for n, i in enumerate(idx): A(f"v_exp_f32 v{T+n}, v{T+n}")
            for n, i in enumerate(idx): A(f"v_mul_f32 v{T+8+n}, v{g+i}, v{u+i}")
            for n, i in enumerate(idx): A(f"v_add_f32 v{T+n}, 1.0, v{T+n}")
            for n, i in enumerate(idx): A(f"v_rcp_f32 v{T+n}, v{T+n}")
            for n, i in enumerate(idx): A(f"v_mul_f32 v{T+n}, v{T+n}, v{T+8+n}")
            for q in range(4): A(f"v_cvt_pk_bf16_f32 v{T+8+q}, v{T+2*q}, v{T+2*q+1}")
            A(f"buffer_store_dwordx4 v[{T+8}:{T+11}], v10, s[{S_WS}:{S_WS+3}], s52 offen offset:{1024*blk+512*half} {sc_st}")

def phase_cf(A, sc_ld="", sc_st=""):
    W = S_WAVE
    ZL = 0; TW = 65536; FR = TW + 24576
    D0 = 64; D1 = 128
    PK = 192
    WW = 224
    FC, FS, FN = 8, 16, 24
    OC, OS, ON = 32, 40, 48
    TT = 32
    A("v_lshlrev_b32 v2, 4, v1")
    A(f"s_lshl_b32 s48, s44, 16\ns_lshl_b32 s49, s{W}, 13\ns_add_u32 s50, s48, s49")
    A(f"s_add_u32 s51, s50, {WS_Z}")
    for k in range(8):
        A(f"s_add_u32 m0, s49, {ZL + k*1024}")
        A(f"buffer_load_dwordx4 v2, s[{S_WS}:{S_WS+3}], s51 offen {sc_ld} lds")
        if k < 7: A("s_add_u32 s51, s51, 1024")
    A(f"s_add_u32 s51, s50, {WS_WP}")
    for k in range(8):
        if k == 4: A("s_add_u32 s51, s51, 4096")
        A(f"buffer_load_dwordx4 v[{WW+4*k}:{WW+4*k+3}], v2, s[{S_WS}:{S_WS+3}], s51 offen offset:{(k&3)*1024} {sc_ld}")
    A("v_and_b32 v3, 31, v1\nv_lshrrev_b32 v4, 5, v1\nv_lshlrev_b32 v4, 2, v4")
    A(f"s_and_b32 s52, s{W}, 3\ns_lshl_b32 s52, s52, 3\ns_lshr_b32 s53, s{W}, 2\ns_mul_i32 s53, s53, 1536")
    A("v_add_u32 v5, s52, v4                ; y0 = 8a + 4h")
    for b in range(4):
        A(f"v_add_u32 v6, {b}, v5")
        A(f"v_mad_u32_u24 v{64+b}, v6, v3, s53")
        A(f"v_lshl_add_u32 v{68+b}, v3, 5, v{64+b}")
        A(f"v_lshl_add_u32 v{72+b}, v6, 5, v{64+b}")
    def frag(dst, matsel):
        A(f"s_and_b32 s54, s{W}, 1\ns_lshl_b32 s54, s54, 4            ; 16m")
        A(f"s_lshr_b32 s55, s{W}, 1\ns_and_b32 s55, s55, 1\ns_mul_i32 s55, s55, 48")
        if matsel == 0:
            A(f"s_lshr_b32 s56, s{W}, 2\nv_lshl_add_u32 v7, v3, 1, s56    ; 2x + mat")
        for j in range(8):
            A(f"v_add_u32 v6, s54, v4\nv_add_u32 v6, {8*(j>>2) + (j&3)}, v6    ; k")
            if matsel == 0:
                A(f"v_mad_u32_u24 v{dst+j}, v6, v7, s55")
            else:
                A(f"v_lshl_add_u32 v6, v6, 1, 1\nv_mad_u32_u24 v{dst+j}, v6, v3, s55")
    frag(80, 0)
    frag(88, 1)
    cos_batch(A, range(64, 76), 2047, 1.0 / 2048)
    cos_batch(A, range(80, 96), 63, 1.0 / 64)
    A(f"s_lshl_b32 s52, s52, 8\ns_lshr_b32 s53, s{W}, 2\ns_lshl_b32 s53, s53, 10\ns_add_u32 s52, s52, s53\ns_add_u32 s52, s52, {TW}")
    A("v_add_u32 v5, s52, v2")
    for t in range(3):
        A(f"ds_write_b128 v5, v[{64+4*t}:{67+4*t}] offset:{8192*t}")
    for q in range(8):
        A(f"v_cvt_pk_bf16_f32 v{80+q}, v{80+2*q}, v{81+2*q}")
    A(f"s_lshl_b32 s52, s{W}, 10\ns_add_u32 s52, s52, {FR}\nv_add_u32 v5, s52, v2")
    A("ds_write_b128 v5, v[80:83]")
    Lskip = A.label("L_cf_skip")
    A(f"s_cmp_ge_u32 s{W}, 4\ns_cbranch_scc1 {Lskip}")
    A("ds_write_b128 v5, v[84:87] offset:8192")
    A(f"{Lskip}:")
    A(f"v_add_u32 v56, {TW}, v2")
    A(f"v_add_u32 v57, {FR}, v2")
    A(f"s_lshl_b32 s52, s{W}, 1\nv_and_b32 v6, 15, v1\nv_xor_b32 v6, s52, v6\nv_lshlrev_b32 v6, 4, v6")
    A("v_lshl_add_u32 v6, v3, 10, v6\nv_lshl_add_u32 v58, v4, 6, v6\nv_xor_b32 v59, 16, v58")
    A("s_waitcnt vmcnt(8) lgkmcnt(0)\ns_barrier")
    def load_frags(C, S, N, mat):
        for m in range(2):
            A(f"ds_read_b128 v[{C+4*m}:{C+4*m+3}], v57 offset:{(mat*4+m)*1024}")
            A(f"ds_read_b128 v[{S+4*m}:{S+4*m+3}], v57 offset:{(mat*4+2+m)*1024}")
    def neg_frags(S, N):
        for q in range(8): A(f"v_xor_b32 v{N+q}, 0x80008000, v{S+q}")
    def pk(blk, c, m): return PK + 16 * blk + 8 * c + 4 * m
    def acc(D, c, blk): return D + 32 * c + 16 * blk
    def cstage(D, blk, data_is_A, C, Sre, Sim):
        for (c, seq) in ((0, ((0, C), (1, Sre))), (1, ((1, C), (0, Sim)))):
            d = acc(D, c, blk); first = True
            for (cc, K) in seq:
                for m in range(2):
                    dat = f"v[{pk(blk,cc,m)}:{pk(blk,cc,m)+3}]"; con = f"v[{K+4*m}:{K+4*m+3}]"
                    a, b = (dat, con) if data_is_A else (con, dat)
                    A(f"v_mfma_f32_32x32x16_bf16 v[{d}:{d+15}], {a}, {b}, {0 if first else f'v[{d}:{d+15}]'}")
                    first = False
    def pack(D):
        for blk in range(2):
            for c in range(2):
                for q in range(8):
                    s = acc(D, c, blk) + 2 * q
                    A(f"v_cvt_pk_bf16_f32 v{pk(blk,c,0)+q}, v{s}, v{s+1}")
    load_frags(FC, FS, FN, 0)
    for mu in range(2):
        for c in range(2):
            for m in range(2):
                A(f"ds_read_b128 v[{pk(mu,c,m)}:{pk(mu,c,m)+3}], v{58+c} offset:{ZL + mu*32768 + m*512}")
    A("s_waitcnt lgkmcnt(8)")
    neg_frags(FS, FN)
    A("s_waitcnt lgkmcnt(4)")
    cstage(D0, 0, True, FC, FS, FN)
    A("s_waitcnt lgkmcnt(0)")
    cstage(D0, 1, True, FC, FS, FN)
    def tw_read(a, tabs, slot):
        for n, t in enumerate(tabs):
            for comp in range(2):
                d = TT + 16 * slot + 8 * n + 4 * comp
                A(f"ds_read_b128 v[{d}:{d+3}], v56 offset:{t*8192 + a*2048 + comp*1024}")
    def tslot(slot): return TT if slot == 0 else PK
    def tw_read2(a, tabs, slot):
        for n, t in enumerate(tabs):
            for comp in range(2):
                d = tslot(slot) + 8 * n + 4 * comp
                A(f"ds_read_b128 v[{d}:{d+3}], v56 offset:{t*8192 + a*2048 + comp*1024}")
    tw_read2(0, (0, 1), 0)
    for a in range(4):
        if a < 3: tw_read2(a + 1, (0, 1), (a + 1) & 1) if not (a == 0) else None
        if a == 0:
            tw_read2(1, (0, 1), 1)
        A(f"s_waitcnt lgkmcnt({4 if a < 3 else 0})")
        t = tslot(a & 1)
        for b in range(4):
            i = 4 * a + b
            r0, i0, r1, i1 = acc(D0,0,0)+i, acc(D0,1,0)+i, acc(D0,0,1)+i, acc(D0,1,1)+i
            ur, ui, vr_, vi = acc(D1,0,0)+i, acc(D1,1,0)+i, acc(D1,0,1)+i, acc(D1,1,1)+i
            c0, s0, c1, s1 = t+b, t+4+b, t+8+b, t+12+b
            A(f"v_mul_f32 v{vr_}, v{r0}, v{c0}\nv_mul_f32 v{vi}, v{i0}, v{c0}")
            A(f"v_fmac_f32 v{vr_}, v{i0}, v{s0}\nv_fma_f32 v{vi}, -v{r0}, v{s0}, v{vi}")
            A(f"v_fma_f32 v{ur}, v{r1}, v{c1}, v{vr_}\nv_fma_f32 v{ui}, v{i1}, v{c1}, v{vi}")
            A(f"v_fmac_f32 v{ur}, v{i1}, v{s1}\nv_fma_f32 v{ui}, -v{r1}, v{s1}, v{ui}")
            A(f"v_fma_f32 v{vr_}, v{vr_}, 2.0, -v{ur}\nv_fma_f32 v{vi}, v{vi}, 2.0, -v{ui}")
    load_frags(OC, OS, ON, 1)
    pack(D1)
    cstage(D0, 0, False, FC, FS, FN)
    A("s_waitcnt lgkmcnt(0)")
    neg_frags(OS, ON)
    cstage(D0, 1, False, OC, OS, ON)
    A("s_waitcnt vmcnt(0)")
    for e in range(2):
        for i in range(16):
            w = WW + 16 * e + i
            xr, xi = acc(D0,0,e)+i, acc(D0,1,e)+i
            yr, yi = acc(D1,0,e)+i, acc(D1,1,e)+i
            A(f"v_lshlrev_b32 v60, 16, v{w}\nv_and_b32 v{w}, 0xffff0000, v{w}")
            A(f"v_mul_f32 v{yr}, v{xr}, v60\nv_mul_f32 v{yi}, v{xi}, v60")
            A(f"v_fma_f32 v{yr}, -v{xi}, v{w}, v{yr}\nv_fmac_f32 v{yi}, v{xr}, v{w}")
    load_frags(OC, OS, ON, 2)
    pack(D1)
    cstage(D0, 0, True, FC, FN, FS)
    A("s_waitcnt lgkmcnt(0)")
    neg_frags(OS, ON)
    cstage(D0, 1, True, OC, ON, OS)
    def tslot2(slot): return WW + 16 * slot
    def tw_read3(a, tabs, slot):
        for n, t in enumerate(tabs):
            for comp in range(2):
                d = tslot2(slot) + 8 * n + 4 * comp
                A(f"ds_read_b128 v[{d}:{d+3}], v56 offset:{t*8192 + a*2048 + comp*1024}")
    tw_read3(0, (0, 2), 0)
    for a in range(4):
        if a < 3: tw_read3(a + 1, (0, 2), (a + 1) & 1)
        A(f"s_waitcnt lgkmcnt({4 if a < 3 else 0})")
        t = tslot2(a & 1)
        for b in range(4):
            i = 4 * a + b
            er, ei, o_r, oi = acc(D0,0,0)+i, acc(D0,1,0)+i, acc(D0,0,1)+i, acc(D0,1,1)+i
            ur, ui, vr_, vi = acc(D1,0,0)+i, acc(D1,1,0)+i, acc(D1,0,1)+i, acc(D1,1,1)+i
            c0, s0, c1, s1 = t+b, t+4+b, t+8+b, t+12+b
            A(f"v_add_f32 v60, v{er}, v{o_r}\nv_add_f32 v61, v{ei}, v{oi}\nv_sub_f32 v62, v{er}, v{o_r}\nv_sub_f32 v63, v{ei}, v{oi}")
            A(f"v_mul_f32 v{ur}, v60, v{c0}\nv_mul_f32 v{ui}, v61, v{c0}\nv_mul_f32 v{vr_}, v62, v{c1}\nv_mul_f32 v{vi}, v63, v{c1}")
            A(f"v_fma_f32 v{ur}, -v61, v{s0}, v{ur}\nv_fmac_f32 v{ui}, v60, v{s0}")
            A(f"v_fma_f32 v{vr_}, -v63, v{s1}, v{vr_}\nv_fmac_f32 v{vi}, v62, v{s1}")
    pack(D1)
    cstage(D0, 0, False, FC, FN, FS)
    cstage(D0, 1, False, FC, FN, FS)
    A(f"s_and_b32 s52, s{W}, 1\ns_lshl_b32 s52, s52, 2\nv_lshrrev_b32 v5, 5, v1\nv_or_b32 v5, s52, v5")
    A("v_and_b32 v6, 7, v1\nv_xor_b32 v5, v5, v6\nv_lshlrev_b32 v5, 4, v5\nv_lshl_add_u32 v5, v3, 10, v5")
    A(f"s_lshr_b32 s52, s{W}, 1\ns_lshl_b32 s52, s52, 7\nv_add_u32 v58, s52, v5\nv_xor_b32 v59, 32, v58")
    A("v_bfe_u32 v5, v1, 2, 1\nv_lshlrev_b32 v5, 2, v5\nv_bfe_u32 v6, v1, 4, 1\nv_lshl_add_u32 v5, v6, 1, v5\nv_bfe_u32 v6, v1, 1, 1\nv_add_u32 v5, v5, v6")
    A(f"v_xor_b32 v5, s{W}, v5\nv_lshlrev_b32 v5, 4, v5\nv_and_b32 v6, 1, v1\nv_lshl_add_u32 v5, v6, 3, v5")
    A("v_bfe_u32 v6, v1, 3, 1\nv_lshl_add_u32 v5, v6, 7, v5\nv_lshrrev_b32 v6, 5, v1\nv_lshl_add_u32 v5, v6, 9, v5")
    A(f"s_lshl_b32 s52, s{W}, 10\nv_add_u32 v5, s52, v5")
    A("v_and_b32 v6, 15, v1\nv_lshlrev_b32 v6, 4, v6\nv_lshrrev_b32 v7, 5, v1\nv_lshl_add_u32 v6, v7, 8, v6")
    A("v_bfe_u32 v7, v1, 4, 1\nv_lshl_add_u32 v6, v7, 14, v6")
    A(f"s_lshl_b32 s52, s{W}, 15\ns_lshl_b32 s53, s44, 9\ns_add_u32 s52, s52, s53\ns_add_u32 s52, s52, {WS_ZP}")
    pack(D0)
    A("s_barrier")
    for mu in range(2):
        for c in range(2):
            for m in range(2):
                A(f"ds_write_b128 v{58+m}, v[{pk(mu,c,m)}:{pk(mu,c,m)+3}] offset:{ZL + mu*32768 + c*512}")
    A("s_waitcnt lgkmcnt(0)\ns_barrier")
    for n in range(8):
        A(f"ds_read_b64_tr_b16 v[{64+4*n}:{65+4*n}], v5 offset:{ZL + n*8192}")
        A(f"ds_read_b64_tr_b16 v[{66+4*n}:{67+4*n}], v5 offset:{ZL + n*8192 + 256}")
    for n in range(8):
        A(f"s_waitcnt lgkmcnt({14-2*n})")
        A(f"buffer_store_dwordx4 v[{64+4*n}:{67+4*n}], v6, s[{S_WS}:{S_WS+3}], s52 offen {sc_st}")
        if n < 7: A("s_add_u32 s52, s52, 0x40000")

def g2_map(A):
    A(f"s_and_b32 s47, s{S_WG}, 7\ns_lshr_b32 s46, s{S_WG}, 3")
    A("s_lshl_b32 s44, s47, 2\ns_and_b32 s48, s46, 3\ns_add_u32 s44, s44, s48    ; rt")
    A("s_lshr_b32 s45, s46, 2                ; ct")

def phase_g2(A, sc_ld=""):
    W = S_WAVE
    ACT = 64
    WF = 128
    ACC = 16; ACC2 = 32
    NS = 9
    srd(A, S_X, P_X, 2097152)
    srd(A, S_A, P_WD, 1792 * 1024)
    srd(A, S_B, P_OUT, 2097152)
    A(f"s_and_b32 s48, s{W}, 3              ; mq")
    A(f"s_lshr_b32 s49, s{W}, 2             ; kh")
    A("s_lshl_b32 s50, s44, 2\ns_add_u32 s50, s50, s48       ; rb16")
    A("v_lshrrev_b32 v2, 3, v1\nv_bfe_u32 v3, v1, 4, 2\nv_lshlrev_b32 v3, 1, v3\nv_and_b32 v4, 7, v1\nv_xor_b32 v3, v3, v4")
    A("v_lshlrev_b32 v2, 10, v2\nv_lshl_add_u32 v2, v3, 4, v2")
    A("v_lshlrev_b32 v3, 4, v1")
    A(f"s_mul_i32 s51, s49, {1152*1024}\ns_lshl_b32 s52, s48, 15\ns_add_u32 s51, s51, s52\ns_lshl_b32 s53, s45, 7\ns_add_u32 s51, s51, s53   ; W soffset")
    A(f"s_add_u32 s60, s52, s53\ns_add_u32 s60, s60, {WS_G}")
    A(f"s_mul_i32 s54, s50, 57344\ns_mul_i32 s55, s49, {36*1024}\ns_add_u32 s54, s54, s55\ns_add_u32 s54, s54, {WS_H}")
    A(f"s_lshl_b32 s61, s50, 14\ns_add_u32 s61, s61, {WS_ZP}")
    A("s_lshl_b32 s55, s49, 14\ns_lshl_b32 s56, s48, 12\ns_add_u32 s55, s55, s56")
    A("v_and_b32 v4, 15, v1\ns_and_b32 s56, s50, 1\ns_lshl_b32 s56, s56, 4\nv_add_u32 v4, s56, v4     ; p")
    A("v_and_b32 v5, 0x13, v4\nv_bfe_u32 v6, v4, 2, 1\nv_lshl_or_b32 v5, v6, 3, v5\nv_bfe_u32 v6, v4, 3, 1\nv_lshl_or_b32 v5, v6, 2, v5   ; r1")
    A("v_lshlrev_b32 v5, 16, v5\nv_lshrrev_b32 v6, 4, v1\nv_lshl_add_u32 v5, v6, 3, v5     ; r1*64*1024 + g*8")
    A("s_lshr_b32 s56, s50, 1\ns_lshl_b32 s56, s56, 10\ns_add_u32 s56, s56, s53\ns_lshl_b32 s57, s49, 6\ns_add_u32 s56, s56, s57")
    A(f"buffer_load_dwordx2 v[8:9], v5, s[{S_X}:{S_X+3}], s56 offen")
    A(f"buffer_load_dwordx2 v[10:11], v5, s[{S_X}:{S_X+3}], s56 offen offset:32")
    def issue(n):
        if n == 5:
            L = A.label("L_g2_sw")
            A(f"s_cmp_eq_u32 s49, 0\ns_cbranch_scc1 {L}")
            A(f"s_mov_b32 s{S_A}, s{S_WS}\ns_mov_b32 s{S_A+1}, s{S_WS+1}\ns_mov_b32 s{S_A+2}, s{S_WS+2}")
            A("s_mov_b32 s51, s60\ns_mov_b32 s54, s61")
            A(f"{L}:")
        slot = n & 3
        for k in range(4):
            A(f"s_add_u32 m0, s55, {slot*32768 + k*1024}")
            A(f"buffer_load_dwordx4 v2, s[{S_A}:{S_A+3}], s51 offen {sc_ld} lds")
            A(f"s_add_u32 s51, s51, {8192 if k < 3 else 131072 - 3*8192}")
        for k in range(4):
            d = ACT + 16 * slot + 4 * k
            A(f"buffer_load_dwordx4 v[{d}:{d+3}], v3, s[{S_WS}:{S_WS+3}], s54 offen offset:{1024*k} {sc_ld}")
        A("s_add_u32 s54, s54, 4096")
    for n in range(3): issue(n)
    A("v_lshrrev_b32 v6, 5, v1\nv_lshlrev_b32 v6, 4, v6\nv_bfe_u32 v7, v1, 4, 1\nv_lshl_add_u32 v6, v7, 2, v6\nv_bfe_u32 v4, v1, 2, 2\nv_add_u32 v6, v6, v4   ; 16m+4h+rho")
    A("v_lshlrev_b32 v6, 7, v6\nv_lshrrev_b32 v4, 1, v4\nv_lshl_or_b32 v4, v7, 1, v4      ; sw")
    A("v_lshl_add_u32 v6, v4, 5, v6\nv_and_b32 v4, 3, v1\nv_lshl_add_u32 v6, v4, 3, v6")
    A("s_lshl_b32 s57, s49, 14\nv_add_u32 v12, s57, v6")
    for nb in range(1, 4): A(f"v_xor_b32 v{12+nb}, {32*nb}, v12")
    for nb in range(4): A(f"v_add_u32 v{160+nb}, 0x10000, v{12+nb}")
    def reads(n, k, st):
        slot = n & 3
        va = 12 if slot < 2 else 160
        off = (slot & 1) * 32768 + k * 4096
        r = []
        for nb in range(4):
            d = WF + 16 * st + 4 * nb
            r.append(f"ds_read_b64_tr_b16 v[{d}:{d+1}], v{va+nb} offset:{off}")
            r.append(f"ds_read_b64_tr_b16 v[{d+2}:{d+3}], v{va+nb} offset:{off+1024}")
        return r
    for i in range(16): A(f"v_mov_b32 v{ACC+i}, 0")
    for n in range(NS):
        infl = min(NS - 1 - n, 2) * 8
        A(f"s_waitcnt vmcnt({infl})\ns_barrier")
        for r in reads(n, 0, 0): A(r)
        if n + 3 < NS: issue(n + 3)
        if n == 5:
            L = A.label("L_g2_acc")
            A(f"s_cmp_eq_u32 s49, 0\ns_cbranch_scc1 {L}")
            for i in range(16): A(f"v_mov_b32 v{ACC2+i}, v{ACC+i}\nv_mov_b32 v{ACC+i}, 0")
            A(f"{L}:")
        for k in range(4):
            st = k & 1
            nxt = reads(n, k + 1, st ^ 1) if k < 3 else []
            for nb in range(4):
                for r in nxt[2*nb:2*nb+2]: A(r)
                A(f"s_waitcnt lgkmcnt({6 - 2*nb + len(nxt[0:2*nb+2])})")
                d = WF + 16 * st + 4 * nb
                a = ACT + 16 * (n & 3) + 4 * k
                c = f"v[{ACC+4*nb}:{ACC+4*nb+3}]"
                A(f"v_mfma_f32_16x16x32_bf16 {c}, v[{d}:{d+3}], v[{a}:{a+3}], {c}")
    EX = 32768
    A(f"s_mul_i32 s57, s48, 6144\ns_add_u32 s57, s57, {EX}\nv_add_u32 v6, s57, v3")
    L1 = A.label("L_g2_k1"); L2 = A.label("L_g2_j")
    A(f"s_cmp_eq_u32 s49, 1\ns_cbranch_scc1 {L1}")
    A(f"ds_write_b128 v6, v[{ACC+8}:{ACC+11}]\nds_write_b128 v6, v[{ACC+12}:{ACC+15}] offset:1024")
    A("s_waitcnt lgkmcnt(0)\ns_barrier")
    A(f"ds_read_b128 v[48:51], v6 offset:2048\nds_read_b128 v[52:55], v6 offset:3072")
    A(f"ds_read_b128 v[56:59], v6 offset:4096\nds_read_b128 v[60:63], v6 offset:5120")
    A("s_waitcnt lgkmcnt(2)")
    for i in range(8): A(f"v_add_f32 v{48+i}, v{48+i}, v{ACC+i}")
    A(f"s_waitcnt lgkmcnt(0)\ns_branch {L2}")
    A(f"{L1}:")
    A(f"ds_write_b128 v6, v[{ACC2}:{ACC2+3}] offset:2048\nds_write_b128 v6, v[{ACC2+4}:{ACC2+7}] offset:3072")
    A(f"ds_write_b128 v6, v[{ACC}:{ACC+3}] offset:4096\nds_write_b128 v6, v[{ACC+4}:{ACC+7}] offset:5120")
    A("s_waitcnt lgkmcnt(0)\ns_barrier")
    A(f"ds_read_b128 v[48:51], v6\nds_read_b128 v[52:55], v6 offset:1024")
    for i in range(8): A(f"v_mov_b32 v{56+i}, v{ACC+8+i}")
    A("s_waitcnt lgkmcnt(0)")
    for i in range(8): A(f"v_add_f32 v{48+i}, v{48+i}, v{ACC2+8+i}")
    A(f"{L2}:")
    for i in range(8): A(f"v_mul_f32 v{64+i}, {fhex(-1.4426950408889634)}, v{48+i}")
    for i in range(8): A(f"v_exp_f32 v{64+i}, v{64+i}")
    for i in range(8): A(f"v_mul_f32 v{56+i}, v{56+i}, v{48+i}")
    for i in range(8): A(f"v_add_f32 v{64+i}, 1.0, v{64+i}")
    for i in range(8): A(f"v_rcp_f32 v{64+i}, v{64+i}")
    for q in range(4): A(f"v_lshlrev_b32 v{72+2*q}, 16, v{8+q}\nv_and_b32 v{73+2*q}, 0xffff0000, v{8+q}")
    for i in range(8): A(f"v_fmac_f32 v{72+i}, v{56+i}, v{64+i}")
    for q in range(4): A(f"v_cvt_pk_bf16_f32 v{8+q}, v{72+2*q}, v{73+2*q}")
    A(f"buffer_store_dwordx2 v[8:9], v5, s[{S_B}:{S_B+3}], s56 offen")
    A(f"buffer_store_dwordx2 v[10:11], v5, s[{S_B}:{S_B+3}], s56 offen offset:32")
```

```python
import sys
from asmgen import *
from phases import *
import hazard
HDR = open("recurrent_scan__spectral_gfnet__geglu_ffn__prompt.s.ref").read().split("; Override")[0]
def gen(extra_launch=0):
    A = Asm()
    A(HDR.rstrip())
    A("; @launch kernel=p0_kernel grid=(256,1,1) block=(512,1,1) lds=16896")
    A("; @launch kernel=g1_kernel grid=(256,1,1) block=(512,1,1) lds=131072")
    A("; @launch kernel=g2_kernel grid=(256,1,1) block=(512,1,1) lds=131072")
    for i in range(extra_launch):
        A("; @launch kernel=nop_kernel grid=(1,1,1) block=(64,1,1) lds=0")
    A('.amdgcn_target "amdgcn-amd-amdhsa--gfx950"\n.text')
    kernel_begin(A, "p0_kernel")
    prologue(A, 256, "L_p0_done")
    phase_p0(A)
    A("L_p0_done:\ns_endpgm")
    kernel_begin(A, "g1_kernel")
    prologue(A, 256, "L_g1_done")
    g1_map(A)
    A("s_cmp_ge_u32 s46, 28\ns_cbranch_scc1 L_cf")
    phase_g1(A)
    A("s_endpgm\nL_cf:")
    A("s_lshl_b32 s44, s47, 2\ns_add_u32 s44, s44, s46\ns_sub_u32 s44, s44, 28    ; cg")
    phase_cf(A)
    A("L_g1_done:\ns_endpgm")
    kernel_begin(A, "g2_kernel")
    prologue(A, 256, "L_g2_done")
    g2_map(A)
    phase_g2(A)
    A("L_g2_done:\ns_endpgm")
    if extra_launch:
        kernel_begin(A, "nop_kernel")
        A("s_endpgm")
    A('.section .rodata,"a"')
    for (n, v) in (("p0_kernel", 104), ("g1_kernel", 256), ("g2_kernel", 168)) + ((("nop_kernel", 8),) if extra_launch else ()):
        A(".p2align 6")
        A(descriptor(n, v, 96, v))
    return hazard.fix(A.text(), verbose=True)
if __name__ == "__main__":
    out = sys.argv[1] if len(sys.argv) > 1 else "k3.s"
    open(out, "w").write(gen(int(sys.argv[2]) if len(sys.argv) > 2 else 0))
```

```python
import struct, sys
from asmgen import *
import hazard

WS_FL = 0x0
FL_A = 0x20000
FL_B = 0x9000
FL_H = 0x11000
FL_C = 0x19000
WS_XN = 0x0100000
WS_Z  = 0x0300000
WS_WP = 0x0500000
WS_G  = 0x0700000
WS_ZP = 0x0800000
WS_H  = 0x0A00000
WS_DIAG = 0x1200000
WS_SIZE = 0x1400000
TAGK = 0x3C6EF35F

def fhex(x): return "0x%08x" % struct.unpack("<I", struct.pack("<f", x))[0]
S_WS, S_X, S_A, S_B = 4, 8, 12, 16
S_WAVE, S_WG, S_TAG, S_SLOT = 20, 21, 22, 23
S_PTR = 24
P_X, P_WR, P_WI, P_BX, P_WG, P_WU, P_WD, P_OUT, P_DBG, P_WS = [S_PTR + 2 * i for i in range(10)]
S_RT, S_CT, S_WOFF, S_RDY, S_XCD, S_SPIN = 64, 65, 66, 67, 68, 69
S_WLDS = 3
WSR = f"s[{S_WS}:{S_WS+3}]"; XR = f"s[{S_X}:{S_X+3}]"; AR = f"s[{S_A}:{S_A+3}]"; BR = f"s[{S_B}:{S_B+3}]"
LDS_P0 = 131072

class Cfg:
    diag = False
    g1map = "col"
    g2map = "48"
    nt_x = "nt"; nt_x2 = "nt"; nt_w = "nt"; nt_g1w = "nt"
    E1, E2 = 2, 3
    D = 8
    xst = 6
    la2 = 2
    dbg = ""
    sc_act = "sc1"
    rot2 = 1
    nepi = 2
    pf_start, pf_step = 24, 1
    stamps = "x,xnack,p0end,rdy1,go,main,epi,flag2,hrdy,st0,st4"
C = Cfg()

def stamp(A, name):
    if not C.diag: return
    names = ["entry"] + C.stamps.split(",") + ["end"]
    assert len(names) <= 14
    if name in names:
        n = names.index(name)
        A(f"s_memtime s[{74+2*n}:{75+2*n}]")
def diag_end(A):
    if not C.diag: return
    A("s_waitcnt vmcnt(0)")
    stamp(A, "end")
    A("s_memrealtime s[72:73]\ns_waitcnt lgkmcnt(0)")
    A(f"s_lshl_b32 s3, s{S_WG}, 10\ns_lshl_b32 s44, s{S_WAVE}, 7\ns_add_u32 s3, s3, s44\ns_add_u32 s3, s3, {WS_DIAG}")
    A("v_mov_b32 v2, 0")
    for i, sreg in enumerate([70, 72, S_RDY] + [74 + 2*k for k in range(14)]):
        A(f"v_mov_b32 v3, s{sreg}\nbuffer_store_dword v3, v2, {WSR}, s3 offen offset:{4*i}")

def srd(A, s, ptr, nbytes):
    A(f"s_mov_b32 s{s}, s{ptr}\ns_and_b32 s{s+1}, s{ptr+1}, 0xffff\ns_mov_b32 s{s+2}, {nbytes}\ns_mov_b32 s{s+3}, 0x00020000")
def cos_batch(A, regs, mask, scale):
    for r in regs: A(f"v_and_b32 v{r}, {mask}, v{r}")
    for r in regs: A(f"v_cvt_f32_u32 v{r}, v{r}")
    for r in regs: A(f"v_mul_f32 v{r}, {fhex(scale)}, v{r}")
    for r in regs: A(f"v_cos_f32 v{r}, v{r}")
def wave_sum(A, v, sdst):
    for mod in ("row_shr:1 row_mask:0xf", "row_shr:2 row_mask:0xf", "row_shr:4 row_mask:0xf", "row_shr:8 row_mask:0xf",
                "row_bcast:15 row_mask:0xa", "row_bcast:31 row_mask:0xc"):
        A(f"v_add_f32_dpp v{v}, v{v}, v{v} {mod} bank_mask:0xf")
    A(f"v_readlane_b32 s{sdst}, v{v}, 63")
def set_flag(A, soff_expr_sreg, vt=3, anywave=False):
    L = A.label("L_fl")
    if not anywave: A(f"s_cmp_lg_u32 s{S_WAVE}, 0\ns_cbranch_scc1 {L}")
    A(f"v_mov_b32 v{vt}, s{S_TAG}\nv_mov_b32 v{vt+1}, 0\ns_mov_b64 exec, 1")
    A(f"buffer_store_dword v{vt}, v{vt+1}, {WSR}, s{soff_expr_sreg} offen sc1")
    A("s_mov_b64 exec, -1")
    A(f"{L}:")
def poll(A, groups, vt, once=False):
    L = A.label("L_poll"); Lx = A.label("L_pollx")
    if not once: A(f"s_mov_b32 s{S_SPIN}, 0\n{L}:")
    for n, (va, so) in enumerate(groups):
        A(f"buffer_load_dword v{vt+n}, v{va}, {WSR}, {so} offen sc1")
    A("s_waitcnt vmcnt(0)")
    for n in range(1, len(groups)):
        A(f"v_xor_b32 v{vt+n}, s{S_TAG}, v{vt+n}")
    A(f"v_xor_b32 v{vt}, s{S_TAG}, v{vt}")
    for n in range(1, len(groups)):
        A(f"v_or_b32 v{vt}, v{vt}, v{vt+n}")
    A(f"v_cmp_ne_u32 vcc, 0, v{vt}")
    if once:
        A(f"s_cmp_eq_u64 vcc, 0\ns_cselect_b32 s{S_RDY}, 1, 0")
    else:
        A(f"s_cmp_eq_u64 vcc, 0\ns_cbranch_scc1 {Lx}")
        A(f"s_add_u32 s{S_SPIN}, s{S_SPIN}, 1\ns_cmp_lt_u32 s{S_SPIN}, 0x200000\ns_cbranch_scc1 {L}")
        A(f"{Lx}:")

V_WDMA = 31
PERM = [0, 1, 4, 5, 2, 3, 6, 7]
S_ST0 = 2
def g1_stage(A, j, sreg):
    A(f"s_add_u32 s{sreg}, s{S_ST0}, {PERM[j]}\ns_and_b32 s{sreg}, s{sreg}, 7")
def g1w_dma(A, j, both=False):
    g1_stage(A, j, 60)
    A(f"s_lshl_b32 s61, s60, 13\ns_mul_i32 s60, s60, {64*3584}")
    A(f"s_add_u32 s60, s60, s{S_WOFF}\ns_add_u32 s61, s61, s{S_WLDS}")
    for extra in ((0, 4) if both else (0,)):
        if extra: A(f"s_sub_u32 s60, s60, {4*8*3584}\ns_sub_u32 s61, s61, 4096")
        A("s_mov_b32 m0, s61")
        A(f"buffer_load_dwordx4 v{V_WDMA}, {AR}, s60 offen {C.nt_g1w} lds")
        A("s_add_u32 m0, s61, 0x10000")
        A(f"buffer_load_dwordx4 v{V_WDMA}, {BR}, s60 offen {C.nt_g1w} lds")

def prologue(A):
    if C.diag:
        for k in range(14): A(f"s_mov_b32 s{74+2*k}, 0")
        A("s_memrealtime s[70:71]"); stamp(A, "entry")
    A("s_cmp_ge_u32 s2, 256\ns_cbranch_scc1 L_done")
    A(f"s_load_dwordx16 s[{S_PTR}:{S_PTR+15}], s[0:1], 0")
    A(f"s_load_dwordx4 s[{S_PTR+16}:{S_PTR+19}], s[0:1], 64")
    A("v_lshrrev_b32 v2, 6, v0\nv_and_b32 v1, 63, v0")
    A(f"v_readfirstlane_b32 s{S_WAVE}, v2")
    A(f"s_mov_b32 s{S_WG}, s2\ns_and_b32 s{S_XCD}, s2, 7\ns_lshr_b32 s{S_SLOT}, s2, 3\ns_mov_b32 s{S_RDY}, 0")
    if C.g1map == "col":
        A(f"s_mul_i32 s44, s{S_XCD}, 28\ns_add_u32 s44, s44, s{S_SLOT}\ns_and_b32 s{S_RT}, s44, 7\ns_lshr_b32 s{S_CT}, s44, 3")
    else:
        A(f"s_and_b32 s44, s{S_XCD}, 1\ns_lshl_b32 s44, s44, 2\ns_and_b32 s45, s{S_SLOT}, 3\ns_add_u32 s{S_RT}, s44, s45")
        A(f"s_lshr_b32 s44, s{S_XCD}, 1\ns_mul_i32 s44, s44, 7\ns_lshr_b32 s45, s{S_SLOT}, 2\ns_add_u32 s{S_CT}, s44, s45")
    A(f"s_lshl_b32 s44, s{S_CT}, 1\ns_add_u32 s44, s44, s{S_RT}\ns_and_b32 s{S_ST0}, s44, 7")
    W = S_WAVE
    A(f"s_lshr_b32 s44, s{S_WG}, 2          ; r2")
    A(f"s_and_b32 s45, s{S_WG}, 3           ; mh")
    A(f"s_lshr_b32 s46, s45, 1\ns_lshl_b32 s46, s46, 4")
    A(f"s_and_b32 s47, s45, 1\ns_lshl_b32 s47, s47, 2\ns_add_u32 s46, s46, s47")
    A(f"s_lshr_b32 s47, s{W}, 2\ns_lshl_b32 s47, s47, 3\ns_add_u32 s46, s46, s47")
    A(f"s_and_b32 s47, s{W}, 3\ns_add_u32 s46, s46, s47     ; r1")
    A("s_lshl_b32 s46, s46, 6\ns_add_u32 s46, s46, s44\ns_lshl_b32 s46, s46, 10")
    A("v_lshlrev_b32 v2, 4, v1")
    A("s_waitcnt lgkmcnt(0)")
    srd(A, S_X, P_X, 2097152)
    A(f"buffer_load_dwordx4 v[4:7], v2, {XR}, s46 offen {C.nt_x}")
    A(f"s_load_dword s{S_TAG}, s[{P_WS}:{P_WS+1}], 0")
    srd(A, S_WS, P_WS, WS_SIZE)

def phase_p0(A):
    W = S_WAVE
    XNL = LDS_P0; ZL = LDS_P0 + 8704; WL = ZL + 8192
    B1RE, B1IM, A2RE, A2IM, S2RE, S2IM, TWC, TWS = 64, 68, 72, 76, 80, 84, 88, 92
    T = 32
    A(f"s_cmp_lt_u32 s{W}, 6\ns_cselect_b32 s{S_X}, s{P_WR}, s{P_WI}\ns_cselect_b32 s{S_X+1}, s{P_WR+1}, s{P_WI+1}")
    A(f"s_and_b32 s{S_X+1}, s{S_X+1}, 0xffff\ns_mov_b32 s{S_X+2}, {2048*514}")
    A(f"s_mul_i32 s51, s{S_WG}, 4112\ns_and_b32 s48, s{W}, 1\ns_lshl_b32 s48, s48, 11\ns_add_u32 s49, s51, s48\ns_add_u32 s51, s51, 4096")
    A(f"s_bfe_u32 s50, s{W}, 0x10001\ns_mul_i32 s50, s50, 4160\ns_add_u32 s50, s50, {WL}")
    Lw2 = A.label("L_p0_w2")
    A(f"s_cmp_lt_u32 s{W}, 4\ns_cbranch_scc1 {Lw2}")
    A(f"s_add_u32 m0, s50, s48\nbuffer_load_dwordx4 v2, {XR}, s49 offen {C.nt_w} lds")
    A(f"buffer_load_dwordx4 v2, {XR}, s49 offen offset:1024 {C.nt_w} lds")
    A("s_add_u32 m0, s50, 4096\ns_mov_b64 exec, 1")
    A(f"buffer_load_dwordx4 v2, {XR}, s51 offen {C.nt_w} lds")
    A(f"s_mov_b64 exec, -1\n{Lw2}:")
    srd(A, S_A, P_WG, 512 * 3584)
    srd(A, S_B, P_WU, 512 * 3584)
    A("v_lshrrev_b32 v8, 3, v1")
    A("v_bfe_u32 v9, v1, 4, 1\nv_lshlrev_b32 v9, 2, v9\nv_and_b32 v10, 7, v1\nv_xor_b32 v9, v9, v10")
    A(f"v_mul_u32_u24 v8, 3584, v8\nv_lshl_add_u32 v{V_WDMA}, v9, 4, v8")
    A(f"s_mul_i32 s47, s{W}, {8*3584}\ns_lshl_b32 s52, s{S_CT}, 7\ns_add_u32 s{S_WOFF}, s47, s52\ns_lshl_b32 s{S_WLDS}, s{W}, 10")
    M0 = "s[62:63]"
    A("v_and_b32 v30, 15, v1\nv_lshrrev_b32 v29, 4, v1")
    A(f"v_cmp_eq_u32 {M0}, 0, v30\nv_cmp_gt_u32 vcc, 8, v30")
    A("v_cvt_f32_u32 v26, v30\nv_cvt_f32_u32 v27, v29\nv_mul_f32 v27, 4.0, v27      ; k, 4g")
    Lc = A.label("L_c"); cases = [A.label("L_c") for _ in range(7)]
    A("s_mov_b32 s47, 0")
    for n in range(1, 7):
        A(f"s_cmp_eq_u32 s{W}, {n}\ns_cbranch_scc1 {cases[n]}")
    A(f"; wave 0 (and 7): B1RE\nv_mul_f32 v20, {fhex(1/32)}, v26\nv_mov_b32 v22, 0\ns_mov_b32 s47, {fhex(16.0)}\nv_mov_b32 v21, v20\nv_mov_b32 v23, 0\ns_branch {Lc}")
    A(f"{cases[1]}:\nv_mul_f32 v20, {fhex(1/32)}, v26\nv_mov_b32 v22, {fhex(0.25)}\nv_cndmask_b32 v20, v20, 0.5, {M0}\nv_cndmask_b32 v22, v22, 0, {M0}")
    A(f"s_mov_b32 s47, {fhex(16.0)}\nv_mov_b32 v21, v20\nv_mov_b32 v23, v22\ns_branch {Lc}")
    A(f"{cases[2]}:\nv_mul_f32 v20, {fhex(1/16)}, v26\nv_mov_b32 v22, 0\nv_mov_b32 v23, {fhex(0.75)}\nv_mov_b32 v21, v20\ns_branch {Lc}")
    A(f"{cases[3]}:\nv_mul_f32 v20, {fhex(1/16)}, v26\nv_cndmask_b32 v23, 0.5, 0, vcc\nv_add_f32 v22, {fhex(0.25)}, v23\nv_mov_b32 v21, v20\ns_branch {Lc}")
    for n in (4, 5):
        A(f"{cases[n]}:\nv_mul_f32 v20, {fhex(1/16)}, v26\nv_cndmask_b32 v21, v20, 0.5, {M0}\nv_sub_f32 v24, {fhex(31/32)}, v20")
        A("v_cndmask_b32 v20, 0, v21, vcc\nv_cndmask_b32 v21, v24, 0, vcc")
        if n == 4: A(f"v_mov_b32 v24, {fhex(0.25)}\nv_cndmask_b32 v22, v24, 0, vcc\nv_cndmask_b32 v23, 0, v24, vcc")
        else: A(f"v_mov_b32 v22, {fhex(0.25)}\nv_mov_b32 v23, v22")
        A(f"s_branch {Lc}")
    A(f"{cases[6]}:\nv_mul_f32 v20, {fhex(1/512)}, v26\nv_mov_b32 v22, 0\nv_mov_b32 v23, {fhex(0.75)}\nv_mov_b32 v21, v20")
    A(f"{Lc}:")
    A("v_fma_f32 v22, v27, v20, v22\nv_add_f32 v24, s47, v27\nv_fma_f32 v23, v24, v21, v23")
    for (b, v, o) in ((22, 20, T), (23, 21, T + 4)):
        A(f"v_cos_f32 v{o}, v{b}\nv_add_f32 v{o+1}, v{b}, v{v}\nv_fma_f32 v{o+2}, v{v}, 2.0, v{b}\nv_fmamk_f32 v{o+3}, v{v}, {fhex(3.0)}, v{b}")
        for q in (1, 2, 3): A(f"v_cos_f32 v{o+q}, v{o+q}")
    g1_stage(A, 7, 46)
    A("s_lshl_b32 s46, s46, 13")
    A(f"s_add_u32 s47, s46, s{S_WLDS}\nv_add_u32 v24, s47, v2")
    L6 = A.label("L_c6"); L7 = A.label("L_c7")
    A(f"s_cmp_eq_u32 s{W}, 6\ns_cbranch_scc1 {L6}\ns_cmp_eq_u32 s{W}, 7\ns_cbranch_scc1 {L7}")
    for q in range(4): A(f"v_cvt_pk_bf16_f32 v{T+q}, v{T+2*q}, v{T+2*q+1}")
    A(f"ds_write_b128 v24, v[{T}:{T+3}]\ns_branch {L7}")
    A(f"{L6}:\nds_write_b128 v24, v[{T}:{T+3}]\nds_write_b128 v24, v[{T+4}:{T+7}] offset:1024\n{L7}:")
    A(f"s_mul_i32 s61, s{W}, 1040\ns_add_u32 s61, s61, {XNL}")
    A("v_add_u32 v96, s61, v2\nv_lshl_add_u32 v97, v1, 3, s61")
    A("v_and_b32 v100, 7, v1\nv_mul_u32_u24 v98, 1040, v100\nv_lshrrev_b32 v99, 3, v1")
    A(f"s_lshl_b32 s61, s{W}, 4\nv_add_u32 v99, s61, v99\nv_lshl_add_u32 v98, v99, 4, v98\nv_add_u32 v98, {XNL}, v98")
    A("v_lshlrev_b32 v100, 4, v100\nv_lshl_add_u32 v99, v99, 9, v100")
    A(f"s_lshl_b32 s54, s44, 15\ns_lshl_b32 s55, s45, 7\ns_add_u32 s54, s54, s55\ns_add_u32 s54, s54, {WS_XN}")
    A("v_add_u32 v108, s46, v2")
    A(f"v_lshlrev_b32 v100, 11, v29\nv_lshl_add_u32 v100, v30, 5, v100\ns_lshl_b32 s61, s{W}, 1\ns_add_u32 s61, s61, {ZL}")
    A("v_add_u32 v100, s61, v100")
    A(f"s_waitcnt lgkmcnt(0)\ns_add_u32 s{S_TAG}, s{S_TAG}, {TAGK}")
    A("; ---- P0: layernorm")
    stamp(A, "consts")
    Lw = A.label("L_p0_w"); Lw2 = A.label("L_p0_w2")
    A(f"s_cmp_lt_u32 s{W}, 4\ns_cbranch_scc1 {Lw}\ns_waitcnt vmcnt(3)\ns_branch {Lw2}\n{Lw}:\ns_waitcnt vmcnt(0)\n{Lw2}:")
    stamp(A, "x")
    for q in range(4):
        A(f"v_lshlrev_b32 v{T+2*q}, 16, v{4+q}\nv_and_b32 v{T+2*q+1}, 0xffff0000, v{4+q}")
    A(f"v_pk_add_f32 v[{T+8}:{T+9}], v[{T}:{T+1}], v[{T+2}:{T+3}]\nv_pk_add_f32 v[{T+10}:{T+11}], v[{T+4}:{T+5}], v[{T+6}:{T+7}]")
    A(f"v_pk_add_f32 v[{T+8}:{T+9}], v[{T+8}:{T+9}], v[{T+10}:{T+11}]\nv_add_f32 v{T+8}, v{T+8}, v{T+9}")
    wave_sum(A, T + 8, 57)
    A(f"v_mov_b32 v{T+9}, {fhex(1.0/512)}\nv_mul_f32 v{T+9}, s57, v{T+9}")
    A(f"v_cvt_pk_bf16_f32 v{T+10}, v{T+9}, v{T+9}")
    for q in range(8): A(f"v_sub_f32 v{T+16+q}, v{T+q}, v{T+9}")
    A(f"v_lshlrev_b32 v{T+10}, 16, v{T+10}")
    A(f"v_mul_f32 v{T+8}, v{T+16}, v{T+16}\nv_mul_f32 v{T+11}, v{T+17}, v{T+17}")
    for q in range(2, 8, 2):
        A(f"v_fmac_f32 v{T+8}, v{T+16+q}, v{T+16+q}\nv_fmac_f32 v{T+11}, v{T+17+q}, v{T+17+q}")
    A(f"v_add_f32 v{T+8}, v{T+8}, v{T+11}")
    fill = [f"v_sub_f32 v{T+q}, v{T+q}, v{T+10}" for q in range(8)] + [f"v_cvt_pk_bf16_f32 v{T+16+q}, v{T+2*q}, v{T+2*q+1}" for q in range(4)]
    for n, mod in enumerate(("row_shr:1 row_mask:0xf", "row_shr:2 row_mask:0xf", "row_shr:4 row_mask:0xf", "row_shr:8 row_mask:0xf",
                "row_bcast:15 row_mask:0xa", "row_bcast:31 row_mask:0xc")):
        A(fill[2*n]); A(fill[2*n+1])
        A(f"v_add_f32_dpp v{T+8}, v{T+8}, v{T+8} {mod} bank_mask:0xf")
    A(f"v_mov_b32 v{T+9}, {fhex(1.0/512)}")
    A(f"v_readlane_b32 s57, v{T+8}, 63")
    for q in range(2):
        A(f"v_lshlrev_b32 v{T+2*q}, 16, v{T+16+q}\nv_and_b32 v{T+2*q+1}, 0xffff0000, v{T+16+q}")
    A(f"v_mul_f32 v{T+9}, s57, v{T+9}")
    A(f"v_cvt_pk_bf16_f32 v{T+9}, v{T+9}, v{T+9}\nv_lshlrev_b32 v{T+9}, 16, v{T+9}")
    A(f"v_add_f32 v{T+9}, {fhex(1e-5)}, v{T+9}")
    A(f"v_cvt_pk_bf16_f32 v{T+9}, v{T+9}, v{T+9}\nv_lshlrev_b32 v{T+9}, 16, v{T+9}")
    A(f"v_sqrt_f32 v{T+9}, v{T+9}")
    A(f"v_lshlrev_b32 v{T+4}, 16, v{T+18}")
    A(f"v_cvt_pk_bf16_f32 v{T+9}, v{T+9}, v{T+9}\nv_lshlrev_b32 v{T+9}, 16, v{T+9}")
    A(f"v_rcp_f32 v{T+9}, v{T+9}")
    A(f"v_and_b32 v{T+5}, 0xffff0000, v{T+18}\nv_lshlrev_b32 v{T+6}, 16, v{T+19}\nv_and_b32 v{T+7}, 0xffff0000, v{T+19}")
    for q in range(8): A(f"v_mul_f32 v{T+q}, v{T+9}, v{T+q}")
    for q in range(4): A(f"v_cvt_pk_bf16_f32 v{4+q}, v{T+2*q}, v{T+2*q+1}")
    stamp(A, "ln")
    A("ds_write_b128 v96, v[4:7]")
    A("s_waitcnt lgkmcnt(0)")
    A("ds_read_b64_tr_b16 v[8:9], v97\nds_read_b64_tr_b16 v[10:11], v97 offset:512")
    A("s_barrier")
    Lx = A.label("L_p0_x")
    A(f"s_cmp_ge_u32 s{W}, 4\ns_cbranch_scc1 {Lx}")
    A("ds_read_b128 v[4:7], v98\nds_read_b128 v[12:15], v98 offset:128")
    A("s_add_u32 s55, s54, 4096\ns_waitcnt lgkmcnt(1)")
    A(f"buffer_store_dwordx4 v[4:7], v99, {WSR}, s54 offen sc1")
    A("s_waitcnt lgkmcnt(0)")
    A(f"buffer_store_dwordx4 v[12:15], v99, {WSR}, s55 offen sc1")
    A(f"{Lx}:")
    stamp(A, "xnst")
    for n in range(8): A(f"ds_read_b128 v[{64+4*n}:{67+4*n}], v108 offset:{1024*n}")
    A("s_waitcnt lgkmcnt(6)")
    A(f"v_mfma_f32_16x16x32_bf16 v[{T}:{T+3}], v[8:11], v[{B1RE}:{B1RE+3}], 0")
    A(f"v_mfma_f32_16x16x32_bf16 v[{T+4}:{T+7}], v[8:11], v[{B1IM}:{B1IM+3}], 0")
    A("s_waitcnt lgkmcnt(0)")
    Lw2 = A.label("L_p0_w2")
    A(f"s_cmp_lt_u32 s{W}, 4\ns_cbranch_scc1 {Lw2}\ns_cmp_ge_u32 s{S_SLOT}, 28\ns_cbranch_scc1 {Lw2}")
    g1w_dma(A, 0, True)
    A(f"{Lw2}:")
    stamp(A, "iss1")
    for i in range(0, 4, 2):
        A(f"v_pk_mul_f32 v[{T+8+i}:{T+9+i}], v[{T+i}:{T+i+1}], v[{TWC+i}:{TWC+i+1}]\nv_pk_mul_f32 v[{T+12+i}:{T+13+i}], v[{T+4+i}:{T+5+i}], v[{TWC+i}:{TWC+i+1}]")
    for i in range(0, 4, 2):
        A(f"v_pk_fma_f32 v[{T+8+i}:{T+9+i}], v[{T+4+i}:{T+5+i}], v[{TWS+i}:{TWS+i+1}], v[{T+8+i}:{T+9+i}]")
        A(f"v_pk_fma_f32 v[{T+12+i}:{T+13+i}], v[{T+i}:{T+i+1}], v[{TWS+i}:{TWS+i+1}], v[{T+12+i}:{T+13+i}] neg_lo:[1,0,0] neg_hi:[1,0,0]")
    for q in range(4): A(f"v_cvt_pk_bf16_f32 v{8+q}, v{T+8+2*q}, v{T+9+2*q}")
    A(f"v_mfma_f32_16x16x32_bf16 v[{T}:{T+3}], v[{A2RE}:{A2RE+3}], v[8:11], 0")
    A(f"v_mfma_f32_16x16x32_bf16 v[{T+4}:{T+7}], v[{A2IM}:{A2IM+3}], v[8:11], 0")
    A(f"v_mfma_f32_16x16x32_bf16 v[{T+8}:{T+11}], v[{S2RE}:{S2RE+3}], v[8:11], 0")
    A(f"v_mfma_f32_16x16x32_bf16 v[{T+12}:{T+15}], v[{S2IM}:{S2IM+3}], v[8:11], 0")
    for i in range(8): A(f"v_cndmask_b32 v{T+i}, v{T+i}, v{T+8+i}, {M0}")
    for i in range(4): A(f"v_cvt_pk_bf16_f32 v{T+i}, v{T+i}, v{T+4+i}")
    for i in range(4):
        A(f"ds_write_b16 v100, v{T+i} offset:{512*i}\nds_write_b16_d16_hi v100, v{T+i} offset:{512*i+16}")
    stamp(A, "fft")
    Lh = A.label("L_p0_hi"); Lj = A.label("L_p0_j")
    A(f"s_cmp_ge_u32 s{W}, 4\ns_cbranch_scc1 {Lh}")
    A(f"s_lshl_b32 s57, s{S_WG}, 2\ns_add_u32 s57, s57, s{W}\ns_lshl_b32 s57, s57, 6\ns_add_u32 s57, s57, {FL_A}")
    A("s_waitcnt vmcnt(0)")
    set_flag(A, 57, 26, True)
    stamp(A, "xnack")
    A(f"s_waitcnt lgkmcnt(0)\ns_barrier\ns_branch {Lj}")
    A(f"{Lh}:")
    A("v_and_b32 v12, 255, v0")
    A(f"v_lshlrev_b32 v101, 4, v12\nv_add_u32 v101, {ZL}, v101")
    A("s_and_b32 s61, s44, 15\nv_and_b32 v103, 15, v0\nv_xor_b32 v102, s61, v103\nv_lshlrev_b32 v102, 4, v102")
    A("v_lshrrev_b32 v12, 4, v12")
    A("v_lshl_add_u32 v102, v12, 16, v102\nv_lshlrev_b32 v103, 4, v103\nv_lshl_add_u32 v103, v12, 16, v103")
    A(f"s_lshl_b32 s55, s44, 10\ns_lshl_b32 s56, s45, 8\ns_add_u32 s55, s55, s56\ns_add_u32 s55, s55, {WS_Z}")
    A(f"s_lshl_b32 s56, s{S_WG}, 8\ns_add_u32 s56, s56, {WS_WP}")
    A("s_add_u32 s53, s55, 0x100000\ns_add_u32 s54, s56, 0x100000")
    A("v_lshrrev_b32 v13, 1, v12\nv_lshlrev_b32 v20, 5, v13           ; 32 k2 (k2 < 8)")
    A("v_mov_b32 v15, 0x100\nv_cmp_eq_u32 vcc, 0, v13\nv_cndmask_b32 v22, v20, v15, vcc")
    A("v_sub_u32 v21, 0x100, v20\nv_subrev_u32 v23, 16, v21")
    A(f"v_bfe_u32 v13, v0, 3, 1\ns_lshl_b32 s61, s{S_WG}, 1\nv_add_u32 v13, s61, v13\nv_and_b32 v13, 7, v13")
    A("v_and_b32 v14, 1, v0\nv_lshlrev_b32 v14, 2, v14\nv_xor_b32 v13, v13, v14")
    A("v_and_b32 v14, 1, v12\nv_lshl_or_b32 v13, v14, 3, v13")
    A(f"v_bfe_u32 v14, v0, 1, 3\nv_mul_u32_u24 v14, 514, v14\nv_add_u32 v14, {WL}, v14")
    for q in range(4):
        A(f"v_xor_b32 v15, {q}, v13\nv_add_u32 v{40+q}, v20, v15\nv_sub_u32 v{44+q}, v21, v15\nv_cmp_eq_u32 vcc, 0, v15")
        A(f"v_cndmask_b32 v{40+q}, v{40+q}, v22, vcc\nv_cndmask_b32 v{44+q}, v{44+q}, v23, vcc")
        A(f"v_lshl_add_u32 v{40+q}, v{40+q}, 1, v14\nv_lshl_add_u32 v{44+q}, v{44+q}, 1, v14")
    Lw = A.label("L_p0_w"); Lw2 = A.label("L_p0_w2")
    A(f"s_cmp_ge_u32 s{S_SLOT}, 28\ns_cbranch_scc1 {Lw}\ns_waitcnt vmcnt(4)\ns_branch {Lw2}\n{Lw}:\ns_waitcnt vmcnt(0)\n{Lw2}:")
    A("s_waitcnt lgkmcnt(0)\ns_barrier")
    A("ds_read_b128 v[4:7], v101\nds_read_b128 v[8:11], v101 offset:4096")
    for q in range(8):
        A(f"ds_read_u16 v{48+q}, v{40+q}\nds_read_u16 v{56+q}, v{40+q} offset:4160")
        if q == 5:
            A("s_waitcnt lgkmcnt(12)")
            A(f"buffer_store_dwordx4 v[4:7], v102, {WSR}, s55 offen sc1\nbuffer_store_dwordx4 v[8:11], v102, {WSR}, s53 offen sc1")
    A("s_waitcnt lgkmcnt(0)")
    for q in range(8): A(f"v_lshl_or_b32 v{48+q}, v{56+q}, 16, v{48+q}")
    A(f"buffer_store_dwordx4 v[48:51], v103, {WSR}, s56 offen sc1\nbuffer_store_dwordx4 v[52:55], v103, {WSR}, s54 offen sc1")
    A("s_waitcnt vmcnt(0)")
    A(f"{Lj}:")
    A(f"s_lshl_b32 s57, s{S_WG}, 7\ns_add_u32 s57, s57, {FL_B}")
    stamp(A, "p0end")

def wd_prefetch_setup(A, va, sreg, tmp=11):
    srd(A, S_X, P_WD, 1792 * 1024)
    if C.g2map == "48":
        A(f"v_lshlrev_b32 v{va}, 4, v1")
        A(f"s_lshl_b32 s{sreg}, s{S_SLOT}, 16\ns_lshl_b32 s60, s{S_WAVE}, 13\ns_add_u32 s{sreg}, s{sreg}, s60")
        A(f"s_mov_b32 s{sreg+1}, s{S_XCD}")
        return 8, 10
    else:
        A(f"v_and_b32 v{va}, 31, v1\nv_lshlrev_b32 v{va}, 4, v{va}\nv_lshrrev_b32 v{tmp}, 5, v1\nv_lshl_add_u32 v{va}, v{tmp}, 10, v{va}")
        A(f"s_lshl_b32 s{sreg}, s{S_SLOT}, 16\ns_lshl_b32 s60, s{S_WAVE}, 13\ns_add_u32 s{sreg}, s{sreg}, s60")
        A(f"s_and_b32 s60, s{S_XCD}, 1\ns_lshl_b32 s60, s60, 9\ns_add_u32 s{sreg}, s{sreg}, s60")
        A(f"s_lshr_b32 s{sreg+1}, s{S_XCD}, 1")
        return 4, 11
def wd_prefetch(A, va, sreg, n, sh):
    A(f"s_add_u32 m0, s{S_WLDS}, 152576\ns_lshl_b32 s60, s{sreg+1}, {sh}\ns_add_u32 s60, s60, s{sreg}")
    A(f"buffer_load_dwordx4 v{va}, {XR}, s60 offen lds")
    A(f"s_add_u32 s{sreg+1}, s{sreg+1}, 1\ns_cmp_eq_u32 s{sreg+1}, {n}\ns_cselect_b32 s{sreg+1}, 0, s{sreg+1}")

V_G2W = 13
def g2_setup(A):
    W = S_WAVE
    if C.g2map == "48":
        A(f"s_lshl_b32 s44, s{S_XCD}, 2\ns_and_b32 s45, s{S_SLOT}, 3\ns_add_u32 s44, s44, s45\ns_lshr_b32 s45, s{S_SLOT}, 2\ns_mov_b32 s52, s45")
    else:
        A(f"s_lshr_b32 s44, s{S_XCD}, 1\ns_lshl_b32 s44, s44, 3\ns_and_b32 s45, s{S_SLOT}, 7\ns_add_u32 s44, s44, s45")
        A(f"s_and_b32 s45, s{S_XCD}, 1\ns_lshl_b32 s45, s45, 2\ns_lshr_b32 s46, s{S_SLOT}, 3\ns_add_u32 s45, s45, s46\ns_lshl_b32 s52, s46, 1")
    if not C.rot2: A("s_mov_b32 s52, 0")
    srd(A, S_A, P_WD, 1792 * 1024)
    A(f"s_and_b32 s48, s{W}, 3\ns_lshr_b32 s49, s{W}, 2")
    A("s_cmp_eq_u32 s49, 0\ns_cselect_b32 s59, 9, 5\ns_cmp_ge_u32 s52, s59\ns_cselect_b32 s46, s59, 0\ns_sub_u32 s52, s52, s46\ns_mov_b32 s53, s52\ns_mov_b32 s63, s59")
    A("s_lshl_b32 s50, s44, 2\ns_add_u32 s50, s50, s48       ; rb16")
    A(f"v_lshrrev_b32 v{V_G2W}, 3, v1\nv_bfe_u32 v14, v1, 4, 2\nv_lshlrev_b32 v14, 1, v14\nv_and_b32 v15, 7, v1\nv_xor_b32 v14, v14, v15")
    A(f"v_lshlrev_b32 v{V_G2W}, 10, v{V_G2W}\nv_lshl_add_u32 v{V_G2W}, v14, 4, v{V_G2W}")
    A(f"s_lshl_b32 s46, s48, 15\ns_lshl_b32 s58, s45, 7\ns_add_u32 s58, s58, s46\ns_mul_i32 s51, s49, {1152*1024}\ns_add_u32 s51, s51, s58")
    A(f"s_add_u32 s58, s58, {WS_G}")
    A("s_lshl_b32 s55, s49, 14\ns_lshl_b32 s56, s48, 12\ns_add_u32 s55, s55, s56")
    srd(A, S_X, P_X, 2097152)
    A("v_and_b32 v14, 15, v1\ns_and_b32 s56, s50, 1\ns_lshl_b32 s56, s56, 4\nv_add_u32 v14, s56, v14")
    A("v_and_b32 v244, 0x13, v14\nv_bfe_u32 v15, v14, 2, 1\nv_lshl_or_b32 v244, v15, 3, v244\nv_bfe_u32 v15, v14, 3, 1\nv_lshl_or_b32 v244, v15, 2, v244")
    A("v_lshlrev_b32 v244, 16, v244\nv_lshrrev_b32 v15, 4, v1\nv_lshl_add_u32 v244, v15, 3, v244")
    A("s_lshr_b32 s56, s50, 1\ns_lshl_b32 s56, s56, 10\ns_lshl_b32 s46, s45, 7\ns_add_u32 s56, s56, s46\ns_lshl_b32 s46, s49, 6\ns_add_u32 s56, s56, s46")
def g2_xload(A):
    A(f"buffer_load_dwordx2 v[240:241], v244, {XR}, s56 offen {C.nt_x2}\nbuffer_load_dwordx2 v[242:243], v244, {XR}, s56 offen offset:32 {C.nt_x2}")
def g2_next(A, sig):
    if (sig == 52 and "w" in C.dbg) or (sig == 53 and "a" in C.dbg): return
    A(f"s_add_u32 s{sig}, s{sig}, 1\ns_cmp_eq_u32 s{sig}, s{59 if sig == 52 else 63}\ns_cselect_b32 s{sig}, 0, s{sig}")
def g2_wdma(A, n):
    A("s_lshl_b32 s60, s52, 17\ns_add_u32 s60, s60, s51")
    for k in range(4):
        A(f"s_add_u32 m0, s55, {(n & 3)*32768 + k*1024}")
        A(f"buffer_load_dwordx4 v{V_G2W}, {AR}, s60 offen{' sc1' if n >= 5 else ''} lds")
        if k < 3: A("s_add_u32 s60, s60, 8192")
    g2_next(A, 52)

def gelu_block(A, g, u, T):
    P = lambda r: f"v[{r}:{r+1}]"
    L = []
    for n in range(0, 8, 2): L.append(f"v_pk_mul_f32 {P(T+n)}, {P(g+n)}, {P(g+n)}")
    for n in range(0, 8, 2): L.append(f"v_pk_fma_f32 {P(T+n)}, {P(T+n)}, v[20:21], v[22:23]")
    for n in range(0, 8, 2): L.append(f"v_pk_mul_f32 {P(T+n)}, {P(T+n)}, {P(g+n)}")
    for n in range(8): L.append(f"v_exp_f32 v{T+n}, v{T+n}")
    for n in range(0, 8, 2): L.append(f"v_pk_mul_f32 {P(T+8+n)}, {P(g+n)}, {P(u+n)}")
    for n in range(0, 8, 2): L.append(f"v_pk_add_f32 {P(T+n)}, {P(T+n)}, v[24:25]")
    for n in range(8): L.append(f"v_rcp_f32 v{T+n}, v{T+n}")
    for n in range(0, 8, 2): L.append(f"v_pk_mul_f32 {P(T+n)}, {P(T+n)}, {P(T+8+n)}")
    for q in range(4): L.append(f"v_cvt_pk_bf16_f32 v{T+8+q}, v{T+2*q}, v{T+2*q+1}")
    return L

def phase_g1(A):
    W = S_WAVE
    ACC = 64; ACT = 128; WF = 32
    A("; ---- G1")
    L = A.label("L_g1_np")
    A(f"s_cmp_lg_u32 s{W}, 0\ns_cbranch_scc1 {L}")
    A(f"v_lshlrev_b32 v8, 6, v1\ns_lshl_b32 s58, s{S_RT}, 13\ns_add_u32 s58, s58, {FL_A}\ns_add_u32 s59, s58, 4096")
    poll(A, [(8, "s58"), (8, "s59")], 16)
    A(f"{L}:")
    A("v_lshlrev_b32 v3, 4, v1")
    A(f"s_lshl_b32 s50, s{S_RT}, 3\ns_add_u32 s50, s50, s{W}\ns_lshl_b32 s51, s50, 15\ns_add_u32 s51, s51, {WS_XN}")
    A("s_barrier")
    stamp(A, "rdy1")
    vm = []
    def act(j, k):
        if k == 0:
            g1_stage(A, j, 53); A("s_lshl_b32 s53, s53, 12\ns_add_u32 s53, s53, s51")
        kk = 4 * j + k
        A(f"buffer_load_dwordx4 v[{ACT+4*kk}:{ACT+4*kk+3}], v3, {WSR}, s53 offen offset:{1024*k} sc1")
        vm.append(("a", kk))
    def wdma(j):
        g1w_dma(A, j); vm.append(("w", j)); vm.append(("w", j))
    for k in range(4): act(0, k)
    set_flag(A, 57, 16)
    A("s_barrier")
    wdma(1)
    for k in range(4): act(1, k)
    A("v_lshrrev_b32 v8, 5, v1\nv_lshlrev_b32 v8, 3, v8\nv_bfe_u32 v9, v1, 2, 2\nv_add_u32 v8, v8, v9\nv_lshlrev_b32 v8, 7, v8")
    A("v_and_b32 v10, 3, v1\nv_lshl_add_u32 v8, v10, 3, v8\nv_bfe_u32 v10, v1, 4, 1\nv_lshl_add_u32 v8, v10, 5, v8")
    A("v_lshrrev_b32 v9, 1, v9\nv_lshl_add_u32 v26, v9, 6, v8\nv_xor_b32 v27, 64, v26")
    A("v_add_u32 v28, 0x10000, v26\nv_add_u32 v29, 0x10000, v27")
    A("v_and_b32 v10, 15, v1\nv_lshlrev_b32 v10, 4, v10\nv_lshrrev_b32 v11, 5, v1\nv_lshl_add_u32 v10, v11, 8, v10")
    A("v_bfe_u32 v11, v1, 4, 1\nv_mul_u32_u24 v11, 57344, v11\nv_add_u32 v10, v10, v11")
    A(f"s_mul_i32 s47, s50, {2*57344}\ns_lshl_b32 s52, s{S_CT}, 11\ns_add_u32 s47, s47, s52\ns_add_u32 s47, s47, {WS_H}")
    K1 = -2.0 * 0.7978845608028654 * 1.4426950408889634
    A(f"v_mov_b32 v20, {fhex(K1*0.044715)}\nv_mov_b32 v21, v20\nv_mov_b32 v22, {fhex(K1)}\nv_mov_b32 v23, v22\nv_mov_b32 v24, 1.0\nv_mov_b32 v25, 1.0")
    npf, pfsh = wd_prefetch_setup(A, 2, 54)
    def raddr(j):
        g1_stage(A, j, 52); A("s_lshl_b32 s52, s52, 13")
        for n in range(4): A(f"v_add_u32 v{4+n}, s52, v{26+n}")
    def reads(k, st, fs=(0, 1, 2, 3)):
        r = []
        for f in fs:
            va = (4, 6, 5, 7)[f]; d = WF + 16 * st + 4 * f
            r.append(f"ds_read_b64_tr_b16 v[{d}:{d+1}], v{va} offset:{k*2048}")
            r.append(f"ds_read_b64_tr_b16 v[{d+2}:{d+3}], v{va} offset:{k*2048+512}")
        return r
    def younger(op):
        return len(vm) - 1 - max(i for i, o in enumerate(vm) if o == op)
    raddr(0)
    A(f"s_waitcnt vmcnt({younger(('a', 0))})\ns_barrier")
    stamp(A, "go")
    for r in reads(0, 0): A(r)
    pf = 0
    for kk in range(32):
        j, k = kk // 4, kk % 4
        st = kk & 1
        if k == 3 and kk < 31:
            A(f"s_waitcnt vmcnt({younger(('w', j + 1))})")
            raddr(j + 1)
            A("s_barrier")
        nxt = reads((k + 1) & 3, st ^ 1) if kk < 31 else []
        for f in range(4):
            for r in nxt[2*f:2*f+2]: A(r)
            if f == 0:
                A(f"s_waitcnt vmcnt({younger(('a', kk))}) lgkmcnt({6 + len(nxt[0:2])})")
            else:
                A(f"s_waitcnt lgkmcnt({6 - 2*f + len(nxt[0:2*f+2])})")
            d = WF + 16 * st + 4 * f
            c = f"v[{ACC+16*f}:{ACC+16*f+15}]"
            A(f"v_mfma_f32_32x32x16_bf16 {c}, v[{d}:{d+3}], v[{ACT+4*kk}:{ACT+4*kk+3}], {c if kk else 0}")
            if f == 0 and j + 2 < 8:
                if k == 0: wdma(j + 2)
                act(j + 2, k)
            if f == 2 and pf < npf and kk >= C.pf_start and (kk - C.pf_start) % C.pf_step == 0:
                wd_prefetch(A, 2, 54, npf, pfsh); vm.append(("p", pf)); pf += 1
    assert pf == npf or C.pf_start > 31
    stamp(A, "main")
    g2_setup(A)
    A("s_barrier")
    for blk in range(2):
        for half in range(2):
            n = 2 * blk + half
            if n < C.nepi: g2_wdma(A, n)
            T = 128 + 16 * n
            for l in gelu_block(A, ACC + 32 * blk + 8 * half, ACC + 32 * blk + 16 + 8 * half, T): A(l)
            A(f"buffer_store_dwordx4 v[{T+8}:{T+11}], v10, {WSR}, s47 offen offset:{1024*blk+512*half} sc1")
    stamp(A, "epi")
    if C.nepi < 4: g2_wdma(A, C.nepi)
    A(f"s_waitcnt vmcnt({4 if C.nepi < 4 else 0})\ns_barrier")
    A(f"s_lshl_b32 s57, s{S_RT}, 5\ns_add_u32 s57, s57, s{S_CT}\ns_lshl_b32 s57, s57, 7\ns_add_u32 s57, s57, {FL_H}")
    set_flag(A, 57, 16)
    for n in range(C.nepi + 1, 4): g2_wdma(A, n)
    stamp(A, "flag2")

def phase_cf(A):
    W = S_WAVE
    ZL = 0; WL = 65536; TW = 131072; FR = TW + 8192
    D0 = 64; D1 = 128; PK = 192; WW = 224
    FC, FS, FN = 8, 16, 24
    OC, OS, ON = 32, 40, 48
    A("; ---- CF")
    A(f"s_lshl_b32 s44, s{S_XCD}, 2\ns_add_u32 s44, s44, s{S_SLOT}\ns_sub_u32 s44, s44, 28    ; cg")
    A("s_waitcnt vmcnt(0)\ns_barrier")
    set_flag(A, 57, 16)
    A(f"s_lshl_b32 s46, s{W}, 1\nv_lshrrev_b32 v8, 5, v1\nv_add_u32 v8, s46, v8")
    A("v_and_b32 v9, 3, v8\nv_bfe_u32 v10, v8, 3, 1\nv_lshl_or_b32 v9, v10, 2, v9      ; beta")
    A("s_and_b32 s46, s44, 1\ns_lshl_b32 s46, s46, 3\nv_or_b32 v9, s46, v9         ; k1")
    A("s_lshr_b32 s46, s44, 1\ns_lshl_b32 s47, s46, 5\ns_sub_u32 s48, 0x200, s47\ns_cmp_lt_u32 s46, 8")
    A(f"s_cselect_b32 s49, s47, s48\ns_cselect_b32 s50, 1, -1\ns_sub_u32 s48, s48, 16\ns_cmp_lt_u32 s46, 8\ns_cselect_b32 s48, s47, s48")
    A("s_cmp_eq_u32 s46, 0\ns_cselect_b32 s48, 0x100, s48")
    A("v_mov_b32 v11, s49\nv_mad_i32_i24 v10, v9, s50, v11\nv_mov_b32 v11, s48\nv_cmp_eq_u32 vcc, 0, v9\nv_cndmask_b32 v10, v10, v11, vcc   ; bin")
    A(f"v_mov_b32 v11, {fhex(2.0**-19)}\nv_mov_b32 v12, {fhex(2.0**-20)}\nv_cmp_eq_u32 vcc, 0x100, v10\nv_cndmask_b32 v12, v11, v12, vcc\nv_mov_b32 v13, v12")
    A(f"v_cvt_f32_u32 v10, v10\nv_mul_f32 v10, {fhex(1/512)}, v10")
    A(f"v_bfe_u32 v11, v8, 2, 1\nv_cvt_f32_u32 v11, v11\nv_mul_f32 v11, {fhex(0.25)}, v11")
    A("v_and_b32 v14, 31, v1\nv_lshlrev_b32 v15, 3, v14\nv_cvt_f32_u32 v15, v15\nv_fma_f32 v64, v15, v10, v11")
    A(f"v_fmamk_f32 v72, v10, {fhex(256.0)}, v64\nv_fract_f32 v72, v72")
    for b in (64, 72):
        for j in range(1, 8): A(f"v_fmamk_f32 v{b+j}, v10, {fhex(float(j))}, v{b}")
    for j in range(16): A(f"v_cos_f32 v{64+j}, v{64+j}")
    for j in range(0, 16, 2): A(f"v_pk_mul_f32 v[{64+j}:{65+j}], v[{64+j}:{65+j}], v[12:13]")
    for q in range(8): A(f"v_cvt_pk_bf16_f32 v{64+q}, v{64+2*q}, v{65+2*q}")
    A(f"v_lshlrev_b32 v14, 4, v14\nv_lshl_add_u32 v14, v8, 10, v14\ns_lshl_b32 s46, s44, 14\ns_add_u32 s46, s46, {WS_G}")
    A(f"buffer_store_dwordx4 v[64:67], v14, {WSR}, s46 offen sc1\nbuffer_store_dwordx4 v[68:71], v14, {WSR}, s46 offen offset:512 sc1")
    A("v_and_b32 v3, 31, v1\nv_lshrrev_b32 v4, 5, v1\nv_lshlrev_b32 v4, 2, v4")
    A(f"s_and_b32 s52, s{W}, 3\ns_lshl_b32 s52, s52, 3\ns_lshr_b32 s53, s{W}, 2\ns_mul_i32 s53, s53, 1536")
    A("v_add_u32 v5, s52, v4")
    for b in range(4):
        A(f"v_add_u32 v6, {b}, v5\nv_mad_u32_u24 v{64+b}, v6, v3, s53")
    def frag(dst, matsel):
        A(f"s_and_b32 s54, s{W}, 1\ns_lshl_b32 s54, s54, 4")
        A(f"s_lshr_b32 s55, s{W}, 1\ns_and_b32 s55, s55, 1\ns_mul_i32 s55, s55, 48")
        if matsel == 0: A(f"s_lshr_b32 s56, s{W}, 2\nv_lshl_add_u32 v7, v3, 1, s56")
        for j in range(8):
            A(f"v_add_u32 v6, s54, v4\nv_add_u32 v6, {8*(j>>2) + (j&3)}, v6")
            if matsel == 0: A(f"v_mad_u32_u24 v{dst+j}, v6, v7, s55")
            else: A(f"v_lshl_add_u32 v6, v6, 1, 1\nv_mad_u32_u24 v{dst+j}, v6, v3, s55")
    frag(80, 0); frag(88, 1)
    cos_batch(A, range(64, 68), 2047, 1.0 / 2048)
    cos_batch(A, range(80, 96), 63, 1.0 / 64)
    A(f"s_lshl_b32 s52, s52, 8\ns_lshr_b32 s53, s{W}, 2\ns_lshl_b32 s53, s53, 10\ns_add_u32 s52, s52, s53\ns_add_u32 s52, s52, {TW}")
    A("v_add_u32 v5, s52, v2\nds_write_b128 v5, v[64:67]")
    for q in range(8): A(f"v_cvt_pk_bf16_f32 v{80+q}, v{80+2*q}, v{81+2*q}")
    A(f"s_lshl_b32 s52, s{W}, 10\ns_add_u32 s52, s52, {FR}\nv_add_u32 v5, s52, v2")
    A("ds_write_b128 v5, v[80:83]")
    Ls = A.label("L_cf_skip")
    A(f"s_cmp_ge_u32 s{W}, 4\ns_cbranch_scc1 {Ls}\nds_write_b128 v5, v[84:87] offset:8192\n{Ls}:")
    A(f"v_add_u32 v56, {TW}, v2\nv_add_u32 v57, {FR}, v2")
    A(f"s_lshl_b32 s52, s{W}, 1\nv_and_b32 v6, 15, v1\nv_xor_b32 v6, s52, v6\nv_lshlrev_b32 v6, 4, v6")
    A("v_lshl_add_u32 v6, v3, 10, v6\nv_lshl_add_u32 v58, v4, 6, v6\nv_xor_b32 v59, 16, v58")
    A(f"v_lshrrev_b32 v6, 2, v3\nv_xor_b32 v6, s{W}, v6\nv_lshlrev_b32 v6, 2, v6\nv_lshl_add_u32 v6, v3, 5, v6\nv_lshl_add_u32 v6, v4, 11, v6\nv_add_u32 v7, {WL}, v6")
    L = A.label("L_cf_np")
    A(f"s_cmp_lg_u32 s{W}, 0\ns_cbranch_scc1 {L}")
    A(f"v_lshlrev_b32 v6, 7, v1\ns_mov_b32 s57, {FL_B}\ns_mov_b32 s58, {FL_B+8192}\ns_mov_b32 s59, {FL_B+16384}\ns_mov_b32 s60, {FL_B+24576}")
    poll(A, [(6, "s57"), (6, "s58"), (6, "s59"), (6, "s60")], 64)
    A(f"{L}:")
    A("s_waitcnt lgkmcnt(0)\ns_barrier")
    stamp(A, "rdy1")
    A(f"s_lshl_b32 s48, s44, 16\ns_lshl_b32 s49, s{W}, 13\ns_add_u32 s50, s48, s49")
    for (base, lb) in ((WS_Z, ZL), (WS_WP, WL)):
        A(f"s_add_u32 s51, s50, {base}")
        for k in range(8):
            A(f"s_add_u32 m0, s49, {lb + k*1024}")
            A(f"buffer_load_dwordx4 v2, {WSR}, s51 offen sc1 lds")
            if k < 7: A("s_add_u32 s51, s51, 1024")
    def load_frags(Cc, S, mat):
        for m in range(2):
            A(f"ds_read_b128 v[{Cc+4*m}:{Cc+4*m+3}], v57 offset:{(mat*4+m)*1024}")
            A(f"ds_read_b128 v[{S+4*m}:{S+4*m+3}], v57 offset:{(mat*4+2+m)*1024}")
    def neg_frags(S, N):
        for q in range(8): A(f"v_xor_b32 v{N+q}, 0x80008000, v{S+q}")
    def pk(blk, c, m): return PK + 16 * blk + 8 * c + 4 * m
    def acc(D, c, blk): return D + 32 * c + 16 * blk
    def cstage(D, blk, data_is_A, Cc, Sre, Sim):
        for (c, seq) in ((0, ((0, Cc), (1, Sre))), (1, ((1, Cc), (0, Sim)))):
            d = acc(D, c, blk); first = True
            for (cc, K) in seq:
                for m in range(2):
                    dat = f"v[{pk(blk,cc,m)}:{pk(blk,cc,m)+3}]"; con = f"v[{K+4*m}:{K+4*m+3}]"
                    a, b = (dat, con) if data_is_A else (con, dat)
                    A(f"v_mfma_f32_32x32x16_bf16 v[{d}:{d+15}], {a}, {b}, {0 if first else f'v[{d}:{d+15}]'}")
                    first = False
    def pack(D):
        for blk in range(2):
            for c in range(2):
                for q in range(8):
                    s = acc(D, c, blk) + 2 * q
                    A(f"v_cvt_pk_bf16_f32 v{pk(blk,c,0)+q}, v{s}, v{s+1}")
    def tw_load():
        for a in range(4):
            for comp in range(2):
                d = WW + 16 * comp + 4 * a
                A(f"ds_read_b128 v[{d}:{d+3}], v56 offset:{a*2048 + comp*1024}")
    def radix2_tw(conj):
        for i in range(16):
            er, ei, o_r, oi = acc(D0,0,0)+i, acc(D0,1,0)+i, acc(D0,0,1)+i, acc(D0,1,1)+i
            ur, ui, vr_, vi = acc(D1,0,0)+i, acc(D1,1,0)+i, acc(D1,0,1)+i, acc(D1,1,1)+i
            c0, s0 = WW + i, WW + 16 + i
            A(f"v_add_f32 v60, v{er}, v{o_r}\nv_add_f32 v61, v{ei}, v{oi}\nv_sub_f32 v62, v{er}, v{o_r}\nv_sub_f32 v63, v{ei}, v{oi}")
            A(f"v_mul_f32 v{ur}, v60, v{c0}\nv_mul_f32 v{ui}, v61, v{c0}\nv_mul_f32 v{vr_}, v62, v{c0}\nv_mul_f32 v{vi}, v63, v{c0}")
            if conj:
                A(f"v_fma_f32 v{ur}, -v61, v{s0}, v{ur}\nv_fmac_f32 v{ui}, v60, v{s0}\nv_fma_f32 v{vr_}, -v63, v{s0}, v{vr_}\nv_fmac_f32 v{vi}, v62, v{s0}")
            else:
                A(f"v_fmac_f32 v{ur}, v61, v{s0}\nv_fma_f32 v{ui}, -v60, v{s0}, v{ui}\nv_fmac_f32 v{vr_}, v63, v{s0}\nv_fma_f32 v{vi}, -v62, v{s0}, v{vi}")
    load_frags(FC, FS, 0); load_frags(OC, OS, 2)
    tw_load()
    A("s_waitcnt lgkmcnt(8)")
    neg_frags(FS, FN); neg_frags(OS, ON)
    A("s_waitcnt vmcnt(8)\ns_barrier")
    stamp(A, "go")
    for mu in range(2):
        for c in range(2):
            for m in range(2):
                A(f"ds_read_b128 v[{pk(mu,c,m)}:{pk(mu,c,m)+3}], v{58+c} offset:{ZL + mu*32768 + m*512}")
    A("s_waitcnt lgkmcnt(4)")
    cstage(D0, 0, True, FC, FS, FN)
    A("s_waitcnt lgkmcnt(0)")
    cstage(D0, 1, True, OC, OS, ON)
    load_frags(OC, OS, 1)
    radix2_tw(False)
    pack(D1)
    cstage(D0, 0, False, FC, FS, FN)
    A("s_waitcnt lgkmcnt(0)")
    neg_frags(OS, ON)
    cstage(D0, 1, False, OC, OS, ON)
    stamp(A, "main")
    A("s_waitcnt vmcnt(0)\ns_barrier")
    for e in range(2):
        for a in range(4):
            for b in (0, 2):
                d = WW + 16 * e + 4 * a + b; o = a * 64 + b * 8 + e * 4
                A(f"ds_read2st64_b32 v[{d}:{d+1}], v7 offset0:{o} offset1:{o+8}")
    load_frags(OC, OS, 2)
    for e in range(2):
        for i in range(16):
            if i % 4 == 0: A(f"s_waitcnt lgkmcnt({min(15, 4 + 16 - (8*e + i//2 + 2))})")
            w = WW + 16 * e + i
            xr, xi = acc(D0,0,e)+i, acc(D0,1,e)+i
            yr, yi = acc(D1,0,e)+i, acc(D1,1,e)+i
            A(f"v_lshlrev_b32 v60, 16, v{w}\nv_and_b32 v{w}, 0xffff0000, v{w}")
            A(f"v_mul_f32 v{yr}, v{xr}, v60\nv_mul_f32 v{yi}, v{xi}, v60")
            A(f"v_fma_f32 v{yr}, -v{xi}, v{w}, v{yr}\nv_fmac_f32 v{yi}, v{xr}, v{w}")
    tw_load()
    pack(D1)
    cstage(D0, 0, True, FC, FN, FS)
    A("s_waitcnt lgkmcnt(8)")
    neg_frags(OS, ON)
    cstage(D0, 1, True, OC, ON, OS)
    load_frags(OC, OS, 1)
    A("s_waitcnt lgkmcnt(4)")
    radix2_tw(True)
    pack(D1)
    cstage(D0, 0, False, FC, FN, FS)
    A("s_waitcnt lgkmcnt(0)")
    neg_frags(OS, ON)
    cstage(D0, 1, False, OC, ON, OS)
    stamp(A, "epi")
    A(f"s_and_b32 s52, s{W}, 1\ns_lshl_b32 s52, s52, 2\nv_lshrrev_b32 v5, 5, v1\nv_or_b32 v5, s52, v5")
    A("v_and_b32 v6, 7, v1\nv_xor_b32 v5, v5, v6\nv_lshlrev_b32 v5, 4, v5\nv_lshl_add_u32 v5, v3, 10, v5")
    A(f"s_lshr_b32 s52, s{W}, 1\ns_lshl_b32 s52, s52, 7\nv_add_u32 v58, s52, v5\nv_xor_b32 v59, 32, v58")
    A("v_bfe_u32 v5, v1, 2, 1\nv_lshlrev_b32 v5, 2, v5\nv_bfe_u32 v6, v1, 4, 1\nv_lshl_add_u32 v5, v6, 1, v5\nv_bfe_u32 v6, v1, 1, 1\nv_add_u32 v5, v5, v6")
    A(f"v_xor_b32 v5, s{W}, v5\nv_lshlrev_b32 v5, 4, v5\nv_and_b32 v6, 1, v1\nv_lshl_add_u32 v5, v6, 3, v5")
    A("v_bfe_u32 v6, v1, 3, 1\nv_lshl_add_u32 v5, v6, 7, v5\nv_lshrrev_b32 v6, 5, v1\nv_lshl_add_u32 v5, v6, 9, v5")
    A(f"s_lshl_b32 s52, s{W}, 10\nv_add_u32 v5, s52, v5")
    A("v_and_b32 v6, 15, v1\nv_lshlrev_b32 v6, 4, v6\nv_lshrrev_b32 v7, 5, v1\nv_lshl_add_u32 v6, v7, 8, v6")
    A("v_bfe_u32 v7, v1, 4, 1\nv_lshl_add_u32 v6, v7, 14, v6")
    A(f"s_lshl_b32 s52, s{W}, 15\ns_lshl_b32 s53, s44, 9\ns_add_u32 s52, s52, s53\ns_add_u32 s47, s52, {WS_ZP}")
    A(f"s_lshl_b32 s57, s44, 7\ns_add_u32 s57, s57, {FL_C}")
    pack(D0)
    for mu in range(2):
        for c in range(2):
            for m in range(2):
                A(f"ds_write_b128 v{58+m}, v[{pk(mu,c,m)}:{pk(mu,c,m)+3}] offset:{ZL + mu*32768 + c*512}")
    g2_setup(A)
    A("s_waitcnt lgkmcnt(0)\ns_barrier")
    for n in range(8):
        A(f"ds_read_b64_tr_b16 v[{64+4*n}:{65+4*n}], v5 offset:{ZL + n*8192}")
        A(f"ds_read_b64_tr_b16 v[{66+4*n}:{67+4*n}], v5 offset:{ZL + n*8192 + 256}")
    for n in range(8):
        A(f"s_waitcnt lgkmcnt({14-2*n})")
        A(f"buffer_store_dwordx4 v[{64+4*n}:{67+4*n}], v6, {WSR}, s47 offen sc1")
        if n < 7: A("s_add_u32 s47, s47, 0x40000")
    A("s_barrier")
    g2_wdma(A, 0)
    A("s_waitcnt vmcnt(4)\ns_barrier")
    set_flag(A, 57, 16)
    for n in range(1, 4): g2_wdma(A, n)
    stamp(A, "flag2")

def phase_g2(A):
    W = S_WAVE
    ACT = 64; WF = 128; ACC = 16; ACC2 = 32; NS = 9
    A("; ---- G2")
    srd(A, S_B, P_OUT, 2097152)
    A("v_lshlrev_b32 v3, 4, v1")
    A(f"s_mul_i32 s54, s50, 57344\ns_mul_i32 s46, s49, {36*1024}\ns_add_u32 s54, s54, s46\ns_add_u32 s54, s54, {WS_H}")
    A(f"s_lshl_b32 s57, s50, 14\ns_add_u32 s57, s57, {WS_ZP}")
    A("v_lshrrev_b32 v6, 5, v1\nv_lshlrev_b32 v6, 4, v6\nv_bfe_u32 v7, v1, 4, 1\nv_lshl_add_u32 v6, v7, 2, v6\nv_bfe_u32 v4, v1, 2, 2\nv_add_u32 v6, v6, v4")
    A("v_lshlrev_b32 v6, 7, v6\nv_lshrrev_b32 v4, 1, v4\nv_lshl_or_b32 v4, v7, 1, v4")
    A("v_lshl_add_u32 v6, v4, 5, v6\nv_and_b32 v4, 3, v1\nv_lshl_add_u32 v6, v4, 3, v6")
    A("s_lshl_b32 s46, s49, 14\nv_add_u32 v164, s46, v6")
    for nb in range(1, 4): A(f"v_xor_b32 v{164+nb}, {32*nb}, v164")
    for nb in range(4): A(f"v_add_u32 v{160+nb}, 0x10000, v{164+nb}")
    for i in range(16): A(f"v_mov_b32 v{ACC+i}, 0")
    A("v_min_u32 v170, 27, v1\nv_lshlrev_b32 v170, 7, v170\nv_and_b32 v172, 31, v1\nv_lshlrev_b32 v172, 7, v172")
    A(f"s_lshr_b32 s46, s44, 2\ns_lshl_b32 s46, s46, 12\ns_add_u32 s46, s46, {FL_H}\ns_mov_b32 s47, {FL_C}")
    late = [(172, "s47")]
    L = A.label("L_g2_np"); L4 = A.label("L_g2_np4")
    A(f"s_cmp_lg_u32 s{W}, 0\ns_cbranch_scc1 {L}")
    poll(A, [(170, "s46")], 176)
    A(f"{L}:")
    A(f"s_cmp_lg_u32 s{W}, 4\ns_cbranch_scc1 {L4}")
    poll(A, late, 176, once=True)
    A(f"{L4}:")
    A("s_barrier")
    stamp(A, "hrdy")
    vm = []
    def act_ops(n):
        L = []
        for k in range(4):
            d = ACT + 16 * (n & 3) + 4 * k
            pre = "s_lshl_b32 s61, s53, 12\ns_add_u32 s61, s61, s54\n" if k == 0 else ""
            L.append((("a", n), pre + f"buffer_load_dwordx4 v[{d}:{d+3}], v3, {WSR}, s61 offen offset:{1024*k} {C.sc_act}", 53 if k == 3 else None))
        return L
    def w_ops(n):
        L = []
        for k in range(4):
            pre = "s_lshl_b32 s60, s52, 17\ns_add_u32 s60, s60, s51\n" if k == 0 else "s_add_u32 s60, s60, 8192\n"
            L.append((("w", n), pre + f"s_add_u32 m0, s55, {(n & 3)*32768 + k*1024}\nbuffer_load_dwordx4 v{V_G2W}, {AR}, s60 offen{' sc1' if n >= 5 else ''} lds", 52 if k == 3 else None))
        return L
    def emit(op):
        A(op[1]); vm.append(op[0])
        if op[2]: g2_next(A, op[2])
    for op in act_ops(0): emit(op)
    A("s_barrier")
    for op in act_ops(1): emit(op)
    def reads(n, k, st):
        slot = n & 3
        va = 164 if slot < 2 else 160
        off = (slot & 1) * 32768 + k * 4096
        r = []
        for nb in range(4):
            d = WF + 16 * st + 4 * nb
            r.append(f"ds_read_b64_tr_b16 v[{d}:{d+1}], v{va+nb} offset:{off}")
            r.append(f"ds_read_b64_tr_b16 v[{d+2}:{d+3}], v{va+nb} offset:{off+1024}")
        return r
    LA = C.la2
    for n in range(NS):
        if n == 2:
            L = A.label("L_g2_lp")
            A(f"s_cmp_lg_u32 s{W}, 4\ns_cbranch_scc1 {L}\ns_cmp_eq_u32 s{S_RDY}, 1\ns_cbranch_scc1 {L}")
            poll(A, late, 176)
            A(f"{L}:")
        need = [i for i, o in enumerate(vm) if o in (("a", n), ("w", n))]
        A(f"s_waitcnt vmcnt({len(vm) - 1 - max(need)})\ns_barrier")
        stamp(A, f"st{n}")
        for r in reads(n, 0, 0): A(r)
        ops = []
        if n == 0 and LA == 3: ops += act_ops(2)
        def switch(what):
            L = A.label("L_g2_sw")
            t = f"s_cmp_eq_u32 s49, 0\ns_cbranch_scc1 {L}\n"
            r = "s_add_u32 s{0}, s44, s45\ns_and_b32 s{0}, s{0}, 3\n" if C.rot2 else "s_mov_b32 s{0}, 0\n"
            if what == "w": t += f"s_mov_b32 s{S_A}, s{S_WS}\ns_mov_b32 s{S_A+1}, s{S_WS+1}\ns_mov_b32 s{S_A+2}, s{S_WS+2}\ns_mov_b32 s51, s58\ns_mov_b32 s59, 4\n" + r.format(52)
            else: t += "s_mov_b32 s54, s57\ns_mov_b32 s63, 4\n" + r.format(53)
            return t + f"{L}:\n"
        if 4 <= n + 3 < NS:
            o = w_ops(n + 3)
            if n + 3 == 5: o[0] = (o[0][0], switch("w") + o[0][1], o[0][2])
            ops += o
        if n + LA < NS:
            o = act_ops(n + LA)
            if n + LA == 5: o[0] = (o[0][0], switch("a") + o[0][1], o[0][2])
            ops += o
        if n == C.xst:
            ops.append((("x", 0), f"buffer_load_dwordx2 v[240:241], v244, {XR}, s56 offen {C.nt_x2}", None))
            ops.append((("x", 0), f"buffer_load_dwordx2 v[242:243], v244, {XR}, s56 offen offset:32 {C.nt_x2}", None))
        if n == 5:
            L = A.label("L_g2_acc")
            A(f"s_cmp_eq_u32 s49, 0\ns_cbranch_scc1 {L}")
            for i in range(16): A(f"v_mov_b32 v{ACC2+i}, v{ACC+i}\nv_mov_b32 v{ACC+i}, 0")
            A(f"{L}:")
        slots = [[] for _ in range(16)]
        for i, op in enumerate(ops): slots[(i * 16) // max(len(ops), 8) if len(ops) > 8 else 2 * i].append(op)
        for k in range(4):
            st = k & 1
            nxt = reads(n, k + 1, st ^ 1) if k < 3 else []
            for nb in range(4):
                if nb % 2 == 0: A(f"s_waitcnt lgkmcnt({4 - 2*nb + len(nxt[0:2*nb])})")
                d = WF + 16 * st + 4 * nb; a = ACT + 16 * (n & 3) + 4 * k
                c = f"v[{ACC+4*nb}:{ACC+4*nb+3}]"
                A(f"v_mfma_f32_16x16x32_bf16 {c}, v[{d}:{d+3}], v[{a}:{a+3}], {c}")
                for r in nxt[2*nb:2*nb+2]: A(r)
                for op in slots[4 * k + nb]: emit(op)
    A("s_waitcnt vmcnt(0)")
    EX = 32768
    A(f"s_mul_i32 s57, s48, 6144\ns_add_u32 s57, s57, {EX}\nv_add_u32 v6, s57, v3")
    L1 = A.label("L_g2_k1"); L2 = A.label("L_g2_j")
    A(f"s_cmp_eq_u32 s49, 1\ns_cbranch_scc1 {L1}")
    A(f"ds_write_b128 v6, v[{ACC+8}:{ACC+11}]\nds_write_b128 v6, v[{ACC+12}:{ACC+15}] offset:1024")
    A("s_waitcnt lgkmcnt(0)\ns_barrier")
    A("ds_read_b128 v[48:51], v6 offset:2048\nds_read_b128 v[52:55], v6 offset:3072")
    A("ds_read_b128 v[56:59], v6 offset:4096\nds_read_b128 v[60:63], v6 offset:5120")
    A("s_waitcnt lgkmcnt(2)")
    for i in range(8): A(f"v_add_f32 v{48+i}, v{48+i}, v{ACC+i}")
    A(f"s_waitcnt lgkmcnt(0)\ns_branch {L2}")
    A(f"{L1}:")
    A(f"ds_write_b128 v6, v[{ACC2}:{ACC2+3}] offset:2048\nds_write_b128 v6, v[{ACC2+4}:{ACC2+7}] offset:3072")
    A(f"ds_write_b128 v6, v[{ACC}:{ACC+3}] offset:4096\nds_write_b128 v6, v[{ACC+4}:{ACC+7}] offset:5120")
    A("s_waitcnt lgkmcnt(0)\ns_barrier")
    A("ds_read_b128 v[48:51], v6\nds_read_b128 v[52:55], v6 offset:1024")
    for i in range(8): A(f"v_mov_b32 v{56+i}, v{ACC+8+i}")
    A("s_waitcnt lgkmcnt(0)")
    for i in range(8): A(f"v_add_f32 v{48+i}, v{48+i}, v{ACC2+8+i}")
    A(f"{L2}:")
    for i in range(8): A(f"v_mul_f32 v{64+i}, {fhex(-1.4426950408889634)}, v{48+i}")
    for i in range(8): A(f"v_exp_f32 v{64+i}, v{64+i}")
    for i in range(8): A(f"v_mul_f32 v{56+i}, v{56+i}, v{48+i}")
    for i in range(8): A(f"v_add_f32 v{64+i}, 1.0, v{64+i}")
    for i in range(8): A(f"v_rcp_f32 v{64+i}, v{64+i}")
    for q in range(4): A(f"v_lshlrev_b32 v{72+2*q}, 16, v{240+q}\nv_and_b32 v{73+2*q}, 0xffff0000, v{240+q}")
    for i in range(8): A(f"v_fmac_f32 v{72+i}, v{56+i}, v{64+i}")
    for q in range(4): A(f"v_cvt_pk_bf16_f32 v{8+q}, v{72+2*q}, v{73+2*q}")
    A(f"buffer_store_dwordx2 v[8:9], v244, {BR}, s56 offen\nbuffer_store_dwordx2 v[10:11], v244, {BR}, s56 offen offset:32")
    L = A.label("L_ep")
    A(f"s_cmp_lg_u32 s{S_WG}, 0\ns_cbranch_scc1 {L}\ns_mov_b32 s57, 0")
    set_flag(A, 57, 16)
    A(f"{L}:")

HDR = open("recurrent_scan__spectral_gfnet__geglu_ffn__prompt.s.ref").read().split("; Override")[0]
def gen(**kw):
    for k, v in kw.items(): setattr(C, k, v)
    A = Asm()
    A(HDR.rstrip())
    A("; @launch grid=(256,1,1) block=(512,1,1) lds=163840")
    A('.amdgcn_target "amdgcn-amd-amdhsa--gfx950"\n.text')
    kernel_begin(A, KN)
    prologue(A)
    phase_p0(A)
    A(f"s_cmp_ge_u32 s{S_SLOT}, 28\ns_cbranch_scc1 L_cf")
    phase_g1(A)
    A("s_branch L_g2\nL_cf:")
    phase_cf(A)
    A("L_g2:")
    phase_g2(A)
    diag_end(A)
    A("L_done:\ns_endpgm")
    A('.section .rodata,"a"\n.p2align 6')
    A(descriptor(KN, 256, 102, 256))
    return hazard.fix(A.text(), verbose=False)
if __name__ == "__main__":
    kw = dict(a.split("=") for a in sys.argv[2:])
    kw = {k: (int(v) if v.isdigit() else v) for k, v in kw.items()}
    open(sys.argv[1], "w").write(gen(**kw))
```

```python
import struct, sys
from asmgen import *
import hazard

WS_FL = 0x0
FL_A = 0x20000
FL_B = 0x9000
FL_H = 0x11000
FL_C = 0x19000
WS_XN = 0x0100000
WS_Z  = 0x0300000
WS_WP = 0x0500000
WS_G  = 0x0700000
WS_ZP = 0x0800000
WS_H  = 0x0A00000
WS_DIAG = 0x1200000
WS_SIZE = 0x1400000
TAGK = 0x3C6EF35F

def fhex(x): return "0x%08x" % struct.unpack("<I", struct.pack("<f", x))[0]
S_WS, S_X, S_A, S_B = 4, 8, 12, 16
S_WAVE, S_WG, S_TAG, S_SLOT = 20, 21, 22, 23
S_PTR = 24
P_X, P_WR, P_WI, P_BX, P_WG, P_WU, P_WD, P_OUT, P_DBG, P_WS = [S_PTR + 2 * i for i in range(10)]
S_RT, S_CT, S_WOFF, S_RDY, S_XCD, S_SPIN = 64, 65, 66, 67, 68, 69
S_WLDS = 3
WSR = f"s[{S_WS}:{S_WS+3}]"; XR = f"s[{S_X}:{S_X+3}]"; AR = f"s[{S_A}:{S_A+3}]"; BR = f"s[{S_B}:{S_B+3}]"
LDS_P0 = 131072

class Cfg:
    diag = False
    g1map = "col"
    g2map = "48"
    nt_x = "nt"; nt_x2 = "nt"; nt_w = "nt"; nt_g1w = "nt"
    E1, E2 = 2, 3
    D = 8
    xst = 6
    delay = 0
    dbgclk = 0
    la2 = 2
    dbg = ""
    sc_act = "sc1"
    rot2 = 1
    nepi = 2
    pf_start, pf_step = 24, 1
    stamps = "x,xnack,p0end,rdy1,go,main,epi,flag2,hrdy,st0,st4"
C = Cfg()

def stamp(A, name):
    if not C.diag: return
    names = ["entry"] + C.stamps.split(",") + ["end"]
    assert len(names) <= 14
    if name in names:
        n = names.index(name)
        A(f"s_memtime s[{74+2*n}:{75+2*n}]")
def diag_end(A):
    if not C.diag: return
    A("s_waitcnt vmcnt(0)")
    stamp(A, "end")
    A("s_memrealtime s[72:73]\ns_waitcnt lgkmcnt(0)")
    A(f"s_lshl_b32 s3, s{S_WG}, 10\ns_lshl_b32 s44, s{S_WAVE}, 7\ns_add_u32 s3, s3, s44\ns_add_u32 s3, s3, {WS_DIAG}")
    A("v_mov_b32 v2, 0")
    for i, sreg in enumerate([70, 72, S_RDY] + [74 + 2*k for k in range(14)]):
        A(f"v_mov_b32 v3, s{sreg}\nbuffer_store_dword v3, v2, {WSR}, s3 offen offset:{4*i}")

def srd(A, s, ptr, nbytes):
    A(f"s_mov_b32 s{s}, s{ptr}\ns_and_b32 s{s+1}, s{ptr+1}, 0xffff\ns_mov_b32 s{s+2}, {nbytes}\ns_mov_b32 s{s+3}, 0x00020000")
def cos_batch(A, regs, mask, scale):
    for r in regs: A(f"v_and_b32 v{r}, {mask}, v{r}")
    for r in regs: A(f"v_cvt_f32_u32 v{r}, v{r}")
    for r in regs: A(f"v_mul_f32 v{r}, {fhex(scale)}, v{r}")
    for r in regs: A(f"v_cos_f32 v{r}, v{r}")
def wave_sum(A, v, sdst):
    for mod in ("row_shr:1 row_mask:0xf", "row_shr:2 row_mask:0xf", "row_shr:4 row_mask:0xf", "row_shr:8 row_mask:0xf",
                "row_bcast:15 row_mask:0xa", "row_bcast:31 row_mask:0xc"):
        A(f"v_add_f32_dpp v{v}, v{v}, v{v} {mod} bank_mask:0xf")
    A(f"v_readlane_b32 s{sdst}, v{v}, 63")
def set_flag(A, soff_expr_sreg, vt=3, anywave=False):
    L = A.label("L_fl")
    if not anywave: A(f"s_cmp_lg_u32 s{S_WAVE}, 0\ns_cbranch_scc1 {L}")
    A(f"v_mov_b32 v{vt}, s{S_TAG}\nv_mov_b32 v{vt+1}, 0\ns_mov_b64 exec, 1")
    A(f"buffer_store_dword v{vt}, v{vt+1}, {WSR}, s{soff_expr_sreg} offen sc1")
    A("s_mov_b64 exec, -1")
    A(f"{L}:")
def poll(A, groups, vt, once=False):
    L = A.label("L_poll"); Lx = A.label("L_pollx")
    if not once: A(f"s_mov_b32 s{S_SPIN}, 0\n{L}:")
    for n, (va, so) in enumerate(groups):
        A(f"buffer_load_dword v{vt+n}, v{va}, {WSR}, {so} offen sc1")
    A("s_waitcnt vmcnt(0)")
    for n in range(1, len(groups)):
        A(f"v_xor_b32 v{vt+n}, s{S_TAG}, v{vt+n}")
    A(f"v_xor_b32 v{vt}, s{S_TAG}, v{vt}")
    for n in range(1, len(groups)):
        A(f"v_or_b32 v{vt}, v{vt}, v{vt+n}")
    A(f"v_cmp_ne_u32 vcc, 0, v{vt}")
    if once:
        A(f"s_cmp_eq_u64 vcc, 0\ns_cselect_b32 s{S_RDY}, 1, 0")
    else:
        A(f"s_cmp_eq_u64 vcc, 0\ns_cbranch_scc1 {Lx}")
        A(f"s_add_u32 s{S_SPIN}, s{S_SPIN}, 1\ns_cmp_lt_u32 s{S_SPIN}, 0x200000\ns_cbranch_scc1 {L}")
        A(f"{Lx}:")

V_WDMA = 31
PERM = [0, 1, 4, 5, 2, 3, 6, 7]
S_ST0 = 2
def g1_stage(A, j, sreg):
    A(f"s_add_u32 s{sreg}, s{S_ST0}, {PERM[j]}\ns_and_b32 s{sreg}, s{sreg}, 7")
def g1w_dma(A, j, both=False):
    g1_stage(A, j, 60)
    A(f"s_lshl_b32 s61, s60, 13\ns_mul_i32 s60, s60, {64*3584}")
    A(f"s_add_u32 s60, s60, s{S_WOFF}\ns_add_u32 s61, s61, s{S_WLDS}")
    for extra in ((0, 4) if both else (0,)):
        if extra: A(f"s_sub_u32 s60, s60, {4*8*3584}\ns_sub_u32 s61, s61, 4096")
        A("s_mov_b32 m0, s61")
        A(f"buffer_load_dwordx4 v{V_WDMA}, {AR}, s60 offen {C.nt_g1w} lds")
        A("s_add_u32 m0, s61, 0x10000")
        A(f"buffer_load_dwordx4 v{V_WDMA}, {BR}, s60 offen {C.nt_g1w} lds")

def prologue(A):
    if C.dbgclk: A("s_memtime s[80:81]\ns_memrealtime s[82:83]")
    if C.diag:
        for k in range(14): A(f"s_mov_b32 s{74+2*k}, 0")
        A("s_memrealtime s[70:71]"); stamp(A, "entry")
    A("s_cmp_ge_u32 s2, 256\ns_cbranch_scc1 L_done")
    A(f"s_load_dwordx16 s[{S_PTR}:{S_PTR+15}], s[0:1], 0")
    A(f"s_load_dwordx4 s[{S_PTR+16}:{S_PTR+19}], s[0:1], 64")
    A("v_lshrrev_b32 v2, 6, v0\nv_and_b32 v1, 63, v0")
    A(f"v_readfirstlane_b32 s{S_WAVE}, v2")
    A(f"s_mov_b32 s{S_WG}, s2\ns_and_b32 s{S_XCD}, s2, 7\ns_lshr_b32 s{S_SLOT}, s2, 3\ns_mov_b32 s{S_RDY}, 0")
    if C.g1map == "col":
        A(f"s_mul_i32 s44, s{S_XCD}, 28\ns_add_u32 s44, s44, s{S_SLOT}\ns_and_b32 s{S_RT}, s44, 7\ns_lshr_b32 s{S_CT}, s44, 3")
    else:
        A(f"s_and_b32 s44, s{S_XCD}, 1\ns_lshl_b32 s44, s44, 2\ns_and_b32 s45, s{S_SLOT}, 3\ns_add_u32 s{S_RT}, s44, s45")
        A(f"s_lshr_b32 s44, s{S_XCD}, 1\ns_mul_i32 s44, s44, 7\ns_lshr_b32 s45, s{S_SLOT}, 2\ns_add_u32 s{S_CT}, s44, s45")
    A(f"s_lshl_b32 s44, s{S_CT}, 1\ns_add_u32 s44, s44, s{S_RT}\ns_and_b32 s{S_ST0}, s44, 7")
    W = S_WAVE
    A(f"s_lshr_b32 s44, s{S_WG}, 2          ; r2")
    A(f"s_and_b32 s45, s{S_WG}, 3           ; mh")
    A(f"s_lshr_b32 s46, s45, 1\ns_lshl_b32 s46, s46, 4")
    A(f"s_and_b32 s47, s45, 1\ns_lshl_b32 s47, s47, 2\ns_add_u32 s46, s46, s47")
    A(f"s_lshr_b32 s47, s{W}, 2\ns_lshl_b32 s47, s47, 3\ns_add_u32 s46, s46, s47")
    A(f"s_and_b32 s47, s{W}, 3\ns_add_u32 s46, s46, s47     ; r1")
    A("s_lshl_b32 s46, s46, 6\ns_add_u32 s46, s46, s44\ns_lshl_b32 s46, s46, 10")
    A("v_lshlrev_b32 v2, 4, v1")
    A("s_waitcnt lgkmcnt(0)")
    srd(A, S_X, P_X, 2097152)
    A(f"buffer_load_dwordx4 v[4:7], v2, {XR}, s46 offen {C.nt_x}")
    A(f"s_load_dword s{S_TAG}, s[{P_WS}:{P_WS+1}], 0")
    srd(A, S_WS, P_WS, WS_SIZE)

def phase_p0(A):
    W = S_WAVE
    XNL = LDS_P0; ZL = LDS_P0 + 8704; WL = ZL + 8192
    B1RE, B1IM, A2RE, A2IM, S2RE, S2IM, TWC, TWS = 64, 68, 72, 76, 80, 84, 88, 92
    T = 32
    A(f"s_cmp_lt_u32 s{W}, 6\ns_cselect_b32 s{S_X}, s{P_WR}, s{P_WI}\ns_cselect_b32 s{S_X+1}, s{P_WR+1}, s{P_WI+1}")
    A(f"s_and_b32 s{S_X+1}, s{S_X+1}, 0xffff\ns_mov_b32 s{S_X+2}, {2048*514}")
    A(f"s_mul_i32 s51, s{S_WG}, 4112\ns_and_b32 s48, s{W}, 1\ns_lshl_b32 s48, s48, 11\ns_add_u32 s49, s51, s48\ns_add_u32 s51, s51, 4096")
    A(f"s_bfe_u32 s50, s{W}, 0x10001\ns_mul_i32 s50, s50, 4160\ns_add_u32 s50, s50, {WL}")
    Lw2 = A.label("L_p0_w2")
    A(f"s_cmp_lt_u32 s{W}, 4\ns_cbranch_scc1 {Lw2}")
    A(f"s_add_u32 m0, s50, s48\nbuffer_load_dwordx4 v2, {XR}, s49 offen {C.nt_w} lds")
    A(f"buffer_load_dwordx4 v2, {XR}, s49 offen offset:1024 {C.nt_w} lds")
    A("s_add_u32 m0, s50, 4096\ns_mov_b64 exec, 1")
    A(f"buffer_load_dwordx4 v2, {XR}, s51 offen {C.nt_w} lds")
    A(f"s_mov_b64 exec, -1\n{Lw2}:")
    srd(A, S_A, P_WG, 512 * 3584)
    srd(A, S_B, P_WU, 512 * 3584)
    A("v_lshrrev_b32 v8, 3, v1")
    A("v_bfe_u32 v9, v1, 4, 1\nv_lshlrev_b32 v9, 2, v9\nv_and_b32 v10, 7, v1\nv_xor_b32 v9, v9, v10")
    A(f"v_mul_u32_u24 v8, 3584, v8\nv_lshl_add_u32 v{V_WDMA}, v9, 4, v8")
    A(f"s_mul_i32 s47, s{W}, {8*3584}\ns_lshl_b32 s52, s{S_CT}, 7\ns_add_u32 s{S_WOFF}, s47, s52\ns_lshl_b32 s{S_WLDS}, s{W}, 10")
    M0 = "s[62:63]"
    A("v_and_b32 v30, 15, v1\nv_lshrrev_b32 v29, 4, v1")
    A(f"v_cmp_eq_u32 {M0}, 0, v30\nv_cmp_gt_u32 vcc, 8, v30")
    A("v_cvt_f32_u32 v26, v30\nv_cvt_f32_u32 v27, v29\nv_mul_f32 v27, 4.0, v27      ; k, 4g")
    Lc = A.label("L_c"); cases = [A.label("L_c") for _ in range(7)]
    A("s_mov_b32 s47, 0")
    for n in range(1, 7):
        A(f"s_cmp_eq_u32 s{W}, {n}\ns_cbranch_scc1 {cases[n]}")
    A(f"; wave 0 (and 7): B1RE\nv_mul_f32 v20, {fhex(1/32)}, v26\nv_mov_b32 v22, 0\ns_mov_b32 s47, {fhex(16.0)}\nv_mov_b32 v21, v20\nv_mov_b32 v23, 0\ns_branch {Lc}")
    A(f"{cases[1]}:\nv_mul_f32 v20, {fhex(1/32)}, v26\nv_mov_b32 v22, {fhex(0.25)}\nv_cndmask_b32 v20, v20, 0.5, {M0}\nv_cndmask_b32 v22, v22, 0, {M0}")
    A(f"s_mov_b32 s47, {fhex(16.0)}\nv_mov_b32 v21, v20\nv_mov_b32 v23, v22\ns_branch {Lc}")
    A(f"{cases[2]}:\nv_mul_f32 v20, {fhex(1/16)}, v26\nv_mov_b32 v22, 0\nv_mov_b32 v23, {fhex(0.75)}\nv_mov_b32 v21, v20\ns_branch {Lc}")
    A(f"{cases[3]}:\nv_mul_f32 v20, {fhex(1/16)}, v26\nv_cndmask_b32 v23, 0.5, 0, vcc\nv_add_f32 v22, {fhex(0.25)}, v23\nv_mov_b32 v21, v20\ns_branch {Lc}")
    for n in (4, 5):
        A(f"{cases[n]}:\nv_mul_f32 v20, {fhex(1/16)}, v26\nv_cndmask_b32 v21, v20, 0.5, {M0}\nv_sub_f32 v24, {fhex(31/32)}, v20")
        A("v_cndmask_b32 v20, 0, v21, vcc\nv_cndmask_b32 v21, v24, 0, vcc")
        if n == 4: A(f"v_mov_b32 v24, {fhex(0.25)}\nv_cndmask_b32 v22, v24, 0, vcc\nv_cndmask_b32 v23, 0, v24, vcc")
        else: A(f"v_mov_b32 v22, {fhex(0.25)}\nv_mov_b32 v23, v22")
        A(f"s_branch {Lc}")
    A(f"{cases[6]}:\nv_mul_f32 v20, {fhex(1/512)}, v26\nv_mov_b32 v22, 0\nv_mov_b32 v23, {fhex(0.75)}\nv_mov_b32 v21, v20")
    A(f"{Lc}:")
    A("v_fma_f32 v22, v27, v20, v22\nv_add_f32 v24, s47, v27\nv_fma_f32 v23, v24, v21, v23")
    for (b, v, o) in ((22, 20, T), (23, 21, T + 4)):
        A(f"v_cos_f32 v{o}, v{b}\nv_add_f32 v{o+1}, v{b}, v{v}\nv_fma_f32 v{o+2}, v{v}, 2.0, v{b}\nv_fmamk_f32 v{o+3}, v{v}, {fhex(3.0)}, v{b}")
        for q in (1, 2, 3): A(f"v_cos_f32 v{o+q}, v{o+q}")
    g1_stage(A, 7, 46)
    A("s_lshl_b32 s46, s46, 13")
    A(f"s_add_u32 s47, s46, s{S_WLDS}\nv_add_u32 v24, s47, v2")
    L6 = A.label("L_c6"); L7 = A.label("L_c7")
    A(f"s_cmp_eq_u32 s{W}, 6\ns_cbranch_scc1 {L6}\ns_cmp_eq_u32 s{W}, 7\ns_cbranch_scc1 {L7}")
    for q in range(4): A(f"v_cvt_pk_bf16_f32 v{T+q}, v{T+2*q}, v{T+2*q+1}")
    A(f"ds_write_b128 v24, v[{T}:{T+3}]\ns_branch {L7}")
    A(f"{L6}:\nds_write_b128 v24, v[{T}:{T+3}]\nds_write_b128 v24, v[{T+4}:{T+7}] offset:1024\n{L7}:")
    A(f"s_mul_i32 s61, s{W}, 1040\ns_add_u32 s61, s61, {XNL}")
    A("v_add_u32 v96, s61, v2\nv_lshl_add_u32 v97, v1, 3, s61")
    A("v_and_b32 v100, 7, v1\nv_mul_u32_u24 v98, 1040, v100\nv_lshrrev_b32 v99, 3, v1")
    A(f"s_lshl_b32 s61, s{W}, 4\nv_add_u32 v99, s61, v99\nv_lshl_add_u32 v98, v99, 4, v98\nv_add_u32 v98, {XNL}, v98")
    A("v_lshlrev_b32 v100, 4, v100\nv_lshl_add_u32 v99, v99, 9, v100")
    A(f"s_lshl_b32 s54, s44, 15\ns_lshl_b32 s55, s45, 7\ns_add_u32 s54, s54, s55\ns_add_u32 s54, s54, {WS_XN}")
    A("v_add_u32 v108, s46, v2")
    A(f"v_lshlrev_b32 v100, 11, v29\nv_lshl_add_u32 v100, v30, 5, v100\ns_lshl_b32 s61, s{W}, 1\ns_add_u32 s61, s61, {ZL}")
    A("v_add_u32 v100, s61, v100")
    A(f"s_waitcnt lgkmcnt(0)\ns_add_u32 s{S_TAG}, s{S_TAG}, {TAGK}")
    A("; ---- P0: layernorm")
    stamp(A, "consts")
    Lw = A.label("L_p0_w"); Lw2 = A.label("L_p0_w2")
    A(f"s_cmp_lt_u32 s{W}, 4\ns_cbranch_scc1 {Lw}\ns_waitcnt vmcnt(3)\ns_branch {Lw2}\n{Lw}:\ns_waitcnt vmcnt(0)\n{Lw2}:")
    stamp(A, "x")
    for q in range(4):
        A(f"v_lshlrev_b32 v{T+2*q}, 16, v{4+q}\nv_and_b32 v{T+2*q+1}, 0xffff0000, v{4+q}")
    A(f"v_pk_add_f32 v[{T+8}:{T+9}], v[{T}:{T+1}], v[{T+2}:{T+3}]\nv_pk_add_f32 v[{T+10}:{T+11}], v[{T+4}:{T+5}], v[{T+6}:{T+7}]")
    A(f"v_pk_add_f32 v[{T+8}:{T+9}], v[{T+8}:{T+9}], v[{T+10}:{T+11}]\nv_add_f32 v{T+8}, v{T+8}, v{T+9}")
    wave_sum(A, T + 8, 57)
    A(f"v_mov_b32 v{T+9}, {fhex(1.0/512)}\nv_mul_f32 v{T+9}, s57, v{T+9}")
    A(f"v_cvt_pk_bf16_f32 v{T+10}, v{T+9}, v{T+9}")
    for q in range(8): A(f"v_sub_f32 v{T+16+q}, v{T+q}, v{T+9}")
    A(f"v_lshlrev_b32 v{T+10}, 16, v{T+10}")
    A(f"v_mul_f32 v{T+8}, v{T+16}, v{T+16}\nv_mul_f32 v{T+11}, v{T+17}, v{T+17}")
    for q in range(2, 8, 2):
        A(f"v_fmac_f32 v{T+8}, v{T+16+q}, v{T+16+q}\nv_fmac_f32 v{T+11}, v{T+17+q}, v{T+17+q}")
    A(f"v_add_f32 v{T+8}, v{T+8}, v{T+11}")
    fill = [f"v_sub_f32 v{T+q}, v{T+q}, v{T+10}" for q in range(8)] + [f"v_cvt_pk_bf16_f32 v{T+16+q}, v{T+2*q}, v{T+2*q+1}" for q in range(4)]
    for n, mod in enumerate(("row_shr:1 row_mask:0xf", "row_shr:2 row_mask:0xf", "row_shr:4 row_mask:0xf", "row_shr:8 row_mask:0xf",
                "row_bcast:15 row_mask:0xa", "row_bcast:31 row_mask:0xc")):
        A(fill[2*n]); A(fill[2*n+1])
        A(f"v_add_f32_dpp v{T+8}, v{T+8}, v{T+8} {mod} bank_mask:0xf")
    A(f"v_mov_b32 v{T+9}, {fhex(1.0/512)}")
    A(f"v_readlane_b32 s57, v{T+8}, 63")
    for q in range(2):
        A(f"v_lshlrev_b32 v{T+2*q}, 16, v{T+16+q}\nv_and_b32 v{T+2*q+1}, 0xffff0000, v{T+16+q}")
    A(f"v_mul_f32 v{T+9}, s57, v{T+9}")
    A(f"v_cvt_pk_bf16_f32 v{T+9}, v{T+9}, v{T+9}\nv_lshlrev_b32 v{T+9}, 16, v{T+9}")
    A(f"v_add_f32 v{T+9}, {fhex(1e-5)}, v{T+9}")
    A(f"v_cvt_pk_bf16_f32 v{T+9}, v{T+9}, v{T+9}\nv_lshlrev_b32 v{T+9}, 16, v{T+9}")
    A(f"v_sqrt_f32 v{T+9}, v{T+9}")
    A(f"v_lshlrev_b32 v{T+4}, 16, v{T+18}")
    A(f"v_cvt_pk_bf16_f32 v{T+9}, v{T+9}, v{T+9}\nv_lshlrev_b32 v{T+9}, 16, v{T+9}")
    A(f"v_rcp_f32 v{T+9}, v{T+9}")
    A(f"v_and_b32 v{T+5}, 0xffff0000, v{T+18}\nv_lshlrev_b32 v{T+6}, 16, v{T+19}\nv_and_b32 v{T+7}, 0xffff0000, v{T+19}")
    for q in range(8): A(f"v_mul_f32 v{T+q}, v{T+9}, v{T+q}")
    for q in range(4): A(f"v_cvt_pk_bf16_f32 v{4+q}, v{T+2*q}, v{T+2*q+1}")
    stamp(A, "ln")
    A("ds_write_b128 v96, v[4:7]")
    A("s_waitcnt lgkmcnt(0)")
    A("ds_read_b64_tr_b16 v[8:9], v97\nds_read_b64_tr_b16 v[10:11], v97 offset:512")
    A("s_barrier")
    Lx = A.label("L_p0_x")
    A(f"s_cmp_ge_u32 s{W}, 4\ns_cbranch_scc1 {Lx}")
    A("ds_read_b128 v[4:7], v98\nds_read_b128 v[12:15], v98 offset:128")
    A("s_add_u32 s55, s54, 4096\ns_waitcnt lgkmcnt(1)")
    A(f"buffer_store_dwordx4 v[4:7], v99, {WSR}, s54 offen sc1")
    A("s_waitcnt lgkmcnt(0)")
    A(f"buffer_store_dwordx4 v[12:15], v99, {WSR}, s55 offen sc1")
    A(f"{Lx}:")
    stamp(A, "xnst")
    for n in range(8): A(f"ds_read_b128 v[{64+4*n}:{67+4*n}], v108 offset:{1024*n}")
    A("s_waitcnt lgkmcnt(6)")
    A(f"v_mfma_f32_16x16x32_bf16 v[{T}:{T+3}], v[8:11], v[{B1RE}:{B1RE+3}], 0")
    A(f"v_mfma_f32_16x16x32_bf16 v[{T+4}:{T+7}], v[8:11], v[{B1IM}:{B1IM+3}], 0")
    A("s_waitcnt lgkmcnt(0)")
    Lw2 = A.label("L_p0_w2")
    A(f"s_cmp_lt_u32 s{W}, 4\ns_cbranch_scc1 {Lw2}\ns_cmp_ge_u32 s{S_SLOT}, 28\ns_cbranch_scc1 {Lw2}")
    g1w_dma(A, 0, True)
    A(f"{Lw2}:")
    stamp(A, "iss1")
    for i in range(0, 4, 2):
        A(f"v_pk_mul_f32 v[{T+8+i}:{T+9+i}], v[{T+i}:{T+i+1}], v[{TWC+i}:{TWC+i+1}]\nv_pk_mul_f32 v[{T+12+i}:{T+13+i}], v[{T+4+i}:{T+5+i}], v[{TWC+i}:{TWC+i+1}]")
    for i in range(0, 4, 2):
        A(f"v_pk_fma_f32 v[{T+8+i}:{T+9+i}], v[{T+4+i}:{T+5+i}], v[{TWS+i}:{TWS+i+1}], v[{T+8+i}:{T+9+i}]")
        A(f"v_pk_fma_f32 v[{T+12+i}:{T+13+i}], v[{T+i}:{T+i+1}], v[{TWS+i}:{TWS+i+1}], v[{T+12+i}:{T+13+i}] neg_lo:[1,0,0] neg_hi:[1,0,0]")
    for q in range(4): A(f"v_cvt_pk_bf16_f32 v{8+q}, v{T+8+2*q}, v{T+9+2*q}")
    A(f"v_mfma_f32_16x16x32_bf16 v[{T}:{T+3}], v[{A2RE}:{A2RE+3}], v[8:11], 0")
    A(f"v_mfma_f32_16x16x32_bf16 v[{T+4}:{T+7}], v[{A2IM}:{A2IM+3}], v[8:11], 0")
    A(f"v_mfma_f32_16x16x32_bf16 v[{T+8}:{T+11}], v[{S2RE}:{S2RE+3}], v[8:11], 0")
    A(f"v_mfma_f32_16x16x32_bf16 v[{T+12}:{T+15}], v[{S2IM}:{S2IM+3}], v[8:11], 0")
    for i in range(8): A(f"v_cndmask_b32 v{T+i}, v{T+i}, v{T+8+i}, {M0}")
    for i in range(4): A(f"v_cvt_pk_bf16_f32 v{T+i}, v{T+i}, v{T+4+i}")
    for i in range(4):
        A(f"ds_write_b16 v100, v{T+i} offset:{512*i}\nds_write_b16_d16_hi v100, v{T+i} offset:{512*i+16}")
    stamp(A, "fft")
    Lh = A.label("L_p0_hi"); Lj = A.label("L_p0_j")
    A(f"s_cmp_ge_u32 s{W}, 4\ns_cbranch_scc1 {Lh}")
    A(f"s_lshl_b32 s57, s{S_WG}, 2\ns_add_u32 s57, s57, s{W}\ns_lshl_b32 s57, s57, 6\ns_add_u32 s57, s57, {FL_A}")
    A("s_waitcnt vmcnt(0)")
    set_flag(A, 57, 26, True)
    stamp(A, "xnack")
    A(f"s_waitcnt lgkmcnt(0)\ns_barrier\ns_branch {Lj}")
    A(f"{Lh}:")
    A("v_and_b32 v12, 255, v0")
    A(f"v_lshlrev_b32 v101, 4, v12\nv_add_u32 v101, {ZL}, v101")
    A("s_and_b32 s61, s44, 15\nv_and_b32 v103, 15, v0\nv_xor_b32 v102, s61, v103\nv_lshlrev_b32 v102, 4, v102")
    A("v_lshrrev_b32 v12, 4, v12")
    A("v_lshl_add_u32 v102, v12, 16, v102\nv_lshlrev_b32 v103, 4, v103\nv_lshl_add_u32 v103, v12, 16, v103")
    A(f"s_lshl_b32 s55, s44, 10\ns_lshl_b32 s56, s45, 8\ns_add_u32 s55, s55, s56\ns_add_u32 s55, s55, {WS_Z}")
    A(f"s_lshl_b32 s56, s{S_WG}, 8\ns_add_u32 s56, s56, {WS_WP}")
    A("s_add_u32 s53, s55, 0x100000\ns_add_u32 s54, s56, 0x100000")
    A("v_lshrrev_b32 v13, 1, v12\nv_lshlrev_b32 v20, 5, v13           ; 32 k2 (k2 < 8)")
    A("v_mov_b32 v15, 0x100\nv_cmp_eq_u32 vcc, 0, v13\nv_cndmask_b32 v22, v20, v15, vcc")
    A("v_sub_u32 v21, 0x100, v20\nv_subrev_u32 v23, 16, v21")
    A(f"v_bfe_u32 v13, v0, 3, 1\ns_lshl_b32 s61, s{S_WG}, 1\nv_add_u32 v13, s61, v13\nv_and_b32 v13, 7, v13")
    A("v_and_b32 v14, 1, v0\nv_lshlrev_b32 v14, 2, v14\nv_xor_b32 v13, v13, v14")
    A("v_and_b32 v14, 1, v12\nv_lshl_or_b32 v13, v14, 3, v13")
    A(f"v_bfe_u32 v14, v0, 1, 3\nv_mul_u32_u24 v14, 514, v14\nv_add_u32 v14, {WL}, v14")
    for q in range(4):
        A(f"v_xor_b32 v15, {q}, v13\nv_add_u32 v{40+q}, v20, v15\nv_sub_u32 v{44+q}, v21, v15\nv_cmp_eq_u32 vcc, 0, v15")
        A(f"v_cndmask_b32 v{40+q}, v{40+q}, v22, vcc\nv_cndmask_b32 v{44+q}, v{44+q}, v23, vcc")
        A(f"v_lshl_add_u32 v{40+q}, v{40+q}, 1, v14\nv_lshl_add_u32 v{44+q}, v{44+q}, 1, v14")
    Lw = A.label("L_p0_w"); Lw2 = A.label("L_p0_w2")
    A(f"s_cmp_ge_u32 s{S_SLOT}, 28\ns_cbranch_scc1 {Lw}\ns_waitcnt vmcnt(4)\ns_branch {Lw2}\n{Lw}:\ns_waitcnt vmcnt(0)\n{Lw2}:")
    stamp(A, "pre2")
    A("s_waitcnt lgkmcnt(0)\ns_barrier")
    stamp(A, "b2")
    A("ds_read_b128 v[4:7], v101\nds_read_b128 v[8:11], v101 offset:4096")
    for q in range(8):
        A(f"ds_read_u16 v{48+q}, v{40+q}\nds_read_u16 v{56+q}, v{40+q} offset:4160")
        if q == 5:
            A("s_waitcnt lgkmcnt(12)")
            A(f"buffer_store_dwordx4 v[4:7], v102, {WSR}, s55 offen sc1\nbuffer_store_dwordx4 v[8:11], v102, {WSR}, s53 offen sc1")
    A("s_waitcnt lgkmcnt(0)")
    stamp(A, "gath")
    for q in range(8): A(f"v_lshl_or_b32 v{48+q}, v{56+q}, 16, v{48+q}")
    A(f"buffer_store_dwordx4 v[48:51], v103, {WSR}, s56 offen sc1\nbuffer_store_dwordx4 v[52:55], v103, {WSR}, s54 offen sc1")
    stamp(A, "stiss")
    A("s_waitcnt vmcnt(0)")
    A(f"{Lj}:")
    A(f"s_lshl_b32 s57, s{S_WG}, 7\ns_add_u32 s57, s57, {FL_B}")
    stamp(A, "p0end")

def wd_prefetch_setup(A, va, sreg, tmp=11):
    srd(A, S_X, P_WD, 1792 * 1024)
    if C.g2map == "48":
        A(f"v_lshlrev_b32 v{va}, 4, v1")
        A(f"s_lshl_b32 s{sreg}, s{S_SLOT}, 16\ns_lshl_b32 s60, s{S_WAVE}, 13\ns_add_u32 s{sreg}, s{sreg}, s60")
        A(f"s_mov_b32 s{sreg+1}, s{S_XCD}")
        return 8, 10
    else:
        A(f"v_and_b32 v{va}, 31, v1\nv_lshlrev_b32 v{va}, 4, v{va}\nv_lshrrev_b32 v{tmp}, 5, v1\nv_lshl_add_u32 v{va}, v{tmp}, 10, v{va}")
        A(f"s_lshl_b32 s{sreg}, s{S_SLOT}, 16\ns_lshl_b32 s60, s{S_WAVE}, 13\ns_add_u32 s{sreg}, s{sreg}, s60")
        A(f"s_and_b32 s60, s{S_XCD}, 1\ns_lshl_b32 s60, s60, 9\ns_add_u32 s{sreg}, s{sreg}, s60")
        A(f"s_lshr_b32 s{sreg+1}, s{S_XCD}, 1")
        return 4, 11
def wd_prefetch(A, va, sreg, n, sh):
    A(f"s_add_u32 m0, s{S_WLDS}, 152576\ns_lshl_b32 s60, s{sreg+1}, {sh}\ns_add_u32 s60, s60, s{sreg}")
    A(f"buffer_load_dwordx4 v{va}, {XR}, s60 offen lds")
    A(f"s_add_u32 s{sreg+1}, s{sreg+1}, 1\ns_cmp_eq_u32 s{sreg+1}, {n}\ns_cselect_b32 s{sreg+1}, 0, s{sreg+1}")

V_G2W = 13
def g2_setup(A):
    W = S_WAVE
    if C.g2map == "48":
        A(f"s_lshl_b32 s44, s{S_XCD}, 2\ns_and_b32 s45, s{S_SLOT}, 3\ns_add_u32 s44, s44, s45\ns_lshr_b32 s45, s{S_SLOT}, 2\ns_mov_b32 s52, s45")
    else:
        A(f"s_lshr_b32 s44, s{S_XCD}, 1\ns_lshl_b32 s44, s44, 3\ns_and_b32 s45, s{S_SLOT}, 7\ns_add_u32 s44, s44, s45")
        A(f"s_and_b32 s45, s{S_XCD}, 1\ns_lshl_b32 s45, s45, 2\ns_lshr_b32 s46, s{S_SLOT}, 3\ns_add_u32 s45, s45, s46\ns_lshl_b32 s52, s46, 1")
    if not C.rot2: A("s_mov_b32 s52, 0")
    srd(A, S_A, P_WD, 1792 * 1024)
    A(f"s_and_b32 s48, s{W}, 3\ns_lshr_b32 s49, s{W}, 2")
    A("s_cmp_eq_u32 s49, 0\ns_cselect_b32 s59, 9, 5\ns_cmp_ge_u32 s52, s59\ns_cselect_b32 s46, s59, 0\ns_sub_u32 s52, s52, s46\ns_mov_b32 s53, s52\ns_mov_b32 s63, s59")
    A("s_lshl_b32 s50, s44, 2\ns_add_u32 s50, s50, s48       ; rb16")
    A(f"v_lshrrev_b32 v{V_G2W}, 3, v1\nv_bfe_u32 v14, v1, 4, 2\nv_lshlrev_b32 v14, 1, v14\nv_and_b32 v15, 7, v1\nv_xor_b32 v14, v14, v15")
    A(f"v_lshlrev_b32 v{V_G2W}, 10, v{V_G2W}\nv_lshl_add_u32 v{V_G2W}, v14, 4, v{V_G2W}")
    A(f"s_lshl_b32 s46, s48, 15\ns_lshl_b32 s58, s45, 7\ns_add_u32 s58, s58, s46\ns_mul_i32 s51, s49, {1152*1024}\ns_add_u32 s51, s51, s58")
    A(f"s_add_u32 s58, s58, {WS_G}")
    A("s_lshl_b32 s55, s49, 14\ns_lshl_b32 s56, s48, 12\ns_add_u32 s55, s55, s56")
    srd(A, S_X, P_X, 2097152)
    A("v_and_b32 v14, 15, v1\ns_and_b32 s56, s50, 1\ns_lshl_b32 s56, s56, 4\nv_add_u32 v14, s56, v14")
    A("v_and_b32 v244, 0x13, v14\nv_bfe_u32 v15, v14, 2, 1\nv_lshl_or_b32 v244, v15, 3, v244\nv_bfe_u32 v15, v14, 3, 1\nv_lshl_or_b32 v244, v15, 2, v244")
    A("v_lshlrev_b32 v244, 16, v244\nv_lshrrev_b32 v15, 4, v1\nv_lshl_add_u32 v244, v15, 3, v244")
    A("s_lshr_b32 s56, s50, 1\ns_lshl_b32 s56, s56, 10\ns_lshl_b32 s46, s45, 7\ns_add_u32 s56, s56, s46\ns_lshl_b32 s46, s49, 6\ns_add_u32 s56, s56, s46")
def g2_xload(A):
    A(f"buffer_load_dwordx2 v[240:241], v244, {XR}, s56 offen {C.nt_x2}\nbuffer_load_dwordx2 v[242:243], v244, {XR}, s56 offen offset:32 {C.nt_x2}")
def g2_next(A, sig):
    if (sig == 52 and "w" in C.dbg) or (sig == 53 and "a" in C.dbg): return
    A(f"s_add_u32 s{sig}, s{sig}, 1\ns_cmp_eq_u32 s{sig}, s{59 if sig == 52 else 63}\ns_cselect_b32 s{sig}, 0, s{sig}")
def g2_wdma(A, n):
    A("s_lshl_b32 s60, s52, 17\ns_add_u32 s60, s60, s51")
    for k in range(4):
        A(f"s_add_u32 m0, s55, {(n & 3)*32768 + k*1024}")
        A(f"buffer_load_dwordx4 v{V_G2W}, {AR}, s60 offen{' sc1' if n >= 5 else ''} lds")
        if k < 3: A("s_add_u32 s60, s60, 8192")
    g2_next(A, 52)

def gelu_block(A, g, u, T):
    P = lambda r: f"v[{r}:{r+1}]"
    L = []
    for n in range(0, 8, 2): L.append(f"v_pk_mul_f32 {P(T+n)}, {P(g+n)}, {P(g+n)}")
    for n in range(0, 8, 2): L.append(f"v_pk_fma_f32 {P(T+n)}, {P(T+n)}, v[20:21], v[22:23]")
    for n in range(0, 8, 2): L.append(f"v_pk_mul_f32 {P(T+n)}, {P(T+n)}, {P(g+n)}")
    for n in range(8): L.append(f"v_exp_f32 v{T+n}, v{T+n}")
    for n in range(0, 8, 2): L.append(f"v_pk_mul_f32 {P(T+8+n)}, {P(g+n)}, {P(u+n)}")
    for n in range(0, 8, 2): L.append(f"v_pk_add_f32 {P(T+n)}, {P(T+n)}, v[24:25]")
    for n in range(8): L.append(f"v_rcp_f32 v{T+n}, v{T+n}")
    for n in range(0, 8, 2): L.append(f"v_pk_mul_f32 {P(T+n)}, {P(T+n)}, {P(T+8+n)}")
    for q in range(4): L.append(f"v_cvt_pk_bf16_f32 v{T+8+q}, v{T+2*q}, v{T+2*q+1}")
    return L

def phase_g1(A):
    W = S_WAVE
    ACC = 64; ACT = 128; WF = 32
    A("; ---- G1")
    L = A.label("L_g1_np")
    A(f"s_cmp_lg_u32 s{W}, 0\ns_cbranch_scc1 {L}")
    A(f"v_lshlrev_b32 v8, 6, v1\ns_lshl_b32 s58, s{S_RT}, 13\ns_add_u32 s58, s58, {FL_A}\ns_add_u32 s59, s58, 4096")
    poll(A, [(8, "s58"), (8, "s59")], 16)
    stamp(A, "polled")
    A(f"{L}:")
    A("v_lshlrev_b32 v3, 4, v1")
    A(f"s_lshl_b32 s50, s{S_RT}, 3\ns_add_u32 s50, s50, s{W}\ns_lshl_b32 s51, s50, 15\ns_add_u32 s51, s51, {WS_XN}")
    A("s_barrier")
    stamp(A, "rdy1")
    vm = []
    def act(j, k):
        if k == 0:
            g1_stage(A, j, 53); A("s_lshl_b32 s53, s53, 12\ns_add_u32 s53, s53, s51")
        kk = 4 * j + k
        A(f"buffer_load_dwordx4 v[{ACT+4*kk}:{ACT+4*kk+3}], v3, {WSR}, s53 offen offset:{1024*k} sc1")
        vm.append(("a", kk))
    def wdma(j):
        g1w_dma(A, j); vm.append(("w", j)); vm.append(("w", j))
    for k in range(4): act(0, k)
    set_flag(A, 57, 16)
    A("s_barrier")
    wdma(1)
    for k in range(4): act(1, k)
    A("v_lshrrev_b32 v8, 5, v1\nv_lshlrev_b32 v8, 3, v8\nv_bfe_u32 v9, v1, 2, 2\nv_add_u32 v8, v8, v9\nv_lshlrev_b32 v8, 7, v8")
    A("v_and_b32 v10, 3, v1\nv_lshl_add_u32 v8, v10, 3, v8\nv_bfe_u32 v10, v1, 4, 1\nv_lshl_add_u32 v8, v10, 5, v8")
    A("v_lshrrev_b32 v9, 1, v9\nv_lshl_add_u32 v26, v9, 6, v8\nv_xor_b32 v27, 64, v26")
    A("v_add_u32 v28, 0x10000, v26\nv_add_u32 v29, 0x10000, v27")
    A("v_and_b32 v10, 15, v1\nv_lshlrev_b32 v10, 4, v10\nv_lshrrev_b32 v11, 5, v1\nv_lshl_add_u32 v10, v11, 8, v10")
    A("v_bfe_u32 v11, v1, 4, 1\nv_mul_u32_u24 v11, 57344, v11\nv_add_u32 v10, v10, v11")
    A(f"s_mul_i32 s47, s50, {2*57344}\ns_lshl_b32 s52, s{S_CT}, 11\ns_add_u32 s47, s47, s52\ns_add_u32 s47, s47, {WS_H}")
    K1 = -2.0 * 0.7978845608028654 * 1.4426950408889634
    A(f"v_mov_b32 v20, {fhex(K1*0.044715)}\nv_mov_b32 v21, v20\nv_mov_b32 v22, {fhex(K1)}\nv_mov_b32 v23, v22\nv_mov_b32 v24, 1.0\nv_mov_b32 v25, 1.0")
    npf, pfsh = wd_prefetch_setup(A, 2, 54)
    def raddr(j):
        g1_stage(A, j, 52); A("s_lshl_b32 s52, s52, 13")
        for n in range(4): A(f"v_add_u32 v{4+n}, s52, v{26+n}")
    def reads(k, st, fs=(0, 1, 2, 3)):
        r = []
        for f in fs:
            va = (4, 6, 5, 7)[f]; d = WF + 16 * st + 4 * f
            r.append(f"ds_read_b64_tr_b16 v[{d}:{d+1}], v{va} offset:{k*2048}")
            r.append(f"ds_read_b64_tr_b16 v[{d+2}:{d+3}], v{va} offset:{k*2048+512}")
        return r
    def younger(op):
        return len(vm) - 1 - max(i for i, o in enumerate(vm) if o == op)
    raddr(0)
    A(f"s_waitcnt vmcnt({younger(('a', 0))})\ns_barrier")
    stamp(A, "go")
    for r in reads(0, 0): A(r)
    pf = 0
    for kk in range(32):
        j, k = kk // 4, kk % 4
        st = kk & 1
        if k == 3 and kk < 31:
            A(f"s_waitcnt vmcnt({younger(('w', j + 1))})")
            raddr(j + 1)
            A("s_barrier")
        nxt = reads((k + 1) & 3, st ^ 1) if kk < 31 else []
        for f in range(4):
            for r in nxt[2*f:2*f+2]: A(r)
            if f == 0:
                A(f"s_waitcnt vmcnt({younger(('a', kk))}) lgkmcnt({6 + len(nxt[0:2])})")
            else:
                A(f"s_waitcnt lgkmcnt({6 - 2*f + len(nxt[0:2*f+2])})")
            d = WF + 16 * st + 4 * f
            c = f"v[{ACC+16*f}:{ACC+16*f+15}]"
            A(f"v_mfma_f32_32x32x16_bf16 {c}, v[{d}:{d+3}], v[{ACT+4*kk}:{ACT+4*kk+3}], {c if kk else 0}")
            if f == 0 and j + 2 < 8:
                if k == 0: wdma(j + 2)
                act(j + 2, k)
            if f == 2 and pf < npf and kk >= C.pf_start and (kk - C.pf_start) % C.pf_step == 0:
                wd_prefetch(A, 2, 54, npf, pfsh); vm.append(("p", pf)); pf += 1
    assert pf == npf or C.pf_start > 31
    stamp(A, "main")
    g2_setup(A)
    A("s_barrier")
    for blk in range(2):
        for half in range(2):
            n = 2 * blk + half
            if n < C.nepi: g2_wdma(A, n)
            T = 128 + 16 * n
            for l in gelu_block(A, ACC + 32 * blk + 8 * half, ACC + 32 * blk + 16 + 8 * half, T): A(l)
            A(f"buffer_store_dwordx4 v[{T+8}:{T+11}], v10, {WSR}, s47 offen offset:{1024*blk+512*half} sc1")
    stamp(A, "epi")
    if C.nepi < 4: g2_wdma(A, C.nepi)
    A(f"s_waitcnt vmcnt({4 if C.nepi < 4 else 0})\ns_barrier")
    A(f"s_lshl_b32 s57, s{S_RT}, 5\ns_add_u32 s57, s57, s{S_CT}\ns_lshl_b32 s57, s57, 7\ns_add_u32 s57, s57, {FL_H}")
    set_flag(A, 57, 16)
    for n in range(C.nepi + 1, 4): g2_wdma(A, n)
    stamp(A, "flag2")

def phase_cf(A):
    W = S_WAVE
    ZL = 0; WL = 65536; TW = 131072; FR = TW + 8192
    D0 = 64; D1 = 128; PK = 192; WW = 224
    FC, FS, FN = 8, 16, 24
    OC, OS, ON = 32, 40, 48
    A("; ---- CF")
    A(f"s_lshl_b32 s44, s{S_XCD}, 2\ns_add_u32 s44, s44, s{S_SLOT}\ns_sub_u32 s44, s44, 28    ; cg")
    A("s_waitcnt vmcnt(0)\ns_barrier")
    set_flag(A, 57, 16)
    A(f"s_lshl_b32 s46, s{W}, 1\nv_lshrrev_b32 v8, 5, v1\nv_add_u32 v8, s46, v8")
    A("v_and_b32 v9, 3, v8\nv_bfe_u32 v10, v8, 3, 1\nv_lshl_or_b32 v9, v10, 2, v9      ; beta")
    A("s_and_b32 s46, s44, 1\ns_lshl_b32 s46, s46, 3\nv_or_b32 v9, s46, v9         ; k1")
    A("s_lshr_b32 s46, s44, 1\ns_lshl_b32 s47, s46, 5\ns_sub_u32 s48, 0x200, s47\ns_cmp_lt_u32 s46, 8")
    A(f"s_cselect_b32 s49, s47, s48\ns_cselect_b32 s50, 1, -1\ns_sub_u32 s48, s48, 16\ns_cmp_lt_u32 s46, 8\ns_cselect_b32 s48, s47, s48")
    A("s_cmp_eq_u32 s46, 0\ns_cselect_b32 s48, 0x100, s48")
    A("v_mov_b32 v11, s49\nv_mad_i32_i24 v10, v9, s50, v11\nv_mov_b32 v11, s48\nv_cmp_eq_u32 vcc, 0, v9\nv_cndmask_b32 v10, v10, v11, vcc   ; bin")
    A(f"v_mov_b32 v11, {fhex(2.0**-19)}\nv_mov_b32 v12, {fhex(2.0**-20)}\nv_cmp_eq_u32 vcc, 0x100, v10\nv_cndmask_b32 v12, v11, v12, vcc\nv_mov_b32 v13, v12")
    A(f"v_cvt_f32_u32 v10, v10\nv_mul_f32 v10, {fhex(1/512)}, v10")
    A(f"v_bfe_u32 v11, v8, 2, 1\nv_cvt_f32_u32 v11, v11\nv_mul_f32 v11, {fhex(0.25)}, v11")
    A("v_and_b32 v14, 31, v1\nv_lshlrev_b32 v15, 3, v14\nv_cvt_f32_u32 v15, v15\nv_fma_f32 v64, v15, v10, v11")
    A(f"v_fmamk_f32 v72, v10, {fhex(256.0)}, v64\nv_fract_f32 v72, v72")
    for b in (64, 72):
        for j in range(1, 8): A(f"v_fmamk_f32 v{b+j}, v10, {fhex(float(j))}, v{b}")
    for j in range(16): A(f"v_cos_f32 v{64+j}, v{64+j}")
    for j in range(0, 16, 2): A(f"v_pk_mul_f32 v[{64+j}:{65+j}], v[{64+j}:{65+j}], v[12:13]")
    for q in range(8): A(f"v_cvt_pk_bf16_f32 v{64+q}, v{64+2*q}, v{65+2*q}")
    A(f"v_lshlrev_b32 v14, 4, v14\nv_lshl_add_u32 v14, v8, 10, v14\ns_lshl_b32 s46, s44, 14\ns_add_u32 s46, s46, {WS_G}")
    A(f"buffer_store_dwordx4 v[64:67], v14, {WSR}, s46 offen sc1\nbuffer_store_dwordx4 v[68:71], v14, {WSR}, s46 offen offset:512 sc1")
    A("v_and_b32 v3, 31, v1\nv_lshrrev_b32 v4, 5, v1\nv_lshlrev_b32 v4, 2, v4")
    A(f"s_and_b32 s52, s{W}, 3\ns_lshl_b32 s52, s52, 3\ns_lshr_b32 s53, s{W}, 2\ns_mul_i32 s53, s53, 1536")
    A("v_add_u32 v5, s52, v4")
    for b in range(4):
        A(f"v_add_u32 v6, {b}, v5\nv_mad_u32_u24 v{64+b}, v6, v3, s53")
    def frag(dst, matsel):
        A(f"s_and_b32 s54, s{W}, 1\ns_lshl_b32 s54, s54, 4")
        A(f"s_lshr_b32 s55, s{W}, 1\ns_and_b32 s55, s55, 1\ns_mul_i32 s55, s55, 48")
        if matsel == 0: A(f"s_lshr_b32 s56, s{W}, 2\nv_lshl_add_u32 v7, v3, 1, s56")
        for j in range(8):
            A(f"v_add_u32 v6, s54, v4\nv_add_u32 v6, {8*(j>>2) + (j&3)}, v6")
            if matsel == 0: A(f"v_mad_u32_u24 v{dst+j}, v6, v7, s55")
            else: A(f"v_lshl_add_u32 v6, v6, 1, 1\nv_mad_u32_u24 v{dst+j}, v6, v3, s55")
    frag(80, 0); frag(88, 1)
    cos_batch(A, range(64, 68), 2047, 1.0 / 2048)
    cos_batch(A, range(80, 96), 63, 1.0 / 64)
    A(f"s_lshl_b32 s52, s52, 8\ns_lshr_b32 s53, s{W}, 2\ns_lshl_b32 s53, s53, 10\ns_add_u32 s52, s52, s53\ns_add_u32 s52, s52, {TW}")
    A("v_add_u32 v5, s52, v2\nds_write_b128 v5, v[64:67]")
    for q in range(8): A(f"v_cvt_pk_bf16_f32 v{80+q}, v{80+2*q}, v{81+2*q}")
    A(f"s_lshl_b32 s52, s{W}, 10\ns_add_u32 s52, s52, {FR}\nv_add_u32 v5, s52, v2")
    A("ds_write_b128 v5, v[80:83]")
    Ls = A.label("L_cf_skip")
    A(f"s_cmp_ge_u32 s{W}, 4\ns_cbranch_scc1 {Ls}\nds_write_b128 v5, v[84:87] offset:8192\n{Ls}:")
    A(f"v_add_u32 v56, {TW}, v2\nv_add_u32 v57, {FR}, v2")
    A(f"s_lshl_b32 s52, s{W}, 1\nv_and_b32 v6, 15, v1\nv_xor_b32 v6, s52, v6\nv_lshlrev_b32 v6, 4, v6")
    A("v_lshl_add_u32 v6, v3, 10, v6\nv_lshl_add_u32 v58, v4, 6, v6\nv_xor_b32 v59, 16, v58")
    A(f"v_lshrrev_b32 v6, 2, v3\nv_xor_b32 v6, s{W}, v6\nv_lshlrev_b32 v6, 2, v6\nv_lshl_add_u32 v6, v3, 5, v6\nv_lshl_add_u32 v6, v4, 11, v6\nv_add_u32 v7, {WL}, v6")
    L = A.label("L_cf_np")
    A(f"s_cmp_lg_u32 s{W}, 0\ns_cbranch_scc1 {L}")
    A(f"v_lshlrev_b32 v6, 7, v1\ns_mov_b32 s57, {FL_B}\ns_mov_b32 s58, {FL_B+8192}\ns_mov_b32 s59, {FL_B+16384}\ns_mov_b32 s60, {FL_B+24576}")
    poll(A, [(6, "s57"), (6, "s58"), (6, "s59"), (6, "s60")], 64)
    A(f"{L}:")
    A("s_waitcnt lgkmcnt(0)\ns_barrier")
    stamp(A, "rdy1")
    A(f"s_lshl_b32 s48, s44, 16\ns_lshl_b32 s49, s{W}, 13\ns_add_u32 s50, s48, s49")
    for (base, lb) in ((WS_Z, ZL), (WS_WP, WL)):
        A(f"s_add_u32 s51, s50, {base}")
        for k in range(8):
            A(f"s_add_u32 m0, s49, {lb + k*1024}")
            A(f"buffer_load_dwordx4 v2, {WSR}, s51 offen sc1 lds")
            if k < 7: A("s_add_u32 s51, s51, 1024")
    def load_frags(Cc, S, mat):
        for m in range(2):
            A(f"ds_read_b128 v[{Cc+4*m}:{Cc+4*m+3}], v57 offset:{(mat*4+m)*1024}")
            A(f"ds_read_b128 v[{S+4*m}:{S+4*m+3}], v57 offset:{(mat*4+2+m)*1024}")
    def neg_frags(S, N):
        for q in range(8): A(f"v_xor_b32 v{N+q}, 0x80008000, v{S+q}")
    def pk(blk, c, m): return PK + 16 * blk + 8 * c + 4 * m
    def acc(D, c, blk): return D + 32 * c + 16 * blk
    def cstage(D, blk, data_is_A, Cc, Sre, Sim):
        for (c, seq) in ((0, ((0, Cc), (1, Sre))), (1, ((1, Cc), (0, Sim)))):
            d = acc(D, c, blk); first = True
            for (cc, K) in seq:
                for m in range(2):
                    dat = f"v[{pk(blk,cc,m)}:{pk(blk,cc,m)+3}]"; con = f"v[{K+4*m}:{K+4*m+3}]"
                    a, b = (dat, con) if data_is_A else (con, dat)
                    A(f"v_mfma_f32_32x32x16_bf16 v[{d}:{d+15}], {a}, {b}, {0 if first else f'v[{d}:{d+15}]'}")
                    first = False
    def pack(D):
        for blk in range(2):
            for c in range(2):
                for q in range(8):
                    s = acc(D, c, blk) + 2 * q
                    A(f"v_cvt_pk_bf16_f32 v{pk(blk,c,0)+q}, v{s}, v{s+1}")
    def tw_load():
        for a in range(4):
            for comp in range(2):
                d = WW + 16 * comp + 4 * a
                A(f"ds_read_b128 v[{d}:{d+3}], v56 offset:{a*2048 + comp*1024}")
    def radix2_tw(conj):
        for i in range(16):
            er, ei, o_r, oi = acc(D0,0,0)+i, acc(D0,1,0)+i, acc(D0,0,1)+i, acc(D0,1,1)+i
            ur, ui, vr_, vi = acc(D1,0,0)+i, acc(D1,1,0)+i, acc(D1,0,1)+i, acc(D1,1,1)+i
            c0, s0 = WW + i, WW + 16 + i
            A(f"v_add_f32 v60, v{er}, v{o_r}\nv_add_f32 v61, v{ei}, v{oi}\nv_sub_f32 v62, v{er}, v{o_r}\nv_sub_f32 v63, v{ei}, v{oi}")
            A(f"v_mul_f32 v{ur}, v60, v{c0}\nv_mul_f32 v{ui}, v61, v{c0}\nv_mul_f32 v{vr_}, v62, v{c0}\nv_mul_f32 v{vi}, v63, v{c0}")
            if conj:
                A(f"v_fma_f32 v{ur}, -v61, v{s0}, v{ur}\nv_fmac_f32 v{ui}, v60, v{s0}\nv_fma_f32 v{vr_}, -v63, v{s0}, v{vr_}\nv_fmac_f32 v{vi}, v62, v{s0}")
            else:
                A(f"v_fmac_f32 v{ur}, v61, v{s0}\nv_fma_f32 v{ui}, -v60, v{s0}, v{ui}\nv_fmac_f32 v{vr_}, v63, v{s0}\nv_fma_f32 v{vi}, -v62, v{s0}, v{vi}")
    load_frags(FC, FS, 0); load_frags(OC, OS, 2)
    tw_load()
    A("s_waitcnt lgkmcnt(8)")
    neg_frags(FS, FN); neg_frags(OS, ON)
    A("s_waitcnt vmcnt(8)\ns_barrier")
    stamp(A, "go")
    for mu in range(2):
        for c in range(2):
            for m in range(2):
                A(f"ds_read_b128 v[{pk(mu,c,m)}:{pk(mu,c,m)+3}], v{58+c} offset:{ZL + mu*32768 + m*512}")
    A("s_waitcnt lgkmcnt(4)")
    cstage(D0, 0, True, FC, FS, FN)
    A("s_waitcnt lgkmcnt(0)")
    cstage(D0, 1, True, OC, OS, ON)
    load_frags(OC, OS, 1)
    radix2_tw(False)
    pack(D1)
    cstage(D0, 0, False, FC, FS, FN)
    A("s_waitcnt lgkmcnt(0)")
    neg_frags(OS, ON)
    cstage(D0, 1, False, OC, OS, ON)
    stamp(A, "main")
    A("s_waitcnt vmcnt(0)\ns_barrier")
    for e in range(2):
        for a in range(4):
            for b in (0, 2):
                d = WW + 16 * e + 4 * a + b; o = a * 64 + b * 8 + e * 4
                A(f"ds_read2st64_b32 v[{d}:{d+1}], v7 offset0:{o} offset1:{o+8}")
    load_frags(OC, OS, 2)
    for e in range(2):
        for i in range(16):
            if i % 4 == 0: A(f"s_waitcnt lgkmcnt({min(15, 4 + 16 - (8*e + i//2 + 2))})")
            w = WW + 16 * e + i
            xr, xi = acc(D0,0,e)+i, acc(D0,1,e)+i
            yr, yi = acc(D1,0,e)+i, acc(D1,1,e)+i
            A(f"v_lshlrev_b32 v60, 16, v{w}\nv_and_b32 v{w}, 0xffff0000, v{w}")
            A(f"v_mul_f32 v{yr}, v{xr}, v60\nv_mul_f32 v{yi}, v{xi}, v60")
            A(f"v_fma_f32 v{yr}, -v{xi}, v{w}, v{yr}\nv_fmac_f32 v{yi}, v{xr}, v{w}")
    tw_load()
    pack(D1)
    cstage(D0, 0, True, FC, FN, FS)
    A("s_waitcnt lgkmcnt(8)")
    neg_frags(OS, ON)
    cstage(D0, 1, True, OC, ON, OS)
    load_frags(OC, OS, 1)
    A("s_waitcnt lgkmcnt(4)")
    radix2_tw(True)
    pack(D1)
    cstage(D0, 0, False, FC, FN, FS)
    A("s_waitcnt lgkmcnt(0)")
    neg_frags(OS, ON)
    cstage(D0, 1, False, OC, ON, OS)
    stamp(A, "epi")
    A(f"s_and_b32 s52, s{W}, 1\ns_lshl_b32 s52, s52, 2\nv_lshrrev_b32 v5, 5, v1\nv_or_b32 v5, s52, v5")
    A("v_and_b32 v6, 7, v1\nv_xor_b32 v5, v5, v6\nv_lshlrev_b32 v5, 4, v5\nv_lshl_add_u32 v5, v3, 10, v5")
    A(f"s_lshr_b32 s52, s{W}, 1\ns_lshl_b32 s52, s52, 7\nv_add_u32 v58, s52, v5\nv_xor_b32 v59, 32, v58")
    A("v_bfe_u32 v5, v1, 2, 1\nv_lshlrev_b32 v5, 2, v5\nv_bfe_u32 v6, v1, 4, 1\nv_lshl_add_u32 v5, v6, 1, v5\nv_bfe_u32 v6, v1, 1, 1\nv_add_u32 v5, v5, v6")
    A(f"v_xor_b32 v5, s{W}, v5\nv_lshlrev_b32 v5, 4, v5\nv_and_b32 v6, 1, v1\nv_lshl_add_u32 v5, v6, 3, v5")
    A("v_bfe_u32 v6, v1, 3, 1\nv_lshl_add_u32 v5, v6, 7, v5\nv_lshrrev_b32 v6, 5, v1\nv_lshl_add_u32 v5, v6, 9, v5")
    A(f"s_lshl_b32 s52, s{W}, 10\nv_add_u32 v5, s52, v5")
    A("v_and_b32 v6, 15, v1\nv_lshlrev_b32 v6, 4, v6\nv_lshrrev_b32 v7, 5, v1\nv_lshl_add_u32 v6, v7, 8, v6")
    A("v_bfe_u32 v7, v1, 4, 1\nv_lshl_add_u32 v6, v7, 14, v6")
    A(f"s_lshl_b32 s52, s{W}, 15\ns_lshl_b32 s53, s44, 9\ns_add_u32 s52, s52, s53\ns_add_u32 s47, s52, {WS_ZP}")
    A(f"s_lshl_b32 s57, s44, 7\ns_add_u32 s57, s57, {FL_C}")
    pack(D0)
    for mu in range(2):
        for c in range(2):
            for m in range(2):
                A(f"ds_write_b128 v{58+m}, v[{pk(mu,c,m)}:{pk(mu,c,m)+3}] offset:{ZL + mu*32768 + c*512}")
    g2_setup(A)
    A("s_waitcnt lgkmcnt(0)\ns_barrier")
    for n in range(8):
        A(f"ds_read_b64_tr_b16 v[{64+4*n}:{65+4*n}], v5 offset:{ZL + n*8192}")
        A(f"ds_read_b64_tr_b16 v[{66+4*n}:{67+4*n}], v5 offset:{ZL + n*8192 + 256}")
    for n in range(8):
        A(f"s_waitcnt lgkmcnt({14-2*n})")
        A(f"buffer_store_dwordx4 v[{64+4*n}:{67+4*n}], v6, {WSR}, s47 offen sc1")
        if n < 7: A("s_add_u32 s47, s47, 0x40000")
    A("s_barrier")
    g2_wdma(A, 0)
    A("s_waitcnt vmcnt(4)\ns_barrier")
    set_flag(A, 57, 16)
    for n in range(1, 4): g2_wdma(A, n)
    stamp(A, "flag2")

def phase_g2(A):
    W = S_WAVE
    ACT = 64; WF = 128; ACC = 16; ACC2 = 32; NS = 9
    A("; ---- G2")
    srd(A, S_B, P_OUT, 2097152)
    A("v_lshlrev_b32 v3, 4, v1")
    A(f"s_mul_i32 s54, s50, 57344\ns_mul_i32 s46, s49, {36*1024}\ns_add_u32 s54, s54, s46\ns_add_u32 s54, s54, {WS_H}")
    A(f"s_lshl_b32 s57, s50, 14\ns_add_u32 s57, s57, {WS_ZP}")
    A("v_lshrrev_b32 v6, 5, v1\nv_lshlrev_b32 v6, 4, v6\nv_bfe_u32 v7, v1, 4, 1\nv_lshl_add_u32 v6, v7, 2, v6\nv_bfe_u32 v4, v1, 2, 2\nv_add_u32 v6, v6, v4")
    A("v_lshlrev_b32 v6, 7, v6\nv_lshrrev_b32 v4, 1, v4\nv_lshl_or_b32 v4, v7, 1, v4")
    A("v_lshl_add_u32 v6, v4, 5, v6\nv_and_b32 v4, 3, v1\nv_lshl_add_u32 v6, v4, 3, v6")
    A("s_lshl_b32 s46, s49, 14\nv_add_u32 v164, s46, v6")
    for nb in range(1, 4): A(f"v_xor_b32 v{164+nb}, {32*nb}, v164")
    for nb in range(4): A(f"v_add_u32 v{160+nb}, 0x10000, v{164+nb}")
    for i in range(16): A(f"v_mov_b32 v{ACC+i}, 0")
    A("v_min_u32 v170, 27, v1\nv_lshlrev_b32 v170, 7, v170\nv_and_b32 v172, 31, v1\nv_lshlrev_b32 v172, 7, v172")
    A(f"s_lshr_b32 s46, s44, 2\ns_lshl_b32 s46, s46, 12\ns_add_u32 s46, s46, {FL_H}\ns_mov_b32 s47, {FL_C}")
    late = [(172, "s47")]
    L = A.label("L_g2_np"); L4 = A.label("L_g2_np4")
    A(f"s_cmp_lg_u32 s{W}, 0\ns_cbranch_scc1 {L}")
    poll(A, [(170, "s46")], 176)
    A(f"{L}:")
    A(f"s_cmp_lg_u32 s{W}, 4\ns_cbranch_scc1 {L4}")
    poll(A, late, 176, once=True)
    A(f"{L4}:")
    A("s_barrier")
    stamp(A, "hrdy")
    vm = []
    def act_ops(n):
        L = []
        for k in range(4):
            d = ACT + 16 * (n & 3) + 4 * k
            pre = "s_lshl_b32 s61, s53, 12\ns_add_u32 s61, s61, s54\n" if k == 0 else ""
            L.append((("a", n), pre + f"buffer_load_dwordx4 v[{d}:{d+3}], v3, {WSR}, s61 offen offset:{1024*k} {C.sc_act}", 53 if k == 3 else None))
        return L
    def w_ops(n):
        L = []
        for k in range(4):
            pre = "s_lshl_b32 s60, s52, 17\ns_add_u32 s60, s60, s51\n" if k == 0 else "s_add_u32 s60, s60, 8192\n"
            L.append((("w", n), pre + f"s_add_u32 m0, s55, {(n & 3)*32768 + k*1024}\nbuffer_load_dwordx4 v{V_G2W}, {AR}, s60 offen{' sc1' if n >= 5 else ''} lds", 52 if k == 3 else None))
        return L
    def emit(op):
        A(op[1]); vm.append(op[0])
        if op[2]: g2_next(A, op[2])
    for op in act_ops(0): emit(op)
    A("s_barrier")
    for op in act_ops(1): emit(op)
    def reads(n, k, st):
        slot = n & 3
        va = 164 if slot < 2 else 160
        off = (slot & 1) * 32768 + k * 4096
        r = []
        for nb in range(4):
            d = WF + 16 * st + 4 * nb
            r.append(f"ds_read_b64_tr_b16 v[{d}:{d+1}], v{va+nb} offset:{off}")
            r.append(f"ds_read_b64_tr_b16 v[{d+2}:{d+3}], v{va+nb} offset:{off+1024}")
        return r
    LA = C.la2
    for n in range(NS):
        if n == 2:
            L = A.label("L_g2_lp")
            A(f"s_cmp_lg_u32 s{W}, 4\ns_cbranch_scc1 {L}\ns_cmp_eq_u32 s{S_RDY}, 1\ns_cbranch_scc1 {L}")
            poll(A, late, 176)
            A(f"{L}:")
        need = [i for i, o in enumerate(vm) if o in (("a", n), ("w", n))]
        A(f"s_waitcnt vmcnt({len(vm) - 1 - max(need)})\ns_barrier")
        stamp(A, f"st{n}")
        for r in reads(n, 0, 0): A(r)
        ops = []
        if n == 0 and LA == 3: ops += act_ops(2)
        def switch(what):
            L = A.label("L_g2_sw")
            t = f"s_cmp_eq_u32 s49, 0\ns_cbranch_scc1 {L}\n"
            r = "s_add_u32 s{0}, s44, s45\ns_and_b32 s{0}, s{0}, 3\n" if C.rot2 else "s_mov_b32 s{0}, 0\n"
            if what == "w": t += f"s_mov_b32 s{S_A}, s{S_WS}\ns_mov_b32 s{S_A+1}, s{S_WS+1}\ns_mov_b32 s{S_A+2}, s{S_WS+2}\ns_mov_b32 s51, s58\ns_mov_b32 s59, 4\n" + r.format(52)
            else: t += "s_mov_b32 s54, s57\ns_mov_b32 s63, 4\n" + r.format(53)
            return t + f"{L}:\n"
        if 4 <= n + 3 < NS:
            o = w_ops(n + 3)
            if n + 3 == 5: o[0] = (o[0][0], switch("w") + o[0][1], o[0][2])
            ops += o
        if n + LA < NS:
            o = act_ops(n + LA)
            if n + LA == 5: o[0] = (o[0][0], switch("a") + o[0][1], o[0][2])
            ops += o
        if n == C.xst:
            ops.append((("x", 0), f"buffer_load_dwordx2 v[240:241], v244, {XR}, s56 offen {C.nt_x2}", None))
            ops.append((("x", 0), f"buffer_load_dwordx2 v[242:243], v244, {XR}, s56 offen offset:32 {C.nt_x2}", None))
        if n == 5:
            L = A.label("L_g2_acc")
            A(f"s_cmp_eq_u32 s49, 0\ns_cbranch_scc1 {L}")
            for i in range(16): A(f"v_mov_b32 v{ACC2+i}, v{ACC+i}\nv_mov_b32 v{ACC+i}, 0")
            A(f"{L}:")
        slots = [[] for _ in range(16)]
        for i, op in enumerate(ops): slots[(i * 16) // max(len(ops), 8) if len(ops) > 8 else 2 * i].append(op)
        for k in range(4):
            st = k & 1
            nxt = reads(n, k + 1, st ^ 1) if k < 3 else []
            for nb in range(4):
                if nb % 2 == 0: A(f"s_waitcnt lgkmcnt({4 - 2*nb + len(nxt[0:2*nb])})")
                d = WF + 16 * st + 4 * nb; a = ACT + 16 * (n & 3) + 4 * k
                c = f"v[{ACC+4*nb}:{ACC+4*nb+3}]"
                A(f"v_mfma_f32_16x16x32_bf16 {c}, v[{d}:{d+3}], v[{a}:{a+3}], {c}")
                for r in nxt[2*nb:2*nb+2]: A(r)
                for op in slots[4 * k + nb]: emit(op)
    A("s_waitcnt vmcnt(0)")
    EX = 32768
    A(f"s_mul_i32 s57, s48, 6144\ns_add_u32 s57, s57, {EX}\nv_add_u32 v6, s57, v3")
    L1 = A.label("L_g2_k1"); L2 = A.label("L_g2_j")
    A(f"s_cmp_eq_u32 s49, 1\ns_cbranch_scc1 {L1}")
    A(f"ds_write_b128 v6, v[{ACC+8}:{ACC+11}]\nds_write_b128 v6, v[{ACC+12}:{ACC+15}] offset:1024")
    A("s_waitcnt lgkmcnt(0)\ns_barrier")
    A("ds_read_b128 v[48:51], v6 offset:2048\nds_read_b128 v[52:55], v6 offset:3072")
    A("ds_read_b128 v[56:59], v6 offset:4096\nds_read_b128 v[60:63], v6 offset:5120")
    A("s_waitcnt lgkmcnt(2)")
    for i in range(8): A(f"v_add_f32 v{48+i}, v{48+i}, v{ACC+i}")
    A(f"s_waitcnt lgkmcnt(0)\ns_branch {L2}")
    A(f"{L1}:")
    A(f"ds_write_b128 v6, v[{ACC2}:{ACC2+3}] offset:2048\nds_write_b128 v6, v[{ACC2+4}:{ACC2+7}] offset:3072")
    A(f"ds_write_b128 v6, v[{ACC}:{ACC+3}] offset:4096\nds_write_b128 v6, v[{ACC+4}:{ACC+7}] offset:5120")
    A("s_waitcnt lgkmcnt(0)\ns_barrier")
    A("ds_read_b128 v[48:51], v6\nds_read_b128 v[52:55], v6 offset:1024")
    for i in range(8): A(f"v_mov_b32 v{56+i}, v{ACC+8+i}")
    A("s_waitcnt lgkmcnt(0)")
    for i in range(8): A(f"v_add_f32 v{48+i}, v{48+i}, v{ACC2+8+i}")
    A(f"{L2}:")
    for i in range(8): A(f"v_mul_f32 v{64+i}, {fhex(-1.4426950408889634)}, v{48+i}")
    for i in range(8): A(f"v_exp_f32 v{64+i}, v{64+i}")
    for i in range(8): A(f"v_mul_f32 v{56+i}, v{56+i}, v{48+i}")
    for i in range(8): A(f"v_add_f32 v{64+i}, 1.0, v{64+i}")
    for i in range(8): A(f"v_rcp_f32 v{64+i}, v{64+i}")
    for q in range(4): A(f"v_lshlrev_b32 v{72+2*q}, 16, v{240+q}\nv_and_b32 v{73+2*q}, 0xffff0000, v{240+q}")
    for i in range(8): A(f"v_fmac_f32 v{72+i}, v{56+i}, v{64+i}")
    for q in range(4): A(f"v_cvt_pk_bf16_f32 v{8+q}, v{72+2*q}, v{73+2*q}")
    A(f"buffer_store_dwordx2 v[8:9], v244, {BR}, s56 offen\nbuffer_store_dwordx2 v[10:11], v244, {BR}, s56 offen offset:32")
    L = A.label("L_ep")
    A(f"s_cmp_lg_u32 s{S_WG}, 0\ns_cbranch_scc1 {L}\ns_mov_b32 s57, 0")
    set_flag(A, 57, 16)
    A(f"{L}:")

HDR = open("recurrent_scan__spectral_gfnet__geglu_ffn__prompt.s.ref").read().split("; Override")[0]
def gen(**kw):
    for k, v in kw.items(): setattr(C, k, v)
    A = Asm()
    A(HDR.rstrip())
    A("; @launch grid=(256,1,1) block=(512,1,1) lds=163840")
    A('.amdgcn_target "amdgcn-amd-amdhsa--gfx950"\n.text')
    kernel_begin(A, KN)
    prologue(A)
    phase_p0(A)
    A(f"s_cmp_ge_u32 s{S_SLOT}, 28\ns_cbranch_scc1 L_cf")
    phase_g1(A)
    A("s_branch L_g2\nL_cf:")
    phase_cf(A)
    A("L_g2:")
    phase_g2(A)
    if C.delay:
        A(f"s_memtime s[70:71]\ns_waitcnt lgkmcnt(0)\nL_dly:\ns_memtime s[72:73]\ns_waitcnt lgkmcnt(0)\ns_sub_u32 s72, s72, s70\ns_cmp_lt_u32 s72, {C.delay}\ns_cbranch_scc1 L_dly")
    if C.dbgclk:
        A(f"s_cmp_lg_u32 s{S_WG}, 0\ns_cbranch_scc1 L_done\ns_cmp_lg_u32 s{S_WAVE}, 0\ns_cbranch_scc1 L_done")
        A("s_memtime s[74:75]\ns_memrealtime s[76:77]\ns_waitcnt lgkmcnt(0)\ns_sub_u32 s74, s74, s80\ns_sub_u32 s76, s76, s82")
        srd(A, S_A, P_DBG, 256)
        A(f"v_mov_b32 v2, 0\nv_mov_b32 v4, s74\nv_mov_b32 v5, s76\nbuffer_store_dwordx2 v[4:5], v2, {AR}, 0 offen")
    diag_end(A)
    A("L_done:\ns_endpgm")
    A('.section .rodata,"a"\n.p2align 6')
    A(descriptor(KN, 256, 102, 256))
    return hazard.fix(A.text(), verbose=False)
if __name__ == "__main__":
    kw = dict(a.split("=") for a in sys.argv[2:])
    kw = {k: (int(v) if v.isdigit() else v) for k, v in kw.items()}
    open(sys.argv[1], "w").write(gen(**kw))
```

```python
import struct, sys
from asmgen import *
import hazard

WS_FL = 0x0
FL_B = 0x9000
FL_H = 0x11000
FL_C = 0x19000
WS_ST = 0x0100000
WS_Z  = 0x0300000
WS_WP = 0x0500000
WS_G  = 0x0700000
WS_ZP = 0x0800000
WS_H  = 0x0A00000
WS_DIAG = 0x1200000
WS_SIZE = 0x1400000
TAGK = 0x3C6EF35F

def fhex(x): return "0x%08x" % struct.unpack("<I", struct.pack("<f", x))[0]
S_WS, S_X, S_A, S_B = 4, 8, 12, 16
S_WAVE, S_WG, S_TAG, S_SLOT = 20, 21, 22, 23
S_PTR = 24
P_X, P_WR, P_WI, P_BX, P_WG, P_WU, P_WD, P_OUT, P_DBG, P_WS = [S_PTR + 2 * i for i in range(10)]
S_RT, S_CT, S_WOFF, S_RDY, S_XCD, S_SPIN = 64, 65, 66, 67, 68, 69
S_WLDS = 3
WSR = f"s[{S_WS}:{S_WS+3}]"; XR = f"s[{S_X}:{S_X+3}]"; AR = f"s[{S_A}:{S_A+3}]"; BR = f"s[{S_B}:{S_B+3}]"
S_C = 96; CR = f"s[{S_C}:{S_C+3}]"
LDS_P0 = 98304
SLOT = 49152
LDS_CS = 147456
LDS_SINK = 152576

class Cfg:
    diag = False
    g1map = "col"
    g2map = "84"
    nt_x = ""; nt_x2 = ""; nt_w = "nt"; nt_g1w = "nt"
    E1, E2 = 2, 3
    D = 8
    xst = 6
    cfstage = 1
    cfw0 = 1
    zfirst = 1
    fbj = 0
    a0early = 0
    bulk = 1
    cpf = 1
    rotc = 0
    rotr = 1
    perm = "01452367"
    j0early = 1
    delay = 0
    echo = ""
    echo_k = 1
    dbgclk = 0
    la2 = 3
    dbg = ""
    sc_act = "sc1"
    rot2 = 0
    nepi = 0
    pf_start, pf_step = 24, 2
    stamps = "x,p0end,go,main,epi,flag2,hrdy,st0,st8"
C = Cfg()

def stamp(A, name):
    if C.echo == name: A("s_memrealtime s[84:85]")
    if not C.diag: return
    names = ["entry"] + C.stamps.split(",") + ["end"]
    assert len(names) <= 11
    if name in names:
        n = names.index(name)
        A(f"s_memtime s[{74+2*n}:{75+2*n}]")
def diag_end(A):
    if not C.diag: return
    A("s_waitcnt vmcnt(0)")
    stamp(A, "end")
    A("s_memrealtime s[72:73]\ns_waitcnt lgkmcnt(0)")
    A(f"s_lshl_b32 s3, s{S_WG}, 10\ns_lshl_b32 s44, s{S_WAVE}, 7\ns_add_u32 s3, s3, s44\ns_add_u32 s3, s3, {WS_DIAG}")
    A("v_mov_b32 v2, 0")
    for i, sreg in enumerate([70, 72, S_RDY] + [74 + 2*k for k in range(11)]):
        A(f"v_mov_b32 v3, s{sreg}\nbuffer_store_dword v3, v2, {WSR}, s3 offen offset:{4*i}")

def srd(A, s, ptr, nbytes):
    A(f"s_mov_b32 s{s}, s{ptr}\ns_and_b32 s{s+1}, s{ptr+1}, 0xffff\ns_mov_b32 s{s+2}, {nbytes}\ns_mov_b32 s{s+3}, 0x00020000")
def cos_batch(A, regs, mask, scale):
    for r in regs: A(f"v_and_b32 v{r}, {mask}, v{r}")
    for r in regs: A(f"v_cvt_f32_u32 v{r}, v{r}")
    for r in regs: A(f"v_mul_f32 v{r}, {fhex(scale)}, v{r}")
    for r in regs: A(f"v_cos_f32 v{r}, v{r}")
def wave_sum(A, v, sdst):
    for mod in ("row_shr:1 row_mask:0xf", "row_shr:2 row_mask:0xf", "row_shr:4 row_mask:0xf", "row_shr:8 row_mask:0xf",
                "row_bcast:15 row_mask:0xa", "row_bcast:31 row_mask:0xc"):
        A(f"v_add_f32_dpp v{v}, v{v}, v{v} {mod} bank_mask:0xf")
    A(f"v_readlane_b32 s{sdst}, v{v}, 63")
def set_flag(A, soff_expr_sreg, vt=3, anywave=False):
    L = A.label("L_fl")
    if not anywave: A(f"s_cmp_lg_u32 s{S_WAVE}, 0\ns_cbranch_scc1 {L}")
    A(f"v_mov_b32 v{vt}, s{S_TAG}\nv_mov_b32 v{vt+1}, 0\ns_mov_b64 exec, 1")
    A(f"buffer_store_dword v{vt}, v{vt+1}, {WSR}, s{soff_expr_sreg} offen sc1")
    A("s_mov_b64 exec, -1")
    A(f"{L}:")
def poll(A, groups, vt, once=False):
    L = A.label("L_poll"); Lx = A.label("L_pollx")
    if not once: A(f"s_mov_b32 s{S_SPIN}, 0\n{L}:")
    for n, (va, so) in enumerate(groups):
        A(f"buffer_load_dword v{vt+n}, v{va}, {WSR}, {so} offen sc1")
    A("s_waitcnt vmcnt(0)")
    for n in range(1, len(groups)):
        A(f"v_xor_b32 v{vt+n}, s{S_TAG}, v{vt+n}")
    A(f"v_xor_b32 v{vt}, s{S_TAG}, v{vt}")
    for n in range(1, len(groups)):
        A(f"v_or_b32 v{vt}, v{vt}, v{vt+n}")
    A(f"v_cmp_ne_u32 vcc, 0, v{vt}")
    if once:
        A(f"s_cmp_eq_u64 vcc, 0\ns_cselect_b32 s{S_RDY}, 1, 0")
    else:
        A(f"s_cmp_eq_u64 vcc, 0\ns_cbranch_scc1 {Lx}")
        A(f"s_add_u32 s{S_SPIN}, s{S_SPIN}, 1\ns_cmp_lt_u32 s{S_SPIN}, 0x200000\ns_cbranch_scc1 {L}")
        A(f"{Lx}:")

V_WDMA, V_ADE, V_ADO = 143, 144, 145
S_ST0 = 2
S_AOFF = 58
def g1_stage(A, j, sreg):
    A(f"s_add_u32 s{sreg}, s{S_ST0}, {int(C.perm[j])}\ns_and_b32 s{sreg}, s{sreg}, 7")
def g1w_ops(j):
    sl = (j % 3) * SLOT
    if "W" in C.dbg: j = 0
    return [f"s_add_u32 s60, s{S_ST0}, {int(C.perm[j])}\ns_and_b32 s60, s60, 7\ns_mul_i32 s60, s60, {64*3584}\ns_add_u32 s60, s60, s{S_WOFF}\n"
            f"s_add_u32 m0, s{S_WLDS}, {sl}\nbuffer_load_dwordx4 v{V_WDMA}, {AR}, s60 offen {C.nt_g1w} lds",
            f"s_add_u32 m0, s{S_WLDS}, {sl + 8192}\nbuffer_load_dwordx4 v{V_WDMA}, {BR}, s60 offen {C.nt_g1w} lds"]
def g1a_ops(j):
    sl = (j % 3) * SLOT + 16384
    if "A" in C.dbg: j = 0
    L = []
    for i in range(4):
        pre = (f"s_add_u32 s61, s{S_ST0}, {int(C.perm[j])}\ns_and_b32 s61, s61, 7\ns_lshl_b32 s61, s61, 7\ns_add_u32 s61, s61, s{S_AOFF}\ns_lshl_b32 s59, s{S_WLDS}, 2\n" if i == 0
               else f"s_add_u32 s61, s61, {(4 if i & 1 else 12) * 1024}\n")
        L.append(pre + f"s_add_u32 m0, s59, {sl + i*1024}\nbuffer_load_dwordx4 v{V_ADO if i & 1 else V_ADE}, {XR}, s61 offen lds")
    return L

def prologue(A):
    if C.dbgclk or C.echo: A("s_memtime s[80:81]\ns_memrealtime s[82:83]\ns_memrealtime s[84:85]")
    if C.diag:
        for k in range(11): A(f"s_mov_b32 s{74+2*k}, 0")
        A("s_memrealtime s[70:71]"); stamp(A, "entry")
    A("s_cmp_ge_u32 s2, 256\ns_cbranch_scc1 L_done")
    A(f"s_load_dwordx16 s[{S_PTR}:{S_PTR+15}], s[0:1], 0")
    A(f"s_load_dwordx4 s[{S_PTR+16}:{S_PTR+19}], s[0:1], 64")
    A("v_lshrrev_b32 v2, 6, v0\nv_and_b32 v1, 63, v0")
    A(f"v_readfirstlane_b32 s{S_WAVE}, v2")
    A(f"s_mov_b32 s{S_WG}, s2\ns_and_b32 s{S_XCD}, s2, 7\ns_lshr_b32 s{S_SLOT}, s2, 3\ns_mov_b32 s{S_RDY}, 0")
    code_prefetch(A, KN, "L_done", 112)
    if C.g1map == "col":
        A(f"s_mul_i32 s44, s{S_XCD}, 28\ns_add_u32 s44, s44, s{S_SLOT}\ns_and_b32 s{S_RT}, s44, 7\ns_lshr_b32 s{S_CT}, s44, 3")
    else:
        A(f"s_and_b32 s44, s{S_XCD}, 1\ns_lshl_b32 s44, s44, 2\ns_and_b32 s45, s{S_SLOT}, 3\ns_add_u32 s{S_RT}, s44, s45")
        A(f"s_lshr_b32 s44, s{S_XCD}, 1\ns_mul_i32 s44, s44, 7\ns_lshr_b32 s45, s{S_SLOT}, 2\ns_add_u32 s{S_CT}, s44, s45")
    A(f"s_mul_i32 s44, s{S_CT}, {C.rotc}\ns_mul_i32 s45, s{S_RT}, {C.rotr}\ns_add_u32 s44, s44, s45\ns_and_b32 s{S_ST0}, s44, 7")
    W = S_WAVE
    A(f"s_lshr_b32 s44, s{S_WG}, 2          ; r2")
    A(f"s_and_b32 s45, s{S_WG}, 3           ; mh")
    A(f"s_lshr_b32 s46, s45, 1\ns_lshl_b32 s46, s46, 4")
    A(f"s_and_b32 s47, s45, 1\ns_lshl_b32 s47, s47, 2\ns_add_u32 s46, s46, s47")
    A(f"s_lshr_b32 s47, s{W}, 2\ns_lshl_b32 s47, s47, 3\ns_add_u32 s46, s46, s47")
    A(f"s_and_b32 s47, s{W}, 3\ns_add_u32 s46, s46, s47     ; r1")
    A("s_lshl_b32 s46, s46, 6\ns_add_u32 s46, s46, s44\ns_lshl_b32 s56, s46, 10")
    A("v_lshlrev_b32 v2, 4, v1")
    A("s_waitcnt lgkmcnt(0)")
    srd(A, S_X, P_X, 2097152)
    A(f"buffer_load_dwordx4 v[4:7], v2, {XR}, s56 offen {C.nt_x}")
    A(f"s_load_dword s{S_TAG}, s[{P_WS}:{P_WS+1}], 0")
    srd(A, S_WS, P_WS, WS_SIZE)

def code_prefetch(A, start, end, vt):
    Lh = A.label("L_cph")
    A(f"s_getpc_b64 s[60:61]\n{Lh}:")
    A(f"s_lshl_b32 s59, s{S_SLOT}, 10\ns_lshl_b32 s57, s{S_WAVE}, 7\ns_add_u32 s59, s59, s57\nv_and_b32 v{vt}, 7, v1\nv_lshl_add_u32 v{vt}, v{vt}, 4, s59\nv_min_u32 v{vt}, {end} - {start} - 16, v{vt}")
    A(f"s_add_u32 s60, s60, {start} - {Lh}\ns_addc_u32 s61, s61, {'-1' if start == KN else '0'}")
    A(f"v_mov_b32 v{vt+1}, s61\nv_add_co_u32 v{vt}, vcc, s60, v{vt}\nv_addc_co_u32 v{vt+1}, vcc, 0, v{vt+1}, vcc")
    A(f"global_load_dwordx4 v[{vt+2}:{vt+5}], v[{vt}:{vt+1}], off")

def gemm_only(A, fn):
    L = A.label("L_go")
    A(f"s_cmp_ge_u32 s{S_SLOT}, 28\ns_cbranch_scc1 {L}")
    fn()
    A(f"{L}:")
def wait_role(A, n_gemm, n_cf):
    L = A.label("L_wr"); L2 = A.label("L_wr")
    A(f"s_cmp_ge_u32 s{S_SLOT}, 28\ns_cbranch_scc1 {L}\ns_waitcnt vmcnt({n_gemm})\ns_branch {L2}\n{L}:\ns_waitcnt vmcnt({n_cf})\n{L2}:")

def phase_p0(A):
    W = S_WAVE
    ZL = 2 * SLOT; XNL = 2 * SLOT + 16384; CL = XNL + 8192; WL = 151552; STL = WL + 8320
    B1RE, B1IM, A2RE, A2IM, S2RE, S2IM, TWC, TWS = 64, 68, 72, 76, 80, 84, 88, 92
    T = 32
    srd(A, S_A, P_WG, 512 * 3584)
    srd(A, S_B, P_WU, 512 * 3584)
    A("v_lshrrev_b32 v8, 3, v1")
    A("v_bfe_u32 v9, v1, 4, 1\nv_lshlrev_b32 v9, 2, v9\nv_and_b32 v10, 7, v1\nv_xor_b32 v9, v9, v10")
    A(f"v_mul_u32_u24 v11, 3584, v8\nv_lshl_add_u32 v{V_WDMA}, v9, 4, v11")
    A(f"s_mul_i32 s47, s{W}, {8*3584}\ns_lshl_b32 s52, s{S_CT}, 7\ns_add_u32 s{S_WOFF}, s47, s52\ns_lshl_b32 s{S_WLDS}, s{W}, 10")
    def bulk():
        gemm_only(A, lambda: [A(o) for o in g1w_ops(0)])
        A(f"s_cmp_lt_u32 s{W}, 4\ns_cselect_b32 s{S_C}, s{P_WR}, s{P_WI}\ns_cselect_b32 s{S_C+1}, s{P_WR+1}, s{P_WI+1}")
        A(f"s_and_b32 s{S_C+1}, s{S_C+1}, 0xffff\ns_mov_b32 s{S_C+2}, {2048*514}\ns_mov_b32 s{S_C+3}, 0x00020000")
        A(f"s_mul_i32 s47, s{S_WG}, 4112\ns_and_b32 s48, s{W}, 3\ns_lshl_b32 s48, s48, 10\ns_add_u32 s49, s47, s48")
        A(f"s_lshr_b32 s50, s{W}, 2\ns_mul_i32 s50, s50, 4160\ns_add_u32 s50, s50, {WL}\ns_add_u32 m0, s50, s48")
        A(f"buffer_load_dwordx4 v2, {CR}, s49 offen {C.nt_w} lds")
        A("s_add_u32 m0, s50, 4096\ns_add_u32 s47, s47, 4096\ns_mov_b64 exec, 1")
        A(f"buffer_load_dwordx4 v2, {CR}, s47 offen {C.nt_w} lds")
        A("s_mov_b64 exec, -1")
    if C.bulk == 0: bulk()
    A("v_lshrrev_b32 v9, 2, v8\nv_lshlrev_b32 v9, 3, v9\nv_and_b32 v8, 3, v8\nv_add_u32 v8, v8, v9\nv_lshlrev_b32 v8, 10, v8")
    A(f"v_lshrrev_b32 v9, 4, v1\nv_xor_b32 v9, v9, v10\nv_lshl_add_u32 v{V_ADE}, v9, 4, v8\nv_xor_b32 v{V_ADO}, 64, v{V_ADE}")
    A(f"s_lshl_b32 s47, s{S_RT}, 3\ns_add_u32 s47, s47, s{W}\ns_lshl_b32 s{S_AOFF}, s47, 15")
    if C.a0early == 1: gemm_only(A, lambda: [A(o) for o in g1a_ops(0)])
    M0 = "s[62:63]"
    A("v_and_b32 v30, 15, v1\nv_lshrrev_b32 v29, 4, v1")
    A(f"v_cmp_eq_u32 {M0}, 0, v30\nv_cmp_gt_u32 vcc, 8, v30")
    A("v_cvt_f32_u32 v26, v30\nv_cvt_f32_u32 v27, v29\nv_mul_f32 v27, 4.0, v27      ; k, 4g")
    Lc = A.label("L_c"); cases = [A.label("L_c") for _ in range(7)]
    A("s_mov_b32 s47, 0")
    for n in range(1, 7):
        A(f"s_cmp_eq_u32 s{W}, {n}\ns_cbranch_scc1 {cases[n]}")
    A(f"; wave 0 (and 7): B1RE\nv_mul_f32 v20, {fhex(1/32)}, v26\nv_mov_b32 v22, 0\ns_mov_b32 s47, {fhex(16.0)}\nv_mov_b32 v21, v20\nv_mov_b32 v23, 0\ns_branch {Lc}")
    A(f"{cases[1]}:\nv_mul_f32 v20, {fhex(1/32)}, v26\nv_mov_b32 v22, {fhex(0.25)}\nv_cndmask_b32 v20, v20, 0.5, {M0}\nv_cndmask_b32 v22, v22, 0, {M0}")
    A(f"s_mov_b32 s47, {fhex(16.0)}\nv_mov_b32 v21, v20\nv_mov_b32 v23, v22\ns_branch {Lc}")
    A(f"{cases[2]}:\nv_mul_f32 v20, {fhex(1/16)}, v26\nv_mov_b32 v22, 0\nv_mov_b32 v23, {fhex(0.75)}\nv_mov_b32 v21, v20\ns_branch {Lc}")
    A(f"{cases[3]}:\nv_mul_f32 v20, {fhex(1/16)}, v26\nv_cndmask_b32 v23, 0.5, 0, vcc\nv_add_f32 v22, {fhex(0.25)}, v23\nv_mov_b32 v21, v20\ns_branch {Lc}")
    for n in (4, 5):
        A(f"{cases[n]}:\nv_mul_f32 v20, {fhex(1/16)}, v26\nv_cndmask_b32 v21, v20, 0.5, {M0}\nv_sub_f32 v24, {fhex(31/32)}, v20")
        A("v_cndmask_b32 v20, 0, v21, vcc\nv_cndmask_b32 v21, v24, 0, vcc")
        if n == 4: A(f"v_mov_b32 v24, {fhex(0.25)}\nv_cndmask_b32 v22, v24, 0, vcc\nv_cndmask_b32 v23, 0, v24, vcc")
        else: A(f"v_mov_b32 v22, {fhex(0.25)}\nv_mov_b32 v23, v22")
        A(f"s_branch {Lc}")
    A(f"{cases[6]}:\nv_mul_f32 v20, {fhex(1/512)}, v26\nv_mov_b32 v22, 0\nv_mov_b32 v23, {fhex(0.75)}\nv_mov_b32 v21, v20")
    A(f"{Lc}:")
    A("v_fma_f32 v22, v27, v20, v22\nv_add_f32 v24, s47, v27\nv_fma_f32 v23, v24, v21, v23")
    for (b, v, o) in ((22, 20, T), (23, 21, T + 4)):
        A(f"v_cos_f32 v{o}, v{b}\nv_add_f32 v{o+1}, v{b}, v{v}\nv_fma_f32 v{o+2}, v{v}, 2.0, v{b}\nv_fmamk_f32 v{o+3}, v{v}, {fhex(3.0)}, v{b}")
        for q in (1, 2, 3): A(f"v_cos_f32 v{o+q}, v{o+q}")
    A(f"s_add_u32 s47, s{S_WLDS}, {CL}\nv_add_u32 v24, s47, v2")
    L6 = A.label("L_c6"); L7 = A.label("L_c7")
    A(f"s_cmp_eq_u32 s{W}, 6\ns_cbranch_scc1 {L6}\ns_cmp_eq_u32 s{W}, 7\ns_cbranch_scc1 {L7}")
    for q in range(4): A(f"v_cvt_pk_bf16_f32 v{T+q}, v{T+2*q}, v{T+2*q+1}")
    A(f"ds_write_b128 v24, v[{T}:{T+3}]\ns_branch {L7}")
    A(f"{L6}:\nds_write_b128 v24, v[{T}:{T+3}]\nds_write_b128 v24, v[{T+4}:{T+7}] offset:1024\n{L7}:")
    A(f"s_add_u32 s61, s{S_WLDS}, {XNL}")
    A("v_add_u32 v96, s61, v2\nv_lshl_add_u32 v97, v1, 3, s61")
    A(f"v_add_u32 v108, {CL}, v2")
    A(f"v_lshlrev_b32 v100, 11, v29\nv_lshl_add_u32 v100, v30, 5, v100\ns_lshl_b32 s61, s{W}, 1\ns_add_u32 s61, s61, {ZL}")
    A("v_add_u32 v100, s61, v100")
    A(f"s_waitcnt lgkmcnt(0)\ns_barrier\ns_add_u32 s{S_TAG}, s{S_TAG}, {TAGK}")
    for n in range(8): A(f"ds_read_b128 v[{64+4*n}:{67+4*n}], v108 offset:{1024*n}")
    if C.a0early == 2: gemm_only(A, lambda: [A(o) for o in g1a_ops(0)])
    if C.bulk == 1: bulk()
    A("; ---- P0: layernorm")
    stamp(A, "consts")
    if C.bulk < 2: wait_role(A, 8 if C.a0early else 4, 2)
    else:
        wait_role(A, 4 if C.a0early else 0, 0); bulk()
    stamp(A, "x")
    for q in range(4):
        A(f"v_lshlrev_b32 v{T+2*q}, 16, v{4+q}\nv_and_b32 v{T+2*q+1}, 0xffff0000, v{4+q}")
    A(f"v_pk_add_f32 v[{T+8}:{T+9}], v[{T}:{T+1}], v[{T+2}:{T+3}]\nv_pk_add_f32 v[{T+10}:{T+11}], v[{T+4}:{T+5}], v[{T+6}:{T+7}]")
    A(f"v_pk_add_f32 v[{T+8}:{T+9}], v[{T+8}:{T+9}], v[{T+10}:{T+11}]\nv_add_f32 v{T+8}, v{T+8}, v{T+9}")
    wave_sum(A, T + 8, 57)
    A(f"v_mov_b32 v{T+9}, {fhex(1.0/512)}\nv_mul_f32 v{T+9}, s57, v{T+9}")
    A(f"v_cvt_pk_bf16_f32 v{T+10}, v{T+9}, v{T+9}")
    for q in range(8): A(f"v_sub_f32 v{T+16+q}, v{T+q}, v{T+9}")
    A(f"v_lshlrev_b32 v{T+10}, 16, v{T+10}")
    A(f"v_mul_f32 v{T+8}, v{T+16}, v{T+16}\nv_mul_f32 v{T+11}, v{T+17}, v{T+17}")
    for q in range(2, 8, 2):
        A(f"v_fmac_f32 v{T+8}, v{T+16+q}, v{T+16+q}\nv_fmac_f32 v{T+11}, v{T+17+q}, v{T+17+q}")
    A(f"v_add_f32 v{T+8}, v{T+8}, v{T+11}")
    fill = [f"v_sub_f32 v{T+q}, v{T+q}, v{T+10}" for q in range(8)] + [f"v_cvt_pk_bf16_f32 v{T+16+q}, v{T+2*q}, v{T+2*q+1}" for q in range(4)]
    for n, mod in enumerate(("row_shr:1 row_mask:0xf", "row_shr:2 row_mask:0xf", "row_shr:4 row_mask:0xf", "row_shr:8 row_mask:0xf",
                "row_bcast:15 row_mask:0xa", "row_bcast:31 row_mask:0xc")):
        A(fill[2*n]); A(fill[2*n+1])
        A(f"v_add_f32_dpp v{T+8}, v{T+8}, v{T+8} {mod} bank_mask:0xf")
    A(f"v_mov_b32 v{T+9}, {fhex(1.0/512)}")
    A(f"v_readlane_b32 s57, v{T+8}, 63")
    for q in range(2):
        A(f"v_lshlrev_b32 v{T+2*q}, 16, v{T+16+q}\nv_and_b32 v{T+2*q+1}, 0xffff0000, v{T+16+q}")
    A(f"v_mul_f32 v{T+9}, s57, v{T+9}")
    A(f"v_cvt_pk_bf16_f32 v{T+9}, v{T+9}, v{T+9}\nv_lshlrev_b32 v{T+9}, 16, v{T+9}")
    A(f"v_add_f32 v{T+9}, {fhex(1e-5)}, v{T+9}")
    A(f"v_cvt_pk_bf16_f32 v{T+9}, v{T+9}, v{T+9}\nv_lshlrev_b32 v{T+9}, 16, v{T+9}")
    A(f"v_sqrt_f32 v{T+9}, v{T+9}")
    A(f"v_lshlrev_b32 v{T+4}, 16, v{T+18}")
    A(f"v_cvt_pk_bf16_f32 v{T+9}, v{T+9}, v{T+9}\nv_lshlrev_b32 v{T+9}, 16, v{T+9}")
    A(f"v_rcp_f32 v{T+9}, v{T+9}")
    A(f"v_and_b32 v{T+5}, 0xffff0000, v{T+18}\nv_lshlrev_b32 v{T+6}, 16, v{T+19}\nv_and_b32 v{T+7}, 0xffff0000, v{T+19}")
    for q in range(8): A(f"v_mul_f32 v{T+q}, v{T+9}, v{T+q}")
    for q in range(4): A(f"v_cvt_pk_bf16_f32 v{4+q}, v{T+2*q}, v{T+2*q+1}")
    stamp(A, "ln")
    A("ds_write_b128 v96, v[4:7]")
    A(f"v_lshrrev_b32 v18, 16, v{T+10}\nv_or_b32 v18, v18, v{T+10}\nv_xor_b32 v18, 0x80008000, v18\nv_mov_b32 v19, v{T+9}")
    A("s_waitcnt lgkmcnt(0)")
    A("ds_read_b64_tr_b16 v[8:9], v97\nds_read_b64_tr_b16 v[10:11], v97 offset:512")
    if not C.a0early: gemm_only(A, lambda: [A(o) for o in g1a_ops(0)])
    stamp(A, "iss1")
    A("s_waitcnt lgkmcnt(0)")
    A(f"v_mfma_f32_16x16x32_bf16 v[{T}:{T+3}], v[8:11], v[{B1RE}:{B1RE+3}], 0")
    A(f"v_mfma_f32_16x16x32_bf16 v[{T+4}:{T+7}], v[8:11], v[{B1IM}:{B1IM+3}], 0")
    for i in range(0, 4, 2):
        A(f"v_pk_mul_f32 v[{T+8+i}:{T+9+i}], v[{T+i}:{T+i+1}], v[{TWC+i}:{TWC+i+1}]\nv_pk_mul_f32 v[{T+12+i}:{T+13+i}], v[{T+4+i}:{T+5+i}], v[{TWC+i}:{TWC+i+1}]")
    for i in range(0, 4, 2):
        A(f"v_pk_fma_f32 v[{T+8+i}:{T+9+i}], v[{T+4+i}:{T+5+i}], v[{TWS+i}:{TWS+i+1}], v[{T+8+i}:{T+9+i}]")
        A(f"v_pk_fma_f32 v[{T+12+i}:{T+13+i}], v[{T+i}:{T+i+1}], v[{TWS+i}:{TWS+i+1}], v[{T+12+i}:{T+13+i}] neg_lo:[1,0,0] neg_hi:[1,0,0]")
    for q in range(4): A(f"v_cvt_pk_bf16_f32 v{8+q}, v{T+8+2*q}, v{T+9+2*q}")
    A(f"v_mfma_f32_16x16x32_bf16 v[{T}:{T+3}], v[{A2RE}:{A2RE+3}], v[8:11], 0")
    A(f"v_mfma_f32_16x16x32_bf16 v[{T+4}:{T+7}], v[{A2IM}:{A2IM+3}], v[8:11], 0")
    A(f"v_mfma_f32_16x16x32_bf16 v[{T+8}:{T+11}], v[{S2RE}:{S2RE+3}], v[8:11], 0")
    A(f"v_mfma_f32_16x16x32_bf16 v[{T+12}:{T+15}], v[{S2IM}:{S2IM+3}], v[8:11], 0")
    for i in range(8): A(f"v_cndmask_b32 v{T+i}, v{T+i}, v{T+8+i}, {M0}")
    for i in range(4): A(f"v_cvt_pk_bf16_f32 v{T+i}, v{T+i}, v{T+4+i}")
    for i in range(4):
        A(f"ds_write_b16 v100, v{T+i} offset:{512*i}\nds_write_b16_d16_hi v100, v{T+i} offset:{512*i+16}")
    stamp(A, "fft")
    A(f"v_lshlrev_b32 v101, 4, v0\nv_add_u32 v101, {ZL}, v101")
    A("s_and_b32 s61, s44, 15\nv_and_b32 v103, 15, v0\nv_xor_b32 v102, s61, v103\nv_lshlrev_b32 v102, 4, v102")
    A("v_lshrrev_b32 v12, 4, v0             ; cg")
    A("v_lshl_add_u32 v102, v12, 16, v102\nv_lshlrev_b32 v103, 4, v103\nv_lshl_add_u32 v103, v12, 16, v103")
    A(f"s_lshl_b32 s62, s{S_WG}, 8\ns_add_u32 s45, s62, {WS_Z}\ns_add_u32 s62, s62, {WS_WP}")
    A("v_lshrrev_b32 v13, 1, v12\nv_lshlrev_b32 v14, 5, v13\nv_sub_u32 v15, 0x200, v14")
    A("v_cmp_gt_u32 vcc, 8, v13")
    A("v_cndmask_b32 v20, v15, v14, vcc\nv_cndmask_b32 v21, -1, 1, vcc")
    A("v_subrev_u32 v15, 16, v15\nv_cndmask_b32 v22, v15, v14, vcc")
    A("v_mov_b32 v15, 0x100\nv_cmp_eq_u32 vcc, 0, v13\nv_cndmask_b32 v22, v22, v15, vcc")
    A(f"v_bfe_u32 v13, v0, 3, 1\ns_lshl_b32 s61, s{S_WG}, 1\nv_add_u32 v13, s61, v13\nv_and_b32 v13, 7, v13")
    A("v_and_b32 v14, 1, v0\nv_lshlrev_b32 v14, 2, v14\nv_xor_b32 v13, v13, v14")
    A("v_and_b32 v14, 1, v12\nv_lshl_or_b32 v13, v14, 3, v13")
    A(f"v_bfe_u32 v14, v0, 1, 3\nv_mul_u32_u24 v14, 514, v14\nv_add_u32 v14, {WL}, v14")
    for q in range(4):
        A(f"v_xor_b32 v15, {q}, v13\nv_mad_i32_i24 v{40+q}, v15, v21, v20\nv_cmp_eq_u32 vcc, 0, v15")
        A(f"v_cndmask_b32 v{40+q}, v{40+q}, v22, vcc\nv_lshl_add_u32 v{40+q}, v{40+q}, 1, v14")
    A(f"s_lshl_b32 s57, s{S_WG}, 7\ns_add_u32 s57, s57, {FL_B}")
    A("v_mov_b32 v17, 0\ns_lshr_b32 s63, s56, 10\ns_and_b32 s61, s63, 0x7f3\ns_lshr_b32 s60, s63, 1\ns_and_b32 s60, s60, 4\ns_or_b32 s61, s61, s60")
    A(f"s_lshl_b32 s60, s63, 1\ns_and_b32 s60, s60, 8\ns_or_b32 s61, s61, s60\ns_lshl_b32 s63, s61, 3\ns_add_u32 s63, s63, {WS_ST}")
    A("v_mov_b32 v3, v102\nv_mov_b32 v28, v103")
    g1_setup(A)
    gemm_only(A, lambda: [A(o) for o in g1w_ops(1) + g1a_ops(1)])
    stamp(A, "pre2")
    wait_role(A, 6, 0)
    A("s_waitcnt lgkmcnt(0)\ns_barrier")
    stamp(A, "b2")
    A("ds_read_b128 v[20:23], v101")
    for q in range(4): A(f"ds_read_u16 v{24+q}, v{40+q}\nds_read_u16 v{4+q}, v{40+q} offset:4160")
    stamp(A, "p0end")

def p0_stores(A):
    a = f"buffer_store_dwordx4 v[20:23], v3, {WSR}, s45 offen sc1"
    c = f"s_mov_b64 exec, 1\nbuffer_store_dwordx2 v[18:19], v17, {WSR}, s63 offen sc1\ns_mov_b64 exec, -1"
    b = "\n".join(f"v_lshl_or_b32 v{24+q}, v{4+q}, 16, v{24+q}" for q in range(4)) + f"\nbuffer_store_dwordx4 v[24:27], v28, {WSR}, s62 offen sc1"
    if "z" in C.dbg: return [f"buffer_load_dword v20, v2, {WSR}, 0 offen", f"buffer_load_dword v20, v2, {WSR}, 0 offen"]
    if "y" in C.dbg: return [a, f"buffer_load_dword v20, v2, {WSR}, 0 offen"]
    return [a, b, c]

def wd_prefetch_ops(A):
    srd(A, S_C, P_WD, 1792 * 1024)
    A(f"s_lshl_b32 s54, s{S_SLOT}, 16\ns_lshl_b32 s55, s{S_WAVE}, 13\ns_add_u32 s54, s54, s55")
    if C.g2map == "48":
        A(f"v_mov_b32 v159, v2\ns_mov_b32 s55, s{S_XCD}"); n, sh = 8, 10
    else:
        A(f"v_and_b32 v159, 31, v1\nv_lshlrev_b32 v159, 4, v159\nv_lshrrev_b32 v158, 5, v1\nv_lshl_add_u32 v159, v158, 10, v159")
        A(f"s_and_b32 s55, s{S_XCD}, 1\ns_lshl_b32 s55, s55, 9\ns_add_u32 s54, s54, s55\ns_lshr_b32 s55, s{S_XCD}, 1"); n, sh = 4, 11
    return [f"s_add_u32 m0, s{S_WLDS}, {LDS_SINK}\ns_lshl_b32 s60, s55, {sh}\ns_add_u32 s60, s60, s54\n"
            f"buffer_load_dwordx4 v159, {CR}, s60 offen lds\ns_add_u32 s55, s55, 1\ns_and_b32 s55, s55, {n-1}"] * n

V_G2W = 13
V_G2X = 244
def g2_setup(A, vw=V_G2W, vx=V_G2X, t0=14, t1=15):
    W = S_WAVE
    if C.g2map == "48":
        A(f"s_lshl_b32 s44, s{S_XCD}, 2\ns_and_b32 s45, s{S_SLOT}, 3\ns_add_u32 s44, s44, s45\ns_lshr_b32 s45, s{S_SLOT}, 2")
    else:
        A(f"s_lshr_b32 s44, s{S_XCD}, 1\ns_lshl_b32 s44, s44, 3\ns_and_b32 s45, s{S_SLOT}, 7\ns_add_u32 s44, s44, s45")
        A(f"s_and_b32 s45, s{S_XCD}, 1\ns_lshl_b32 s45, s45, 2\ns_lshr_b32 s46, s{S_SLOT}, 3\ns_add_u32 s45, s45, s46")
    A(f"s_and_b32 s48, s{W}, 3\ns_lshr_b32 s49, s{W}, 2")
    A("s_lshl_b32 s50, s44, 2\ns_add_u32 s50, s50, s48       ; rb16")
    srd(A, S_A, P_WD, 1792 * 1024)
    A(f"v_lshrrev_b32 v{vw}, 3, v1\nv_bfe_u32 v{t0}, v1, 4, 2\nv_lshlrev_b32 v{t0}, 1, v{t0}\nv_and_b32 v{t1}, 7, v1\nv_xor_b32 v{t0}, v{t0}, v{t1}")
    A(f"v_lshlrev_b32 v{vw}, 10, v{vw}\nv_lshl_add_u32 v{vw}, v{t0}, 4, v{vw}")
    A(f"s_lshl_b32 s46, s48, 15\ns_lshl_b32 s51, s45, 7\ns_add_u32 s51, s51, s46\ns_mul_i32 s55, s49, {896*1024}\ns_add_u32 s51, s51, s55")
    A("s_lshl_b32 s46, s48, 12\ns_lshl_b32 s55, s49, 14\ns_add_u32 s55, s55, s46")
    A(f"v_and_b32 v{t0}, 15, v1\ns_and_b32 s56, s50, 1\ns_lshl_b32 s56, s56, 4\nv_add_u32 v{t0}, s56, v{t0}")
    A(f"v_and_b32 v{vx}, 0x13, v{t0}\nv_bfe_u32 v{t1}, v{t0}, 2, 1\nv_lshl_or_b32 v{vx}, v{t1}, 3, v{vx}\nv_bfe_u32 v{t1}, v{t0}, 3, 1\nv_lshl_or_b32 v{vx}, v{t1}, 2, v{vx}")
    A(f"v_lshlrev_b32 v{vx}, 10, v{vx}\nv_lshrrev_b32 v{t1}, 4, v1\nv_lshl_add_u32 v{vx}, v{t1}, 3, v{vx}")
    A("s_lshr_b32 s56, s50, 1\ns_lshl_b32 s56, s56, 15\ns_lshl_b32 s46, s45, 7\ns_add_u32 s56, s56, s46\ns_lshl_b32 s46, s49, 6\ns_add_u32 s56, s56, s46")
def g2w_ops(n, vw=V_G2W):
    L = []
    for k in range(4):
        if n < 7:
            L.append(f"s_add_u32 m0, s55, {(n & 3)*32768 + k*1024}\nbuffer_load_dwordx4 v{vw}, {AR}, s51 offen lds\ns_add_u32 s51, s51, {8192 if k < 3 else 131072 - 3*8192}")
        else:
            L.append((f"s_add_u32 m0, s55, {(n & 3)*32768}\n" if k == 0 else "") + f"buffer_load_dwordx4 v173, {WSR}, s58 offen offset:{1024*k} sc1 lds" + ("\ns_add_u32 s58, s58, 16384" if k == 3 else ""))
    return L
def g2_wdma(A, n):
    for o in g2w_ops(n): A(o)
def weave(A, mf, fill, skip=0):
    n = len(mf) - skip; k = 0
    for i, m in enumerate(mf):
        A(m)
        if i >= skip:
            e = (len(fill) * (i - skip + 1) + n - 1) // n
            for f in fill[k:e]: A(f)
            k = e

def gelu_block(g, u, T, K):
    P = lambda r: f"v[{r}:{r+1}]"
    L = []
    for n in range(0, 8, 2): L.append(f"v_pk_mul_f32 {P(T+n)}, {P(g+n)}, {P(g+n)}")
    for n in range(0, 8, 2): L.append(f"v_pk_fma_f32 {P(T+n)}, {P(T+n)}, {P(K)}, {P(K+2)}")
    for n in range(0, 8, 2): L.append(f"v_pk_mul_f32 {P(T+n)}, {P(T+n)}, {P(g+n)}")
    for n in range(8): L.append(f"v_exp_f32 v{T+n}, v{T+n}")
    for n in range(0, 8, 2): L.append(f"v_pk_mul_f32 {P(T+8+n)}, {P(g+n)}, {P(u+n)}")
    for n in range(0, 8, 2): L.append(f"v_pk_fma_f32 {P(T+n)}, {P(T+n)}, {P(K+4)}, {P(K+4)}")
    for n in range(8): L.append(f"v_rcp_f32 v{T+n}, v{T+n}")
    for n in range(0, 8, 2): L.append(f"v_pk_mul_f32 {P(T+n)}, {P(T+n)}, {P(T+8+n)}")
    for q in range(4): L.append(f"v_cvt_pk_bf16_f32 v{T+8+q}, v{T+2*q}, v{T+2*q+1}")
    return L

def g1_setup(A):
    W = S_WAVE; AD = 128
    A(f"s_and_b32 s48, s{W}, 3\ns_lshr_b32 s49, s{W}, 2")
    A("v_lshrrev_b32 v8, 5, v1\nv_lshlrev_b32 v11, 3, v8\nv_bfe_u32 v9, v1, 2, 2\nv_add_u32 v11, v11, v9\nv_lshlrev_b32 v11, 7, v11")
    A("v_and_b32 v10, 3, v1\nv_lshl_add_u32 v11, v10, 3, v11\nv_bfe_u32 v10, v1, 4, 1\nv_lshl_add_u32 v11, v10, 5, v11")
    A(f"v_lshrrev_b32 v9, 1, v9\nv_xor_b32 v9, s49, v9\nv_lshl_add_u32 v{AD}, v9, 6, v11")
    A("v_and_b32 v9, 31, v1\nv_bfe_u32 v10, v1, 1, 3\nv_xor_b32 v10, v10, v8\nv_lshlrev_b32 v10, 4, v10\nv_lshl_add_u32 v10, v9, 7, v10")
    A(f"s_lshl_b32 s50, s48, 13\ns_add_u32 s50, s50, 16384\nv_add_u32 v{AD+1}, s50, v10")
    for k in range(1, 4): A(f"v_xor_b32 v{AD+1+k}, {32*k}, v{AD+1}")
    for sl in (1, 2):
        for n in range(5): A(f"v_add_u32 v{AD+5*sl+n}, {sl*SLOT}, v{AD+n}")
    A("v_mov_b32 v146, 0\nv_mov_b32 v147, 0\nv_mov_b32 v148, 0x3f803f80")
    A("s_lshl_b32 s46, s49, 1\ns_add_u32 s46, s46, s48\ns_and_b32 s46, s46, 3")
    A("v_and_b32 v157, 15, v1\nv_lshlrev_b32 v157, 4, v157\nv_lshl_add_u32 v157, v8, 8, v157")
    A("v_bfe_u32 v11, v1, 4, 1\nv_mul_u32_u24 v11, 57344, v11\nv_add_u32 v157, v157, v11")
    A(f"s_lshl_b32 s50, s{S_RT}, 3\ns_lshl_b32 s51, s48, 1\ns_add_u32 s50, s50, s51")
    A(f"s_mul_i32 s47, s50, {2*57344}\ns_lshl_b32 s52, s{S_CT}, 11\ns_add_u32 s47, s47, s52\ns_lshl_b32 s52, s49, 10\ns_add_u32 s47, s47, s52\ns_add_u32 s47, s47, {WS_H}")
    A(f"s_lshr_b32 s51, s{S_RT}, 2\ns_lshl_b32 s51, s51, 1\ns_and_b32 s52, s{S_RT}, 1\ns_add_u32 s51, s51, s52\ns_lshl_b32 s51, s51, 7\ns_add_u32 s51, s51, {FL_B}")
    A(f"s_lshl_b32 s50, s50, 8\ns_add_u32 s50, s50, {WS_ST}")
    A("v_lshlrev_b32 v149, 9, v1\nv_lshlrev_b32 v154, 3, v9")
    A(f"s_lshl_b32 s52, s49, 11\ns_add_u32 s52, s52, {LDS_CS}\nv_add_u32 v155, s52, v2\ns_lshl_b32 s52, s48, 2\nv_add_u32 v156, s52, v155")

def phase_g1(A):
    W = S_WAVE
    ACC = 64; WF = 32; AD = 128
    vm = [("w", 1)] * 2 + [("a", 1)] * 4
    def reads(kk, st):
        j, k = kk // 4, kk % 4
        wa = AD + 5 * (j % 3); aa = wa + 1 + k; d = WF + 16 * st
        return [f"ds_read_b64_tr_b16 v[{d}:{d+1}], v{wa} offset:{k*2048}", f"ds_read_b64_tr_b16 v[{d+2}:{d+3}], v{wa} offset:{k*2048+512}",
                f"ds_read_b128 v[{d+8}:{d+11}], v{aa}",
                f"ds_read_b64_tr_b16 v[{d+4}:{d+5}], v{wa} offset:{8192+k*2048}", f"ds_read_b64_tr_b16 v[{d+6}:{d+7}], v{wa} offset:{8192+k*2048+512}",
                f"ds_read_b128 v[{d+12}:{d+15}], v{aa} offset:4096"]
    def younger(ops):
        return len(vm) - 1 - max(i for i, o in enumerate(vm) if o in ops)
    stamp(A, "go")
    for r in reads(0, 0): A(r)
    pfo = wd_prefetch_ops(A); npf = len(pfo)
    pf = 0
    zst = p0_stores(A)
    for kk in range(32):
        j, k = kk // 4, kk % 4
        st = kk & 1
        if k == 3 and kk < 31:
            A(f"s_waitcnt vmcnt({younger([('w', j + 1), ('a', j + 1), ('f', j + 1)] + ([('z', 0)] if j == C.fbj else []))}) lgkmcnt(0)\ns_barrier")
            stamp(A, f"g{j+1}")
            if j == C.fbj: set_flag(A, 57, 16)
        if kk == 23:
            L = A.label("L_g1_ok")
            A(f"v_cmp_ne_u32 vcc, s{S_TAG}, v16\ns_cmp_eq_u64 vcc, 0\ns_cbranch_scc1 {L}")
            poll(A, [(149, "s51")], 16)
            A(f"{L}:")
            A(f"buffer_load_dwordx2 v[150:151], v154, {WSR}, s50 offen sc1\nbuffer_load_dwordx2 v[152:153], v154, {WSR}, s50 offen offset:256 sc1")
            vm.append(("s", 0)); vm.append(("s", 0))
        nxt = reads(kk + 1, st ^ 1) if kk < 31 else []
        ops = []
        full = lambda jj: [(("w", jj), o) for o in g1w_ops(jj)] + [(("a", jj), o) for o in g1a_ops(jj)]
        if j == 0:
            zs = [(("z", 0), o) for o in zst]
            allo = (zs + full(2)[2:]) if C.zfirst else (full(2)[2:] + zs)
            ops += allo[2 * k:2 * k + 2] if k < 3 else allo[6:]
        elif j == 1:
            ops += (full(2)[:2] + full(3))[2 * k:2 * k + 2]
        elif j + 2 < 8:
            if k == 0: ops += [(("w", j + 2), o) for o in g1w_ops(j + 2)]
            ops.append((("a", j + 2), g1a_ops(j + 2)[k]))
        if kk == 19:
            ops.append((("f", 6), f"buffer_load_dword v16, v149, {WSR}, s51 offen sc1"))
        d = WF + 16 * st
        for m, (wo, ao) in enumerate(((0, 8), (4, 8), (0, 12), (4, 12))):
            if m < 3 and not (k == 3 and kk < 31):
                A(f"s_waitcnt lgkmcnt({(3, 1, 0)[m] + len(nxt[0:2*m])})")
            c = f"v[{ACC+16*m}:{ACC+16*m+15}]"
            A(f"v_mfma_f32_32x32x16_bf16 {c}, v[{d+wo}:{d+wo+3}], v[{d+ao}:{d+ao+3}], {c if kk else 0}")
            for r in nxt[2*m:2*m+2]: A(r)
            if m >= 1 and ops:
                tag, o = ops.pop(0); A(o); vm.append(tag)
            if m == 2 and pf < npf and kk >= C.pf_start and (kk - C.pf_start) % C.pf_step == 0:
                A(pfo[pf]); vm.append(("p", pf)); pf += 1
        assert not ops
        if "c" not in C.dbg:
            L = A.label("L_g1_cs")
            A(f"s_cmp_lg_u32 s46, {k}\ns_cbranch_scc1 {L}")
            for q in range(4): A(f"v_dot2_f32_bf16 v146, v{d+q}, v148, v146\nv_dot2_f32_bf16 v147, v{d+4+q}, v148, v147")
            A(f"{L}:")
    assert pf == npf or C.pf_start > 31
    stamp(A, "main")
    A("s_nop 2")
    for r in (146, 147):
        A(f"v_cvt_pk_bf16_f32 v16, v{r}, v{r}\nv_lshlrev_b32 v16, 16, v16\nv_sub_f32 v16, v{r}, v16\nv_cvt_pk_bf16_f32 v{r}, v{r}, v16")
    A("ds_write_b32 v156, v146\nds_write_b32 v156, v147 offset:1024")
    A(f"s_waitcnt vmcnt({younger([('s', 0)])})")
    K1 = -2.0 * 0.7978845608028654 * 1.4426950408889634
    for b in range(2):
        m, r, K = 150 + 2 * b, 151 + 2 * b, 160 + 8 * b
        for q in range(4): A(f"v_mov_b32 v{WF+16+4*b+q}, v{m}")
        A(f"v_mul_f32 v{K+6}, v{r}, v{r}\nv_mul_f32 v{K+2}, {fhex(K1)}, v{r}\nv_rcp_f32 v{K+4}, v{K+6}\nv_mul_f32 v{K}, {fhex(0.044715)}, v{K+6}")
        A(f"v_mul_f32 v{K}, v{K}, v{K+2}\nv_mov_b32 v{K+3}, v{K+2}\nv_mov_b32 v{K+5}, v{K+4}\nv_mov_b32 v{K+1}, v{K}")
    A("s_waitcnt lgkmcnt(0)\ns_barrier")
    A(f"ds_read_b128 v[{WF}:{WF+3}], v155\nds_read_b128 v[{WF+4}:{WF+7}], v155 offset:1024")
    g2_setup(A)
    A("s_waitcnt lgkmcnt(0)")
    for m in range(4):
        c = f"v[{ACC+16*m}:{ACC+16*m+15}]"
        A(f"v_mfma_f32_32x32x16_bf16 {c}, v[{WF+4*(m&1)}:{WF+4*(m&1)+3}], v[{WF+16+4*(m>>1)}:{WF+16+4*(m>>1)+3}], {c}")
    for b in range(2):
        for half in range(2):
            n = 2 * b + half
            if n < C.nepi: g2_wdma(A, n)
            T = 176 + 16 * n
            for l in gelu_block(ACC + 32 * b + 8 * half, ACC + 32 * b + 16 + 8 * half, T, 160 + 8 * b): A(l)
            if n == 2: A(f"s_add_u32 s47, s47, {2*57344}")
            A(f"buffer_store_dwordx4 v[{T+8}:{T+11}], v157, {WSR}, s47 offen offset:{512*half} sc1")
    stamp(A, "epi")
    A("s_waitcnt vmcnt(0)\ns_barrier")
    A(f"s_lshl_b32 s57, s{S_RT}, 5\ns_add_u32 s57, s57, s{S_CT}\ns_lshl_b32 s57, s57, 7\ns_add_u32 s57, s57, {FL_H}")
    set_flag(A, 57, 16)
    stamp(A, "flag2")
    for n in range(C.nepi, 4): g2_wdma(A, n)

def phase_cf(A):
    W = S_WAVE
    ZL = 0; WL = 65536; TW = 131072; FR = TW + 8192
    D0 = 64; D1 = 128; PK = 192; WW = 224
    FC, FS, FN = 8, 16, 24
    OC, OS, ON = 32, 40, 48
    A("; ---- CF")
    A(f"s_lshl_b32 s44, s{S_XCD}, 2\ns_add_u32 s44, s44, s{S_SLOT}\ns_sub_u32 s44, s44, 28    ; cg")
    A("s_waitcnt lgkmcnt(0)")
    for o in p0_stores(A): A(o)
    A("s_waitcnt vmcnt(0)\ns_barrier")
    set_flag(A, 57, 16)
    if C.cfstage:
        srd(A, S_C, P_WD, 1792 * 1024)
        A(f"s_mul_i32 s46, s44, 57344\ns_mul_i32 s47, s{W}, 7168\ns_add_u32 s46, s46, s47\ns_add_u32 m0, s{S_WLDS}, {LDS_SINK}")
        for k in range(7):
            A(f"buffer_load_dwordx4 v2, {CR}, s46 offen lds")
            if k < 6: A("s_add_u32 s46, s46, 1024")
    A(f"s_lshl_b32 s46, s{W}, 1\nv_lshrrev_b32 v8, 5, v1\nv_add_u32 v8, s46, v8")
    A("v_and_b32 v9, 3, v8\nv_bfe_u32 v10, v8, 3, 1\nv_lshl_or_b32 v9, v10, 2, v9      ; beta")
    A("s_and_b32 s46, s44, 1\ns_lshl_b32 s46, s46, 3\nv_or_b32 v9, s46, v9         ; k1")
    A("s_lshr_b32 s46, s44, 1\ns_lshl_b32 s47, s46, 5\ns_sub_u32 s48, 0x200, s47\ns_cmp_lt_u32 s46, 8")
    A(f"s_cselect_b32 s49, s47, s48\ns_cselect_b32 s50, 1, -1\ns_sub_u32 s48, s48, 16\ns_cmp_lt_u32 s46, 8\ns_cselect_b32 s48, s47, s48")
    A("s_cmp_eq_u32 s46, 0\ns_cselect_b32 s48, 0x100, s48")
    A("v_mov_b32 v11, s49\nv_mad_i32_i24 v10, v9, s50, v11\nv_mov_b32 v11, s48\nv_cmp_eq_u32 vcc, 0, v9\nv_cndmask_b32 v10, v10, v11, vcc   ; bin")
    A(f"v_mov_b32 v11, {fhex(2.0**-19)}\nv_mov_b32 v12, {fhex(2.0**-20)}\nv_cmp_eq_u32 vcc, 0x100, v10\nv_cndmask_b32 v12, v11, v12, vcc\nv_mov_b32 v13, v12")
    A(f"v_cvt_f32_u32 v10, v10\nv_mul_f32 v10, {fhex(1/512)}, v10")
    A(f"v_bfe_u32 v11, v8, 2, 1\nv_cvt_f32_u32 v11, v11\nv_mul_f32 v11, {fhex(0.25)}, v11")
    A("v_and_b32 v14, 31, v1\nv_lshlrev_b32 v15, 3, v14\nv_cvt_f32_u32 v15, v15\nv_fma_f32 v64, v15, v10, v11")
    A(f"v_fmamk_f32 v72, v10, {fhex(256.0)}, v64\nv_fract_f32 v72, v72")
    for b in (64, 72):
        for j in range(1, 8): A(f"v_fmamk_f32 v{b+j}, v10, {fhex(float(j))}, v{b}")
    for j in range(16): A(f"v_cos_f32 v{64+j}, v{64+j}")
    for j in range(0, 16, 2): A(f"v_pk_mul_f32 v[{64+j}:{65+j}], v[{64+j}:{65+j}], v[12:13]")
    for q in range(8): A(f"v_cvt_pk_bf16_f32 v{64+q}, v{64+2*q}, v{65+2*q}")
    A(f"v_lshrrev_b32 v15, 3, v14\nv_and_b32 v14, 7, v14\nv_lshlrev_b32 v14, 4, v14\nv_lshl_add_u32 v14, v8, 7, v14\nv_lshl_add_u32 v14, v15, 16, v14")
    A(f"s_lshl_b32 s46, s44, 11\ns_add_u32 s46, s46, {WS_G}\ns_add_u32 s47, s46, 0x40000")
    A(f"buffer_store_dwordx4 v[64:67], v14, {WSR}, s46 offen sc1\nbuffer_store_dwordx4 v[68:71], v14, {WSR}, s47 offen sc1")
    A("v_and_b32 v3, 31, v1\nv_lshrrev_b32 v4, 5, v1\nv_lshlrev_b32 v4, 2, v4")
    A(f"s_and_b32 s52, s{W}, 3\ns_lshl_b32 s52, s52, 3\ns_lshr_b32 s53, s{W}, 2\ns_mul_i32 s53, s53, 1536")
    A("v_add_u32 v5, s52, v4")
    for b in range(4):
        A(f"v_add_u32 v6, {b}, v5\nv_mad_u32_u24 v{64+b}, v6, v3, s53")
    def frag(dst, matsel):
        A(f"s_and_b32 s54, s{W}, 1\ns_lshl_b32 s54, s54, 4")
        A(f"s_lshr_b32 s55, s{W}, 1\ns_and_b32 s55, s55, 1\ns_mul_i32 s55, s55, 48")
        if matsel == 0: A(f"s_lshr_b32 s56, s{W}, 2\nv_lshl_add_u32 v7, v3, 1, s56")
        for j in range(8):
            A(f"v_add_u32 v6, s54, v4\nv_add_u32 v6, {8*(j>>2) + (j&3)}, v6")
            if matsel == 0: A(f"v_mad_u32_u24 v{dst+j}, v6, v7, s55")
            else: A(f"v_lshl_add_u32 v6, v6, 1, 1\nv_mad_u32_u24 v{dst+j}, v6, v3, s55")
    frag(80, 0); frag(88, 1)
    cos_batch(A, range(64, 68), 2047, 1.0 / 2048)
    cos_batch(A, range(80, 96), 63, 1.0 / 64)
    A(f"s_lshl_b32 s52, s52, 8\ns_lshr_b32 s53, s{W}, 2\ns_lshl_b32 s53, s53, 10\ns_add_u32 s52, s52, s53\ns_add_u32 s52, s52, {TW}")
    A("v_add_u32 v5, s52, v2\nds_write_b128 v5, v[64:67]")
    for q in range(8): A(f"v_cvt_pk_bf16_f32 v{80+q}, v{80+2*q}, v{81+2*q}")
    A(f"s_lshl_b32 s52, s{W}, 10\ns_add_u32 s52, s52, {FR}\nv_add_u32 v5, s52, v2")
    A("ds_write_b128 v5, v[80:83]")
    Ls = A.label("L_cf_skip")
    A(f"s_cmp_ge_u32 s{W}, 4\ns_cbranch_scc1 {Ls}\nds_write_b128 v5, v[84:87] offset:8192\n{Ls}:")
    A(f"v_add_u32 v56, {TW}, v2\nv_add_u32 v57, {FR}, v2")
    A(f"s_lshl_b32 s52, s{W}, 1\nv_and_b32 v6, 15, v1\nv_xor_b32 v6, s52, v6\nv_lshlrev_b32 v6, 4, v6")
    A("v_lshl_add_u32 v6, v3, 10, v6\nv_lshl_add_u32 v58, v4, 6, v6\nv_xor_b32 v59, 16, v58")
    A(f"v_lshrrev_b32 v6, 2, v3\nv_xor_b32 v6, s{W}, v6\nv_lshlrev_b32 v6, 2, v6\nv_lshl_add_u32 v6, v3, 5, v6\nv_lshl_add_u32 v6, v4, 11, v6\nv_add_u32 v7, {WL}, v6")
    A("s_waitcnt vmcnt(0)")
    stamp(A, "fd")
    A(f"v_lshlrev_b32 v6, 7, v3\ns_lshl_b32 s57, s{W}, 12\ns_add_u32 s57, s57, {FL_B}")
    poll(A, [(6, "s57")], 64)
    A("s_waitcnt lgkmcnt(0)\ns_barrier")
    stamp(A, "rdy1")
    A(f"s_lshl_b32 s48, s44, 16\ns_lshl_b32 s49, s{W}, 13\ns_add_u32 s50, s48, s49")
    def dma64(base, lb):
        return [(f"s_add_u32 s51, s50, {base}\n" if k == 0 else "s_add_u32 s51, s51, 1024\n") +
                f"s_add_u32 m0, s49, {lb + k*1024}\nbuffer_load_dwordx4 v2, {WSR}, s51 offen sc1 lds" for k in range(8)]
    for o in dma64(WS_Z, ZL): A(o)
    P = lambda r: f"v[{r}:{r+1}]"
    def load_frags(Cc, S, mat):
        return [f"ds_read_b128 v[{R+4*m}:{R+4*m+3}], v57 offset:{(mat*4+o+m)*1024}" for m in range(2) for (R, o) in ((Cc, 0), (S, 2))]
    def neg_frags(S, N): return [f"v_xor_b32 v{N+q}, 0x80008000, v{S+q}" for q in range(8)]
    def pk(blk, c, m): return PK + 16 * blk + 8 * c + 4 * m
    def acc(D, c, blk): return D + 32 * c + 16 * blk
    def cstage(D, blk, data_is_A, Cc, Sre, Sim):
        L = []
        for (c, seq) in ((0, ((0, Cc), (1, Sre))), (1, ((1, Cc), (0, Sim)))):
            d = acc(D, c, blk); first = True
            for (cc, K) in seq:
                for m in range(2):
                    dat = f"v[{pk(blk,cc,m)}:{pk(blk,cc,m)+3}]"; con = f"v[{K+4*m}:{K+4*m+3}]"
                    a, b = (dat, con) if data_is_A else (con, dat)
                    L.append(f"v_mfma_f32_32x32x16_bf16 v[{d}:{d+15}], {a}, {b}, {0 if first else f'v[{d}:{d+15}]'}")
                    first = False
        return L
    def pack(D, blk):
        return [f"v_cvt_pk_bf16_f32 v{pk(blk,c,0)+q}, v{acc(D,c,blk)+2*q}, v{acc(D,c,blk)+2*q+1}" for c in range(2) for q in range(8)]
    def tw_load():
        return [f"ds_read_b128 v[{WW+16*comp+4*a}:{WW+16*comp+4*a+3}], v56 offset:{a*2048 + comp*1024}" for a in range(4) for comp in range(2)]
    NEG = lambda i: " neg_lo:[%s] neg_hi:[%s]" % ((",".join("1" if j == i else "0" for j in range(3)),) * 2)
    def radix2_tw(conj):
        for i in range(0, 16, 2):
            er, ei, o_r, oi = acc(D0,0,0)+i, acc(D0,1,0)+i, acc(D0,0,1)+i, acc(D0,1,1)+i
            ur, ui, vr_, vi = acc(D1,0,0)+i, acc(D1,1,0)+i, acc(D1,0,1)+i, acc(D1,1,1)+i
            c0, s0 = P(WW + i), P(WW + 16 + i)
            A(f"v_pk_add_f32 {P(ur)}, {P(er)}, {P(o_r)}\nv_pk_add_f32 {P(vr_)}, {P(er)}, {P(o_r)} neg_lo:[0,1] neg_hi:[0,1]")
            A(f"v_pk_add_f32 {P(ui)}, {P(ei)}, {P(oi)}\nv_pk_add_f32 {P(vi)}, {P(ei)}, {P(oi)} neg_lo:[0,1] neg_hi:[0,1]")
            A(f"v_pk_mul_f32 v[60:61], {P(ur)}, {s0}\nv_pk_mul_f32 v[62:63], {P(vr_)}, {s0}")
            A(f"v_pk_mul_f32 {P(ur)}, {P(ur)}, {c0}\nv_pk_mul_f32 {P(vr_)}, {P(vr_)}, {c0}")
            n0 = NEG(0) if conj else ""; n2 = "" if conj else NEG(2)
            A(f"v_pk_fma_f32 {P(ur)}, {P(ui)}, {s0}, {P(ur)}{n0}\nv_pk_fma_f32 {P(vr_)}, {P(vi)}, {s0}, {P(vr_)}{n0}")
            A(f"v_pk_fma_f32 {P(ui)}, {P(ui)}, {c0}, v[60:61]{n2}\nv_pk_fma_f32 {P(vi)}, {P(vi)}, {c0}, v[62:63]{n2}")
    def wmul(e):
        L = []
        for i in range(0, 16, 2):
            w = WW + 16 * e + i; t = 60 + (i & 2)
            xr, xi, yr, yi = acc(D0,0,e)+i, acc(D0,1,e)+i, acc(D1,0,e)+i, acc(D1,1,e)+i
            L += [f"v_lshlrev_b32 v{t}, 16, v{w}", f"v_lshlrev_b32 v{t+1}, 16, v{w+1}", f"v_and_b32 v{w}, 0xffff0000, v{w}", f"v_and_b32 v{w+1}, 0xffff0000, v{w+1}",
                  f"v_pk_mul_f32 {P(yr)}, {P(xr)}, {P(t)}", f"v_pk_mul_f32 {P(yi)}, {P(xi)}, {P(t)}",
                  f"v_pk_fma_f32 {P(yr)}, {P(xi)}, {P(w)}, {P(yr)}{NEG(0)}", f"v_pk_fma_f32 {P(yi)}, {P(xr)}, {P(w)}, {P(yi)}"]
        return L
    def E(L):
        for l in L: A(l)
    E(load_frags(FC, FS, 0) + load_frags(OC, OS, 2) + tw_load())
    A("s_waitcnt lgkmcnt(8)")
    E(neg_frags(FS, FN) + neg_frags(OS, ON))
    A(f"s_lshl_b32 s52, s{W}, 16\ns_lshl_b32 s53, s44, 9\ns_add_u32 s52, s52, s53\ns_add_u32 s47, s52, {WS_ZP}")
    A(f"s_lshl_b32 s57, s44, 7\ns_add_u32 s57, s57, {FL_C}")
    A("s_waitcnt vmcnt(0)\ns_barrier")
    stamp(A, "go")
    for mu in range(2):
        for c in range(2):
            for m in range(2):
                A(f"ds_read_b128 v[{pk(mu,c,m)}:{pk(mu,c,m)+3}], v{58+c} offset:{ZL + mu*32768 + m*512}")
    wp = dma64(WS_WP, WL)
    A("s_waitcnt lgkmcnt(4)")
    weave(A, cstage(D0, 0, True, FC, FS, FN), wp[:4])
    A("s_waitcnt lgkmcnt(0)")
    weave(A, cstage(D0, 1, True, OC, OS, ON), wp[4:])
    E(load_frags(OC, OS, 1))
    radix2_tw(False)
    E(pack(D1, 0))
    A("s_waitcnt lgkmcnt(0)")
    weave(A, cstage(D0, 0, False, FC, FS, FN), pack(D1, 1) + neg_frags(OS, ON))
    stamp(A, "main")
    A("s_waitcnt vmcnt(0)\ns_barrier")
    wr = [f"ds_read2st64_b32 {P(WW+16*e+4*a+b)}, v7 offset0:{a*64+b*8+e*4} offset1:{a*64+b*8+e*4+8}" for e in range(2) for a in range(4) for b in (0, 2)]
    E(wr[:8])
    m2 = cstage(D0, 1, False, OC, OS, ON)
    weave(A, m2[:2], wr[8:])
    A("s_waitcnt lgkmcnt(8)")
    weave(A, m2[2:], wmul(0))
    stamp(A, "wrdy")
    E(load_frags(OC, OS, 2))
    E(pack(D1, 0))
    g2_setup(A, 58, 59, 5, 6)
    A("s_waitcnt lgkmcnt(4)")
    weave(A, cstage(D0, 0, True, FC, FN, FS), wmul(1) + pack(D1, 1), 1)
    A("s_waitcnt lgkmcnt(0)")
    E(neg_frags(OS, ON) + tw_load())
    weave(A, cstage(D0, 1, True, OC, ON, OS), g2w_ops(0, 58) if C.cfw0 else [])
    E(load_frags(OC, OS, 1))
    A("s_waitcnt lgkmcnt(4)")
    radix2_tw(True)
    E(pack(D1, 0))
    A("s_waitcnt lgkmcnt(0)")
    weave(A, cstage(D0, 0, True, FC, FN, FS), pack(D1, 1) + neg_frags(OS, ON))
    stamp(A, "epi")
    adr = (f"s_and_b32 s60, s{W}, 1\ns_lshl_b32 s60, s60, 2\nv_lshrrev_b32 v5, 5, v1\nv_or_b32 v5, s60, v5\n"
           "v_and_b32 v6, 7, v1\nv_xor_b32 v5, v5, v6\nv_lshlrev_b32 v5, 4, v5\nv_lshl_add_u32 v5, v3, 11, v5\n"
           f"s_lshr_b32 s60, s{W}, 1\ns_lshl_b32 s60, s60, 7\ns_add_u32 s60, s60, {WL}\nv_add_u32 v56, s60, v5\nv_xor_b32 v57, 32, v56\n"
           "v_bfe_u32 v5, v1, 2, 1\nv_lshlrev_b32 v5, 2, v5\nv_bfe_u32 v6, v1, 4, 1\nv_lshl_add_u32 v5, v6, 1, v5\nv_bfe_u32 v6, v1, 1, 1\nv_add_u32 v5, v5, v6\n"
           f"v_xor_b32 v5, s{W}, v5\nv_lshlrev_b32 v5, 4, v5\nv_and_b32 v6, 1, v1\nv_lshl_add_u32 v5, v6, 3, v5\n"
           "v_bfe_u32 v6, v1, 3, 1\nv_lshl_add_u32 v5, v6, 7, v5\nv_lshrrev_b32 v6, 5, v1\nv_lshl_add_u32 v5, v6, 9, v5\n"
           f"s_lshl_b32 s60, s{W}, 11\ns_add_u32 s60, s60, {WL}\nv_add_u32 v5, s60, v5\n"
           "v_and_b32 v6, 15, v1\nv_lshlrev_b32 v6, 4, v6\nv_lshrrev_b32 v7, 5, v1\nv_lshl_add_u32 v6, v7, 8, v6\n"
           "v_bfe_u32 v7, v1, 4, 1\nv_lshl_add_u32 v6, v7, 14, v6").split("\n")
    def xw(mu): return [f"ds_write_b128 v{56+m}, v[{pk(mu,c,m)}:{pk(mu,c,m)+3}] offset:{mu*1024 + c*512}" for c in range(2) for m in range(2)]
    def xr_store(mu):
        for n in range(4):
            d = D1 + 16 * mu + 4 * n
            A(f"ds_read_b64_tr_b16 v[{d}:{d+1}], v5 offset:{n*16384 + mu*1024}\nds_read_b64_tr_b16 v[{d+2}:{d+3}], v5 offset:{n*16384 + mu*1024 + 256}")
        for n in range(4):
            d = D1 + 16 * mu + 4 * n
            A(f"s_waitcnt lgkmcnt({6-2*n})")
            A(f"buffer_store_dwordx4 v[{d}:{d+3}], v6, {WSR}, s47 offen sc1")
            A(f"s_add_u32 s47, s47, {0x80000 if n < 3 else (0x8000 - 0x180000) & 0xffffffff}")
    m4 = cstage(D0, 1, True, OC, ON, OS)
    weave(A, m4[:4], adr)
    A("s_barrier")
    weave(A, m4[4:], pack(D0, 0) + xw(0))
    A("s_waitcnt lgkmcnt(0)\ns_barrier")
    stamp(A, "c1")
    xr_store(0)
    E(pack(D0, 1) + xw(1))
    A("s_waitcnt lgkmcnt(0)\ns_barrier")
    xr_store(1)
    stamp(A, "c3")
    A(f"v_mov_b32 v{V_G2W}, v58\nv_mov_b32 v{V_G2X}, v59")
    g2_wdma(A, C.cfw0)
    A("s_waitcnt vmcnt(4)\ns_barrier")
    stamp(A, "c5")
    set_flag(A, 57, 16)
    for n in range(C.cfw0 + 1, 4): g2_wdma(A, n)
    stamp(A, "flag2")

def phase_g2(A):
    W = S_WAVE
    ACT = 64; WF = 128; ACC = 16; NS = 9
    A("; ---- G2")
    srd(A, S_X, P_X, 2097152)
    srd(A, S_B, P_OUT, 2097152)
    A("v_lshlrev_b32 v3, 4, v1")
    A(f"s_mul_i32 s54, s50, 57344\ns_mul_i32 s46, s49, {28*1024}\ns_add_u32 s54, s54, s46\ns_add_u32 s54, s54, {WS_H}")
    A(f"s_lshl_b32 s57, s50, 14\ns_lshl_b32 s46, s49, 13\ns_add_u32 s57, s57, s46\ns_add_u32 s57, s57, {WS_ZP}")
    A("v_lshrrev_b32 v6, 5, v1\nv_lshlrev_b32 v6, 4, v6\nv_bfe_u32 v7, v1, 4, 1\nv_lshl_add_u32 v6, v7, 2, v6\nv_bfe_u32 v4, v1, 2, 2\nv_add_u32 v6, v6, v4")
    A("v_lshlrev_b32 v6, 7, v6\nv_lshrrev_b32 v4, 1, v4\nv_lshl_or_b32 v4, v7, 1, v4")
    A("v_lshl_add_u32 v6, v4, 5, v6\nv_and_b32 v4, 3, v1\nv_lshl_add_u32 v6, v4, 3, v6")
    A("s_lshl_b32 s46, s49, 14\nv_add_u32 v164, s46, v6")
    for nb in range(1, 4): A(f"v_xor_b32 v{164+nb}, {32*nb}, v164")
    for nb in range(4): A(f"v_add_u32 v{160+nb}, 0x10000, v{164+nb}")
    A("v_bfe_u32 v4, v1, 4, 2\nv_lshlrev_b32 v4, 5, v4\nv_xor_b32 v173, v3, v4")
    A(f"s_lshl_b32 s58, s45, 16\ns_lshl_b32 s46, s49, 15\ns_add_u32 s58, s58, s46\ns_lshl_b32 s46, s48, 12\ns_add_u32 s58, s58, s46\ns_add_u32 s58, s58, {WS_G}")
    A("v_min_u32 v170, 27, v1\nv_lshlrev_b32 v170, 7, v170\nv_and_b32 v172, 31, v1\nv_lshlrev_b32 v172, 7, v172")
    A(f"s_lshr_b32 s46, s44, 2\ns_lshl_b32 s46, s46, 12\ns_add_u32 s46, s46, {FL_H}\ns_mov_b32 s47, {FL_C}")
    L = A.label("L_g2_np")
    A(f"s_cmp_lg_u32 s{W}, 0\ns_cbranch_scc1 {L}\ns_waitcnt vmcnt(0)")
    poll(A, [(170, "s46")], 176)
    A(f"{L}:")
    A("s_barrier")
    stamp(A, "hrdy")
    vm = []
    def act_ops(n):
        L = []
        for k in range(4):
            d = ACT + 16 * (n & 3) + 4 * k
            L.append((("a", n), ("s_mov_b32 s54, s57\n" if (n == 7 and k == 0) else "") +
                      f"buffer_load_dwordx4 v[{d}:{d+3}], v3, {WSR}, s54 offen offset:{1024*k} sc1" + ("\ns_add_u32 s54, s54, 4096" if k == 3 else "")))
        return L
    def w_ops(n): return [(("w", n), o) for o in g2w_ops(n)]
    def emit(op):
        A(op[1]); vm.append(op[0])
    for op in act_ops(0): emit(op)
    A("s_barrier")
    for op in act_ops(1): emit(op)
    def reads(n, k, st):
        slot = n & 3
        va = 164 if slot < 2 else 160
        off = (slot & 1) * 32768 + k * 4096
        r = []
        for nb in range(4):
            d = WF + 16 * st + 4 * nb
            r.append(f"ds_read_b64_tr_b16 v[{d}:{d+1}], v{va+nb} offset:{off}")
            r.append(f"ds_read_b64_tr_b16 v[{d+2}:{d+3}], v{va+nb} offset:{off+1024}")
        return r
    LA = C.la2
    NZ = 4
    for n in range(NS):
        need = [i for i, o in enumerate(vm) if o in (("a", n), ("w", n), ("f", n))]
        A(f"s_waitcnt vmcnt({len(vm) - 1 - max(need)})\ns_barrier")
        stamp(A, f"st{n}")
        for r in reads(n, 0, 0): A(r)
        if n == NZ:
            L = A.label("L_g2_ok")
            A(f"v_cmp_ne_u32 vcc, s{S_TAG}, v176\ns_cmp_eq_u64 vcc, 0\ns_cbranch_scc1 {L}")
            poll(A, [(172, "s47")], 176)
            A(f"s_mov_b32 s{S_RDY}, 1\n{L}:")
        ops = []
        if n == 0 and LA == 3: ops += act_ops(2)
        if n == NZ - 1: ops.append((("f", NZ), f"buffer_load_dword v176, v172, {WSR}, s47 offen sc1"))
        if 4 <= n + 3 < NS: ops += w_ops(n + 3)
        if n + LA < NS: ops += act_ops(n + LA)
        if n == C.xst:
            ops.append((("x", 0), f"buffer_load_dwordx2 v[240:241], v{V_G2X}, {XR}, s56 offen {C.nt_x2}"))
            ops.append((("x", 0), f"buffer_load_dwordx2 v[242:243], v{V_G2X}, {XR}, s56 offen offset:32 {C.nt_x2}"))
        slots = [[] for _ in range(16)]
        for i, op in enumerate(ops): slots[(i * 16) // max(len(ops), 8) if len(ops) > 8 else 2 * i].append(op)
        for k in range(4):
            st = k & 1
            nxt = reads(n, k + 1, st ^ 1) if k < 3 else []
            for nb in range(4):
                if nb % 2 == 0: A(f"s_waitcnt lgkmcnt({4 - 2*nb + len(nxt[0:2*nb])})")
                d = WF + 16 * st + 4 * nb; a = ACT + 16 * (n & 3) + 4 * k
                cb = ACC + (16 if n >= 7 else 0) + 4 * nb
                c = f"v[{cb}:{cb+3}]"
                A(f"v_mfma_f32_16x16x32_bf16 {c}, v[{d}:{d+3}], v[{a}:{a+3}], {0 if (n in (0, 7) and k == 0) else c}")
                for r in nxt[2*nb:2*nb+2]: A(r)
                for op in slots[4 * k + nb]: emit(op)
    stamp(A, "g2m")
    EX = 32768
    A(f"s_lshl_b32 s57, s{W}, 12\ns_add_u32 s57, s57, {EX}\nv_add_u32 v6, s57, v3\nv_xor_b32 v7, 0x4000, v6")
    L1 = A.label("L_g2_k1"); L2 = A.label("L_g2_j")
    A(f"s_cmp_eq_u32 s49, 1\ns_cbranch_scc1 {L1}")
    for (lab, keep) in ((None, 0), (L1, 8)):
        if lab: A(f"{lab}:")
        send = 8 - keep
        for q, r in enumerate((ACC + send, ACC + send + 4, ACC + 16 + send, ACC + 20 + send)):
            A(f"ds_write_b128 v6, v[{r}:{r+3}] offset:{1024*q}")
        A("s_waitcnt lgkmcnt(0)\ns_barrier")
        for q in range(4): A(f"ds_read_b128 v[{48+4*q}:{51+4*q}], v7 offset:{1024*q}")
        A("s_waitcnt lgkmcnt(2)")
        for i in range(0, 8, 2): A(f"v_pk_add_f32 v[{48+i}:{49+i}], v[{48+i}:{49+i}], v[{ACC+keep+i}:{ACC+keep+i+1}]")
        A("s_waitcnt lgkmcnt(0)")
        for i in range(0, 8, 2): A(f"v_pk_add_f32 v[{56+i}:{57+i}], v[{56+i}:{57+i}], v[{ACC+16+keep+i}:{ACC+16+keep+i+1}]")
        if not lab: A(f"s_branch {L2}")
    A(f"{L2}:")
    for i in range(8): A(f"v_mul_f32 v{64+i}, {fhex(-1.4426950408889634)}, v{48+i}")
    for i in range(8): A(f"v_exp_f32 v{64+i}, v{64+i}")
    for i in range(8): A(f"v_mul_f32 v{56+i}, v{56+i}, v{48+i}")
    for i in range(8): A(f"v_add_f32 v{64+i}, 1.0, v{64+i}")
    for i in range(8): A(f"v_rcp_f32 v{64+i}, v{64+i}")
    A("s_waitcnt vmcnt(0)")
    for q in range(4): A(f"v_lshlrev_b32 v{72+2*q}, 16, v{240+q}\nv_and_b32 v{73+2*q}, 0xffff0000, v{240+q}")
    for i in range(8): A(f"v_fmac_f32 v{72+i}, v{56+i}, v{64+i}")
    for q in range(4): A(f"v_cvt_pk_bf16_f32 v{8+q}, v{72+2*q}, v{73+2*q}")
    A(f"buffer_store_dwordx2 v[8:9], v244, {BR}, s56 offen\nbuffer_store_dwordx2 v[10:11], v244, {BR}, s56 offen offset:32")
    L = A.label("L_ep")
    A(f"s_cmp_lg_u32 s{S_WG}, 0\ns_cbranch_scc1 {L}\ns_mov_b32 s57, 0")
    set_flag(A, 57, 16)
    A(f"{L}:")

HDR = open("recurrent_scan__spectral_gfnet__geglu_ffn__prompt.s.ref").read().split("; Override")[0]
def gen(**kw):
    for k, v in kw.items(): setattr(C, k, v)
    A = Asm()
    A(HDR.rstrip())
    A("; @launch grid=(256,1,1) block=(512,1,1) lds=163840")
    A('.amdgcn_target "amdgcn-amd-amdhsa--gfx950"\n.text')
    kernel_begin(A, KN)
    prologue(A)
    phase_p0(A)
    A(f"s_cmp_ge_u32 s{S_SLOT}, 28\ns_cbranch_scc1 L_cf")
    phase_g1(A)
    A("s_branch L_g2\nL_cf:")
    phase_cf(A)
    A("L_g2:")
    phase_g2(A)
    if C.delay:
        A(f"s_memtime s[70:71]\ns_waitcnt lgkmcnt(0)\nL_dly:\ns_memtime s[72:73]\ns_waitcnt lgkmcnt(0)\ns_sub_u32 s72, s72, s70\ns_cmp_lt_u32 s72, {C.delay}\ns_cbranch_scc1 L_dly")
    if C.echo:
        A(f"s_memrealtime s[72:73]\ns_waitcnt lgkmcnt(0)")
        if C.echo == "end": A("s_mov_b32 s84, s72")
        A(f"s_sub_u32 s84, s84, s82\ns_mul_i32 s84, s84, {C.echo_k}")
        A(f"L_echo:\ns_memrealtime s[74:75]\ns_waitcnt lgkmcnt(0)\ns_sub_u32 s74, s74, s72\ns_cmp_lt_u32 s74, s84\ns_cbranch_scc1 L_echo")
    if C.dbgclk:
        A(f"s_cmp_lg_u32 s{S_WG}, 0\ns_cbranch_scc1 L_done\ns_cmp_lg_u32 s{S_WAVE}, 0\ns_cbranch_scc1 L_done")
        A("s_memtime s[74:75]\ns_memrealtime s[76:77]\ns_waitcnt lgkmcnt(0)\ns_sub_u32 s74, s74, s80\ns_sub_u32 s76, s76, s82")
        srd(A, S_A, P_DBG, 256)
        A(f"v_mov_b32 v2, 0\nv_mov_b32 v4, s74\nv_mov_b32 v5, s76\nbuffer_store_dwordx2 v[4:5], v2, {AR}, 0 offen")
    diag_end(A)
    A("L_done:\ns_endpgm")
    A('.section .rodata,"a"\n.p2align 6')
    A(descriptor(KN, 256, 102, 256))
    return hazard.fix(A.text(), verbose=False)
if __name__ == "__main__":
    kw = dict(a.split("=") for a in sys.argv[2:])
    kw = {k: (int(v) if v.isdigit() else v) for k, v in kw.items()}
    open(sys.argv[1], "w").write(gen(**kw))
```

```python
import struct, sys
from asmgen import *
import hazard

WS_FL = 0x0
FL_B = 0x9000
FL_H = 0x11000
FL_C = 0x19000
WS_ST = 0x0100000
WS_Z  = 0x0300000
WS_WP = 0x0500000
WS_G  = 0x0700000
WS_ZP = 0x0800000
WS_H  = 0x0A00000
WS_DIAG = 0x1200000
WS_SIZE = 0x1400000
TAGK = 0x3C6EF35F

def fhex(x): return "0x%08x" % struct.unpack("<I", struct.pack("<f", x))[0]
S_WS, S_X, S_A, S_B = 4, 8, 12, 16
S_WAVE, S_WG, S_TAG, S_SLOT = 20, 21, 22, 23
S_PTR = 24
P_X, P_WR, P_WI, P_BX, P_WG, P_WU, P_WD, P_OUT, P_DBG, P_WS = [S_PTR + 2 * i for i in range(10)]
S_RT, S_CT, S_WOFF, S_RDY, S_XCD, S_SPIN = 64, 65, 66, 67, 68, 69
S_WLDS = 3
WSR = f"s[{S_WS}:{S_WS+3}]"; XR = f"s[{S_X}:{S_X+3}]"; AR = f"s[{S_A}:{S_A+3}]"; BR = f"s[{S_B}:{S_B+3}]"
S_C = 96; CR = f"s[{S_C}:{S_C+3}]"
LDS_P0 = 98304
SLOT = 49152
LDS_CS = 147456
LDS_SINK = 152576

class Cfg:
    diag = False
    g1map = "col"
    g2map = "84"
    nt_x = ""; nt_x2 = ""; nt_w = "nt"; nt_g1w = "nt"
    E1, E2 = 2, 3
    D = 8
    xst = 6
    outf = "nt"
    cfstage = 1
    cfw0 = 1
    zfirst = 1
    fbj = 0
    a0early = 0
    bulk = 1
    cpf = 1
    rotc = 0
    rotr = 1
    perm = "01452367"
    j0early = 1
    delay = 0
    echo = ""
    echo_k = 1
    dbgclk = 0
    la2 = 3
    dbg = ""
    sc_act = "sc1"
    rot2 = 0
    nepi = 0
    pf_start, pf_step = 24, 2
    stamps = "x,p0end,go,main,epi,flag2,hrdy,st0,st8"
C = Cfg()

def stamp(A, name):
    if C.echo == name: A("s_memrealtime s[84:85]")
    if not C.diag: return
    names = ["entry"] + C.stamps.split(",") + ["end"]
    assert len(names) <= 11
    if name in names:
        n = names.index(name)
        A(f"s_memtime s[{74+2*n}:{75+2*n}]")
def diag_end(A):
    if not C.diag: return
    A("s_waitcnt vmcnt(0)")
    stamp(A, "end")
    A("s_memrealtime s[72:73]\ns_waitcnt lgkmcnt(0)")
    A(f"s_lshl_b32 s3, s{S_WG}, 10\ns_lshl_b32 s44, s{S_WAVE}, 7\ns_add_u32 s3, s3, s44\ns_add_u32 s3, s3, {WS_DIAG}")
    A("v_mov_b32 v2, 0")
    for i, sreg in enumerate([70, 72, S_RDY] + [74 + 2*k for k in range(11)]):
        A(f"v_mov_b32 v3, s{sreg}\nbuffer_store_dword v3, v2, {WSR}, s3 offen offset:{4*i}")

def srd(A, s, ptr, nbytes):
    A(f"s_mov_b32 s{s}, s{ptr}\ns_and_b32 s{s+1}, s{ptr+1}, 0xffff\ns_mov_b32 s{s+2}, {nbytes}\ns_mov_b32 s{s+3}, 0x00020000")
def cos_batch(A, regs, mask, scale):
    for r in regs: A(f"v_and_b32 v{r}, {mask}, v{r}")
    for r in regs: A(f"v_cvt_f32_u32 v{r}, v{r}")
    for r in regs: A(f"v_mul_f32 v{r}, {fhex(scale)}, v{r}")
    for r in regs: A(f"v_cos_f32 v{r}, v{r}")
def wave_sum(A, v, sdst):
    for mod in ("row_shr:1 row_mask:0xf", "row_shr:2 row_mask:0xf", "row_shr:4 row_mask:0xf", "row_shr:8 row_mask:0xf",
                "row_bcast:15 row_mask:0xa", "row_bcast:31 row_mask:0xc"):
        A(f"v_add_f32_dpp v{v}, v{v}, v{v} {mod} bank_mask:0xf")
    A(f"v_readlane_b32 s{sdst}, v{v}, 63")
def set_flag(A, soff_expr_sreg, vt=3, anywave=False):
    L = A.label("L_fl")
    if not anywave: A(f"s_cmp_lg_u32 s{S_WAVE}, 0\ns_cbranch_scc1 {L}")
    A(f"v_mov_b32 v{vt}, s{S_TAG}\nv_mov_b32 v{vt+1}, 0\ns_mov_b64 exec, 1")
    A(f"buffer_store_dword v{vt}, v{vt+1}, {WSR}, s{soff_expr_sreg} offen sc1")
    A("s_mov_b64 exec, -1")
    A(f"{L}:")
def poll(A, groups, vt, once=False):
    L = A.label("L_poll"); Lx = A.label("L_pollx")
    if not once: A(f"s_mov_b32 s{S_SPIN}, 0\n{L}:")
    for n, (va, so) in enumerate(groups):
        A(f"buffer_load_dword v{vt+n}, v{va}, {WSR}, {so} offen sc1")
    A("s_waitcnt vmcnt(0)")
    for n in range(1, len(groups)):
        A(f"v_xor_b32 v{vt+n}, s{S_TAG}, v{vt+n}")
    A(f"v_xor_b32 v{vt}, s{S_TAG}, v{vt}")
    for n in range(1, len(groups)):
        A(f"v_or_b32 v{vt}, v{vt}, v{vt+n}")
    A(f"v_cmp_ne_u32 vcc, 0, v{vt}")
    if once:
        A(f"s_cmp_eq_u64 vcc, 0\ns_cselect_b32 s{S_RDY}, 1, 0")
    else:
        A(f"s_cmp_eq_u64 vcc, 0\ns_cbranch_scc1 {Lx}")
        A(f"s_add_u32 s{S_SPIN}, s{S_SPIN}, 1\ns_cmp_lt_u32 s{S_SPIN}, 0x200000\ns_cbranch_scc1 {L}")
        A(f"{Lx}:")

V_WDMA, V_ADE, V_ADO = 143, 144, 145
S_ST0 = 2
S_AOFF = 58
def g1_stage(A, j, sreg):
    A(f"s_add_u32 s{sreg}, s{S_ST0}, {int(C.perm[j])}\ns_and_b32 s{sreg}, s{sreg}, 7")
def g1w_ops(j):
    sl = (j % 3) * SLOT
    if "W" in C.dbg: j = 0
    return [f"s_add_u32 s60, s{S_ST0}, {int(C.perm[j])}\ns_and_b32 s60, s60, 7\ns_mul_i32 s60, s60, {64*3584}\ns_add_u32 s60, s60, s{S_WOFF}\n"
            f"s_add_u32 m0, s{S_WLDS}, {sl}\nbuffer_load_dwordx4 v{V_WDMA}, {AR}, s60 offen {C.nt_g1w} lds",
            f"s_add_u32 m0, s{S_WLDS}, {sl + 8192}\nbuffer_load_dwordx4 v{V_WDMA}, {BR}, s60 offen {C.nt_g1w} lds"]
def g1a_ops(j):
    sl = (j % 3) * SLOT + 16384
    if "A" in C.dbg: j = 0
    L = []
    for i in range(4):
        pre = (f"s_add_u32 s61, s{S_ST0}, {int(C.perm[j])}\ns_and_b32 s61, s61, 7\ns_lshl_b32 s61, s61, 7\ns_add_u32 s61, s61, s{S_AOFF}\ns_lshl_b32 s59, s{S_WLDS}, 2\n" if i == 0
               else f"s_add_u32 s61, s61, {(4 if i & 1 else 12) * 1024}\n")
        L.append(pre + f"s_add_u32 m0, s59, {sl + i*1024}\nbuffer_load_dwordx4 v{V_ADO if i & 1 else V_ADE}, {XR}, s61 offen lds")
    return L

def prologue(A):
    if C.dbgclk or C.echo: A("s_memtime s[80:81]\ns_memrealtime s[82:83]\ns_memrealtime s[84:85]")
    if C.diag:
        for k in range(11): A(f"s_mov_b32 s{74+2*k}, 0")
        A("s_memrealtime s[70:71]"); stamp(A, "entry")
    A("s_cmp_ge_u32 s2, 256\ns_cbranch_scc1 L_done")
    A(f"s_load_dwordx16 s[{S_PTR}:{S_PTR+15}], s[0:1], 0")
    A(f"s_load_dwordx4 s[{S_PTR+16}:{S_PTR+19}], s[0:1], 64")
    A("v_lshrrev_b32 v2, 6, v0\nv_and_b32 v1, 63, v0")
    A(f"v_readfirstlane_b32 s{S_WAVE}, v2")
    A(f"s_mov_b32 s{S_WG}, s2\ns_and_b32 s{S_XCD}, s2, 7\ns_lshr_b32 s{S_SLOT}, s2, 3\ns_mov_b32 s{S_RDY}, 0")
    code_prefetch(A, KN, "L_done", 112)
    if C.g1map == "col":
        A(f"s_mul_i32 s44, s{S_XCD}, 28\ns_add_u32 s44, s44, s{S_SLOT}\ns_and_b32 s{S_RT}, s44, 7\ns_lshr_b32 s{S_CT}, s44, 3")
    else:
        A(f"s_and_b32 s44, s{S_XCD}, 1\ns_lshl_b32 s44, s44, 2\ns_and_b32 s45, s{S_SLOT}, 3\ns_add_u32 s{S_RT}, s44, s45")
        A(f"s_lshr_b32 s44, s{S_XCD}, 1\ns_mul_i32 s44, s44, 7\ns_lshr_b32 s45, s{S_SLOT}, 2\ns_add_u32 s{S_CT}, s44, s45")
    A(f"s_mul_i32 s44, s{S_CT}, {C.rotc}\ns_mul_i32 s45, s{S_RT}, {C.rotr}\ns_add_u32 s44, s44, s45\ns_and_b32 s{S_ST0}, s44, 7")
    W = S_WAVE
    A(f"s_lshr_b32 s44, s{S_WG}, 2          ; r2")
    A(f"s_and_b32 s45, s{S_WG}, 3           ; mh")
    A(f"s_lshr_b32 s46, s45, 1\ns_lshl_b32 s46, s46, 4")
    A(f"s_and_b32 s47, s45, 1\ns_lshl_b32 s47, s47, 2\ns_add_u32 s46, s46, s47")
    A(f"s_lshr_b32 s47, s{W}, 2\ns_lshl_b32 s47, s47, 3\ns_add_u32 s46, s46, s47")
    A(f"s_and_b32 s47, s{W}, 3\ns_add_u32 s46, s46, s47     ; r1")
    A("s_lshl_b32 s46, s46, 6\ns_add_u32 s46, s46, s44\ns_lshl_b32 s56, s46, 10")
    A("v_lshlrev_b32 v2, 4, v1")
    A("s_waitcnt lgkmcnt(0)")
    srd(A, S_X, P_X, 2097152)
    A(f"buffer_load_dwordx4 v[4:7], v2, {XR}, s56 offen {C.nt_x}")
    A(f"s_load_dword s{S_TAG}, s[{P_WS}:{P_WS+1}], 0")
    srd(A, S_WS, P_WS, WS_SIZE)

def code_prefetch(A, start, end, vt):
    Lh = A.label("L_cph")
    A(f"s_getpc_b64 s[60:61]\n{Lh}:")
    A(f"s_lshl_b32 s59, s{S_SLOT}, 10\ns_lshl_b32 s57, s{S_WAVE}, 7\ns_add_u32 s59, s59, s57\nv_and_b32 v{vt}, 7, v1\nv_lshl_add_u32 v{vt}, v{vt}, 4, s59\nv_min_u32 v{vt}, {end} - {start} - 16, v{vt}")
    A(f"s_add_u32 s60, s60, {start} - {Lh}\ns_addc_u32 s61, s61, {'-1' if start == KN else '0'}")
    A(f"v_mov_b32 v{vt+1}, s61\nv_add_co_u32 v{vt}, vcc, s60, v{vt}\nv_addc_co_u32 v{vt+1}, vcc, 0, v{vt+1}, vcc")
    A(f"global_load_dwordx4 v[{vt+2}:{vt+5}], v[{vt}:{vt+1}], off")

def gemm_only(A, fn):
    L = A.label("L_go")
    A(f"s_cmp_ge_u32 s{S_SLOT}, 28\ns_cbranch_scc1 {L}")
    fn()
    A(f"{L}:")
def wait_role(A, n_gemm, n_cf):
    L = A.label("L_wr"); L2 = A.label("L_wr")
    A(f"s_cmp_ge_u32 s{S_SLOT}, 28\ns_cbranch_scc1 {L}\ns_waitcnt vmcnt({n_gemm})\ns_branch {L2}\n{L}:\ns_waitcnt vmcnt({n_cf})\n{L2}:")

def phase_p0(A):
    W = S_WAVE
    ZL = 2 * SLOT; XNL = 2 * SLOT + 16384; CL = XNL + 8192; WL = 151552; STL = WL + 8320
    B1RE, B1IM, A2RE, A2IM, S2RE, S2IM, TWC, TWS = 64, 68, 72, 76, 80, 84, 88, 92
    T = 32
    srd(A, S_A, P_WG, 512 * 3584)
    srd(A, S_B, P_WU, 512 * 3584)
    A("v_lshrrev_b32 v8, 3, v1")
    A("v_bfe_u32 v9, v1, 4, 1\nv_lshlrev_b32 v9, 2, v9\nv_and_b32 v10, 7, v1\nv_xor_b32 v9, v9, v10")
    A(f"v_mul_u32_u24 v11, 3584, v8\nv_lshl_add_u32 v{V_WDMA}, v9, 4, v11")
    A(f"s_mul_i32 s47, s{W}, {8*3584}\ns_lshl_b32 s52, s{S_CT}, 7\ns_add_u32 s{S_WOFF}, s47, s52\ns_lshl_b32 s{S_WLDS}, s{W}, 10")
    def bulk():
        gemm_only(A, lambda: [A(o) for o in g1w_ops(0)])
        A(f"s_cmp_lt_u32 s{W}, 4\ns_cselect_b32 s{S_C}, s{P_WR}, s{P_WI}\ns_cselect_b32 s{S_C+1}, s{P_WR+1}, s{P_WI+1}")
        A(f"s_and_b32 s{S_C+1}, s{S_C+1}, 0xffff\ns_mov_b32 s{S_C+2}, {2048*514}\ns_mov_b32 s{S_C+3}, 0x00020000")
        A(f"s_mul_i32 s47, s{S_WG}, 4112\ns_and_b32 s48, s{W}, 3\ns_lshl_b32 s48, s48, 10\ns_add_u32 s49, s47, s48")
        A(f"s_lshr_b32 s50, s{W}, 2\ns_mul_i32 s50, s50, 4160\ns_add_u32 s50, s50, {WL}\ns_add_u32 m0, s50, s48")
        A(f"buffer_load_dwordx4 v2, {CR}, s49 offen {C.nt_w} lds")
        A("s_add_u32 m0, s50, 4096\ns_add_u32 s47, s47, 4096\ns_mov_b64 exec, 1")
        A(f"buffer_load_dwordx4 v2, {CR}, s47 offen {C.nt_w} lds")
        A("s_mov_b64 exec, -1")
    if C.bulk == 0: bulk()
    A("v_lshrrev_b32 v9, 2, v8\nv_lshlrev_b32 v9, 3, v9\nv_and_b32 v8, 3, v8\nv_add_u32 v8, v8, v9\nv_lshlrev_b32 v8, 10, v8")
    A(f"v_lshrrev_b32 v9, 4, v1\nv_xor_b32 v9, v9, v10\nv_lshl_add_u32 v{V_ADE}, v9, 4, v8\nv_xor_b32 v{V_ADO}, 64, v{V_ADE}")
    A(f"s_lshl_b32 s47, s{S_RT}, 3\ns_add_u32 s47, s47, s{W}\ns_lshl_b32 s{S_AOFF}, s47, 15")
    if C.a0early == 1: gemm_only(A, lambda: [A(o) for o in g1a_ops(0)])
    M0 = "s[62:63]"
    A("v_and_b32 v30, 15, v1\nv_lshrrev_b32 v29, 4, v1")
    A(f"v_cmp_eq_u32 {M0}, 0, v30\nv_cmp_gt_u32 vcc, 8, v30")
    A("v_cvt_f32_u32 v26, v30\nv_cvt_f32_u32 v27, v29\nv_mul_f32 v27, 4.0, v27      ; k, 4g")
    Lc = A.label("L_c"); cases = [A.label("L_c") for _ in range(7)]
    A("s_mov_b32 s47, 0")
    for n in range(1, 7):
        A(f"s_cmp_eq_u32 s{W}, {n}\ns_cbranch_scc1 {cases[n]}")
    A(f"; wave 0 (and 7): B1RE\nv_mul_f32 v20, {fhex(1/32)}, v26\nv_mov_b32 v22, 0\ns_mov_b32 s47, {fhex(16.0)}\nv_mov_b32 v21, v20\nv_mov_b32 v23, 0\ns_branch {Lc}")
    A(f"{cases[1]}:\nv_mul_f32 v20, {fhex(1/32)}, v26\nv_mov_b32 v22, {fhex(0.25)}\nv_cndmask_b32 v20, v20, 0.5, {M0}\nv_cndmask_b32 v22, v22, 0, {M0}")
    A(f"s_mov_b32 s47, {fhex(16.0)}\nv_mov_b32 v21, v20\nv_mov_b32 v23, v22\ns_branch {Lc}")
    A(f"{cases[2]}:\nv_mul_f32 v20, {fhex(1/16)}, v26\nv_mov_b32 v22, 0\nv_mov_b32 v23, {fhex(0.75)}\nv_mov_b32 v21, v20\ns_branch {Lc}")
    A(f"{cases[3]}:\nv_mul_f32 v20, {fhex(1/16)}, v26\nv_cndmask_b32 v23, 0.5, 0, vcc\nv_add_f32 v22, {fhex(0.25)}, v23\nv_mov_b32 v21, v20\ns_branch {Lc}")
    for n in (4, 5):
        A(f"{cases[n]}:\nv_mul_f32 v20, {fhex(1/16)}, v26\nv_cndmask_b32 v21, v20, 0.5, {M0}\nv_sub_f32 v24, {fhex(31/32)}, v20")
        A("v_cndmask_b32 v20, 0, v21, vcc\nv_cndmask_b32 v21, v24, 0, vcc")
        if n == 4: A(f"v_mov_b32 v24, {fhex(0.25)}\nv_cndmask_b32 v22, v24, 0, vcc\nv_cndmask_b32 v23, 0, v24, vcc")
        else: A(f"v_mov_b32 v22, {fhex(0.25)}\nv_mov_b32 v23, v22")
        A(f"s_branch {Lc}")
    A(f"{cases[6]}:\nv_mul_f32 v20, {fhex(1/512)}, v26\nv_mov_b32 v22, 0\nv_mov_b32 v23, {fhex(0.75)}\nv_mov_b32 v21, v20")
    A(f"{Lc}:")
    A("v_fma_f32 v22, v27, v20, v22\nv_add_f32 v24, s47, v27\nv_fma_f32 v23, v24, v21, v23")
    for (b, v, o) in ((22, 20, T), (23, 21, T + 4)):
        A(f"v_cos_f32 v{o}, v{b}\nv_add_f32 v{o+1}, v{b}, v{v}\nv_fma_f32 v{o+2}, v{v}, 2.0, v{b}\nv_fmamk_f32 v{o+3}, v{v}, {fhex(3.0)}, v{b}")
        for q in (1, 2, 3): A(f"v_cos_f32 v{o+q}, v{o+q}")
    A(f"s_add_u32 s47, s{S_WLDS}, {CL}\nv_add_u32 v24, s47, v2")
    L6 = A.label("L_c6"); L7 = A.label("L_c7")
    A(f"s_cmp_eq_u32 s{W}, 6\ns_cbranch_scc1 {L6}\ns_cmp_eq_u32 s{W}, 7\ns_cbranch_scc1 {L7}")
    for q in range(4): A(f"v_cvt_pk_bf16_f32 v{T+q}, v{T+2*q}, v{T+2*q+1}")
    A(f"ds_write_b128 v24, v[{T}:{T+3}]\ns_branch {L7}")
    A(f"{L6}:\nds_write_b128 v24, v[{T}:{T+3}]\nds_write_b128 v24, v[{T+4}:{T+7}] offset:1024\n{L7}:")
    A(f"s_add_u32 s61, s{S_WLDS}, {XNL}")
    A("v_add_u32 v96, s61, v2\nv_lshl_add_u32 v97, v1, 3, s61")
    A(f"v_add_u32 v108, {CL}, v2")
    A(f"v_lshlrev_b32 v100, 11, v29\nv_lshl_add_u32 v100, v30, 5, v100\ns_lshl_b32 s61, s{W}, 1\ns_add_u32 s61, s61, {ZL}")
    A("v_add_u32 v100, s61, v100")
    A(f"s_waitcnt lgkmcnt(0)\ns_barrier\ns_add_u32 s{S_TAG}, s{S_TAG}, {TAGK}")
    for n in range(8): A(f"ds_read_b128 v[{64+4*n}:{67+4*n}], v108 offset:{1024*n}")
    if C.a0early == 2: gemm_only(A, lambda: [A(o) for o in g1a_ops(0)])
    if C.bulk == 1: bulk()
    A("; ---- P0: layernorm")
    stamp(A, "consts")
    if C.bulk < 2: wait_role(A, 8 if C.a0early else 4, 2)
    else:
        wait_role(A, 4 if C.a0early else 0, 0); bulk()
    stamp(A, "x")
    for q in range(4):
        A(f"v_lshlrev_b32 v{T+2*q}, 16, v{4+q}\nv_and_b32 v{T+2*q+1}, 0xffff0000, v{4+q}")
    A(f"v_pk_add_f32 v[{T+8}:{T+9}], v[{T}:{T+1}], v[{T+2}:{T+3}]\nv_pk_add_f32 v[{T+10}:{T+11}], v[{T+4}:{T+5}], v[{T+6}:{T+7}]")
    A(f"v_pk_add_f32 v[{T+8}:{T+9}], v[{T+8}:{T+9}], v[{T+10}:{T+11}]\nv_add_f32 v{T+8}, v{T+8}, v{T+9}")
    wave_sum(A, T + 8, 57)
    A(f"v_mov_b32 v{T+9}, {fhex(1.0/512)}\nv_mul_f32 v{T+9}, s57, v{T+9}")
    A(f"v_cvt_pk_bf16_f32 v{T+10}, v{T+9}, v{T+9}")
    for q in range(8): A(f"v_sub_f32 v{T+16+q}, v{T+q}, v{T+9}")
    A(f"v_lshlrev_b32 v{T+10}, 16, v{T+10}")
    A(f"v_mul_f32 v{T+8}, v{T+16}, v{T+16}\nv_mul_f32 v{T+11}, v{T+17}, v{T+17}")
    for q in range(2, 8, 2):
        A(f"v_fmac_f32 v{T+8}, v{T+16+q}, v{T+16+q}\nv_fmac_f32 v{T+11}, v{T+17+q}, v{T+17+q}")
    A(f"v_add_f32 v{T+8}, v{T+8}, v{T+11}")
    fill = [f"v_sub_f32 v{T+q}, v{T+q}, v{T+10}" for q in range(8)] + [f"v_cvt_pk_bf16_f32 v{T+16+q}, v{T+2*q}, v{T+2*q+1}" for q in range(4)]
    for n, mod in enumerate(("row_shr:1 row_mask:0xf", "row_shr:2 row_mask:0xf", "row_shr:4 row_mask:0xf", "row_shr:8 row_mask:0xf",
                "row_bcast:15 row_mask:0xa", "row_bcast:31 row_mask:0xc")):
        A(fill[2*n]); A(fill[2*n+1])
        A(f"v_add_f32_dpp v{T+8}, v{T+8}, v{T+8} {mod} bank_mask:0xf")
    A(f"v_mov_b32 v{T+9}, {fhex(1.0/512)}")
    A(f"v_readlane_b32 s57, v{T+8}, 63")
    for q in range(2):
        A(f"v_lshlrev_b32 v{T+2*q}, 16, v{T+16+q}\nv_and_b32 v{T+2*q+1}, 0xffff0000, v{T+16+q}")
    A(f"v_mul_f32 v{T+9}, s57, v{T+9}")
    A(f"v_cvt_pk_bf16_f32 v{T+9}, v{T+9}, v{T+9}\nv_lshlrev_b32 v{T+9}, 16, v{T+9}")
    A(f"v_add_f32 v{T+9}, {fhex(1e-5)}, v{T+9}")
    A(f"v_cvt_pk_bf16_f32 v{T+9}, v{T+9}, v{T+9}\nv_lshlrev_b32 v{T+9}, 16, v{T+9}")
    A(f"v_sqrt_f32 v{T+9}, v{T+9}")
    A(f"v_lshlrev_b32 v{T+4}, 16, v{T+18}")
    A(f"v_cvt_pk_bf16_f32 v{T+9}, v{T+9}, v{T+9}\nv_lshlrev_b32 v{T+9}, 16, v{T+9}")
    A(f"v_rcp_f32 v{T+9}, v{T+9}")
    A(f"v_and_b32 v{T+5}, 0xffff0000, v{T+18}\nv_lshlrev_b32 v{T+6}, 16, v{T+19}\nv_and_b32 v{T+7}, 0xffff0000, v{T+19}")
    for q in range(8): A(f"v_mul_f32 v{T+q}, v{T+9}, v{T+q}")
    for q in range(4): A(f"v_cvt_pk_bf16_f32 v{4+q}, v{T+2*q}, v{T+2*q+1}")
    stamp(A, "ln")
    A("ds_write_b128 v96, v[4:7]")
    A(f"v_lshrrev_b32 v18, 16, v{T+10}\nv_or_b32 v18, v18, v{T+10}\nv_xor_b32 v18, 0x80008000, v18\nv_mov_b32 v19, v{T+9}")
    A("s_waitcnt lgkmcnt(0)")
    A("ds_read_b64_tr_b16 v[8:9], v97\nds_read_b64_tr_b16 v[10:11], v97 offset:512")
    if not C.a0early: gemm_only(A, lambda: [A(o) for o in g1a_ops(0)])
    stamp(A, "iss1")
    A("s_waitcnt lgkmcnt(0)")
    A(f"v_mfma_f32_16x16x32_bf16 v[{T}:{T+3}], v[8:11], v[{B1RE}:{B1RE+3}], 0")
    A(f"v_mfma_f32_16x16x32_bf16 v[{T+4}:{T+7}], v[8:11], v[{B1IM}:{B1IM+3}], 0")
    for i in range(0, 4, 2):
        A(f"v_pk_mul_f32 v[{T+8+i}:{T+9+i}], v[{T+i}:{T+i+1}], v[{TWC+i}:{TWC+i+1}]\nv_pk_mul_f32 v[{T+12+i}:{T+13+i}], v[{T+4+i}:{T+5+i}], v[{TWC+i}:{TWC+i+1}]")
    for i in range(0, 4, 2):
        A(f"v_pk_fma_f32 v[{T+8+i}:{T+9+i}], v[{T+4+i}:{T+5+i}], v[{TWS+i}:{TWS+i+1}], v[{T+8+i}:{T+9+i}]")
        A(f"v_pk_fma_f32 v[{T+12+i}:{T+13+i}], v[{T+i}:{T+i+1}], v[{TWS+i}:{TWS+i+1}], v[{T+12+i}:{T+13+i}] neg_lo:[1,0,0] neg_hi:[1,0,0]")
    for q in range(4): A(f"v_cvt_pk_bf16_f32 v{8+q}, v{T+8+2*q}, v{T+9+2*q}")
    A(f"v_mfma_f32_16x16x32_bf16 v[{T}:{T+3}], v[{A2RE}:{A2RE+3}], v[8:11], 0")
    A(f"v_mfma_f32_16x16x32_bf16 v[{T+4}:{T+7}], v[{A2IM}:{A2IM+3}], v[8:11], 0")
    A(f"v_mfma_f32_16x16x32_bf16 v[{T+8}:{T+11}], v[{S2RE}:{S2RE+3}], v[8:11], 0")
    A(f"v_mfma_f32_16x16x32_bf16 v[{T+12}:{T+15}], v[{S2IM}:{S2IM+3}], v[8:11], 0")
    for i in range(8): A(f"v_cndmask_b32 v{T+i}, v{T+i}, v{T+8+i}, {M0}")
    for i in range(4): A(f"v_cvt_pk_bf16_f32 v{T+i}, v{T+i}, v{T+4+i}")
    for i in range(4):
        A(f"ds_write_b16 v100, v{T+i} offset:{512*i}\nds_write_b16_d16_hi v100, v{T+i} offset:{512*i+16}")
    stamp(A, "fft")
    A(f"v_lshlrev_b32 v101, 4, v0\nv_add_u32 v101, {ZL}, v101")
    A("s_and_b32 s61, s44, 15\nv_and_b32 v103, 15, v0\nv_xor_b32 v102, s61, v103\nv_lshlrev_b32 v102, 4, v102")
    A("v_lshrrev_b32 v12, 4, v0             ; cg")
    A("v_lshl_add_u32 v102, v12, 16, v102\nv_lshlrev_b32 v103, 4, v103\nv_lshl_add_u32 v103, v12, 16, v103")
    A(f"s_lshl_b32 s62, s{S_WG}, 8\ns_add_u32 s45, s62, {WS_Z}\ns_add_u32 s62, s62, {WS_WP}")
    A("v_lshrrev_b32 v13, 1, v12\nv_lshlrev_b32 v14, 5, v13\nv_sub_u32 v15, 0x200, v14")
    A("v_cmp_gt_u32 vcc, 8, v13")
    A("v_cndmask_b32 v20, v15, v14, vcc\nv_cndmask_b32 v21, -1, 1, vcc")
    A("v_subrev_u32 v15, 16, v15\nv_cndmask_b32 v22, v15, v14, vcc")
    A("v_mov_b32 v15, 0x100\nv_cmp_eq_u32 vcc, 0, v13\nv_cndmask_b32 v22, v22, v15, vcc")
    A(f"v_bfe_u32 v13, v0, 3, 1\ns_lshl_b32 s61, s{S_WG}, 1\nv_add_u32 v13, s61, v13\nv_and_b32 v13, 7, v13")
    A("v_and_b32 v14, 1, v0\nv_lshlrev_b32 v14, 2, v14\nv_xor_b32 v13, v13, v14")
    A("v_and_b32 v14, 1, v12\nv_lshl_or_b32 v13, v14, 3, v13")
    A(f"v_bfe_u32 v14, v0, 1, 3\nv_mul_u32_u24 v14, 514, v14\nv_add_u32 v14, {WL}, v14")
    for q in range(4):
        A(f"v_xor_b32 v15, {q}, v13\nv_mad_i32_i24 v{40+q}, v15, v21, v20\nv_cmp_eq_u32 vcc, 0, v15")
        A(f"v_cndmask_b32 v{40+q}, v{40+q}, v22, vcc\nv_lshl_add_u32 v{40+q}, v{40+q}, 1, v14")
    A(f"s_lshl_b32 s57, s{S_WG}, 7\ns_add_u32 s57, s57, {FL_B}")
    A("v_mov_b32 v17, 0\ns_lshr_b32 s63, s56, 10\ns_and_b32 s61, s63, 0x7f3\ns_lshr_b32 s60, s63, 1\ns_and_b32 s60, s60, 4\ns_or_b32 s61, s61, s60")
    A(f"s_lshl_b32 s60, s63, 1\ns_and_b32 s60, s60, 8\ns_or_b32 s61, s61, s60\ns_lshl_b32 s63, s61, 3\ns_add_u32 s63, s63, {WS_ST}")
    A("v_mov_b32 v3, v102\nv_mov_b32 v28, v103")
    g1_setup(A)
    gemm_only(A, lambda: [A(o) for o in g1w_ops(1) + g1a_ops(1)])
    stamp(A, "pre2")
    wait_role(A, 6, 0)
    A("s_waitcnt lgkmcnt(0)\ns_barrier")
    stamp(A, "b2")
    A("ds_read_b128 v[20:23], v101")
    for q in range(4): A(f"ds_read_u16 v{24+q}, v{40+q}\nds_read_u16 v{4+q}, v{40+q} offset:4160")
    stamp(A, "p0end")

def p0_stores(A):
    a = f"buffer_store_dwordx4 v[20:23], v3, {WSR}, s45 offen sc1"
    c = f"s_mov_b64 exec, 1\nbuffer_store_dwordx2 v[18:19], v17, {WSR}, s63 offen sc1\ns_mov_b64 exec, -1"
    b = "\n".join(f"v_lshl_or_b32 v{24+q}, v{4+q}, 16, v{24+q}" for q in range(4)) + f"\nbuffer_store_dwordx4 v[24:27], v28, {WSR}, s62 offen sc1"
    if "z" in C.dbg: return [f"buffer_load_dword v20, v2, {WSR}, 0 offen", f"buffer_load_dword v20, v2, {WSR}, 0 offen"]
    if "y" in C.dbg: return [a, f"buffer_load_dword v20, v2, {WSR}, 0 offen"]
    return [a, b, c]

def wd_prefetch_ops(A):
    srd(A, S_C, P_WD, 1792 * 1024)
    A(f"s_lshl_b32 s54, s{S_SLOT}, 16\ns_lshl_b32 s55, s{S_WAVE}, 13\ns_add_u32 s54, s54, s55")
    if C.g2map == "48":
        A(f"v_mov_b32 v159, v2\ns_mov_b32 s55, s{S_XCD}"); n, sh = 8, 10
    else:
        A(f"v_and_b32 v159, 31, v1\nv_lshlrev_b32 v159, 4, v159\nv_lshrrev_b32 v158, 5, v1\nv_lshl_add_u32 v159, v158, 10, v159")
        A(f"s_and_b32 s55, s{S_XCD}, 1\ns_lshl_b32 s55, s55, 9\ns_add_u32 s54, s54, s55\ns_lshr_b32 s55, s{S_XCD}, 1"); n, sh = 4, 11
    return [f"s_add_u32 m0, s{S_WLDS}, {LDS_SINK}\ns_lshl_b32 s60, s55, {sh}\ns_add_u32 s60, s60, s54\n"
            f"buffer_load_dwordx4 v159, {CR}, s60 offen lds\ns_add_u32 s55, s55, 1\ns_and_b32 s55, s55, {n-1}"] * n

V_G2W = 13
V_G2X = 244
def g2_setup(A, vw=V_G2W, vx=V_G2X, t0=14, t1=15):
    W = S_WAVE
    if C.g2map == "48":
        A(f"s_lshl_b32 s44, s{S_XCD}, 2\ns_and_b32 s45, s{S_SLOT}, 3\ns_add_u32 s44, s44, s45\ns_lshr_b32 s45, s{S_SLOT}, 2")
    else:
        A(f"s_lshr_b32 s44, s{S_XCD}, 1\ns_lshl_b32 s44, s44, 3\ns_and_b32 s45, s{S_SLOT}, 7\ns_add_u32 s44, s44, s45")
        A(f"s_and_b32 s45, s{S_XCD}, 1\ns_lshl_b32 s45, s45, 2\ns_lshr_b32 s46, s{S_SLOT}, 3\ns_add_u32 s45, s45, s46")
    A(f"s_and_b32 s48, s{W}, 3\ns_lshr_b32 s49, s{W}, 2")
    A("s_lshl_b32 s50, s44, 2\ns_add_u32 s50, s50, s48       ; rb16")
    srd(A, S_A, P_WD, 1792 * 1024)
    A(f"v_lshrrev_b32 v{vw}, 3, v1\nv_bfe_u32 v{t0}, v1, 4, 2\nv_lshlrev_b32 v{t0}, 1, v{t0}\nv_and_b32 v{t1}, 7, v1\nv_xor_b32 v{t0}, v{t0}, v{t1}")
    A(f"v_lshlrev_b32 v{vw}, 10, v{vw}\nv_lshl_add_u32 v{vw}, v{t0}, 4, v{vw}")
    A(f"s_lshl_b32 s46, s48, 15\ns_lshl_b32 s51, s45, 7\ns_add_u32 s51, s51, s46\ns_mul_i32 s55, s49, {896*1024}\ns_add_u32 s51, s51, s55")
    A("s_lshl_b32 s46, s48, 12\ns_lshl_b32 s55, s49, 14\ns_add_u32 s55, s55, s46")
    A(f"v_lshrrev_b32 v{t0}, 3, v1\nv_and_b32 v{vx}, 3, v{t0}\nv_lshrrev_b32 v{t0}, 2, v{t0}\nv_lshl_or_b32 v{vx}, v{t0}, 3, v{vx}")
    A(f"v_lshlrev_b32 v{vx}, 10, v{vx}\nv_and_b32 v{t1}, 7, v1\nv_lshl_add_u32 v{vx}, v{t1}, 4, v{vx}")
    A(f"s_and_b32 s56, s{W}, 6\ns_lshl_b32 s56, s56, 3\ns_and_b32 s46, s{W}, 1\ns_lshl_b32 s46, s46, 2\ns_add_u32 s56, s56, s46")
    A("s_lshl_b32 s46, s44, 6\ns_add_u32 s56, s56, s46\ns_lshl_b32 s56, s56, 10\ns_lshl_b32 s46, s45, 7\ns_add_u32 s56, s56, s46")
def g2w_ops(n, vw=V_G2W):
    L = []
    for k in range(4):
        if n < 7:
            L.append(f"s_add_u32 m0, s55, {(n & 3)*32768 + k*1024}\nbuffer_load_dwordx4 v{vw}, {AR}, s51 offen lds\ns_add_u32 s51, s51, {8192 if k < 3 else 131072 - 3*8192}")
        else:
            L.append((f"s_add_u32 m0, s55, {(n & 3)*32768}\n" if k == 0 else "") + f"buffer_load_dwordx4 v173, {WSR}, s58 offen offset:{1024*k} sc1 lds" + ("\ns_add_u32 s58, s58, 16384" if k == 3 else ""))
    return L
def g2_wdma(A, n):
    for o in g2w_ops(n): A(o)
def weave(A, mf, fill, skip=0):
    n = len(mf) - skip; k = 0
    for i, m in enumerate(mf):
        A(m)
        if i >= skip:
            e = (len(fill) * (i - skip + 1) + n - 1) // n
            for f in fill[k:e]: A(f)
            k = e

def gelu_block(g, u, T, K):
    P = lambda r: f"v[{r}:{r+1}]"
    L = []
    for n in range(0, 8, 2): L.append(f"v_pk_mul_f32 {P(T+n)}, {P(g+n)}, {P(g+n)}")
    for n in range(0, 8, 2): L.append(f"v_pk_fma_f32 {P(T+n)}, {P(T+n)}, {P(K)}, {P(K+2)}")
    for n in range(0, 8, 2): L.append(f"v_pk_mul_f32 {P(T+n)}, {P(T+n)}, {P(g+n)}")
    for n in range(8): L.append(f"v_exp_f32 v{T+n}, v{T+n}")
    for n in range(0, 8, 2): L.append(f"v_pk_mul_f32 {P(T+8+n)}, {P(g+n)}, {P(u+n)}")
    for n in range(0, 8, 2): L.append(f"v_pk_fma_f32 {P(T+n)}, {P(T+n)}, {P(K+4)}, {P(K+4)}")
    for n in range(8): L.append(f"v_rcp_f32 v{T+n}, v{T+n}")
    for n in range(0, 8, 2): L.append(f"v_pk_mul_f32 {P(T+n)}, {P(T+n)}, {P(T+8+n)}")
    for q in range(4): L.append(f"v_cvt_pk_bf16_f32 v{T+8+q}, v{T+2*q}, v{T+2*q+1}")
    return L

def g1_setup(A):
    W = S_WAVE; AD = 128
    A(f"s_and_b32 s48, s{W}, 3\ns_lshr_b32 s49, s{W}, 2")
    A("v_lshrrev_b32 v8, 5, v1\nv_lshlrev_b32 v11, 3, v8\nv_bfe_u32 v9, v1, 2, 2\nv_add_u32 v11, v11, v9\nv_lshlrev_b32 v11, 7, v11")
    A("v_and_b32 v10, 3, v1\nv_lshl_add_u32 v11, v10, 3, v11\nv_bfe_u32 v10, v1, 4, 1\nv_lshl_add_u32 v11, v10, 5, v11")
    A(f"v_lshrrev_b32 v9, 1, v9\nv_xor_b32 v9, s49, v9\nv_lshl_add_u32 v{AD}, v9, 6, v11")
    A("v_and_b32 v9, 31, v1\nv_bfe_u32 v10, v1, 1, 3\nv_xor_b32 v10, v10, v8\nv_lshlrev_b32 v10, 4, v10\nv_lshl_add_u32 v10, v9, 7, v10")
    A(f"s_lshl_b32 s50, s48, 13\ns_add_u32 s50, s50, 16384\nv_add_u32 v{AD+1}, s50, v10")
    for k in range(1, 4): A(f"v_xor_b32 v{AD+1+k}, {32*k}, v{AD+1}")
    for sl in (1, 2):
        for n in range(5): A(f"v_add_u32 v{AD+5*sl+n}, {sl*SLOT}, v{AD+n}")
    A("v_mov_b32 v146, 0\nv_mov_b32 v147, 0\nv_mov_b32 v148, 0x3f803f80")
    A("s_lshl_b32 s46, s49, 1\ns_add_u32 s46, s46, s48\ns_and_b32 s46, s46, 3")
    A("v_and_b32 v157, 15, v1\nv_lshlrev_b32 v157, 4, v157\nv_lshl_add_u32 v157, v8, 8, v157")
    A("v_bfe_u32 v11, v1, 4, 1\nv_mul_u32_u24 v11, 57344, v11\nv_add_u32 v157, v157, v11")
    A(f"s_lshl_b32 s50, s{S_RT}, 3\ns_lshl_b32 s51, s48, 1\ns_add_u32 s50, s50, s51")
    A(f"s_mul_i32 s47, s50, {2*57344}\ns_lshl_b32 s52, s{S_CT}, 11\ns_add_u32 s47, s47, s52\ns_lshl_b32 s52, s49, 10\ns_add_u32 s47, s47, s52\ns_add_u32 s47, s47, {WS_H}")
    A(f"s_lshr_b32 s51, s{S_RT}, 2\ns_lshl_b32 s51, s51, 1\ns_and_b32 s52, s{S_RT}, 1\ns_add_u32 s51, s51, s52\ns_lshl_b32 s51, s51, 7\ns_add_u32 s51, s51, {FL_B}")
    A(f"s_lshl_b32 s50, s50, 8\ns_add_u32 s50, s50, {WS_ST}")
    A("v_lshlrev_b32 v149, 9, v1\nv_lshlrev_b32 v154, 3, v9")
    A(f"s_lshl_b32 s52, s49, 11\ns_add_u32 s52, s52, {LDS_CS}\nv_add_u32 v155, s52, v2\ns_lshl_b32 s52, s48, 2\nv_add_u32 v156, s52, v155")

def phase_g1(A):
    W = S_WAVE
    ACC = 64; WF = 32; AD = 128
    vm = [("w", 1)] * 2 + [("a", 1)] * 4
    def reads(kk, st):
        j, k = kk // 4, kk % 4
        wa = AD + 5 * (j % 3); aa = wa + 1 + k; d = WF + 16 * st
        return [f"ds_read_b64_tr_b16 v[{d}:{d+1}], v{wa} offset:{k*2048}", f"ds_read_b64_tr_b16 v[{d+2}:{d+3}], v{wa} offset:{k*2048+512}",
                f"ds_read_b128 v[{d+8}:{d+11}], v{aa}",
                f"ds_read_b64_tr_b16 v[{d+4}:{d+5}], v{wa} offset:{8192+k*2048}", f"ds_read_b64_tr_b16 v[{d+6}:{d+7}], v{wa} offset:{8192+k*2048+512}",
                f"ds_read_b128 v[{d+12}:{d+15}], v{aa} offset:4096"]
    def younger(ops):
        return len(vm) - 1 - max(i for i, o in enumerate(vm) if o in ops)
    stamp(A, "go")
    for r in reads(0, 0): A(r)
    pfo = wd_prefetch_ops(A); npf = len(pfo)
    pf = 0
    zst = p0_stores(A)
    for kk in range(32):
        j, k = kk // 4, kk % 4
        st = kk & 1
        if k == 3 and kk < 31:
            A(f"s_waitcnt vmcnt({younger([('w', j + 1), ('a', j + 1), ('f', j + 1)] + ([('z', 0)] if j == C.fbj else []))}) lgkmcnt(0)\ns_barrier")
            stamp(A, f"g{j+1}")
            if j == C.fbj: set_flag(A, 57, 16)
        if kk == 23:
            L = A.label("L_g1_ok")
            A(f"v_cmp_ne_u32 vcc, s{S_TAG}, v16\ns_cmp_eq_u64 vcc, 0\ns_cbranch_scc1 {L}")
            poll(A, [(149, "s51")], 16)
            A(f"{L}:")
            A(f"buffer_load_dwordx2 v[150:151], v154, {WSR}, s50 offen sc1\nbuffer_load_dwordx2 v[152:153], v154, {WSR}, s50 offen offset:256 sc1")
            vm.append(("s", 0)); vm.append(("s", 0))
        nxt = reads(kk + 1, st ^ 1) if kk < 31 else []
        ops = []
        full = lambda jj: [(("w", jj), o) for o in g1w_ops(jj)] + [(("a", jj), o) for o in g1a_ops(jj)]
        if j == 0:
            zs = [(("z", 0), o) for o in zst]
            allo = (zs + full(2)[2:]) if C.zfirst else (full(2)[2:] + zs)
            ops += allo[2 * k:2 * k + 2] if k < 3 else allo[6:]
        elif j == 1:
            ops += (full(2)[:2] + full(3))[2 * k:2 * k + 2]
        elif j + 2 < 8:
            if k == 0: ops += [(("w", j + 2), o) for o in g1w_ops(j + 2)]
            ops.append((("a", j + 2), g1a_ops(j + 2)[k]))
        if kk == 19:
            ops.append((("f", 6), f"buffer_load_dword v16, v149, {WSR}, s51 offen sc1"))
        d = WF + 16 * st
        for m, (wo, ao) in enumerate(((0, 8), (4, 8), (0, 12), (4, 12))):
            if m < 3 and not (k == 3 and kk < 31):
                A(f"s_waitcnt lgkmcnt({(3, 1, 0)[m] + len(nxt[0:2*m])})")
            c = f"v[{ACC+16*m}:{ACC+16*m+15}]"
            A(f"v_mfma_f32_32x32x16_bf16 {c}, v[{d+wo}:{d+wo+3}], v[{d+ao}:{d+ao+3}], {c if kk else 0}")
            for r in nxt[2*m:2*m+2]: A(r)
            if m >= 1 and ops:
                tag, o = ops.pop(0); A(o); vm.append(tag)
            if m == 2 and pf < npf and kk >= C.pf_start and (kk - C.pf_start) % C.pf_step == 0:
                A(pfo[pf]); vm.append(("p", pf)); pf += 1
        assert not ops
        if "c" not in C.dbg:
            L = A.label("L_g1_cs")
            A(f"s_cmp_lg_u32 s46, {k}\ns_cbranch_scc1 {L}")
            for q in range(4): A(f"v_dot2_f32_bf16 v146, v{d+q}, v148, v146\nv_dot2_f32_bf16 v147, v{d+4+q}, v148, v147")
            A(f"{L}:")
    assert pf == npf or C.pf_start > 31
    stamp(A, "main")
    A("s_nop 2")
    for r in (146, 147):
        A(f"v_cvt_pk_bf16_f32 v16, v{r}, v{r}\nv_lshlrev_b32 v16, 16, v16\nv_sub_f32 v16, v{r}, v16\nv_cvt_pk_bf16_f32 v{r}, v{r}, v16")
    A("ds_write_b32 v156, v146\nds_write_b32 v156, v147 offset:1024")
    A(f"s_waitcnt vmcnt({younger([('s', 0)])})")
    K1 = -2.0 * 0.7978845608028654 * 1.4426950408889634
    for b in range(2):
        m, r, K = 150 + 2 * b, 151 + 2 * b, 160 + 8 * b
        for q in range(4): A(f"v_mov_b32 v{WF+16+4*b+q}, v{m}")
        A(f"v_mul_f32 v{K+6}, v{r}, v{r}\nv_mul_f32 v{K+2}, {fhex(K1)}, v{r}\nv_rcp_f32 v{K+4}, v{K+6}\nv_mul_f32 v{K}, {fhex(0.044715)}, v{K+6}")
        A(f"v_mul_f32 v{K}, v{K}, v{K+2}\nv_mov_b32 v{K+3}, v{K+2}\nv_mov_b32 v{K+5}, v{K+4}\nv_mov_b32 v{K+1}, v{K}")
    A("s_waitcnt lgkmcnt(0)\ns_barrier")
    A(f"ds_read_b128 v[{WF}:{WF+3}], v155\nds_read_b128 v[{WF+4}:{WF+7}], v155 offset:1024")
    g2_setup(A)
    A("s_waitcnt lgkmcnt(0)")
    for m in range(4):
        c = f"v[{ACC+16*m}:{ACC+16*m+15}]"
        A(f"v_mfma_f32_32x32x16_bf16 {c}, v[{WF+4*(m&1)}:{WF+4*(m&1)+3}], v[{WF+16+4*(m>>1)}:{WF+16+4*(m>>1)+3}], {c}")
    for b in range(2):
        for half in range(2):
            n = 2 * b + half
            if n < C.nepi: g2_wdma(A, n)
            T = 176 + 16 * n
            for l in gelu_block(ACC + 32 * b + 8 * half, ACC + 32 * b + 16 + 8 * half, T, 160 + 8 * b): A(l)
            if n == 2: A(f"s_add_u32 s47, s47, {2*57344}")
            A(f"buffer_store_dwordx4 v[{T+8}:{T+11}], v157, {WSR}, s47 offen offset:{512*half} sc1")
    stamp(A, "epi")
    A("s_waitcnt vmcnt(0)\ns_barrier")
    A(f"s_lshl_b32 s57, s{S_RT}, 5\ns_add_u32 s57, s57, s{S_CT}\ns_lshl_b32 s57, s57, 7\ns_add_u32 s57, s57, {FL_H}")
    set_flag(A, 57, 16)
    stamp(A, "flag2")
    for n in range(C.nepi, 4): g2_wdma(A, n)

def phase_cf(A):
    W = S_WAVE
    ZL = 0; WL = 65536; TW = 131072; FR = TW + 8192
    D0 = 64; D1 = 128; PK = 192; WW = 224
    FC, FS, FN = 8, 16, 24
    OC, OS, ON = 32, 40, 48
    A("; ---- CF")
    A(f"s_lshl_b32 s44, s{S_XCD}, 2\ns_add_u32 s44, s44, s{S_SLOT}\ns_sub_u32 s44, s44, 28    ; cg")
    A("s_waitcnt lgkmcnt(0)")
    for o in p0_stores(A): A(o)
    A("s_waitcnt vmcnt(0)\ns_barrier")
    set_flag(A, 57, 16)
    if C.cfstage:
        srd(A, S_C, P_WD, 1792 * 1024)
        A(f"s_mul_i32 s46, s44, 57344\ns_mul_i32 s47, s{W}, 7168\ns_add_u32 s46, s46, s47\ns_add_u32 m0, s{S_WLDS}, {LDS_SINK}")
        for k in range(7):
            A(f"buffer_load_dwordx4 v2, {CR}, s46 offen lds")
            if k < 6: A("s_add_u32 s46, s46, 1024")
    A(f"s_lshl_b32 s46, s{W}, 1\nv_lshrrev_b32 v8, 5, v1\nv_add_u32 v8, s46, v8")
    A("v_and_b32 v9, 3, v8\nv_bfe_u32 v10, v8, 3, 1\nv_lshl_or_b32 v9, v10, 2, v9      ; beta")
    A("s_and_b32 s46, s44, 1\ns_lshl_b32 s46, s46, 3\nv_or_b32 v9, s46, v9         ; k1")
    A("s_lshr_b32 s46, s44, 1\ns_lshl_b32 s47, s46, 5\ns_sub_u32 s48, 0x200, s47\ns_cmp_lt_u32 s46, 8")
    A(f"s_cselect_b32 s49, s47, s48\ns_cselect_b32 s50, 1, -1\ns_sub_u32 s48, s48, 16\ns_cmp_lt_u32 s46, 8\ns_cselect_b32 s48, s47, s48")
    A("s_cmp_eq_u32 s46, 0\ns_cselect_b32 s48, 0x100, s48")
    A("v_mov_b32 v11, s49\nv_mad_i32_i24 v10, v9, s50, v11\nv_mov_b32 v11, s48\nv_cmp_eq_u32 vcc, 0, v9\nv_cndmask_b32 v10, v10, v11, vcc   ; bin")
    A(f"v_mov_b32 v11, {fhex(2.0**-19)}\nv_mov_b32 v12, {fhex(2.0**-20)}\nv_cmp_eq_u32 vcc, 0x100, v10\nv_cndmask_b32 v12, v11, v12, vcc\nv_mov_b32 v13, v12")
    A(f"v_cvt_f32_u32 v10, v10\nv_mul_f32 v10, {fhex(1/512)}, v10")
    A(f"v_bfe_u32 v11, v8, 2, 1\nv_cvt_f32_u32 v11, v11\nv_mul_f32 v11, {fhex(0.25)}, v11")
    A("v_and_b32 v14, 31, v1\nv_lshlrev_b32 v15, 3, v14\nv_cvt_f32_u32 v15, v15\nv_fma_f32 v64, v15, v10, v11")
    A(f"v_fmamk_f32 v72, v10, {fhex(256.0)}, v64\nv_fract_f32 v72, v72")
    for b in (64, 72):
        for j in range(1, 8): A(f"v_fmamk_f32 v{b+j}, v10, {fhex(float(j))}, v{b}")
    for j in range(16): A(f"v_cos_f32 v{64+j}, v{64+j}")
    for j in range(0, 16, 2): A(f"v_pk_mul_f32 v[{64+j}:{65+j}], v[{64+j}:{65+j}], v[12:13]")
    for q in range(8): A(f"v_cvt_pk_bf16_f32 v{64+q}, v{64+2*q}, v{65+2*q}")
    A(f"v_lshrrev_b32 v15, 3, v14\nv_and_b32 v14, 7, v14\nv_lshlrev_b32 v14, 4, v14\nv_lshl_add_u32 v14, v8, 7, v14\nv_lshl_add_u32 v14, v15, 16, v14")
    A(f"s_lshl_b32 s46, s44, 11\ns_add_u32 s46, s46, {WS_G}\ns_add_u32 s47, s46, 0x40000")
    A(f"buffer_store_dwordx4 v[64:67], v14, {WSR}, s46 offen sc1\nbuffer_store_dwordx4 v[68:71], v14, {WSR}, s47 offen sc1")
    A("v_and_b32 v3, 31, v1\nv_lshrrev_b32 v4, 5, v1\nv_lshlrev_b32 v4, 2, v4")
    A(f"s_and_b32 s52, s{W}, 3\ns_lshl_b32 s52, s52, 3\ns_lshr_b32 s53, s{W}, 2\ns_mul_i32 s53, s53, 1536")
    A("v_add_u32 v5, s52, v4")
    for b in range(4):
        A(f"v_add_u32 v6, {b}, v5\nv_mad_u32_u24 v{64+b}, v6, v3, s53")
    def frag(dst, matsel):
        A(f"s_and_b32 s54, s{W}, 1\ns_lshl_b32 s54, s54, 4")
        A(f"s_lshr_b32 s55, s{W}, 1\ns_and_b32 s55, s55, 1\ns_mul_i32 s55, s55, 48")
        if matsel == 0: A(f"s_lshr_b32 s56, s{W}, 2\nv_lshl_add_u32 v7, v3, 1, s56")
        for j in range(8):
            A(f"v_add_u32 v6, s54, v4\nv_add_u32 v6, {8*(j>>2) + (j&3)}, v6")
            if matsel == 0: A(f"v_mad_u32_u24 v{dst+j}, v6, v7, s55")
            else: A(f"v_lshl_add_u32 v6, v6, 1, 1\nv_mad_u32_u24 v{dst+j}, v6, v3, s55")
    frag(80, 0); frag(88, 1)
    cos_batch(A, range(64, 68), 2047, 1.0 / 2048)
    cos_batch(A, range(80, 96), 63, 1.0 / 64)
    A(f"s_lshl_b32 s52, s52, 8\ns_lshr_b32 s53, s{W}, 2\ns_lshl_b32 s53, s53, 10\ns_add_u32 s52, s52, s53\ns_add_u32 s52, s52, {TW}")
    A("v_add_u32 v5, s52, v2\nds_write_b128 v5, v[64:67]")
    for q in range(8): A(f"v_cvt_pk_bf16_f32 v{80+q}, v{80+2*q}, v{81+2*q}")
    A(f"s_lshl_b32 s52, s{W}, 10\ns_add_u32 s52, s52, {FR}\nv_add_u32 v5, s52, v2")
    A("ds_write_b128 v5, v[80:83]")
    Ls = A.label("L_cf_skip")
    A(f"s_cmp_ge_u32 s{W}, 4\ns_cbranch_scc1 {Ls}\nds_write_b128 v5, v[84:87] offset:8192\n{Ls}:")
    A(f"v_add_u32 v56, {TW}, v2\nv_add_u32 v57, {FR}, v2")
    A(f"s_lshl_b32 s52, s{W}, 1\nv_and_b32 v6, 15, v1\nv_xor_b32 v6, s52, v6\nv_lshlrev_b32 v6, 4, v6")
    A("v_lshl_add_u32 v6, v3, 10, v6\nv_lshl_add_u32 v58, v4, 6, v6\nv_xor_b32 v59, 16, v58")
    A(f"v_lshrrev_b32 v6, 2, v3\nv_xor_b32 v6, s{W}, v6\nv_lshlrev_b32 v6, 2, v6\nv_lshl_add_u32 v6, v3, 5, v6\nv_lshl_add_u32 v6, v4, 11, v6\nv_add_u32 v7, {WL}, v6")
    A("s_waitcnt vmcnt(0)")
    stamp(A, "fd")
    A(f"v_lshlrev_b32 v6, 7, v3\ns_lshl_b32 s57, s{W}, 12\ns_add_u32 s57, s57, {FL_B}")
    poll(A, [(6, "s57")], 64)
    A("s_waitcnt lgkmcnt(0)\ns_barrier")
    stamp(A, "rdy1")
    A(f"s_lshl_b32 s48, s44, 16\ns_lshl_b32 s49, s{W}, 13\ns_add_u32 s50, s48, s49")
    def dma64(base, lb):
        return [(f"s_add_u32 s51, s50, {base}\n" if k == 0 else "s_add_u32 s51, s51, 1024\n") +
                f"s_add_u32 m0, s49, {lb + k*1024}\nbuffer_load_dwordx4 v2, {WSR}, s51 offen sc1 lds" for k in range(8)]
    for o in dma64(WS_Z, ZL): A(o)
    P = lambda r: f"v[{r}:{r+1}]"
    def load_frags(Cc, S, mat):
        return [f"ds_read_b128 v[{R+4*m}:{R+4*m+3}], v57 offset:{(mat*4+o+m)*1024}" for m in range(2) for (R, o) in ((Cc, 0), (S, 2))]
    def neg_frags(S, N): return [f"v_xor_b32 v{N+q}, 0x80008000, v{S+q}" for q in range(8)]
    def pk(blk, c, m): return PK + 16 * blk + 8 * c + 4 * m
    def acc(D, c, blk): return D + 32 * c + 16 * blk
    def cstage(D, blk, data_is_A, Cc, Sre, Sim):
        L = []
        for (c, seq) in ((0, ((0, Cc), (1, Sre))), (1, ((1, Cc), (0, Sim)))):
            d = acc(D, c, blk); first = True
            for (cc, K) in seq:
                for m in range(2):
                    dat = f"v[{pk(blk,cc,m)}:{pk(blk,cc,m)+3}]"; con = f"v[{K+4*m}:{K+4*m+3}]"
                    a, b = (dat, con) if data_is_A else (con, dat)
                    L.append(f"v_mfma_f32_32x32x16_bf16 v[{d}:{d+15}], {a}, {b}, {0 if first else f'v[{d}:{d+15}]'}")
                    first = False
        return L
    def pack(D, blk):
        return [f"v_cvt_pk_bf16_f32 v{pk(blk,c,0)+q}, v{acc(D,c,blk)+2*q}, v{acc(D,c,blk)+2*q+1}" for c in range(2) for q in range(8)]
    def tw_load():
        return [f"ds_read_b128 v[{WW+16*comp+4*a}:{WW+16*comp+4*a+3}], v56 offset:{a*2048 + comp*1024}" for a in range(4) for comp in range(2)]
    NEG = lambda i: " neg_lo:[%s] neg_hi:[%s]" % ((",".join("1" if j == i else "0" for j in range(3)),) * 2)
    def radix2_tw(conj):
        for i in range(0, 16, 2):
            er, ei, o_r, oi = acc(D0,0,0)+i, acc(D0,1,0)+i, acc(D0,0,1)+i, acc(D0,1,1)+i
            ur, ui, vr_, vi = acc(D1,0,0)+i, acc(D1,1,0)+i, acc(D1,0,1)+i, acc(D1,1,1)+i
            c0, s0 = P(WW + i), P(WW + 16 + i)
            A(f"v_pk_add_f32 {P(ur)}, {P(er)}, {P(o_r)}\nv_pk_add_f32 {P(vr_)}, {P(er)}, {P(o_r)} neg_lo:[0,1] neg_hi:[0,1]")
            A(f"v_pk_add_f32 {P(ui)}, {P(ei)}, {P(oi)}\nv_pk_add_f32 {P(vi)}, {P(ei)}, {P(oi)} neg_lo:[0,1] neg_hi:[0,1]")
            A(f"v_pk_mul_f32 v[60:61], {P(ur)}, {s0}\nv_pk_mul_f32 v[62:63], {P(vr_)}, {s0}")
            A(f"v_pk_mul_f32 {P(ur)}, {P(ur)}, {c0}\nv_pk_mul_f32 {P(vr_)}, {P(vr_)}, {c0}")
            n0 = NEG(0) if conj else ""; n2 = "" if conj else NEG(2)
            A(f"v_pk_fma_f32 {P(ur)}, {P(ui)}, {s0}, {P(ur)}{n0}\nv_pk_fma_f32 {P(vr_)}, {P(vi)}, {s0}, {P(vr_)}{n0}")
            A(f"v_pk_fma_f32 {P(ui)}, {P(ui)}, {c0}, v[60:61]{n2}\nv_pk_fma_f32 {P(vi)}, {P(vi)}, {c0}, v[62:63]{n2}")
    def wmul(e):
        L = []
        for i in range(0, 16, 2):
            w = WW + 16 * e + i; t = 60 + (i & 2)
            xr, xi, yr, yi = acc(D0,0,e)+i, acc(D0,1,e)+i, acc(D1,0,e)+i, acc(D1,1,e)+i
            L += [f"v_lshlrev_b32 v{t}, 16, v{w}", f"v_lshlrev_b32 v{t+1}, 16, v{w+1}", f"v_and_b32 v{w}, 0xffff0000, v{w}", f"v_and_b32 v{w+1}, 0xffff0000, v{w+1}",
                  f"v_pk_mul_f32 {P(yr)}, {P(xr)}, {P(t)}", f"v_pk_mul_f32 {P(yi)}, {P(xi)}, {P(t)}",
                  f"v_pk_fma_f32 {P(yr)}, {P(xi)}, {P(w)}, {P(yr)}{NEG(0)}", f"v_pk_fma_f32 {P(yi)}, {P(xr)}, {P(w)}, {P(yi)}"]
        return L
    def E(L):
        for l in L: A(l)
    E(load_frags(FC, FS, 0) + load_frags(OC, OS, 2) + tw_load())
    A("s_waitcnt lgkmcnt(8)")
    E(neg_frags(FS, FN) + neg_frags(OS, ON))
    A(f"s_lshl_b32 s52, s{W}, 16\ns_lshl_b32 s53, s44, 9\ns_add_u32 s52, s52, s53\ns_add_u32 s47, s52, {WS_ZP}")
    A(f"s_lshl_b32 s57, s44, 7\ns_add_u32 s57, s57, {FL_C}")
    A("s_waitcnt vmcnt(0)\ns_barrier")
    stamp(A, "go")
    for mu in range(2):
        for c in range(2):
            for m in range(2):
                A(f"ds_read_b128 v[{pk(mu,c,m)}:{pk(mu,c,m)+3}], v{58+c} offset:{ZL + mu*32768 + m*512}")
    wp = dma64(WS_WP, WL)
    A("s_waitcnt lgkmcnt(4)")
    weave(A, cstage(D0, 0, True, FC, FS, FN), wp[:4])
    A("s_waitcnt lgkmcnt(0)")
    weave(A, cstage(D0, 1, True, OC, OS, ON), wp[4:])
    E(load_frags(OC, OS, 1))
    radix2_tw(False)
    E(pack(D1, 0))
    A("s_waitcnt lgkmcnt(0)")
    weave(A, cstage(D0, 0, False, FC, FS, FN), pack(D1, 1) + neg_frags(OS, ON))
    stamp(A, "main")
    A("s_waitcnt vmcnt(0)\ns_barrier")
    wr = [f"ds_read2st64_b32 {P(WW+16*e+4*a+b)}, v7 offset0:{a*64+b*8+e*4} offset1:{a*64+b*8+e*4+8}" for e in range(2) for a in range(4) for b in (0, 2)]
    E(wr[:8])
    m2 = cstage(D0, 1, False, OC, OS, ON)
    weave(A, m2[:2], wr[8:])
    A("s_waitcnt lgkmcnt(8)")
    weave(A, m2[2:], wmul(0))
    stamp(A, "wrdy")
    E(load_frags(OC, OS, 2))
    E(pack(D1, 0))
    g2_setup(A, 58, 59, 5, 6)
    A("s_waitcnt lgkmcnt(4)")
    weave(A, cstage(D0, 0, True, FC, FN, FS), wmul(1) + pack(D1, 1), 1)
    A("s_waitcnt lgkmcnt(0)")
    E(neg_frags(OS, ON) + tw_load())
    weave(A, cstage(D0, 1, True, OC, ON, OS), g2w_ops(0, 58) if C.cfw0 else [])
    E(load_frags(OC, OS, 1))
    A("s_waitcnt lgkmcnt(4)")
    radix2_tw(True)
    E(pack(D1, 0))
    A("s_waitcnt lgkmcnt(0)")
    weave(A, cstage(D0, 0, True, FC, FN, FS), pack(D1, 1) + neg_frags(OS, ON))
    stamp(A, "epi")
    adr = (f"s_and_b32 s60, s{W}, 1\ns_lshl_b32 s60, s60, 2\nv_lshrrev_b32 v5, 5, v1\nv_or_b32 v5, s60, v5\n"
           "v_and_b32 v6, 7, v1\nv_xor_b32 v5, v5, v6\nv_lshlrev_b32 v5, 4, v5\nv_lshl_add_u32 v5, v3, 11, v5\n"
           f"s_lshr_b32 s60, s{W}, 1\ns_lshl_b32 s60, s60, 7\ns_add_u32 s60, s60, {WL}\nv_add_u32 v56, s60, v5\nv_xor_b32 v57, 32, v56\n"
           "v_bfe_u32 v5, v1, 2, 1\nv_lshlrev_b32 v5, 2, v5\nv_bfe_u32 v6, v1, 4, 1\nv_lshl_add_u32 v5, v6, 1, v5\nv_bfe_u32 v6, v1, 1, 1\nv_add_u32 v5, v5, v6\n"
           f"v_xor_b32 v5, s{W}, v5\nv_lshlrev_b32 v5, 4, v5\nv_and_b32 v6, 1, v1\nv_lshl_add_u32 v5, v6, 3, v5\n"
           "v_bfe_u32 v6, v1, 3, 1\nv_lshl_add_u32 v5, v6, 7, v5\nv_lshrrev_b32 v6, 5, v1\nv_lshl_add_u32 v5, v6, 9, v5\n"
           f"s_lshl_b32 s60, s{W}, 11\ns_add_u32 s60, s60, {WL}\nv_add_u32 v5, s60, v5\n"
           "v_and_b32 v6, 15, v1\nv_lshlrev_b32 v6, 4, v6\nv_lshrrev_b32 v7, 5, v1\nv_lshl_add_u32 v6, v7, 8, v6\n"
           "v_bfe_u32 v7, v1, 4, 1\nv_lshl_add_u32 v6, v7, 14, v6").split("\n")
    def xw(mu): return [f"ds_write_b128 v{56+m}, v[{pk(mu,c,m)}:{pk(mu,c,m)+3}] offset:{mu*1024 + c*512}" for c in range(2) for m in range(2)]
    def xr_store(mu):
        for n in range(4):
            d = D1 + 16 * mu + 4 * n
            A(f"ds_read_b64_tr_b16 v[{d}:{d+1}], v5 offset:{n*16384 + mu*1024}\nds_read_b64_tr_b16 v[{d+2}:{d+3}], v5 offset:{n*16384 + mu*1024 + 256}")
        for n in range(4):
            d = D1 + 16 * mu + 4 * n
            A(f"s_waitcnt lgkmcnt({6-2*n})")
            A(f"buffer_store_dwordx4 v[{d}:{d+3}], v6, {WSR}, s47 offen sc1")
            A(f"s_add_u32 s47, s47, {0x80000 if n < 3 else (0x8000 - 0x180000) & 0xffffffff}")
    m4 = cstage(D0, 1, True, OC, ON, OS)
    weave(A, m4[:4], adr)
    A("s_barrier")
    weave(A, m4[4:], pack(D0, 0) + xw(0))
    A("s_waitcnt lgkmcnt(0)\ns_barrier")
    stamp(A, "c1")
    xr_store(0)
    E(pack(D0, 1) + xw(1))
    A("s_waitcnt lgkmcnt(0)\ns_barrier")
    xr_store(1)
    stamp(A, "c3")
    A(f"v_mov_b32 v{V_G2W}, v58\nv_mov_b32 v{V_G2X}, v59")
    g2_wdma(A, C.cfw0)
    A("s_waitcnt vmcnt(4)\ns_barrier")
    stamp(A, "c5")
    set_flag(A, 57, 16)
    for n in range(C.cfw0 + 1, 4): g2_wdma(A, n)
    stamp(A, "flag2")

def phase_g2(A):
    W = S_WAVE
    ACT = 64; WF = 128; ACC = 16; NS = 9
    A("; ---- G2")
    srd(A, S_X, P_X, 2097152)
    srd(A, S_B, P_OUT, 2097152)
    A("v_lshlrev_b32 v3, 4, v1")
    A(f"s_mul_i32 s54, s50, 57344\ns_mul_i32 s46, s49, {28*1024}\ns_add_u32 s54, s54, s46\ns_add_u32 s54, s54, {WS_H}")
    A(f"s_lshl_b32 s57, s50, 14\ns_lshl_b32 s46, s49, 13\ns_add_u32 s57, s57, s46\ns_add_u32 s57, s57, {WS_ZP}")
    A("v_lshrrev_b32 v6, 5, v1\nv_lshlrev_b32 v6, 4, v6\nv_bfe_u32 v7, v1, 4, 1\nv_lshl_add_u32 v6, v7, 2, v6\nv_bfe_u32 v4, v1, 2, 2\nv_add_u32 v6, v6, v4")
    A("v_lshlrev_b32 v6, 7, v6\nv_lshrrev_b32 v4, 1, v4\nv_lshl_or_b32 v4, v7, 1, v4")
    A("v_lshl_add_u32 v6, v4, 5, v6\nv_and_b32 v4, 3, v1\nv_lshl_add_u32 v6, v4, 3, v6")
    A("s_lshl_b32 s46, s49, 14\nv_add_u32 v164, s46, v6")
    for nb in range(1, 4): A(f"v_xor_b32 v{164+nb}, {32*nb}, v164")
    for nb in range(4): A(f"v_add_u32 v{160+nb}, 0x10000, v{164+nb}")
    A("v_bfe_u32 v4, v1, 4, 2\nv_lshlrev_b32 v4, 5, v4\nv_xor_b32 v173, v3, v4")
    A(f"s_lshl_b32 s58, s45, 16\ns_lshl_b32 s46, s49, 15\ns_add_u32 s58, s58, s46\ns_lshl_b32 s46, s48, 12\ns_add_u32 s58, s58, s46\ns_add_u32 s58, s58, {WS_G}")
    A("v_min_u32 v170, 27, v1\nv_lshlrev_b32 v170, 7, v170\nv_and_b32 v172, 31, v1\nv_lshlrev_b32 v172, 7, v172")
    A(f"s_lshr_b32 s46, s44, 2\ns_lshl_b32 s46, s46, 12\ns_add_u32 s46, s46, {FL_H}\ns_mov_b32 s47, {FL_C}")
    L = A.label("L_g2_np")
    A(f"s_cmp_lg_u32 s{W}, 0\ns_cbranch_scc1 {L}\ns_waitcnt vmcnt(0)")
    poll(A, [(170, "s46")], 176)
    A(f"{L}:")
    A("s_barrier")
    stamp(A, "hrdy")
    vm = []
    def act_ops(n):
        L = []
        for k in range(4):
            d = ACT + 16 * (n & 3) + 4 * k
            L.append((("a", n), ("s_mov_b32 s54, s57\n" if (n == 7 and k == 0) else "") +
                      f"buffer_load_dwordx4 v[{d}:{d+3}], v3, {WSR}, s54 offen offset:{1024*k} sc1" + ("\ns_add_u32 s54, s54, 4096" if k == 3 else "")))
        return L
    def w_ops(n): return [(("w", n), o) for o in g2w_ops(n)]
    def emit(op):
        A(op[1]); vm.append(op[0])
    for op in act_ops(0): emit(op)
    A("s_barrier")
    for op in act_ops(1): emit(op)
    def reads(n, k, st):
        slot = n & 3
        va = 164 if slot < 2 else 160
        off = (slot & 1) * 32768 + k * 4096
        r = []
        for nb in range(4):
            d = WF + 16 * st + 4 * nb
            r.append(f"ds_read_b64_tr_b16 v[{d}:{d+1}], v{va+nb} offset:{off}")
            r.append(f"ds_read_b64_tr_b16 v[{d+2}:{d+3}], v{va+nb} offset:{off+1024}")
        return r
    LA = C.la2
    NZ = 4
    for n in range(NS):
        need = [i for i, o in enumerate(vm) if o in (("a", n), ("w", n), ("f", n))]
        A(f"s_waitcnt vmcnt({len(vm) - 1 - max(need)})\ns_barrier")
        stamp(A, f"st{n}")
        for r in reads(n, 0, 0): A(r)
        if n == NZ:
            L = A.label("L_g2_ok")
            A(f"v_cmp_ne_u32 vcc, s{S_TAG}, v176\ns_cmp_eq_u64 vcc, 0\ns_cbranch_scc1 {L}")
            poll(A, [(172, "s47")], 176)
            A(f"s_mov_b32 s{S_RDY}, 1\n{L}:")
        ops = []
        if n == 0 and LA == 3: ops += act_ops(2)
        if n == NZ - 1: ops.append((("f", NZ), f"buffer_load_dword v176, v172, {WSR}, s47 offen sc1"))
        if 4 <= n + 3 < NS: ops += w_ops(n + 3)
        if n + LA < NS: ops += act_ops(n + LA)
        if n == C.xst:
            ops.append((("x", 0), f"buffer_load_dwordx4 v[240:243], v{V_G2X}, {XR}, s56 offen {C.nt_x2}"))
        slots = [[] for _ in range(16)]
        for i, op in enumerate(ops): slots[(i * 16) // max(len(ops), 8) if len(ops) > 8 else 2 * i].append(op)
        for k in range(4):
            st = k & 1
            nxt = reads(n, k + 1, st ^ 1) if k < 3 else []
            for nb in range(4):
                if nb % 2 == 0: A(f"s_waitcnt lgkmcnt({4 - 2*nb + len(nxt[0:2*nb])})")
                d = WF + 16 * st + 4 * nb; a = ACT + 16 * (n & 3) + 4 * k
                cb = ACC + (16 if n >= 7 else 0) + 4 * nb
                c = f"v[{cb}:{cb+3}]"
                A(f"v_mfma_f32_16x16x32_bf16 {c}, v[{d}:{d+3}], v[{a}:{a+3}], {0 if (n in (0, 7) and k == 0) else c}")
                for r in nxt[2*nb:2*nb+2]: A(r)
                for op in slots[4 * k + nb]: emit(op)
    stamp(A, "g2m")
    EX = 32768
    A(f"s_lshl_b32 s57, s{W}, 12\ns_add_u32 s57, s57, {EX}\nv_add_u32 v6, s57, v3\nv_xor_b32 v7, 0x4000, v6")
    L1 = A.label("L_g2_k1"); L2 = A.label("L_g2_j")
    A(f"s_cmp_eq_u32 s49, 1\ns_cbranch_scc1 {L1}")
    for (lab, keep) in ((None, 0), (L1, 8)):
        if lab: A(f"{lab}:")
        send = 8 - keep
        for q, r in enumerate((ACC + send, ACC + send + 4, ACC + 16 + send, ACC + 20 + send)):
            A(f"ds_write_b128 v6, v[{r}:{r+3}] offset:{1024*q}")
        A("s_waitcnt lgkmcnt(0)\ns_barrier")
        for q in range(4): A(f"ds_read_b128 v[{48+4*q}:{51+4*q}], v7 offset:{1024*q}")
        A("s_waitcnt lgkmcnt(2)")
        for i in range(0, 8, 2): A(f"v_pk_add_f32 v[{48+i}:{49+i}], v[{48+i}:{49+i}], v[{ACC+keep+i}:{ACC+keep+i+1}]")
        A("s_waitcnt lgkmcnt(0)")
        for i in range(0, 8, 2): A(f"v_pk_add_f32 v[{56+i}:{57+i}], v[{56+i}:{57+i}], v[{ACC+16+keep+i}:{ACC+16+keep+i+1}]")
        if not lab: A(f"s_branch {L2}")
    A(f"{L2}:")
    P = lambda r: f"v[{r}:{r+1}]"
    for i in range(8): A(f"v_mul_f32 v{64+i}, {fhex(-1.4426950408889634)}, v{48+i}")
    for i in range(8): A(f"v_exp_f32 v{64+i}, v{64+i}")
    A("v_and_b32 v4, 15, v1\nv_mul_u32_u24 v4, 144, v4\nv_lshrrev_b32 v5, 4, v1\nv_lshl_add_u32 v4, v5, 3, v4")
    A(f"s_mul_i32 s57, s48, {16*144}\ns_lshl_b32 s46, s49, 6\ns_add_u32 s57, s57, s46\ns_add_u32 s57, s57, 69632\nv_add_u32 v4, s57, v4")
    for i in range(0, 8, 2): A(f"v_pk_mul_f32 {P(56+i)}, {P(56+i)}, {P(48+i)}")
    for i in range(8): A(f"v_add_f32 v{64+i}, 1.0, v{64+i}")
    for i in range(8): A(f"v_rcp_f32 v{64+i}, v{64+i}")
    A(f"v_lshrrev_b32 v5, 3, v1\nv_mul_u32_u24 v5, 144, v5\nv_and_b32 v6, 7, v1\nv_lshl_add_u32 v5, v6, 4, v5\ns_mul_i32 s57, s{W}, {8*144}\ns_add_u32 s57, s57, 69632\nv_add_u32 v5, s57, v5")
    for i in range(0, 8, 2): A(f"v_pk_mul_f32 {P(56+i)}, {P(56+i)}, {P(64+i)}")
    for q in range(4): A(f"v_cvt_pk_bf16_f32 v{8+q}, v{56+2*q}, v{57+2*q}")
    A("ds_write_b64 v4, v[8:9]\nds_write_b64 v4, v[10:11] offset:32")
    A("s_waitcnt vmcnt(0)")
    for q in range(4): A(f"v_lshlrev_b32 v{72+2*q}, 16, v{240+q}\nv_and_b32 v{73+2*q}, 0xffff0000, v{240+q}")
    A("s_waitcnt lgkmcnt(0)\ns_barrier\nds_read_b128 v[8:11], v5\ns_waitcnt lgkmcnt(0)")
    for q in range(4): A(f"v_lshlrev_b32 v{64+2*q}, 16, v{8+q}\nv_and_b32 v{65+2*q}, 0xffff0000, v{8+q}")
    for i in range(0, 8, 2): A(f"v_pk_add_f32 {P(72+i)}, {P(72+i)}, {P(64+i)}")
    for q in range(4): A(f"v_cvt_pk_bf16_f32 v{8+q}, v{72+2*q}, v{73+2*q}")
    A(f"buffer_store_dwordx4 v[8:11], v{V_G2X}, {BR}, s56 offen {C.outf}")
    L = A.label("L_ep")
    A(f"s_cmp_lg_u32 s{S_WG}, 0\ns_cbranch_scc1 {L}\ns_mov_b32 s57, 0")
    set_flag(A, 57, 16)
    A(f"{L}:")

HDR = open("recurrent_scan__spectral_gfnet__geglu_ffn__prompt.s.ref").read().split("; Override")[0]
def gen(**kw):
    for k, v in kw.items(): setattr(C, k, v)
    A = Asm()
    A(HDR.rstrip())
    A("; @launch grid=(256,1,1) block=(512,1,1) lds=163840")
    A('.amdgcn_target "amdgcn-amd-amdhsa--gfx950"\n.text')
    kernel_begin(A, KN)
    prologue(A)
    phase_p0(A)
    A(f"s_cmp_ge_u32 s{S_SLOT}, 28\ns_cbranch_scc1 L_cf")
    phase_g1(A)
    A("s_branch L_g2\nL_cf:")
    phase_cf(A)
    A("L_g2:")
    phase_g2(A)
    if C.delay:
        A(f"s_memtime s[70:71]\ns_waitcnt lgkmcnt(0)\nL_dly:\ns_memtime s[72:73]\ns_waitcnt lgkmcnt(0)\ns_sub_u32 s72, s72, s70\ns_cmp_lt_u32 s72, {C.delay}\ns_cbranch_scc1 L_dly")
    if C.echo:
        A(f"s_memrealtime s[72:73]\ns_waitcnt lgkmcnt(0)")
        if C.echo == "end": A("s_mov_b32 s84, s72")
        A(f"s_sub_u32 s84, s84, s82\ns_mul_i32 s84, s84, {C.echo_k}")
        A(f"L_echo:\ns_memrealtime s[74:75]\ns_waitcnt lgkmcnt(0)\ns_sub_u32 s74, s74, s72\ns_cmp_lt_u32 s74, s84\ns_cbranch_scc1 L_echo")
    if C.dbgclk:
        A(f"s_cmp_lg_u32 s{S_WG}, 0\ns_cbranch_scc1 L_done\ns_cmp_lg_u32 s{S_WAVE}, 0\ns_cbranch_scc1 L_done")
        A("s_memtime s[74:75]\ns_memrealtime s[76:77]\ns_waitcnt lgkmcnt(0)\ns_sub_u32 s74, s74, s80\ns_sub_u32 s76, s76, s82")
        srd(A, S_A, P_DBG, 256)
        A(f"v_mov_b32 v2, 0\nv_mov_b32 v4, s74\nv_mov_b32 v5, s76\nbuffer_store_dwordx2 v[4:5], v2, {AR}, 0 offen")
    diag_end(A)
    A("L_done:\ns_endpgm")
    A('.section .rodata,"a"\n.p2align 6')
    A(descriptor(KN, 256, 102, 256))
    return hazard.fix(A.text(), verbose=False)
if __name__ == "__main__":
    kw = dict(a.split("=") for a in sys.argv[2:])
    kw = {k: (int(v) if v.isdigit() and k not in ("perm", "g2map") else v.replace("_", "")) for k, v in kw.items()}
    open(sys.argv[1], "w").write(gen(**kw))
```

```python
import re
TRANS = ("v_exp_f32","v_log_f32","v_rcp_f32","v_rsq_f32","v_sqrt_f32","v_sin_f32","v_cos_f32","v_rcp_iflag_f32")
def regs_of(tok):
    tok = tok.strip()
    neg = tok.lstrip("-")
    m = re.fullmatch(r"(?:abs\()?([vas])(\d+)\)?", neg) or re.fullmatch(r"\|([vas])(\d+)\|", neg)
    if m: return [(m.group(1), int(m.group(2)))]
    m = re.fullmatch(r"([vas])\[(\d+):(\d+)\]", neg)
    if m: return [(m.group(1), i) for i in range(int(m.group(2)), int(m.group(3)) + 1)]
    if neg == "vcc": return [("s", "vcc")]
    if neg in ("vcc_lo", "vcc_hi"): return [("s", "vcc")]
    if neg == "exec": return [("s", "exec")]
    if neg == "m0": return [("s", "m0")]
    return []
class Ins:
    def __init__(self, text):
        self.text = text
        t = text.split(";")[0].strip()
        self.label = None; self.mn = None
        if not t or t.startswith("."):
            return
        if t.endswith(":"):
            self.label = t[:-1]; return
        parts = t.split(None, 1)
        self.mn = mn = parts[0]
        rest = parts[1] if len(parts) > 1 else ""
        ops = [o.strip() for o in rest.split(",")] if rest else []
        self.mods = ""
        if ops:
            last = ops[-1].split(None, 1)
            ops[-1] = last[0]
            self.mods = last[1] if len(last) > 1 else ""
        clean = re.sub(r"\b(op_sel|op_sel_hi|neg_lo|neg_hi|quad_perm):\[[^\]]*\]", "", rest)
        ops = [o.strip() for o in clean.split(",")] if clean.strip() else []
        if ops:
            last = ops[-1].split(None, 1); ops[-1] = last[0]
        self.ops = ops
        self.full = rest
        R = lambda i: regs_of(ops[i]) if i < len(ops) else []
        self.w = []; self.r = []
        self.kind = "other"
        base = re.sub(r"_(e32|e64|dpp|sdwa)$", "", mn)
        self.base = base
        if base.startswith("v_mfma"):
            self.kind = "mfma"
            self.w = R(0); self.A = R(1); self.B = R(2); self.C = R(3); self.r = self.A + self.B + self.C
            self.passes = 8 if "32x32x16" in base else 4 if "16x16x32" in base else 2 if "4x4x4" in base else None
            assert self.passes, base
        elif base.startswith("v_"):
            self.kind = "valu"
            if base.startswith("v_cmpx"):
                self.w = R(0) + [("s", "exec")]; self.r = sum((R(i) for i in range(1, len(ops))), [])
            elif base.startswith("v_permlane") and "swap" in base:
                self.w = R(0) + R(1); self.r = R(0) + R(1)
            elif base in ("v_add_co_u32", "v_sub_co_u32", "v_addc_co_u32", "v_subb_co_u32", "v_mad_u64_u32"):
                self.w = R(0) + R(1); self.r = sum((R(i) for i in range(2, len(ops))), [])
            elif base == "v_nop":
                pass
            else:
                self.w = R(0); self.r = sum((R(i) for i in range(1, len(ops))), [])
                if base in ("v_fmac_f32", "v_pk_fmac_f16", "v_dot2c_f32_bf16", "v_writelane_b32") or "dpp" in mn or "row_" in rest or "quad_perm" in rest or "sdwa" in mn:
                    self.r += R(0)
                if base == "v_cndmask_b32" and len(ops) == 3:
                    self.r += [("s", "vcc")]
            self.dpp = ("row_" in rest or "quad_perm" in rest or "wave_" in rest)
            self.trans = base in TRANS
        elif base.startswith("ds_"):
            self.kind = "ds"
            if "read" in base or "bpermute" in base or "permute" in base or "swizzle" in base:
                self.w = R(0); self.r = sum((R(i) for i in range(1, len(ops))), [])
            else:
                self.r = sum((R(i) for i in range(len(ops))), [])
        elif base.startswith("buffer_") or base.startswith("global_"):
            self.kind = "vmem"
            self.lds = bool(re.search(r"\blds\b", rest)) or "_lds_" in base
            allr = sum((R(i) for i in range(len(ops))), [])
            if "load" in base and not self.lds:
                self.w = R(0); self.r = sum((R(i) for i in range(1, len(ops))), [])
            elif "atomic" in base and re.search(r"\bsc0\b", rest):
                self.w = R(0); self.r = allr
            else:
                self.r = allr
            self.wide_store = ("store" in base and ("x4" in base or "x3" in base))
            if self.wide_store:
                self.sdata = R(0) if base.startswith("buffer_") else R(1)
        elif base.startswith("s_"):
            self.kind = "salu"
            if base in ("s_nop", "s_waitcnt", "s_barrier", "s_endpgm", "s_setprio", "s_sleep", "s_branch") or base.startswith("s_cbranch") or base.startswith("s_cmp") or base.startswith("s_bitcmp"):
                self.r = sum((R(i) for i in range(len(ops))), [])
            else:
                self.w = R(0); self.r = sum((R(i) for i in range(1, len(ops))), [])
                if "saveexec" in base: self.w += [("s", "exec")]
    def states(self):
        if self.mn is None: return 0
        if self.base == "s_nop": return int(self.ops[0], 0) + 1
        return 1
def need(ev, ins):
    _, k, regs, px = ev
    rs, ws = set(ins.r), set(ins.w)
    n = 0
    if k == "valu_v":
        hit = regs & rs
        if hit:
            if ins.kind == "mfma": n = max(n, 2)
            if ins.kind == "valu":
                if ins.dpp: n = max(n, 2)
                if ins.base.startswith("v_permlane"): n = max(n, 2)
                if ins.base in ("v_readlane_b32", "v_readfirstlane_b32"): n = max(n, 1)
                if px and not ins.trans: n = max(n, 1)
            if px and ins.kind in ("ds", "vmem"): n = max(n, 1)
    elif k == "valu_s":
        if regs & rs:
            if ins.kind == "valu":
                n = max(n, 4 if ins.base in ("v_readlane_b32", "v_writelane_b32") else 2)
            if ins.kind == "vmem": n = max(n, 5)
            if ins.kind == "salu": n = max(n, 1)
            if ins.kind == "mfma": n = max(n, 2)
        if ("s", "exec") in regs:
            if ins.kind == "mfma": n = max(n, 4)
            if ins.kind == "valu" and (ins.dpp): n = max(n, 5)
            if ins.kind == "valu" and (ins.base.startswith("v_read") or ins.base.startswith("v_permlane")): n = max(n, 4)
    elif k == "mfma_d":
        p, dt = px
        big = {2: 5, 4: 8, 8: 12}[p]; ovl = {2: 4, 4: 6, 8: 10}[p]
        if ins.kind == "mfma":
            if regs & (set(ins.A) | set(ins.B)): n = max(n, big)
            if regs & set(ins.C):
                if not (tuple(ins.C) == dt and ins.passes == p): n = max(n, ovl)
                elif p == 2: n = max(n, 2)
            elif regs & ws: n = max(n, big)
        else:
            if regs & (rs | ws): n = max(n, big)
    elif k == "mfma_c":
        if ins.kind == "valu" and (regs & ws): n = max(n, {2: 1, 4: 3, 8: 7}[px])
    elif k == "m0":
        if ins.kind == "vmem" and ins.lds: n = max(n, 1)
    elif k == "store":
        if regs & ws: n = max(n, 2 if ins.kind == "valu" else 1)
    return n
def events_of(ins, t):
    ev = []
    if ins.kind == "valu":
        v = {r for r in ins.w if r[0] in "va"}; s = {r for r in ins.w if r[0] == "s"}
        if v: ev.append((t, "valu_v", v, ins.trans))
        if s: ev.append((t, "valu_s", s, None))
    elif ins.kind == "mfma":
        ev.append((t, "mfma_d", set(ins.w), (ins.passes, tuple(ins.w))))
        if ins.C: ev.append((t, "mfma_c", set(ins.C), ins.passes))
    elif ins.kind == "salu" and ("s", "m0") in ins.w:
        ev.append((t, "m0", set(), None))
    elif ins.kind == "vmem" and ins.wide_store:
        ev.append((t, "store", set(ins.sdata), None))
    return ev
WINDOW = 24
def fix(text, verbose=False):
    lines = text.split("\n")
    ins = [Ins(l) for l in lines]
    labels = {x.label: i for i, x in enumerate(ins) if x.label}
    out = []; t = 0; evs = []; pend = {}; nops = 0
    def required(x, evs, t):
        d = 0
        for ev in evs:
            n = need(ev, x)
            if n: d = max(d, n - (t - ev[0] - 1))
        return d
    for i, x in enumerate(ins):
        if x.label:
            if x.label in pend:
                for (age, ev) in pend.pop(x.label):
                    evs.append((t - age, ev[1], ev[2], ev[3]))
            out.append(x.text); continue
        if x.mn is None:
            out.append(x.text); continue
        d = required(x, evs, t)
        is_br = x.base == "s_branch" or x.base.startswith("s_cbranch")
        if is_br:
            tgt = x.ops[0]
            if labels[tgt] < i:
                tt = t + max(d, 0) + 1; e2 = list(evs); extra = 0
                for y in ins[labels[tgt]:labels[tgt] + 60]:
                    if y.mn is None: continue
                    dd = required(y, e2, tt + extra)
                    if dd > 0: extra += dd
                    tt += y.states()
                    if tt - t > WINDOW: break
                d = max(d, 0) + extra
        while d > 0:
            k = min(d, 16)
            out.append(f"    s_nop {k-1}   ; auto"); t += k; d -= k; nops += 1
        if is_br and labels[x.ops[0]] > i:
            pend.setdefault(x.ops[0], []).extend([(t + 1 - ev[0], ev) for ev in evs])
        evs += events_of(x, t)
        out.append(x.text)
        t += x.states()
        evs = [e for e in evs if t - e[0] <= WINDOW]
        if x.base in ("s_endpgm", "s_branch"): evs = []
    if verbose: print("hazard pass: inserted", nops, "s_nop")
    return "\n".join(out)
```

```python
import struct, sys
from asmgen import *
import hazard

WS_FL = 0x0
FL_W = 0x1000
FL_B = 0x9000
FL_H = 0x11000
FL_C = 0x19000
WS_ST = 0x0100000
WS_Z  = 0x0300000
WS_WP = 0x0500000
WS_G  = 0x0700000
WS_ZP = 0x0800000
WS_H  = 0x0A00000
WS_DIAG = 0x1200000
WS_SIZE = 0x1400000
TAGK = 0x3C6EF35F

def fhex(x): return "0x%08x" % struct.unpack("<I", struct.pack("<f", x))[0]
S_WS, S_X, S_A, S_B = 4, 8, 12, 16
S_WAVE, S_WG, S_TAG, S_SLOT = 20, 21, 22, 23
S_PTR = 24
P_X, P_WR, P_WI, P_BX, P_WG, P_WU, P_WD, P_OUT, P_DBG, P_WS = [S_PTR + 2 * i for i in range(10)]
S_RT, S_CT, S_WOFF, S_RDY, S_XCD, S_SPIN = 64, 65, 66, 67, 68, 69
S_WLDS = 3
WSR = f"s[{S_WS}:{S_WS+3}]"; XR = f"s[{S_X}:{S_X+3}]"; AR = f"s[{S_A}:{S_A+3}]"; BR = f"s[{S_B}:{S_B+3}]"
S_C = 96; CR = f"s[{S_C}:{S_C+3}]"
LDS_P0 = 98304
SLOT = 49152
LDS_CS = 147456
LDS_SINK = 152576
LDS_ST = 160768

class Cfg:
    diag = False
    g1map = "col"
    g2map = "84"
    nt_x = ""; nt_x2 = ""; nt_w = "nt"; nt_g1w = "nt"
    E1, E2 = 2, 3
    D = 8
    xst = 7
    fbgo = 1
    a0pos = 1
    g1pos = 1
    halfpf = 1
    cfpk = 0
    wmax = 0
    sched = "D"
    sj = 4
    wj = 0
    wd = 2
    outf = "nt"
    cfstage = 0
    cfw0 = 1
    zfirst = 1
    fbj = 0
    a0early = 0
    bulk = 1
    cpf = 1
    rotc = 0
    rotr = 1
    perm = "01452367"
    j0early = 1
    delay = 0
    echo = ""
    echo_k = 1
    dbgclk = 0
    la2 = 3
    dbg = ""
    sc_act = "sc1"
    rot2 = 0
    nepi = 0
    pf_start, pf_step = 24, 2
    stamps = "x,p0end,go,main,epi,flag2,hrdy,st0,st8"
C = Cfg()

def stamp(A, name):
    if C.echo == name: A("s_memrealtime s[84:85]")
    if not C.diag: return
    names = ["entry"] + C.stamps.split(",") + ["end"]
    assert len(names) <= 11
    if name in names:
        n = names.index(name)
        A(f"s_memtime s[{74+2*n}:{75+2*n}]")
def diag_end(A):
    if not C.diag: return
    A("s_waitcnt vmcnt(0)")
    stamp(A, "end")
    A("s_memrealtime s[72:73]\ns_waitcnt lgkmcnt(0)")
    A(f"s_lshl_b32 s3, s{S_WG}, 10\ns_lshl_b32 s44, s{S_WAVE}, 7\ns_add_u32 s3, s3, s44\ns_add_u32 s3, s3, {WS_DIAG}")
    A("v_mov_b32 v2, 0")
    for i, sreg in enumerate([70, 72, S_RDY] + [74 + 2*k for k in range(11)]):
        A(f"v_mov_b32 v3, s{sreg}\nbuffer_store_dword v3, v2, {WSR}, s3 offen offset:{4*i}")

def srd(A, s, ptr, nbytes):
    A(f"s_mov_b32 s{s}, s{ptr}\ns_and_b32 s{s+1}, s{ptr+1}, 0xffff\ns_mov_b32 s{s+2}, {nbytes}\ns_mov_b32 s{s+3}, 0x00020000")
def cos_batch(A, regs, mask, scale):
    for r in regs: A(f"v_and_b32 v{r}, {mask}, v{r}")
    for r in regs: A(f"v_cvt_f32_u32 v{r}, v{r}")
    for r in regs: A(f"v_mul_f32 v{r}, {fhex(scale)}, v{r}")
    for r in regs: A(f"v_cos_f32 v{r}, v{r}")
def wave_sum(A, v, sdst):
    for mod in ("row_shr:1 row_mask:0xf", "row_shr:2 row_mask:0xf", "row_shr:4 row_mask:0xf", "row_shr:8 row_mask:0xf",
                "row_bcast:15 row_mask:0xa", "row_bcast:31 row_mask:0xc"):
        A(f"v_add_f32_dpp v{v}, v{v}, v{v} {mod} bank_mask:0xf")
    A(f"v_readlane_b32 s{sdst}, v{v}, 63")
def set_flag(A, soff_expr_sreg, vt=3, anywave=False):
    L = A.label("L_fl")
    if not anywave: A(f"s_cmp_lg_u32 s{S_WAVE}, 0\ns_cbranch_scc1 {L}")
    A(f"v_mov_b32 v{vt}, s{S_TAG}\nv_lshlrev_b32 v{vt+1}, 2, v1\ns_mov_b32 exec_hi, 0")
    A(f"buffer_store_dword v{vt}, v{vt+1}, {WSR}, s{soff_expr_sreg} offen sc1")
    A("s_mov_b64 exec, -1")
    A(f"{L}:")
def poll(A, groups, vt, once=False):
    L = A.label("L_poll"); Lx = A.label("L_pollx")
    if not once: A(f"s_mov_b32 s{S_SPIN}, 0\n{L}:")
    for n, (va, so) in enumerate(groups):
        A(f"buffer_load_dword v{vt+n}, v{va}, {WSR}, {so} offen sc1")
    A("s_waitcnt vmcnt(0)")
    for n in range(1, len(groups)):
        A(f"v_xor_b32 v{vt+n}, s{S_TAG}, v{vt+n}")
    A(f"v_xor_b32 v{vt}, s{S_TAG}, v{vt}")
    for n in range(1, len(groups)):
        A(f"v_or_b32 v{vt}, v{vt}, v{vt+n}")
    A(f"v_cmp_ne_u32 vcc, 0, v{vt}")
    if once:
        A(f"s_cmp_eq_u64 vcc, 0\ns_cselect_b32 s{S_RDY}, 1, 0")
    else:
        A(f"s_cmp_eq_u64 vcc, 0\ns_cbranch_scc1 {Lx}")
        A(f"s_add_u32 s{S_SPIN}, s{S_SPIN}, 1\ns_cmp_lt_u32 s{S_SPIN}, 0x200000\ns_cbranch_scc1 {L}")
        A(f"{Lx}:")

V_WDMA, V_ADE, V_ADO = 146, 147, 148
S_ST0 = 2
S_AOFF = 58
def g1_stage(A, j, sreg):
    A(f"s_add_u32 s{sreg}, s{S_ST0}, {int(C.perm[j])}\ns_and_b32 s{sreg}, s{sreg}, 7")
def g1w_ops(j):
    sl = (j % 3) * SLOT
    if "W" in C.dbg: j = 0
    return [f"s_add_u32 s60, s{S_ST0}, {int(C.perm[j])}\ns_and_b32 s60, s60, 7\ns_mul_i32 s60, s60, {64*3584}\ns_add_u32 s60, s60, s{S_WOFF}\n"
            f"s_add_u32 m0, s{S_WLDS}, {sl}\nbuffer_load_dwordx4 v{V_WDMA}, {AR}, s60 offen {C.nt_g1w} lds",
            f"s_add_u32 m0, s{S_WLDS}, {sl + 8192}\nbuffer_load_dwordx4 v{V_WDMA}, {BR}, s60 offen {C.nt_g1w} lds"]
def g1a_ops(j):
    sl = (j % 3) * SLOT + 16384
    if "A" in C.dbg: j = 0
    L = []
    for i in range(4):
        pre = (f"s_add_u32 s61, s{S_ST0}, {int(C.perm[j])}\ns_and_b32 s61, s61, 7\ns_lshl_b32 s61, s61, 7\ns_add_u32 s61, s61, s{S_AOFF}\ns_lshl_b32 s59, s{S_WLDS}, 2\n" if i == 0
               else f"s_add_u32 s61, s61, {(4 if i & 1 else 12) * 1024}\n")
        L.append(pre + f"s_add_u32 m0, s59, {sl + i*1024}\nbuffer_load_dwordx4 v{V_ADO if i & 1 else V_ADE}, {XR}, s61 offen lds")
    return L

def prologue(A):
    if C.dbgclk or C.echo: A("s_memtime s[80:81]\ns_memrealtime s[82:83]\ns_memrealtime s[84:85]")
    if C.diag:
        for k in range(11): A(f"s_mov_b32 s{74+2*k}, 0")
        A("s_memrealtime s[70:71]"); stamp(A, "entry")
    A("s_cmp_ge_u32 s2, 256\ns_cbranch_scc1 L_done")
    A(f"s_load_dwordx16 s[{S_PTR}:{S_PTR+15}], s[0:1], 0")
    A(f"s_load_dwordx4 s[{S_PTR+16}:{S_PTR+19}], s[0:1], 64")
    A("v_lshrrev_b32 v2, 6, v0\nv_and_b32 v1, 63, v0")
    A(f"v_readfirstlane_b32 s{S_WAVE}, v2")
    A(f"s_mov_b32 s{S_WG}, s2\ns_and_b32 s{S_XCD}, s2, 7\ns_lshr_b32 s{S_SLOT}, s2, 3\ns_mov_b32 s{S_RDY}, 0")
    code_prefetch(A, KN, "L_done", 112)
    if C.g1map == "col":
        A(f"s_mul_i32 s44, s{S_XCD}, 28\ns_add_u32 s44, s44, s{S_SLOT}\ns_and_b32 s{S_RT}, s44, 7\ns_lshr_b32 s{S_CT}, s44, 3")
    else:
        A(f"s_and_b32 s44, s{S_XCD}, 1\ns_lshl_b32 s44, s44, 2\ns_and_b32 s45, s{S_SLOT}, 3\ns_add_u32 s{S_RT}, s44, s45")
        A(f"s_lshr_b32 s44, s{S_XCD}, 1\ns_mul_i32 s44, s44, 7\ns_lshr_b32 s45, s{S_SLOT}, 2\ns_add_u32 s{S_CT}, s44, s45")
    A(f"s_mul_i32 s44, s{S_CT}, {C.rotc}\ns_mul_i32 s45, s{S_RT}, {C.rotr}\ns_add_u32 s44, s44, s45\ns_and_b32 s{S_ST0}, s44, 7")
    W = S_WAVE
    A(f"s_lshr_b32 s44, s{S_WG}, 2          ; r2")
    A(f"s_and_b32 s45, s{S_WG}, 3           ; mh")
    A(f"s_lshr_b32 s46, s45, 1\ns_lshl_b32 s46, s46, 4")
    A(f"s_and_b32 s47, s45, 1\ns_lshl_b32 s47, s47, 2\ns_add_u32 s46, s46, s47")
    A(f"s_lshr_b32 s47, s{W}, 2\ns_lshl_b32 s47, s47, 3\ns_add_u32 s46, s46, s47")
    A(f"s_and_b32 s47, s{W}, 3\ns_add_u32 s46, s46, s47     ; r1")
    A("s_lshl_b32 s46, s46, 6\ns_add_u32 s46, s46, s44\ns_lshl_b32 s56, s46, 10")
    A("v_lshlrev_b32 v2, 4, v1")
    A("s_waitcnt lgkmcnt(0)")
    srd(A, S_X, P_X, 2097152)
    A(f"buffer_load_dwordx4 v[4:7], v2, {XR}, s56 offen {C.nt_x}")
    A(f"s_load_dword s{S_TAG}, s[{P_WS}:{P_WS+1}], 0")
    srd(A, S_WS, P_WS, WS_SIZE)

def code_prefetch(A, start, end, vt):
    Lh = A.label("L_cph")
    A(f"s_getpc_b64 s[60:61]\n{Lh}:")
    A(f"s_mul_i32 s59, s{S_SLOT}, 1280\ns_mul_i32 s57, s{S_WAVE}, 160\ns_add_u32 s59, s59, s57\nv_and_b32 v{vt}, 15, v1\nv_lshl_add_u32 v{vt}, v{vt}, 4, s59\nv_min_u32 v{vt}, {end} - {start} - 16, v{vt}")
    A(f"s_add_u32 s60, s60, {start} - {Lh}\ns_addc_u32 s61, s61, {'-1' if start == KN else '0'}")
    A(f"v_mov_b32 v{vt+1}, s61\nv_add_co_u32 v{vt}, vcc, s60, v{vt}\nv_addc_co_u32 v{vt+1}, vcc, 0, v{vt+1}, vcc")
    A(f"global_load_dwordx4 v[{vt+2}:{vt+5}], v[{vt}:{vt+1}], off")

def gemm_only(A, fn):
    L = A.label("L_go")
    A(f"s_cmp_ge_u32 s{S_SLOT}, 28\ns_cbranch_scc1 {L}")
    fn()
    A(f"{L}:")
def wait_role(A, n_gemm, n_cf):
    L = A.label("L_wr"); L2 = A.label("L_wr")
    A(f"s_cmp_ge_u32 s{S_SLOT}, 28\ns_cbranch_scc1 {L}\ns_waitcnt vmcnt({n_gemm})\ns_branch {L2}\n{L}:\ns_waitcnt vmcnt({n_cf})\n{L2}:")

def phase_p0(A):
    W = S_WAVE
    ZL = 2 * SLOT; XNL = 2 * SLOT + 16384; CL = XNL + 8192; WL = 151552; STL = WL + 8320
    B1RE, B1IM, A2RE, A2IM, S2RE, S2IM, TWC, TWS = 64, 68, 72, 76, 80, 84, 88, 92
    T = 32
    srd(A, S_A, P_WG, 512 * 3584)
    srd(A, S_B, P_WU, 512 * 3584)
    A("v_lshrrev_b32 v8, 3, v1")
    A("v_bfe_u32 v9, v1, 4, 1\nv_lshlrev_b32 v9, 2, v9\nv_and_b32 v10, 7, v1\nv_xor_b32 v9, v9, v10")
    A(f"v_mul_u32_u24 v11, 3584, v8\nv_lshl_add_u32 v{V_WDMA}, v9, 4, v11")
    A(f"s_mul_i32 s47, s{W}, {8*3584}\ns_lshl_b32 s52, s{S_CT}, 7\ns_add_u32 s{S_WOFF}, s47, s52\ns_lshl_b32 s{S_WLDS}, s{W}, 10")
    def w_flat():
        A(f"s_cmp_lt_u32 s{W}, 4\ns_cselect_b32 s{S_C}, s{P_WR}, s{P_WI}\ns_cselect_b32 s{S_C+1}, s{P_WR+1}, s{P_WI+1}")
        A(f"s_and_b32 s{S_C+1}, s{S_C+1}, 0xffff\ns_mov_b32 s{S_C+2}, {2048*514}\ns_mov_b32 s{S_C+3}, 0x00020000")
        A(f"s_mul_i32 s53, s{S_WG}, 4112\ns_and_b32 s54, s{W}, 3\ns_lshl_b32 s54, s54, 10\ns_add_u32 s55, s53, s54")
        A(f"s_lshr_b32 s61, s{W}, 2\ns_mul_i32 s61, s61, 4160\ns_add_u32 s61, s61, {WL}\ns_add_u32 m0, s61, s54")
        A(f"buffer_load_dwordx4 v2, {CR}, s55 offen {C.nt_w} lds")
        A("s_add_u32 m0, s61, 4096\ns_add_u32 s53, s53, 4096\ns_mov_b64 exec, 1")
        A(f"buffer_load_dwordx4 v2, {CR}, s53 offen {C.nt_w} lds")
        A("s_mov_b64 exec, -1")
    def bulk():
        L = A.label("L_bk"); L2 = A.label("L_bk")
        A(f"s_cmp_ge_u32 s{S_SLOT}, 28\ns_cbranch_scc1 {L}")
        for o in g1w_ops(0): A(o)
        A(f"{L}:")
        w_flat()
    if C.bulk == 0: bulk()
    A("v_lshrrev_b32 v9, 2, v8\nv_lshlrev_b32 v9, 3, v9\nv_and_b32 v8, 3, v8\nv_add_u32 v8, v8, v9\nv_lshlrev_b32 v8, 10, v8")
    A(f"v_lshrrev_b32 v9, 4, v1\nv_xor_b32 v9, v9, v10\nv_lshl_add_u32 v{V_ADE}, v9, 4, v8\nv_xor_b32 v{V_ADO}, 64, v{V_ADE}")
    A(f"s_lshl_b32 s47, s{S_RT}, 3\ns_add_u32 s47, s47, s{W}\ns_lshl_b32 s{S_AOFF}, s47, 15")
    if C.a0early == 1: gemm_only(A, lambda: [A(o) for o in g1a_ops(0)])
    M0 = "s[62:63]"
    A("v_and_b32 v30, 15, v1\nv_lshrrev_b32 v29, 4, v1")
    A(f"v_cmp_eq_u32 {M0}, 0, v30\nv_cmp_gt_u32 vcc, 8, v30")
    A("v_cvt_f32_u32 v26, v30\nv_cvt_f32_u32 v27, v29\nv_mul_f32 v27, 4.0, v27      ; k, 4g")
    Lc = A.label("L_c"); cases = [A.label("L_c") for _ in range(7)]
    A("s_mov_b32 s47, 0")
    for n in range(1, 7):
        A(f"s_cmp_eq_u32 s{W}, {n}\ns_cbranch_scc1 {cases[n]}")
    A(f"; wave 0 (and 7): B1RE\nv_mul_f32 v20, {fhex(1/32)}, v26\nv_mov_b32 v22, 0\ns_mov_b32 s47, {fhex(16.0)}\nv_mov_b32 v21, v20\nv_mov_b32 v23, 0\ns_branch {Lc}")
    A(f"{cases[1]}:\nv_mul_f32 v20, {fhex(1/32)}, v26\nv_mov_b32 v22, {fhex(0.25)}\nv_cndmask_b32 v20, v20, 0.5, {M0}\nv_cndmask_b32 v22, v22, 0, {M0}")
    A(f"s_mov_b32 s47, {fhex(16.0)}\nv_mov_b32 v21, v20\nv_mov_b32 v23, v22\ns_branch {Lc}")
    A(f"{cases[2]}:\nv_mul_f32 v20, {fhex(1/16)}, v26\nv_mov_b32 v22, 0\nv_mov_b32 v23, {fhex(0.75)}\nv_mov_b32 v21, v20\ns_branch {Lc}")
    A(f"{cases[3]}:\nv_mul_f32 v20, {fhex(1/16)}, v26\nv_cndmask_b32 v23, 0.5, 0, vcc\nv_add_f32 v22, {fhex(0.25)}, v23\nv_mov_b32 v21, v20\ns_branch {Lc}")
    for n in (4, 5):
        A(f"{cases[n]}:\nv_mul_f32 v20, {fhex(1/16)}, v26\nv_cndmask_b32 v21, v20, 0.5, {M0}\nv_sub_f32 v24, {fhex(31/32)}, v20")
        A("v_cndmask_b32 v20, 0, v21, vcc\nv_cndmask_b32 v21, v24, 0, vcc")
        if n == 4: A(f"v_mov_b32 v24, {fhex(0.25)}\nv_cndmask_b32 v22, v24, 0, vcc\nv_cndmask_b32 v23, 0, v24, vcc")
        else: A(f"v_mov_b32 v22, {fhex(0.25)}\nv_mov_b32 v23, v22")
        A(f"s_branch {Lc}")
    A(f"{cases[6]}:\nv_mul_f32 v20, {fhex(1/512)}, v26\nv_mov_b32 v22, 0\nv_mov_b32 v23, {fhex(0.75)}\nv_mov_b32 v21, v20")
    A(f"{Lc}:")
    A("v_fma_f32 v22, v27, v20, v22\nv_add_f32 v24, s47, v27\nv_fma_f32 v23, v24, v21, v23")
    for (b, v, o) in ((22, 20, T), (23, 21, T + 4)):
        A(f"v_cos_f32 v{o}, v{b}\nv_add_f32 v{o+1}, v{b}, v{v}\nv_fma_f32 v{o+2}, v{v}, 2.0, v{b}\nv_fmamk_f32 v{o+3}, v{v}, {fhex(3.0)}, v{b}")
        for q in (1, 2, 3): A(f"v_cos_f32 v{o+q}, v{o+q}")
    A(f"s_add_u32 s47, s{S_WLDS}, {CL}\nv_add_u32 v24, s47, v2")
    L6 = A.label("L_c6"); L7 = A.label("L_c7")
    A(f"s_cmp_eq_u32 s{W}, 6\ns_cbranch_scc1 {L6}\ns_cmp_eq_u32 s{W}, 7\ns_cbranch_scc1 {L7}")
    for q in range(4): A(f"v_cvt_pk_bf16_f32 v{T+q}, v{T+2*q}, v{T+2*q+1}")
    A(f"ds_write_b128 v24, v[{T}:{T+3}]\ns_branch {L7}")
    A(f"{L6}:\nds_write_b128 v24, v[{T}:{T+3}]\nds_write_b128 v24, v[{T+4}:{T+7}] offset:1024\n{L7}:")
    A(f"s_add_u32 s61, s{S_WLDS}, {XNL}")
    A("v_add_u32 v96, s61, v2\nv_lshl_add_u32 v97, v1, 3, s61")
    A(f"v_add_u32 v108, {CL}, v2")
    A(f"v_lshlrev_b32 v100, 11, v29\nv_lshl_add_u32 v100, v30, 5, v100\ns_lshl_b32 s61, s{W}, 1\ns_add_u32 s61, s61, {ZL}")
    A("v_add_u32 v100, s61, v100")
    A(f"s_waitcnt lgkmcnt(0)\ns_barrier\ns_add_u32 s{S_TAG}, s{S_TAG}, {TAGK}")
    for n in range(8): A(f"ds_read_b128 v[{64+4*n}:{67+4*n}], v108 offset:{1024*n}")
    if C.a0early == 2: gemm_only(A, lambda: [A(o) for o in g1a_ops(0)])
    if C.bulk == 1: bulk()
    A(f"v_lshlrev_b32 v101, 4, v0\nv_add_u32 v101, {ZL}, v101")
    A("s_and_b32 s61, s44, 15\nv_and_b32 v103, 15, v0\nv_xor_b32 v102, s61, v103\nv_lshlrev_b32 v102, 4, v102")
    A("v_lshrrev_b32 v12, 4, v0             ; cg")
    A("v_lshl_add_u32 v102, v12, 16, v102")
    A(f"s_lshl_b32 s46, s{S_WG}, 8\ns_add_u32 s45, s46, {WS_Z}\ns_add_u32 s46, s46, {WS_WP}")
    A("v_bfe_u32 v13, v0, 4, 4\nv_and_b32 v12, 15, v0\nv_lshlrev_b32 v14, 5, v13\nv_add_u32 v20, v14, v12\nv_sub_u32 v15, 0x200, v14")
    A("v_cmp_eq_u32 vcc, 0, v12\nv_cndmask_b32 v21, v12, 16, vcc\nv_sub_u32 v15, v15, v21\nv_cmp_gt_u32 vcc, 8, v13\nv_cndmask_b32 v20, v15, v20, vcc")
    A("v_and_b32 v12, 255, v0\nv_mov_b32 v15, 0x100\nv_cmp_eq_u32 vcc, 0, v12\nv_cndmask_b32 v20, v20, v15, vcc      ; bin")
    A(f"s_lshr_b32 s61, s{W}, 2\ns_mul_i32 s60, s61, {4*514}\ns_add_u32 s60, s60, {WL}\nv_lshl_add_u32 v127, v20, 1, s60")
    A(f"s_lshl_b32 s60, s{S_WG}, 1\ns_add_u32 s60, s60, s61\ns_and_b32 s60, s60, 7\nv_and_b32 v13, 7, v0\nv_xor_b32 v13, s60, v13\nv_lshlrev_b32 v13, 4, v13")
    A("v_lshrrev_b32 v12, 3, v12\nv_lshl_add_u32 v103, v12, 16, v13\ns_lshl_b32 s61, s61, 7\ns_add_u32 s46, s46, s61")
    A(f"s_lshl_b32 s57, s{S_WG}, 7\ns_add_u32 s57, s57, {FL_B}")
    A(f"v_lshlrev_b32 v126, 3, v1\nv_and_b32 v13, 63, v126\nv_add_u32 v99, {STL}, v13\ns_lshl_b32 s55, s{S_WG}, 7\ns_add_u32 s55, s55, {WS_ST}")
    A("v_mov_b32 v3, v102")
    if C.g1pos == 0: g1_setup(A)
    A("; ---- P0: layernorm")
    stamp(A, "consts")
    if C.bulk < 2: wait_role(A, 4, 2)
    else:
        A("s_waitcnt vmcnt(0)"); bulk()
    stamp(A, "x")
    if C.halfpf:
        L = A.label("L_hp")
        A(f"s_add_u32 s60, s{S_SLOT}, 4\ns_and_b32 s61, s{S_XCD}, 1\ns_cselect_b32 s61, 4, 28\ns_sub_u32 s60, s60, s61\ns_cmp_ge_u32 s60, 4\ns_cbranch_scc1 {L}")
        A(f"s_add_u32 s60, s{S_ST0}, 4\ns_and_b32 s60, s60, 7\ns_mul_i32 s60, s60, {64*3584}\ns_add_u32 s60, s60, s{S_WOFF}\ns_add_u32 m0, s{S_WLDS}, 131072")
        A(f"buffer_load_dwordx4 v{V_WDMA}, {AR}, s60 offen {C.nt_g1w} lds\nbuffer_load_dwordx4 v{V_WDMA}, {BR}, s60 offen {C.nt_g1w} lds\n{L}:")
    for q in range(4):
        A(f"v_lshlrev_b32 v{T+2*q}, 16, v{4+q}\nv_and_b32 v{T+2*q+1}, 0xffff0000, v{4+q}")
    A(f"v_pk_add_f32 v[{T+8}:{T+9}], v[{T}:{T+1}], v[{T+2}:{T+3}]\nv_pk_add_f32 v[{T+10}:{T+11}], v[{T+4}:{T+5}], v[{T+6}:{T+7}]")
    A(f"v_pk_add_f32 v[{T+8}:{T+9}], v[{T+8}:{T+9}], v[{T+10}:{T+11}]\nv_add_f32 v{T+8}, v{T+8}, v{T+9}")
    wave_sum(A, T + 8, 60)
    A(f"v_mov_b32 v{T+9}, {fhex(1.0/512)}\nv_mul_f32 v{T+9}, s60, v{T+9}")
    A(f"v_cvt_pk_bf16_f32 v{T+10}, v{T+9}, v{T+9}")
    for q in range(8): A(f"v_sub_f32 v{T+16+q}, v{T+q}, v{T+9}")
    A(f"v_lshlrev_b32 v{T+10}, 16, v{T+10}")
    A(f"v_mul_f32 v{T+8}, v{T+16}, v{T+16}\nv_mul_f32 v{T+11}, v{T+17}, v{T+17}")
    for q in range(2, 8, 2):
        A(f"v_fmac_f32 v{T+8}, v{T+16+q}, v{T+16+q}\nv_fmac_f32 v{T+11}, v{T+17+q}, v{T+17+q}")
    A(f"v_add_f32 v{T+8}, v{T+8}, v{T+11}")
    fill = [f"v_sub_f32 v{T+q}, v{T+q}, v{T+10}" for q in range(8)] + [f"v_cvt_pk_bf16_f32 v{T+16+q}, v{T+2*q}, v{T+2*q+1}" for q in range(4)]
    for n, mod in enumerate(("row_shr:1 row_mask:0xf", "row_shr:2 row_mask:0xf", "row_shr:4 row_mask:0xf", "row_shr:8 row_mask:0xf",
                "row_bcast:15 row_mask:0xa", "row_bcast:31 row_mask:0xc")):
        A(fill[2*n]); A(fill[2*n+1])
        A(f"v_add_f32_dpp v{T+8}, v{T+8}, v{T+8} {mod} bank_mask:0xf")
    A(f"v_mov_b32 v{T+9}, {fhex(1.0/512)}")
    A(f"v_readlane_b32 s60, v{T+8}, 63")
    for q in range(2):
        A(f"v_lshlrev_b32 v{T+2*q}, 16, v{T+16+q}\nv_and_b32 v{T+2*q+1}, 0xffff0000, v{T+16+q}")
    A(f"v_mul_f32 v{T+9}, s60, v{T+9}")
    A(f"v_cvt_pk_bf16_f32 v{T+9}, v{T+9}, v{T+9}\nv_lshlrev_b32 v{T+9}, 16, v{T+9}")
    A(f"v_add_f32 v{T+9}, {fhex(1e-5)}, v{T+9}")
    A(f"v_cvt_pk_bf16_f32 v{T+9}, v{T+9}, v{T+9}\nv_lshlrev_b32 v{T+9}, 16, v{T+9}")
    A(f"v_sqrt_f32 v{T+9}, v{T+9}")
    A(f"v_lshlrev_b32 v{T+4}, 16, v{T+18}")
    A(f"v_cvt_pk_bf16_f32 v{T+9}, v{T+9}, v{T+9}\nv_lshlrev_b32 v{T+9}, 16, v{T+9}")
    A(f"v_rcp_f32 v{T+9}, v{T+9}")
    A(f"v_and_b32 v{T+5}, 0xffff0000, v{T+18}\nv_lshlrev_b32 v{T+6}, 16, v{T+19}\nv_and_b32 v{T+7}, 0xffff0000, v{T+19}")
    for q in range(8): A(f"v_mul_f32 v{T+q}, v{T+9}, v{T+q}")
    for q in range(4): A(f"v_cvt_pk_bf16_f32 v{4+q}, v{T+2*q}, v{T+2*q+1}")
    stamp(A, "ln")
    A("ds_write_b128 v96, v[4:7]")
    A(f"v_lshrrev_b32 v18, 16, v{T+10}\nv_or_b32 v18, v18, v{T+10}\nv_xor_b32 v18, 0x80008000, v18\nv_mov_b32 v19, v{T+9}")
    A(f"s_lshl_b32 s61, s{W}, 3\ns_add_u32 s61, s61, {STL}\nv_mov_b32 v14, s61\nds_write_b64 v14, v[18:19]")
    A("s_waitcnt lgkmcnt(0)")
    A("ds_read_b64_tr_b16 v[8:9], v97\nds_read_b64_tr_b16 v[10:11], v97 offset:512")
    if C.a0pos == 0: gemm_only(A, lambda: [A(o) for o in g1a_ops(0)])
    stamp(A, "iss1")
    A("s_waitcnt lgkmcnt(0)")
    A(f"v_mfma_f32_16x16x32_bf16 v[{T}:{T+3}], v[8:11], v[{B1RE}:{B1RE+3}], 0")
    A(f"v_mfma_f32_16x16x32_bf16 v[{T+4}:{T+7}], v[8:11], v[{B1IM}:{B1IM+3}], 0")
    for i in range(0, 4, 2):
        A(f"v_pk_mul_f32 v[{T+8+i}:{T+9+i}], v[{T+i}:{T+i+1}], v[{TWC+i}:{TWC+i+1}]\nv_pk_mul_f32 v[{T+12+i}:{T+13+i}], v[{T+4+i}:{T+5+i}], v[{TWC+i}:{TWC+i+1}]")
    for i in range(0, 4, 2):
        A(f"v_pk_fma_f32 v[{T+8+i}:{T+9+i}], v[{T+4+i}:{T+5+i}], v[{TWS+i}:{TWS+i+1}], v[{T+8+i}:{T+9+i}]")
        A(f"v_pk_fma_f32 v[{T+12+i}:{T+13+i}], v[{T+i}:{T+i+1}], v[{TWS+i}:{TWS+i+1}], v[{T+12+i}:{T+13+i}] neg_lo:[1,0,0] neg_hi:[1,0,0]")
    for q in range(4): A(f"v_cvt_pk_bf16_f32 v{8+q}, v{T+8+2*q}, v{T+9+2*q}")
    A(f"v_mfma_f32_16x16x32_bf16 v[{T}:{T+3}], v[{A2RE}:{A2RE+3}], v[8:11], 0")
    A(f"v_mfma_f32_16x16x32_bf16 v[{T+4}:{T+7}], v[{A2IM}:{A2IM+3}], v[8:11], 0")
    A(f"v_mfma_f32_16x16x32_bf16 v[{T+8}:{T+11}], v[{S2RE}:{S2RE+3}], v[8:11], 0")
    A(f"v_mfma_f32_16x16x32_bf16 v[{T+12}:{T+15}], v[{S2IM}:{S2IM+3}], v[8:11], 0")
    for i in range(8): A(f"v_cndmask_b32 v{T+i}, v{T+i}, v{T+8+i}, {M0}")
    for i in range(4): A(f"v_cvt_pk_bf16_f32 v{T+i}, v{T+i}, v{T+4+i}")
    for i in range(4):
        A(f"ds_write_b16 v100, v{T+i} offset:{512*i}\nds_write_b16_d16_hi v100, v{T+i} offset:{512*i+16}")
    stamp(A, "fft")
    A("s_mov_b32 s62, s46\ns_mov_b32 s63, s55\nv_mov_b32 v30, v127\nv_mov_b32 v17, v126\nv_mov_b32 v28, v103")
    if C.a0pos == 1: gemm_only(A, lambda: [A(o) for o in g1a_ops(0)])
    if C.g1pos == 1: g1_setup(A)
    stamp(A, "pre2")
    wait_role(A, 63, 0)
    A("s_waitcnt lgkmcnt(0)\ns_barrier")
    stamp(A, "b2")
    A("ds_read_b128 v[20:23], v101\nds_read_b64 v[18:19], v99")
    if C.a0pos == 2: gemm_only(A, lambda: [A(o) for o in g1a_ops(0)])
    A("s_waitcnt lgkmcnt(0)")
    zs = p0_stores(A)
    A(zs[0]); A(zs[2])
    stamp(A, "p0end")
    A(f"s_cmp_ge_u32 s{S_SLOT}, 28\ns_cbranch_scc1 L_cf")
    for o in g1w_ops(1) + g1a_ops(1): A(o)
    if C.g1pos == 2: g1_setup(A)
    if C.fbgo:
        A("s_waitcnt vmcnt(6)\ns_barrier")
        set_flag(A, 57, 16)
        A(f"s_sub_u32 s57, s57, {FL_B - FL_W}")
    else:
        L = A.label("L_w0"); L2 = A.label("L_w0")
        A(f"s_cmp_eq_u32 s{W}, 0\ns_cbranch_scc1 {L}\ns_waitcnt vmcnt(7)\ns_branch {L2}\n{L}:\ns_waitcnt vmcnt(8)\n{L2}:\ns_barrier")

def wp_gather():
    return [f"ds_read_u16 v{24+q}, v30 offset:{514*q}\nds_read_u16 v{4+q}, v30 offset:{4160+514*q}" for q in range(4)]
def p0_stores(A):
    a = f"buffer_store_dwordx4 v[20:23], v3, {WSR}, s45 offen sc1"
    L = A.label("L_p0_st")
    c = f"s_cmp_lg_u32 s{S_WAVE}, 0\ns_cbranch_scc1 {L}\ns_mov_b64 exec, 0xffff\nbuffer_store_dwordx2 v[18:19], v17, {WSR}, s63 offen sc1\ns_mov_b64 exec, -1\n{L}:"
    b = "\n".join(f"v_lshl_or_b32 v{24+q}, v{4+q}, 16, v{24+q}" for q in range(4)) + f"\nbuffer_store_dwordx4 v[24:27], v28, {WSR}, s62 offen sc1"
    if "z" in C.dbg: return [f"buffer_load_dword v20, v2, {WSR}, 0 offen", f"buffer_load_dword v20, v2, {WSR}, 0 offen", c]
    if "y" in C.dbg: return [a, f"buffer_load_dword v20, v2, {WSR}, 0 offen"]
    return [a, b, c]

def wd_prefetch_ops(A):
    srd(A, S_C, P_WD, 1792 * 1024)
    A(f"s_lshl_b32 s100, s{S_SLOT}, 16\ns_lshl_b32 s101, s{S_WAVE}, 13\ns_add_u32 s100, s100, s101")
    if C.g2map == "48":
        A(f"v_mov_b32 v159, v2\ns_mov_b32 s101, s{S_XCD}"); n, sh = 8, 10
    else:
        A(f"v_and_b32 v159, 31, v1\nv_lshlrev_b32 v159, 4, v159\nv_lshrrev_b32 v158, 5, v1\nv_lshl_add_u32 v159, v158, 10, v159")
        A(f"s_and_b32 s101, s{S_XCD}, 1\ns_lshl_b32 s101, s101, 9\ns_add_u32 s100, s100, s101\ns_lshr_b32 s101, s{S_XCD}, 1"); n, sh = 4, 11
    return [f"s_add_u32 m0, s{S_WLDS}, {LDS_SINK}\ns_lshl_b32 s60, s101, {sh}\ns_add_u32 s60, s60, s100\n"
            f"buffer_load_dwordx4 v159, {CR}, s60 offen lds\ns_add_u32 s101, s101, 1\ns_and_b32 s101, s101, {n-1}"] * n

V_G2W = 13
V_G2X = 244
def g2_setup(A, vw=V_G2W, vx=V_G2X, t0=14, t1=15):
    W = S_WAVE
    if C.g2map == "48":
        A(f"s_lshl_b32 s44, s{S_XCD}, 2\ns_and_b32 s45, s{S_SLOT}, 3\ns_add_u32 s44, s44, s45\ns_lshr_b32 s45, s{S_SLOT}, 2")
    else:
        A(f"s_lshr_b32 s44, s{S_XCD}, 1\ns_lshl_b32 s44, s44, 3\ns_and_b32 s45, s{S_SLOT}, 7\ns_add_u32 s44, s44, s45")
        A(f"s_and_b32 s45, s{S_XCD}, 1\ns_lshl_b32 s45, s45, 2\ns_lshr_b32 s46, s{S_SLOT}, 3\ns_add_u32 s45, s45, s46")
    A(f"s_and_b32 s48, s{W}, 3\ns_lshr_b32 s49, s{W}, 2")
    A("s_lshl_b32 s50, s44, 2\ns_add_u32 s50, s50, s48       ; rb16")
    srd(A, S_A, P_WD, 1792 * 1024)
    A(f"v_lshrrev_b32 v{vw}, 3, v1\nv_bfe_u32 v{t0}, v1, 4, 2\nv_lshlrev_b32 v{t0}, 1, v{t0}\nv_and_b32 v{t1}, 7, v1\nv_xor_b32 v{t0}, v{t0}, v{t1}")
    A(f"v_lshlrev_b32 v{vw}, 10, v{vw}\nv_lshl_add_u32 v{vw}, v{t0}, 4, v{vw}")
    A(f"s_lshl_b32 s46, s48, 15\ns_lshl_b32 s51, s45, 7\ns_add_u32 s51, s51, s46\ns_mul_i32 s55, s49, {896*1024}\ns_add_u32 s51, s51, s55")
    A("s_lshl_b32 s46, s48, 12\ns_lshl_b32 s55, s49, 14\ns_add_u32 s55, s55, s46")
    if C.rot2:
        if C.g2map == "48": A("s_cmp_eq_u32 s45, 7\ns_cselect_b32 s52, 0, s45")
        else: A(f"s_and_b32 s52, s45, 3\ns_mul_i32 s52, s52, {C.rot2}")
        A("s_mov_b32 s53, s52\ns_lshl_b32 s46, s52, 17\ns_add_u32 s51, s51, s46")
    A(f"v_lshrrev_b32 v{t0}, 3, v1\nv_and_b32 v{vx}, 3, v{t0}\nv_lshrrev_b32 v{t0}, 2, v{t0}\nv_lshl_or_b32 v{vx}, v{t0}, 3, v{vx}")
    A(f"v_lshlrev_b32 v{vx}, 10, v{vx}\nv_and_b32 v{t1}, 7, v1\nv_lshl_add_u32 v{vx}, v{t1}, 4, v{vx}")
    A(f"s_and_b32 s56, s{W}, 6\ns_lshl_b32 s56, s56, 3\ns_and_b32 s46, s{W}, 1\ns_lshl_b32 s46, s46, 2\ns_add_u32 s56, s56, s46")
    A("s_lshl_b32 s46, s44, 6\ns_add_u32 s56, s56, s46\ns_lshl_b32 s56, s56, 10\ns_lshl_b32 s46, s45, 7\ns_add_u32 s56, s56, s46")
def g2w_ops(n, vw=V_G2W):
    L = []
    for k in range(4):
        if n < 7:
            L.append(f"s_add_u32 m0, s55, {(n & 3)*32768 + k*1024}\nbuffer_load_dwordx4 v{vw}, {AR}, s51 offen lds\ns_add_u32 s51, s51, {8192 if k < 3 else 131072 - 3*8192}" +
                     (f"\ns_add_u32 s52, s52, 1\ns_cmp_eq_u32 s52, 7\ns_cselect_b32 s46, {7*131072}, 0\ns_sub_u32 s51, s51, s46" if (k == 3 and C.rot2) else ""))
        else:
            L.append(f"s_add_u32 m0, s55, {(n & 3)*32768}\n" + f"buffer_load_dwordx4 v173, {WSR}, s58 offen offset:{1024*k} sc1 lds" + ("\ns_add_u32 s58, s58, 16384" if k == 3 else ""))
    return L
def g2_wdma(A, n):
    for o in g2w_ops(n): A(o)
def weave(A, mf, fill, skip=0):
    if C.wmax and len(fill) > C.wmax * (len(mf) - skip):
        k = 0
        for i, m in enumerate(mf):
            A(m)
            if i >= skip:
                for f in fill[k:k + C.wmax]: A(f)
                k += C.wmax
        for f in fill[k:]: A(f)
        return
    n = len(mf) - skip; k = 0
    for i, m in enumerate(mf):
        A(m)
        if i >= skip:
            e = (len(fill) * (i - skip + 1) + n - 1) // n
            for f in fill[k:e]: A(f)
            k = e

def gelu_block(g, u, T, K):
    P = lambda r: f"v[{r}:{r+1}]"
    L = []
    for n in range(0, 8, 2): L.append(f"v_pk_mul_f32 {P(T+n)}, {P(g+n)}, {P(g+n)}")
    for n in range(0, 8, 2): L.append(f"v_pk_fma_f32 {P(T+n)}, {P(T+n)}, {P(K)}, {P(K+2)}")
    for n in range(0, 8, 2): L.append(f"v_pk_mul_f32 {P(T+n)}, {P(T+n)}, {P(g+n)}")
    for n in range(8): L.append(f"v_exp_f32 v{T+n}, v{T+n}")
    for n in range(0, 8, 2): L.append(f"v_pk_mul_f32 {P(T+8+n)}, {P(g+n)}, {P(u+n)}")
    for n in range(0, 8, 2): L.append(f"v_pk_fma_f32 {P(T+n)}, {P(T+n)}, {P(K+4)}, {P(K+4)}")
    for n in range(8): L.append(f"v_rcp_f32 v{T+n}, v{T+n}")
    for n in range(0, 8, 2): L.append(f"v_pk_mul_f32 {P(T+n)}, {P(T+n)}, {P(T+8+n)}")
    for q in range(4): L.append(f"v_cvt_pk_bf16_f32 v{T+8+q}, v{T+2*q}, v{T+2*q+1}")
    return L

def g1_setup(A):
    W = S_WAVE; AD = 208
    A(f"s_and_b32 s48, s{W}, 3\ns_lshr_b32 s49, s{W}, 2")
    A("v_lshrrev_b32 v8, 5, v1\nv_lshlrev_b32 v11, 3, v8\nv_bfe_u32 v9, v1, 2, 2\nv_add_u32 v11, v11, v9\nv_lshlrev_b32 v11, 7, v11")
    A("v_and_b32 v10, 3, v1\nv_lshl_add_u32 v11, v10, 3, v11\nv_bfe_u32 v10, v1, 4, 1\nv_lshl_add_u32 v11, v10, 5, v11")
    A(f"v_lshrrev_b32 v9, 1, v9\nv_xor_b32 v9, s49, v9\nv_lshl_add_u32 v12, v9, 6, v11")
    A("v_and_b32 v9, 31, v1\nv_bfe_u32 v10, v1, 1, 3\nv_xor_b32 v10, v10, v8\nv_lshlrev_b32 v10, 4, v10\nv_lshl_add_u32 v10, v9, 7, v10")
    A(f"s_lshl_b32 s50, s48, 13\ns_add_u32 s50, s50, 16384\nv_add_u32 v10, s50, v10")
    for k in range(4):
        A(f"s_add_u32 s50, s48, {k}\ns_and_b32 s50, s50, 3\ns_lshl_b32 s52, s50, 5\nv_xor_b32 v{AD+4+k}, s52, v10\ns_lshl_b32 s52, s50, 11\nv_add_u32 v{AD+k}, s52, v12")
    for sl in (1, 2):
        for n in range(8): A(f"v_add_u32 v{AD+8*sl+n}, {sl*SLOT}, v{AD+n}")
    for q in range(4): A(f"v_mov_b32 v{128+q}, 0")
    A("v_and_b32 v157, 15, v1\nv_lshlrev_b32 v157, 4, v157\nv_lshl_add_u32 v157, v8, 8, v157")
    A("v_bfe_u32 v11, v1, 4, 1\nv_mul_u32_u24 v11, 57344, v11\nv_add_u32 v157, v157, v11")
    A(f"s_lshl_b32 s50, s{S_RT}, 3\ns_lshl_b32 s51, s48, 1\ns_add_u32 s50, s50, s51")
    A(f"s_mul_i32 s47, s50, {2*57344}\ns_lshl_b32 s52, s{S_CT}, 11\ns_add_u32 s47, s47, s52\ns_lshl_b32 s52, s49, 10\ns_add_u32 s47, s47, s52\ns_add_u32 s47, s47, {WS_H}")
    A(f"s_lshr_b32 s51, s{S_RT}, 2\ns_lshl_b32 s51, s51, 1\ns_and_b32 s52, s{S_RT}, 1\ns_add_u32 s51, s51, s52\ns_lshl_b32 s51, s51, 7\ns_add_u32 s51, s51, {FL_B}")
    A(f"s_lshl_b32 s52, s{W}, 12\ns_add_u32 s51, s51, s52\ns_lshl_b32 s50, s{S_RT}, 4\ns_and_b32 s50, s50, 32\ns_add_u32 s50, s50, s51\ns_add_u32 s50, s50, {WS_ST - FL_B}")
    A("v_and_b32 v149, 7, v1\nv_lshlrev_b32 v149, 9, v149\nv_bfe_u32 v153, v1, 1, 3\nv_lshlrev_b32 v153, 9, v153\nv_and_b32 v11, 1, v1\nv_lshl_or_b32 v153, v11, 4, v153")
    A("v_and_b32 v154, 0x13, v9\nv_bfe_u32 v11, v9, 2, 1\nv_lshl_or_b32 v154, v11, 3, v154\nv_bfe_u32 v11, v9, 3, 1\nv_lshl_or_b32 v154, v11, 2, v154")
    A(f"s_lshl_b32 s52, s48, 3\ns_add_u32 s52, s52, {LDS_ST}\nv_lshl_add_u32 v154, v154, 5, s52")
    A(f"s_lshl_b32 s52, s49, 11\ns_add_u32 s52, s52, {LDS_CS}\nv_add_u32 v155, s52, v2\ns_lshl_b32 s52, s48, 2\nv_add_u32 v156, s52, v155")

def phase_g1(A):
    W = S_WAVE
    ACC = 64; WF = 32; AD = 208
    vm = [("w", 1)] * 2 + [("a", 1)] * 4
    wps = p0_stores(A)[1]
    def reads(kk, st):
        j, k = kk // 4, kk % 4
        wa = AD + 8 * (j % 3) + k; aa = wa + 4; d = WF + 16 * st
        return [f"ds_read_b64_tr_b16 v[{d}:{d+1}], v{wa} offset:0", f"ds_read_b64_tr_b16 v[{d+2}:{d+3}], v{wa} offset:512",
                f"ds_read_b128 v[{d+8}:{d+11}], v{aa}",
                f"ds_read_b64_tr_b16 v[{d+4}:{d+5}], v{wa} offset:8192", f"ds_read_b64_tr_b16 v[{d+6}:{d+7}], v{wa} offset:8704",
                f"ds_read_b128 v[{d+12}:{d+15}], v{aa} offset:4096"]
    def younger(ops):
        return len(vm) - 1 - max(i for i, o in enumerate(vm) if o in ops)
    stamp(A, "go")
    if C.wj == 0:
        for o in wp_gather(): A(o)
    for r in reads(0, 0): A(r)
    pfo = wd_prefetch_ops(A); npf = len(pfo)
    pf = 0
    fill = []
    K1 = -2.0 * 0.7978845608028654 * 1.4426950408889634
    for kk in range(32):
        j, k = kk // 4, kk % 4
        st = kk & 1
        if k == 3 and kk < 31:
            A(f"s_waitcnt vmcnt({younger([('w', j + 1), ('a', j + 1), ('f', j + 1)])}) lgkmcnt(0)\ns_barrier")
            stamp(A, f"g{j+1}")
            if j == 0 and not C.fbgo:
                set_flag(A, 57, 16)
                A(f"s_sub_u32 s57, s57, {FL_B - FL_W}")
            if j + 1 == C.wj:
                for o in wp_gather(): A(o)
            if j + 1 == C.wj + C.wd: set_flag(A, 57, 16)
        if kk == 4 * C.sj - 1:
            L = A.label("L_g1_ok")
            A(f"v_cmp_ne_u32 vcc, s{S_TAG}, v16\ns_cmp_eq_u64 vcc, 0\ns_cbranch_scc1 {L}")
            poll(A, [(149, "s51")], 16)
            A(f"{L}:")
            A(f"s_lshl_b32 s52, s{W}, 8\ns_add_u32 m0, s52, {LDS_ST}\ns_mov_b64 exec, 0xffff\nbuffer_load_dwordx4 v153, {WSR}, s50 offen sc1 lds\ns_mov_b64 exec, -1")
            vm.append(("f", C.sj + 2))
        if kk == 27:
            A("ds_read_b64 v[150:151], v154\nds_read_b64 v[152:153], v154 offset:1024")
        if kk == 28:
            for b in range(2):
                m, r, K = 150 + 2 * b, 151 + 2 * b, 160 + 8 * b
                fill += [f"v_mov_b32 v{136+4*b+q}, v{m}" for q in range(4)]
                fill += (f"v_mul_f32 v{K+6}, v{r}, v{r}\nv_mul_f32 v{K+2}, {fhex(K1)}, v{r}\nv_rcp_f32 v{K+4}, v{K+6}\nv_mul_f32 v{K}, {fhex(0.044715)}, v{K+6}\n"
                         f"v_mul_f32 v{K}, v{K}, v{K+2}\nv_mov_b32 v{K+3}, v{K+2}\nv_mov_b32 v{K+5}, v{K+4}\nv_mov_b32 v{K+1}, v{K}").split("\n")
        if kk == 24:
            B = Asm(); g2_setup(B); fill += [l for l in B.lines if not l.startswith(";")]
        nxt = reads(kk + 1, st ^ 1) if kk < 31 else []
        ops = []
        full = lambda jj: [(("w", jj), o) for o in g1w_ops(jj)] + [(("a", jj), o) for o in g1a_ops(jj)]
        if j + 2 < 8:
            if k == 0: ops += [(("w", j + 2), o) for o in g1w_ops(j + 2)]
            ops.append((("a", j + 2), g1a_ops(j + 2)[k]))
        if kk == 4 * C.wj: ops.insert(0, (("f", C.wj + C.wd), wps))
        if kk == 4 * C.sj - 5:
            ops.append((("f", C.sj), f"buffer_load_dword v16, v149, {WSR}, s51 offen sc1"))
        d = WF + 16 * st
        for m, (wo, ao) in enumerate(((0, 8), (4, 8), (0, 12), (4, 12))):
            if m < 3 and not (k == 3 and kk < 31):
                A(f"s_waitcnt lgkmcnt({(3, 1, 0)[m] + len(nxt[0:2*m])})")
            c = f"v[{ACC+16*m}:{ACC+16*m+15}]"
            A(f"v_mfma_f32_32x32x16_bf16 {c}, v[{d+wo}:{d+wo+3}], v[{d+ao}:{d+ao+3}], {c if kk else 0}")
            for r in nxt[2*m:2*m+2]: A(r)
            if ops and (m >= 1 or len(ops) > 3):
                tag, o = ops.pop(0); A(o); vm.append(tag)
            if "c" not in C.dbg:
                src = d + 4 * (m & 1) + k
                if m < 2: A(f"v_lshlrev_b32 v{132+m}, 16, v{src}\nv_and_b32 v{134+m}, 0xffff0000, v{src}")
                else: A(f"v_add_f32 v{128+(m&1)}, v{128+(m&1)}, v{132+(m&1)}\nv_add_f32 v{130+(m&1)}, v{130+(m&1)}, v{134+(m&1)}")
            cnt = 0
            while fill and cnt < 2:
                l = fill.pop(0); A(l); cnt += 0.34 if l.startswith("s_") else 1
            if m == 2 and pf < npf and kk >= C.pf_start and (kk - C.pf_start) % C.pf_step == 0:
                A(pfo[pf]); vm.append(("p", pf)); pf += 1
        assert not ops
    assert (pf == npf or C.pf_start > 31) and not fill
    stamp(A, "main")
    for r in (128, 129):
        A(f"v_add_f32 v{r}, v{r}, v{r+2}\nv_cvt_pk_bf16_f32 v16, v{r}, v{r}\nv_lshlrev_b32 v16, 16, v16\nv_sub_f32 v16, v{r}, v16\nv_cvt_pk_bf16_f32 v{r}, v{r}, v16")
    A("ds_write_b32 v156, v128\nds_write_b32 v156, v129 offset:1024")
    A("s_waitcnt lgkmcnt(0)\ns_barrier")
    A(f"ds_read_b128 v[{WF}:{WF+3}], v155\nds_read_b128 v[{WF+4}:{WF+7}], v155 offset:1024")
    A("s_waitcnt lgkmcnt(0)")
    for m in range(4):
        c = f"v[{ACC+16*m}:{ACC+16*m+15}]"
        A(f"v_mfma_f32_32x32x16_bf16 {c}, v[{WF+4*(m&1)}:{WF+4*(m&1)+3}], v[{136+4*(m>>1)}:{139+4*(m>>1)}], {c}")
    for b in range(2):
        for half in range(2):
            n = 2 * b + half
            T = 176 + 16 * (n & 1)
            for l in gelu_block(ACC + 32 * b + 8 * half, ACC + 32 * b + 16 + 8 * half, T, 160 + 8 * b): A(l)
            if n == 2: A(f"s_add_u32 s47, s47, {2*57344}")
            A(f"buffer_store_dwordx4 v[{T+8}:{T+11}], v157, {WSR}, s47 offen offset:{512*half} sc1")
    stamp(A, "epi")
    A("s_waitcnt vmcnt(0)\ns_barrier")
    A(f"s_lshl_b32 s57, s{S_RT}, 5\ns_add_u32 s57, s57, s{S_CT}\ns_lshl_b32 s57, s57, 7\ns_add_u32 s57, s57, {FL_H}")
    set_flag(A, 57, 16)
    stamp(A, "flag2")
    for n in range(4): g2_wdma(A, n)

def phase_cf(A):
    W = S_WAVE
    ZL = 0; WL = 65536; TW = 131072; FR = TW + 8192
    D0 = 64; D1 = 128; PK = 192; WW = 224
    FC, FS, FN = 8, 16, 24
    OC, OS, ON = 32, 40, 48
    A("; ---- CF")
    A(f"s_lshl_b32 s44, s{S_XCD}, 2\ns_add_u32 s44, s44, s{S_SLOT}\ns_sub_u32 s44, s44, 28    ; cg")
    for o in wp_gather(): A(o)
    A("s_waitcnt lgkmcnt(0)")
    A(p0_stores(A)[1])
    A(f"s_lshl_b32 s46, s{W}, 1\nv_lshrrev_b32 v8, 5, v1\nv_add_u32 v8, s46, v8")
    A("v_and_b32 v9, 3, v8\nv_bfe_u32 v10, v8, 3, 1\nv_lshl_or_b32 v9, v10, 2, v9      ; beta")
    A("s_and_b32 s46, s44, 1\ns_lshl_b32 s46, s46, 3\nv_or_b32 v9, s46, v9         ; k1")
    A("s_lshr_b32 s46, s44, 1\ns_lshl_b32 s47, s46, 5\ns_sub_u32 s48, 0x200, s47\ns_cmp_lt_u32 s46, 8")
    A(f"s_cselect_b32 s49, s47, s48\ns_cselect_b32 s50, 1, -1\ns_sub_u32 s48, s48, 16\ns_cmp_lt_u32 s46, 8\ns_cselect_b32 s48, s47, s48")
    A("s_cmp_eq_u32 s46, 0\ns_cselect_b32 s48, 0x100, s48")
    A("v_mov_b32 v11, s49\nv_mad_i32_i24 v10, v9, s50, v11\nv_mov_b32 v11, s48\nv_cmp_eq_u32 vcc, 0, v9\nv_cndmask_b32 v10, v10, v11, vcc   ; bin")
    A(f"v_mov_b32 v11, {fhex(2.0**-19)}\nv_mov_b32 v12, {fhex(2.0**-20)}\nv_cmp_eq_u32 vcc, 0x100, v10\nv_cndmask_b32 v12, v11, v12, vcc\nv_mov_b32 v13, v12")
    A(f"v_cvt_f32_u32 v10, v10\nv_mul_f32 v10, {fhex(1/512)}, v10")
    A(f"v_bfe_u32 v11, v8, 2, 1\nv_cvt_f32_u32 v11, v11\nv_mul_f32 v11, {fhex(0.25)}, v11")
    A("v_and_b32 v14, 31, v1\nv_lshlrev_b32 v15, 3, v14\nv_cvt_f32_u32 v15, v15\nv_fma_f32 v64, v15, v10, v11")
    A(f"v_fmamk_f32 v72, v10, {fhex(256.0)}, v64\nv_fract_f32 v72, v72")
    for b in (64, 72):
        for j in range(1, 8): A(f"v_fmamk_f32 v{b+j}, v10, {fhex(float(j))}, v{b}")
    for j in range(16): A(f"v_cos_f32 v{64+j}, v{64+j}")
    for j in range(0, 16, 2): A(f"v_pk_mul_f32 v[{64+j}:{65+j}], v[{64+j}:{65+j}], v[12:13]")
    for q in range(8): A(f"v_cvt_pk_bf16_f32 v{64+q}, v{64+2*q}, v{65+2*q}")
    A(f"v_lshrrev_b32 v15, 3, v14\nv_and_b32 v14, 7, v14\nv_lshlrev_b32 v14, 4, v14\nv_lshl_add_u32 v14, v8, 7, v14\nv_lshl_add_u32 v14, v15, 16, v14")
    A(f"s_lshl_b32 s46, s44, 11\ns_add_u32 s46, s46, {WS_G}\ns_add_u32 s47, s46, 0x40000")
    A(f"buffer_store_dwordx4 v[64:67], v14, {WSR}, s46 offen sc1\nbuffer_store_dwordx4 v[68:71], v14, {WSR}, s47 offen sc1")
    A("v_and_b32 v3, 31, v1\nv_lshrrev_b32 v4, 5, v1\nv_lshlrev_b32 v4, 2, v4")
    A(f"s_and_b32 s52, s{W}, 3\ns_lshl_b32 s52, s52, 3\ns_lshr_b32 s53, s{W}, 2\ns_mul_i32 s53, s53, 1536")
    A("v_add_u32 v5, s52, v4")
    for b in range(4):
        A(f"v_add_u32 v6, {b}, v5\nv_mad_u32_u24 v{64+b}, v6, v3, s53")
    def frag(dst, matsel):
        A(f"s_and_b32 s54, s{W}, 1\ns_lshl_b32 s54, s54, 4")
        A(f"s_lshr_b32 s55, s{W}, 1\ns_and_b32 s55, s55, 1\ns_mul_i32 s55, s55, 48")
        if matsel == 0: A(f"s_lshr_b32 s56, s{W}, 2\nv_lshl_add_u32 v7, v3, 1, s56")
        for j in range(8):
            A(f"v_add_u32 v6, s54, v4\nv_add_u32 v6, {8*(j>>2) + (j&3)}, v6")
            if matsel == 0: A(f"v_mad_u32_u24 v{dst+j}, v6, v7, s55")
            else: A(f"v_lshl_add_u32 v6, v6, 1, 1\nv_mad_u32_u24 v{dst+j}, v6, v3, s55")
    frag(80, 0); frag(88, 1)
    cos_batch(A, range(64, 68), 2047, 1.0 / 2048)
    cos_batch(A, range(80, 96), 63, 1.0 / 64)
    A(f"s_lshl_b32 s52, s52, 8\ns_lshr_b32 s53, s{W}, 2\ns_lshl_b32 s53, s53, 10\ns_add_u32 s52, s52, s53\ns_add_u32 s52, s52, {TW}")
    A("v_add_u32 v5, s52, v2\nds_write_b128 v5, v[64:67]")
    for q in range(8): A(f"v_cvt_pk_bf16_f32 v{80+q}, v{80+2*q}, v{81+2*q}")
    A(f"s_lshl_b32 s52, s{W}, 10\ns_add_u32 s52, s52, {FR}\nv_add_u32 v5, s52, v2")
    A("ds_write_b128 v5, v[80:83]")
    Ls = A.label("L_cf_skip")
    A(f"s_cmp_ge_u32 s{W}, 4\ns_cbranch_scc1 {Ls}\nds_write_b128 v5, v[84:87] offset:8192\n{Ls}:")
    A(f"v_add_u32 v56, {TW}, v2\nv_add_u32 v57, {FR}, v2")
    A(f"s_lshl_b32 s52, s{W}, 1\nv_and_b32 v6, 15, v1\nv_xor_b32 v6, s52, v6\nv_lshlrev_b32 v6, 4, v6")
    A("v_lshl_add_u32 v6, v3, 10, v6\nv_lshl_add_u32 v58, v4, 6, v6\nv_xor_b32 v59, 16, v58")
    A(f"v_lshrrev_b32 v5, 2, v3\nv_xor_b32 v6, s{W}, v5\nv_lshlrev_b32 v6, 4, v6\nv_lshl_add_u32 v6, v5, 7, v6\nv_and_b32 v5, 3, v3\nv_lshl_add_u32 v6, v5, 2, v6\nv_lshl_add_u32 v6, v4, 11, v6\nv_add_u32 v7, {WL}, v6")
    A("s_waitcnt vmcnt(2) lgkmcnt(0)\ns_barrier")
    set_flag(A, 57, 16)
    A(f"s_sub_u32 s57, s57, {FL_B - FL_W}")
    set_flag(A, 57, 16)
    stamp(A, "fd")
    A(f"v_lshlrev_b32 v6, 7, v3\ns_lshl_b32 s57, s{W}, 12\ns_add_u32 s57, s57, {FL_B}")
    poll(A, [(6, "s57")], 64)
    stamp(A, "rdy1")
    A(f"s_lshl_b32 s48, s44, 16\ns_lshl_b32 s49, s{W}, 13\ns_add_u32 s50, s48, s49")
    def dma64(base, lb):
        return [(f"s_add_u32 s51, s50, {base}\n" if k == 0 else "s_add_u32 s51, s51, 1024\n") +
                f"s_add_u32 m0, s49, {lb + k*1024}\nbuffer_load_dwordx4 v2, {WSR}, s51 offen sc1 lds" for k in range(8)]
    for o in dma64(WS_Z, ZL): A(o)
    P = lambda r: f"v[{r}:{r+1}]"
    def load_frags(Cc, S, mat):
        return [f"ds_read_b128 v[{R+4*m}:{R+4*m+3}], v57 offset:{(mat*4+o+m)*1024}" for m in range(2) for (R, o) in ((Cc, 0), (S, 2))]
    def neg_frags(S, N): return [f"v_xor_b32 v{N+q}, 0x80008000, v{S+q}" for q in range(8)]
    def pk(blk, c, m): return PK + 16 * blk + 8 * c + 4 * m
    def acc(D, c, blk): return D + 32 * c + 16 * blk
    def cstage(D, blk, data_is_A, Cc, Sre, Sim):
        L = []
        for (c, seq) in ((0, ((0, Cc), (1, Sre))), (1, ((1, Cc), (0, Sim)))):
            d = acc(D, c, blk); first = True
            for (cc, K) in seq:
                for m in range(2):
                    dat = f"v[{pk(blk,cc,m)}:{pk(blk,cc,m)+3}]"; con = f"v[{K+4*m}:{K+4*m+3}]"
                    a, b = (dat, con) if data_is_A else (con, dat)
                    L.append(f"v_mfma_f32_32x32x16_bf16 v[{d}:{d+15}], {a}, {b}, {0 if first else f'v[{d}:{d+15}]'}")
                    first = False
        return L
    def pack(D, blk):
        return [f"v_cvt_pk_bf16_f32 v{pk(blk,c,0)+q}, v{acc(D,c,blk)+2*q}, v{acc(D,c,blk)+2*q+1}" for c in range(2) for q in range(8)]
    def tw_load():
        return [f"ds_read_b128 v[{WW+16*comp+4*a}:{WW+16*comp+4*a+3}], v56 offset:{a*2048 + comp*1024}" for a in range(4) for comp in range(2)]
    NEG = lambda i: " neg_lo:[%s] neg_hi:[%s]" % ((",".join("1" if j == i else "0" for j in range(3)),) * 2)
    def radix2_tw(conj, extra=()):
        for i in range(0, 16, 2):
            if i % 4 == 2 and extra: A(extra[i // 4])
            er, ei, o_r, oi = acc(D0,0,0)+i, acc(D0,1,0)+i, acc(D0,0,1)+i, acc(D0,1,1)+i
            ur, ui, vr_, vi = acc(D1,0,0)+i, acc(D1,1,0)+i, acc(D1,0,1)+i, acc(D1,1,1)+i
            c0, s0 = P(WW + i), P(WW + 16 + i)
            A(f"v_pk_add_f32 {P(ur)}, {P(er)}, {P(o_r)}\nv_pk_add_f32 {P(vr_)}, {P(er)}, {P(o_r)} neg_lo:[0,1] neg_hi:[0,1]")
            A(f"v_pk_add_f32 {P(ui)}, {P(ei)}, {P(oi)}\nv_pk_add_f32 {P(vi)}, {P(ei)}, {P(oi)} neg_lo:[0,1] neg_hi:[0,1]")
            A(f"v_pk_mul_f32 v[60:61], {P(ur)}, {s0}\nv_pk_mul_f32 v[62:63], {P(vr_)}, {s0}")
            A(f"v_pk_mul_f32 {P(ur)}, {P(ur)}, {c0}\nv_pk_mul_f32 {P(vr_)}, {P(vr_)}, {c0}")
            n0 = NEG(0) if conj else ""; n2 = "" if conj else NEG(2)
            A(f"v_pk_fma_f32 {P(ur)}, {P(ui)}, {s0}, {P(ur)}{n0}\nv_pk_fma_f32 {P(vr_)}, {P(vi)}, {s0}, {P(vr_)}{n0}")
            A(f"v_pk_fma_f32 {P(ui)}, {P(ui)}, {c0}, v[60:61]{n2}\nv_pk_fma_f32 {P(vi)}, {P(vi)}, {c0}, v[62:63]{n2}")
    def wmul(e):
        L = []
        for i in range(0, 16, 2):
            w = WW + 16 * e + i; t = 60 + (i & 2)
            xr, xi, yr, yi = acc(D0,0,e)+i, acc(D0,1,e)+i, acc(D1,0,e)+i, acc(D1,1,e)+i
            L += [f"v_lshlrev_b32 v{t}, 16, v{w}", f"v_lshlrev_b32 v{t+1}, 16, v{w+1}", f"v_and_b32 v{w}, 0xffff0000, v{w}", f"v_and_b32 v{w+1}, 0xffff0000, v{w+1}",
                  ]
            if C.cfpk and not (C.cfpk == 2 and i < 6):
                L += [f"v_pk_mul_f32 {P(yr)}, {P(xr)}, {P(t)}", f"v_pk_mul_f32 {P(yi)}, {P(xi)}, {P(t)}",
                      f"v_pk_fma_f32 {P(yr)}, {P(xi)}, {P(w)}, {P(yr)}{NEG(0)}", f"v_pk_fma_f32 {P(yi)}, {P(xr)}, {P(w)}, {P(yi)}"]
            else:
                for z in range(2): L += [f"v_mul_f32 v{yr+z}, v{xr+z}, v{t+z}", f"v_mul_f32 v{yi+z}, v{xi+z}, v{t+z}"]
                for z in range(2): L += [f"v_fma_f32 v{yr+z}, -v{xi+z}, v{w+z}, v{yr+z}", f"v_fmac_f32 v{yi+z}, v{xr+z}, v{w+z}"]
        return L
    def E(L):
        for l in L: A(l)
    E(load_frags(FC, FS, 0) + load_frags(OC, OS, 2) + tw_load())
    A("s_waitcnt lgkmcnt(8)")
    E(neg_frags(FS, FN) + neg_frags(OS, ON))
    A(f"s_lshl_b32 s52, s{W}, 16\ns_lshl_b32 s53, s44, 9\ns_add_u32 s52, s52, s53\ns_add_u32 s47, s52, {WS_ZP}")
    A(f"s_lshl_b32 s57, s44, 7\ns_add_u32 s57, s57, {FL_C}")
    A("s_waitcnt vmcnt(0)\ns_barrier")
    stamp(A, "go")
    for mu in range(2):
        for c in range(2):
            for m in range(2):
                A(f"ds_read_b128 v[{pk(mu,c,m)}:{pk(mu,c,m)+3}], v{58+c} offset:{ZL + mu*32768 + m*512}")
    wp = dma64(WS_WP, WL)
    def wcheck():
        L = A.label("L_cf_ok")
        A(f"s_waitcnt vmcnt(0)\nv_cmp_ne_u32 vcc, s{S_TAG}, v5\ns_cmp_eq_u64 vcc, 0\ns_cbranch_scc1 {L}")
        poll(A, [(6, "s53")], 5)
        A(f"s_mov_b32 s{S_RDY}, 1\n{L}:")
    A(f"s_lshl_b32 s53, s{W}, 12\ns_add_u32 s53, s53, {FL_W}\nbuffer_load_dword v5, v6, {WSR}, s53 offen sc1")
    A("s_waitcnt lgkmcnt(4)")
    E(cstage(D0, 0, True, FC, FS, FN))
    A("s_waitcnt lgkmcnt(0)")
    m1 = cstage(D0, 1, True, OC, OS, ON)
    E(m1[:4]); wcheck(); weave(A, m1[4:], wp[:4])
    E(load_frags(OC, OS, 1))
    radix2_tw(False, wp[4:])
    E(pack(D1, 0))
    A("s_waitcnt lgkmcnt(0)")
    weave(A, cstage(D0, 0, False, FC, FS, FN), pack(D1, 1) + neg_frags(OS, ON))
    stamp(A, "main")
    A("s_waitcnt vmcnt(0)\ns_barrier")
    wr = [f"ds_read2st64_b32 {P(WW+16*e+4*a+b)}, v7 offset0:{a*64+b*8+e*4} offset1:{a*64+b*8+e*4+8}" for e in range(2) for a in range(4) for b in (0, 2)]
    E(wr[:8])
    m2 = cstage(D0, 1, False, OC, OS, ON)
    weave(A, m2[:2], wr[8:])
    A("s_waitcnt lgkmcnt(8)")
    weave(A, m2[2:], wmul(0))
    stamp(A, "wrdy")
    E(load_frags(OC, OS, 2))
    E(pack(D1, 0))
    g2_setup(A, 58, 59, 5, 6)
    A("s_waitcnt lgkmcnt(4)")
    weave(A, cstage(D0, 0, True, FC, FN, FS), wmul(1) + pack(D1, 1), 1)
    A("s_waitcnt lgkmcnt(0)")
    E(neg_frags(OS, ON) + tw_load())
    weave(A, cstage(D0, 1, True, OC, ON, OS), g2w_ops(0, 58))
    E(load_frags(OC, OS, 1))
    A("s_waitcnt lgkmcnt(4)")
    radix2_tw(True)
    E(pack(D1, 0))
    A("s_waitcnt lgkmcnt(0)")
    weave(A, cstage(D0, 0, True, FC, FN, FS), pack(D1, 1) + neg_frags(OS, ON))
    stamp(A, "epi")
    adr = (f"s_and_b32 s60, s{W}, 1\ns_lshl_b32 s60, s60, 2\nv_lshrrev_b32 v5, 5, v1\nv_or_b32 v5, s60, v5\n"
           "v_and_b32 v6, 7, v1\nv_xor_b32 v5, v5, v6\nv_lshlrev_b32 v5, 4, v5\nv_lshl_add_u32 v5, v3, 11, v5\n"
           f"s_lshr_b32 s60, s{W}, 1\ns_lshl_b32 s60, s60, 7\ns_add_u32 s60, s60, {WL}\nv_add_u32 v56, s60, v5\nv_xor_b32 v57, 32, v56\n"
           "v_bfe_u32 v5, v1, 2, 1\nv_lshlrev_b32 v5, 2, v5\nv_bfe_u32 v6, v1, 4, 1\nv_lshl_add_u32 v5, v6, 1, v5\nv_bfe_u32 v6, v1, 1, 1\nv_add_u32 v5, v5, v6\n"
           f"v_xor_b32 v5, s{W}, v5\nv_lshlrev_b32 v5, 4, v5\nv_and_b32 v6, 1, v1\nv_lshl_add_u32 v5, v6, 3, v5\n"
           "v_bfe_u32 v6, v1, 3, 1\nv_lshl_add_u32 v5, v6, 7, v5\nv_lshrrev_b32 v6, 5, v1\nv_lshl_add_u32 v5, v6, 9, v5\n"
           f"s_lshl_b32 s60, s{W}, 11\ns_add_u32 s60, s60, {WL}\nv_add_u32 v5, s60, v5\n"
           "v_and_b32 v6, 15, v1\nv_lshlrev_b32 v6, 4, v6\nv_lshrrev_b32 v7, 5, v1\nv_lshl_add_u32 v6, v7, 8, v6\n"
           "v_bfe_u32 v7, v1, 4, 1\nv_lshl_add_u32 v6, v7, 14, v6").split("\n")
    def xw(mu): return [f"ds_write_b128 v{56+m}, v[{pk(mu,c,m)}:{pk(mu,c,m)+3}] offset:{mu*1024 + c*512}" for c in range(2) for m in range(2)]
    def xr_store(mu):
        for n in range(4):
            d = D1 + 16 * mu + 4 * n
            A(f"ds_read_b64_tr_b16 v[{d}:{d+1}], v5 offset:{n*16384 + mu*1024}\nds_read_b64_tr_b16 v[{d+2}:{d+3}], v5 offset:{n*16384 + mu*1024 + 256}")
        for n in range(4):
            d = D1 + 16 * mu + 4 * n
            A(f"s_waitcnt lgkmcnt({6-2*n})")
            A(f"buffer_store_dwordx4 v[{d}:{d+3}], v6, {WSR}, s47 offen sc1")
            A(f"s_add_u32 s47, s47, {0x80000 if n < 3 else (0x8000 - 0x180000) & 0xffffffff}")
    m4 = cstage(D0, 1, True, OC, ON, OS)
    weave(A, m4[:4], adr)
    A("s_barrier")
    weave(A, m4[4:], pack(D0, 0) + xw(0))
    A("s_waitcnt lgkmcnt(0)\ns_barrier")
    stamp(A, "c1")
    xr_store(0)
    E(pack(D0, 1) + xw(1))
    A("s_waitcnt lgkmcnt(0)\ns_barrier")
    xr_store(1)
    stamp(A, "c3")
    A(f"v_mov_b32 v{V_G2W}, v58\nv_mov_b32 v{V_G2X}, v59")
    g2_wdma(A, 1)
    A("s_waitcnt vmcnt(4)\ns_barrier")
    stamp(A, "c5")
    set_flag(A, 57, 16)
    stamp(A, "flag2")
    for n in (2, 3): g2_wdma(A, n)

def phase_g2(A):
    W = S_WAVE
    ACT = 64; WF = 128; ACC = 16; NS = 9
    A("; ---- G2")
    srd(A, S_X, P_X, 2097152)
    srd(A, S_B, P_OUT, 2097152)
    A("v_lshlrev_b32 v3, 4, v1")
    A(f"s_mul_i32 s54, s50, 57344\ns_mul_i32 s46, s49, {28*1024}\ns_add_u32 s54, s54, s46\ns_add_u32 s54, s54, {WS_H}")
    if C.rot2: A("s_lshl_b32 s46, s53, 12\ns_add_u32 s54, s54, s46")
    A(f"s_lshl_b32 s57, s50, 14\ns_lshl_b32 s46, s49, 13\ns_add_u32 s57, s57, s46\ns_add_u32 s57, s57, {WS_ZP}")
    A("v_lshrrev_b32 v6, 5, v1\nv_lshlrev_b32 v6, 4, v6\nv_bfe_u32 v7, v1, 4, 1\nv_lshl_add_u32 v6, v7, 2, v6\nv_bfe_u32 v4, v1, 2, 2\nv_add_u32 v6, v6, v4")
    A("v_lshlrev_b32 v6, 7, v6\nv_lshrrev_b32 v4, 1, v4\nv_lshl_or_b32 v4, v7, 1, v4")
    A("v_lshl_add_u32 v6, v4, 5, v6\nv_and_b32 v4, 3, v1\nv_lshl_add_u32 v6, v4, 3, v6")
    A("s_lshl_b32 s46, s49, 14\nv_add_u32 v164, s46, v6")
    for nb in range(1, 4): A(f"v_xor_b32 v{164+nb}, {32*nb}, v164")
    for nb in range(4): A(f"v_add_u32 v{160+nb}, 0x10000, v{164+nb}")
    A("v_bfe_u32 v4, v1, 4, 2\nv_lshlrev_b32 v4, 5, v4\nv_xor_b32 v173, v3, v4")
    A(f"s_lshl_b32 s58, s45, 16\ns_lshl_b32 s46, s49, 15\ns_add_u32 s58, s58, s46\ns_lshl_b32 s46, s48, 12\ns_add_u32 s58, s58, s46\ns_add_u32 s58, s58, {WS_G}")
    A("v_min_u32 v170, 27, v1\nv_lshlrev_b32 v170, 7, v170\nv_and_b32 v172, 31, v1\nv_lshlrev_b32 v172, 7, v172")
    A(f"s_lshr_b32 s59, s44, 2\ns_lshl_b32 s59, s59, 12\ns_add_u32 s59, s59, {FL_H}\ns_mov_b32 s47, {FL_C}")
    vm = []
    def act_ops(n):
        L = []
        for k in range(4):
            d = ACT + 16 * (n & 3) + 4 * k
            L.append((("a", n), ("s_mov_b32 s54, s57\n" if (n == 7 and k == 0) else "") +
                      f"buffer_load_dwordx4 v[{d}:{d+3}], v3, {WSR}, s54 offen offset:{1024*k} sc1" + ("\ns_add_u32 s54, s54, 4096" if k == 3 else "")))
        return L
    def w_ops(n): return [(("w", n), o) for o in g2w_ops(n)]
    def emit(op):
        A(op[1]); vm.append(op[0])
    L = A.label("L_g2_np")
    A(f"s_cmp_lg_u32 s{W}, 0\ns_cbranch_scc1 {L}\ns_waitcnt vmcnt(0)")
    poll(A, [(170, "s59")], 177)
    A(f"{L}:\ns_barrier")
    stamp(A, "hrdy")
    for op in act_ops(0): emit(op)
    A("s_barrier")
    for op in act_ops(1): emit(op)
    def reads(n, k, st):
        slot = n & 3
        va = 164 if slot < 2 else 160
        off = (slot & 1) * 32768 + k * 4096
        r = []
        for nb in range(4):
            d = WF + 16 * st + 4 * nb
            r.append(f"ds_read_b64_tr_b16 v[{d}:{d+1}], v{va+nb} offset:{off}")
            r.append(f"ds_read_b64_tr_b16 v[{d+2}:{d+3}], v{va+nb} offset:{off+1024}")
        return r
    SCHED = {"A": "a2 a3|w4 a4|w5 a5|w6 a6|w7 a7|w8 a8|||", "B": "a2|w4 a3|w5 a4|w6 a5|w7 a6|w8 a7|a8||",
             "C": "a2|a3 w4l|a4 w4h w5l|a5 w5h w6l|a6 w6h|w7 a7|w8 a8||", "D": "a2|a3 w4|a4 w5l|a5 w5h w6l|a6 w6h w7l|a7 w7h w8l|a8 w8h||",
             "E": "|a2 w4|a3 w5l|a4 w5h w6l|a5 w6h|a6 w7|a7 w8l|a8 w8h|"}[C.sched]
    SCHED = [x.split() for x in SCHED.split("|")]
    NZ = min(n for n in range(NS) if any(t[1] in "78" for t in SCHED[n]))
    for n in range(NS):
        need = [i for i, o in enumerate(vm) if o in (("a", n), ("w", n), ("f", n))]
        A(f"s_waitcnt vmcnt({len(vm) - 1 - max(need)})\ns_barrier")
        stamp(A, f"st{n}")
        for r in reads(n, 0, 0): A(r)
        if n == NZ:
            L = A.label("L_g2_ok")
            A(f"v_cmp_ne_u32 vcc, s{S_TAG}, v176\ns_cmp_eq_u64 vcc, 0\ns_cbranch_scc1 {L}")
            poll(A, [(172, "s47")], 176)
            A(f"s_mov_b32 s{S_RDY}, 1\n{L}:")
        ops = []
        if n == NZ - 1: ops.append((("f", NZ), f"buffer_load_dword v176, v172, {WSR}, s47 offen sc1"))
        for tok in SCHED[n]:
            o = w_ops(int(tok[1])) if tok[0] == "w" else act_ops(int(tok[1]))
            if len(tok) == 3: o = o[:2] if tok[2] == "l" else o[2:]
            ops += o
        if n == C.xst:
            ops.append((("x", 0), f"buffer_load_dwordx4 v[240:243], v{V_G2X}, {XR}, s56 offen {C.nt_x2}"))
        slots = [[] for _ in range(16)]
        for i, op in enumerate(ops): slots[(i * 16) // max(len(ops), 8) if len(ops) > 8 else 2 * i].append(op)
        for k in range(4):
            st = k & 1
            nxt = reads(n, k + 1, st ^ 1) if k < 3 else []
            for nb in range(4):
                if nb % 2 == 0: A(f"s_waitcnt lgkmcnt({4 - 2*nb + len(nxt[0:2*nb])})")
                d = WF + 16 * st + 4 * nb; a = ACT + 16 * (n & 3) + 4 * k
                cb = ACC + (16 if n >= 7 else 0) + 4 * nb
                c = f"v[{cb}:{cb+3}]"
                A(f"v_mfma_f32_16x16x32_bf16 {c}, v[{d}:{d+3}], v[{a}:{a+3}], {0 if (n in (0, 7) and k == 0) else c}")
                for r in nxt[2*nb:2*nb+2]: A(r)
                for op in slots[4 * k + nb]: emit(op)
    stamp(A, "g2m")
    EX = 32768
    A(f"s_lshl_b32 s57, s{W}, 12\ns_add_u32 s57, s57, {EX}\nv_add_u32 v6, s57, v3\nv_xor_b32 v7, 0x4000, v6")
    L1 = A.label("L_g2_k1"); L2 = A.label("L_g2_j")
    A(f"s_cmp_eq_u32 s49, 1\ns_cbranch_scc1 {L1}")
    for (lab, keep) in ((None, 0), (L1, 8)):
        if lab: A(f"{lab}:")
        send = 8 - keep
        for q, r in enumerate((ACC + send, ACC + send + 4, ACC + 16 + send, ACC + 20 + send)):
            A(f"ds_write_b128 v6, v[{r}:{r+3}] offset:{1024*q}")
        A("s_waitcnt lgkmcnt(0)\ns_barrier")
        for q in range(4): A(f"ds_read_b128 v[{48+4*q}:{51+4*q}], v7 offset:{1024*q}")
        A("s_waitcnt lgkmcnt(2)")
        for i in range(0, 8, 2): A(f"v_pk_add_f32 v[{48+i}:{49+i}], v[{48+i}:{49+i}], v[{ACC+keep+i}:{ACC+keep+i+1}]")
        A("s_waitcnt lgkmcnt(0)")
        for i in range(0, 8, 2): A(f"v_pk_add_f32 v[{56+i}:{57+i}], v[{56+i}:{57+i}], v[{ACC+16+keep+i}:{ACC+16+keep+i+1}]")
        if not lab: A(f"s_branch {L2}")
    A(f"{L2}:")
    P = lambda r: f"v[{r}:{r+1}]"
    for i in range(8): A(f"v_mul_f32 v{64+i}, {fhex(-1.4426950408889634)}, v{48+i}")
    for i in range(8): A(f"v_exp_f32 v{64+i}, v{64+i}")
    A("v_and_b32 v4, 15, v1\nv_mul_u32_u24 v4, 144, v4\nv_lshrrev_b32 v5, 4, v1\nv_lshl_add_u32 v4, v5, 3, v4")
    A(f"s_mul_i32 s57, s48, {16*144}\ns_lshl_b32 s46, s49, 6\ns_add_u32 s57, s57, s46\ns_add_u32 s57, s57, 69632\nv_add_u32 v4, s57, v4")
    for i in range(0, 8, 2): A(f"v_pk_mul_f32 {P(56+i)}, {P(56+i)}, {P(48+i)}")
    for i in range(8): A(f"v_add_f32 v{64+i}, 1.0, v{64+i}")
    for i in range(8): A(f"v_rcp_f32 v{64+i}, v{64+i}")
    A(f"v_lshrrev_b32 v5, 3, v1\nv_mul_u32_u24 v5, 144, v5\nv_and_b32 v6, 7, v1\nv_lshl_add_u32 v5, v6, 4, v5\ns_mul_i32 s57, s{W}, {8*144}\ns_add_u32 s57, s57, 69632\nv_add_u32 v5, s57, v5")
    for i in range(0, 8, 2): A(f"v_pk_mul_f32 {P(56+i)}, {P(56+i)}, {P(64+i)}")
    for q in range(4): A(f"v_cvt_pk_bf16_f32 v{8+q}, v{56+2*q}, v{57+2*q}")
    A("ds_write_b64 v4, v[8:9]\nds_write_b64 v4, v[10:11] offset:32")
    A("s_waitcnt vmcnt(0)")
    for q in range(4): A(f"v_lshlrev_b32 v{72+2*q}, 16, v{240+q}\nv_and_b32 v{73+2*q}, 0xffff0000, v{240+q}")
    A("s_waitcnt lgkmcnt(0)\ns_barrier\nds_read_b128 v[8:11], v5\ns_waitcnt lgkmcnt(0)")
    for q in range(4): A(f"v_lshlrev_b32 v{64+2*q}, 16, v{8+q}\nv_and_b32 v{65+2*q}, 0xffff0000, v{8+q}")
    for i in range(0, 8, 2): A(f"v_pk_add_f32 {P(72+i)}, {P(72+i)}, {P(64+i)}")
    for q in range(4): A(f"v_cvt_pk_bf16_f32 v{8+q}, v{72+2*q}, v{73+2*q}")
    A(f"buffer_store_dwordx4 v[8:11], v{V_G2X}, {BR}, s56 offen {C.outf}")
    L = A.label("L_ep")
    A(f"s_cmp_lg_u32 s{S_WG}, 0\ns_cbranch_scc1 {L}\ns_mov_b32 s57, 0")
    set_flag(A, 57, 16)
    A(f"{L}:")

HDR = open("recurrent_scan__spectral_gfnet__geglu_ffn__prompt.s.ref").read().split("; Override")[0]
def gen(**kw):
    for k, v in kw.items(): setattr(C, k, v)
    A = Asm()
    A(HDR.rstrip())
    A("; @launch grid=(256,1,1) block=(512,1,1) lds=163840")
    A('.amdgcn_target "amdgcn-amd-amdhsa--gfx950"\n.text')
    kernel_begin(A, KN)
    prologue(A)
    phase_p0(A)
    phase_g1(A)
    A("s_branch L_g2\nL_cf:")
    phase_cf(A)
    A("L_g2:")
    phase_g2(A)
    if C.delay:
        A(f"s_memtime s[70:71]\ns_waitcnt lgkmcnt(0)\nL_dly:\ns_memtime s[72:73]\ns_waitcnt lgkmcnt(0)\ns_sub_u32 s72, s72, s70\ns_cmp_lt_u32 s72, {C.delay}\ns_cbranch_scc1 L_dly")
    if C.echo:
        A(f"s_memrealtime s[72:73]\ns_waitcnt lgkmcnt(0)")
        if C.echo == "end": A("s_mov_b32 s84, s72")
        A(f"s_sub_u32 s84, s84, s82\ns_mul_i32 s84, s84, {C.echo_k}")
        A(f"L_echo:\ns_memrealtime s[74:75]\ns_waitcnt lgkmcnt(0)\ns_sub_u32 s74, s74, s72\ns_cmp_lt_u32 s74, s84\ns_cbranch_scc1 L_echo")
    if C.dbgclk:
        A(f"s_cmp_lg_u32 s{S_WG}, 0\ns_cbranch_scc1 L_done\ns_cmp_lg_u32 s{S_WAVE}, 0\ns_cbranch_scc1 L_done")
        A("s_memtime s[74:75]\ns_memrealtime s[76:77]\ns_waitcnt lgkmcnt(0)\ns_sub_u32 s74, s74, s80\ns_sub_u32 s76, s76, s82")
        srd(A, S_A, P_DBG, 256)
        A(f"v_mov_b32 v2, 0\nv_mov_b32 v4, s74\nv_mov_b32 v5, s76\nbuffer_store_dwordx2 v[4:5], v2, {AR}, 0 offen")
    diag_end(A)
    A("L_done:\ns_endpgm")
    A('.section .rodata,"a"\n.p2align 6')
    A(descriptor(KN, 256, 102, 256))
    return hazard.fix(A.text(), verbose=False)
if __name__ == "__main__":
    kw = dict(a.split("=") for a in sys.argv[2:])
    kw = {k: (int(v) if v.isdigit() and k not in ("perm", "g2map") else v.replace("_", "")) for k, v in kw.items()}
    open(sys.argv[1], "w").write(gen(**kw))
```

```python
import struct, sys
from asmgen import *
import hazard

WS_FL = 0x0
FL_W = 0x1000
FL_B = 0x9000
FL_H = 0x11000
FL_C = 0x19000
WS_ST = 0x0100000
WS_Z  = 0x0300000
WS_WP = 0x0500000
WS_G  = 0x0700000
WS_ZP = 0x0800000
WS_H  = 0x0A00000
WS_DIAG = 0x1200000
WS_SIZE = 0x1400000
TAGK = 0x3C6EF35F

def fhex(x): return "0x%08x" % struct.unpack("<I", struct.pack("<f", x))[0]
S_WS, S_X, S_A, S_B = 4, 8, 12, 16
S_WAVE, S_WG, S_TAG, S_SLOT = 20, 21, 22, 23
S_PTR = 24
P_X, P_WR, P_WI, P_BX, P_WG, P_WU, P_WD, P_OUT, P_DBG, P_WS = [S_PTR + 2 * i for i in range(10)]
S_RT, S_CT, S_WOFF, S_RDY, S_XCD, S_SPIN = 64, 65, 66, 67, 68, 69
S_WLDS = 3
WSR = f"s[{S_WS}:{S_WS+3}]"; XR = f"s[{S_X}:{S_X+3}]"; AR = f"s[{S_A}:{S_A+3}]"; BR = f"s[{S_B}:{S_B+3}]"
S_C = 96; CR = f"s[{S_C}:{S_C+3}]"
LDS_P0 = 98304
SLOT = 49152
LDS_CS = 147456
LDS_SINK = 152576
LDS_ST = 160768

class Cfg:
    diag = False
    g1map = "col"
    g2map = "84"
    nt_x = ""; nt_x2 = ""; nt_w = "nt"; nt_g1w = "nt"
    E1, E2 = 2, 3
    D = 8
    xst = 6
    nsl = 5
    ytail = 0
    csm = "m"
    rt = 0
    fbgo = 1
    a0pos = 1
    g1pos = 1
    halfpf = 1
    cfpk = 0
    wmax = 0
    sched = "R"
    sj = 4
    wj = 0
    wd = 2
    outf = "nt"
    cfstage = 0
    cfw0 = 1
    zfirst = 1
    fbj = 0
    a0early = 0
    bulk = 1
    cpf = 1
    rotc = 0
    rotr = 1
    perm = "01452367"
    j0early = 1
    delay = 0
    echo = ""
    echo_k = 1
    dbgclk = 0
    la2 = 3
    dbg = ""
    sc_act = "sc1"
    rot2 = 0
    nepi = 0
    pf_start, pf_step = 24, 2
    stamps = "x,p0end,go,main,epi,flag2,hrdy,st0,st8"
C = Cfg()

def stamp(A, name):
    if C.echo == name: A("s_memrealtime s[84:85]")
    if not C.diag: return
    names = ["entry"] + C.stamps.split(",") + ["end"]
    assert len(names) <= 11
    if name in names:
        n = names.index(name)
        A(f"{'s_memrealtime' if C.rt else 's_memtime'} s[{74+2*n}:{75+2*n}]")
def diag_end(A):
    if not C.diag: return
    A("s_waitcnt vmcnt(0)")
    stamp(A, "end")
    A("s_memrealtime s[72:73]\ns_waitcnt lgkmcnt(0)")
    A(f"s_lshl_b32 s3, s{S_WG}, 10\ns_lshl_b32 s44, s{S_WAVE}, 7\ns_add_u32 s3, s3, s44\ns_add_u32 s3, s3, {WS_DIAG}")
    A("v_mov_b32 v2, 0")
    for i, sreg in enumerate([70, 72, S_RDY] + [74 + 2*k for k in range(11)]):
        A(f"v_mov_b32 v3, s{sreg}\nbuffer_store_dword v3, v2, {WSR}, s3 offen offset:{4*i}")

def srd(A, s, ptr, nbytes):
    A(f"s_mov_b32 s{s}, s{ptr}\ns_and_b32 s{s+1}, s{ptr+1}, 0xffff\ns_mov_b32 s{s+2}, {nbytes}\ns_mov_b32 s{s+3}, 0x00020000")
def cos_batch(A, regs, mask, scale):
    for r in regs: A(f"v_and_b32 v{r}, {mask}, v{r}")
    for r in regs: A(f"v_cvt_f32_u32 v{r}, v{r}")
    for r in regs: A(f"v_mul_f32 v{r}, {fhex(scale)}, v{r}")
    for r in regs: A(f"v_cos_f32 v{r}, v{r}")
def wave_sum(A, v, sdst):
    for mod in ("row_shr:1 row_mask:0xf", "row_shr:2 row_mask:0xf", "row_shr:4 row_mask:0xf", "row_shr:8 row_mask:0xf",
                "row_bcast:15 row_mask:0xa", "row_bcast:31 row_mask:0xc"):
        A(f"v_add_f32_dpp v{v}, v{v}, v{v} {mod} bank_mask:0xf")
    A(f"v_readlane_b32 s{sdst}, v{v}, 63")
def set_flag(A, soff_expr_sreg, vt=3, anywave=False):
    L = A.label("L_fl")
    if not anywave: A(f"s_cmp_lg_u32 s{S_WAVE}, 0\ns_cbranch_scc1 {L}")
    A(f"v_mov_b32 v{vt}, s{S_TAG}\nv_lshlrev_b32 v{vt+1}, 2, v1\ns_mov_b32 exec_hi, 0")
    A(f"buffer_store_dword v{vt}, v{vt+1}, {WSR}, s{soff_expr_sreg} offen sc1")
    A("s_mov_b64 exec, -1")
    A(f"{L}:")
def poll(A, groups, vt, once=False):
    L = A.label("L_poll"); Lx = A.label("L_pollx")
    if not once: A(f"s_mov_b32 s{S_SPIN}, 0\n{L}:")
    for n, (va, so) in enumerate(groups):
        A(f"buffer_load_dword v{vt+n}, v{va}, {WSR}, {so} offen sc1")
    A("s_waitcnt vmcnt(0)")
    for n in range(1, len(groups)):
        A(f"v_xor_b32 v{vt+n}, s{S_TAG}, v{vt+n}")
    A(f"v_xor_b32 v{vt}, s{S_TAG}, v{vt}")
    for n in range(1, len(groups)):
        A(f"v_or_b32 v{vt}, v{vt}, v{vt+n}")
    A(f"v_cmp_ne_u32 vcc, 0, v{vt}")
    if once:
        A(f"s_cmp_eq_u64 vcc, 0\ns_cselect_b32 s{S_RDY}, 1, 0")
    else:
        A(f"s_cmp_eq_u64 vcc, 0\ns_cbranch_scc1 {Lx}")
        A(f"s_add_u32 s{S_SPIN}, s{S_SPIN}, 1\ns_cmp_lt_u32 s{S_SPIN}, 0x200000\ns_cbranch_scc1 {L}")
        A(f"{Lx}:")

V_WDMA, V_ADE, V_ADO = 146, 147, 148
S_ST0 = 2
S_AOFF = 58
def g1_stage(A, j, sreg):
    A(f"s_add_u32 s{sreg}, s{S_ST0}, {int(C.perm[j])}\ns_and_b32 s{sreg}, s{sreg}, 7")
def g1w_ops(j):
    sl = (j % 3) * SLOT
    if "W" in C.dbg: j = 0
    return [f"s_add_u32 s60, s{S_ST0}, {int(C.perm[j])}\ns_and_b32 s60, s60, 7\ns_mul_i32 s60, s60, {64*3584}\ns_add_u32 s60, s60, s{S_WOFF}\n"
            f"s_add_u32 m0, s{S_WLDS}, {sl}\nbuffer_load_dwordx4 v{V_WDMA}, {AR}, s60 offen {C.nt_g1w} lds",
            f"s_add_u32 m0, s{S_WLDS}, {sl + 8192}\nbuffer_load_dwordx4 v{V_WDMA}, {BR}, s60 offen {C.nt_g1w} lds"]
def g1a_ops(j):
    sl = (j % 3) * SLOT + 16384
    if "A" in C.dbg: j = 0
    L = []
    for i in range(4):
        pre = (f"s_add_u32 s61, s{S_ST0}, {int(C.perm[j])}\ns_and_b32 s61, s61, 7\ns_lshl_b32 s61, s61, 7\ns_add_u32 s61, s61, s{S_AOFF}\ns_lshl_b32 s59, s{S_WLDS}, 2\n" if i == 0
               else f"s_add_u32 s61, s61, {(4 if i & 1 else 12) * 1024}\n")
        L.append(pre + f"s_add_u32 m0, s59, {sl + i*1024}\nbuffer_load_dwordx4 v{V_ADO if i & 1 else V_ADE}, {XR}, s61 offen lds")
    return L

def prologue(A):
    if C.dbgclk or C.echo: A("s_memtime s[80:81]\ns_memrealtime s[82:83]\ns_memrealtime s[84:85]")
    if C.diag:
        for k in range(11): A(f"s_mov_b32 s{74+2*k}, 0")
        A("s_memrealtime s[70:71]"); stamp(A, "entry")
    A("s_cmp_ge_u32 s2, 256\ns_cbranch_scc1 L_done")
    A(f"s_load_dwordx16 s[{S_PTR}:{S_PTR+15}], s[0:1], 0")
    A(f"s_load_dwordx4 s[{S_PTR+16}:{S_PTR+19}], s[0:1], 64")
    A("v_lshrrev_b32 v2, 6, v0\nv_and_b32 v1, 63, v0")
    A(f"v_readfirstlane_b32 s{S_WAVE}, v2")
    A(f"s_mov_b32 s{S_WG}, s2\ns_and_b32 s{S_XCD}, s2, 7\ns_lshr_b32 s{S_SLOT}, s2, 3\ns_mov_b32 s{S_RDY}, 0")
    code_prefetch(A, KN, "L_done", 112)
    if C.g1map == "col":
        A(f"s_mul_i32 s44, s{S_XCD}, 28\ns_add_u32 s44, s44, s{S_SLOT}\ns_and_b32 s{S_RT}, s44, 7\ns_lshr_b32 s{S_CT}, s44, 3")
    else:
        A(f"s_and_b32 s44, s{S_XCD}, 1\ns_lshl_b32 s44, s44, 2\ns_and_b32 s45, s{S_SLOT}, 3\ns_add_u32 s{S_RT}, s44, s45")
        A(f"s_lshr_b32 s44, s{S_XCD}, 1\ns_mul_i32 s44, s44, 7\ns_lshr_b32 s45, s{S_SLOT}, 2\ns_add_u32 s{S_CT}, s44, s45")
    A(f"s_mul_i32 s44, s{S_CT}, {C.rotc}\ns_mul_i32 s45, s{S_RT}, {C.rotr}\ns_add_u32 s44, s44, s45\ns_and_b32 s{S_ST0}, s44, 7")
    W = S_WAVE
    A(f"s_lshr_b32 s44, s{S_WG}, 2          ; r2")
    A(f"s_and_b32 s45, s{S_WG}, 3           ; mh")
    A(f"s_lshr_b32 s46, s45, 1\ns_lshl_b32 s46, s46, 4")
    A(f"s_and_b32 s47, s45, 1\ns_lshl_b32 s47, s47, 2\ns_add_u32 s46, s46, s47")
    A(f"s_lshr_b32 s47, s{W}, 2\ns_lshl_b32 s47, s47, 3\ns_add_u32 s46, s46, s47")
    A(f"s_and_b32 s47, s{W}, 3\ns_add_u32 s46, s46, s47     ; r1")
    A("s_lshl_b32 s46, s46, 6\ns_add_u32 s46, s46, s44\ns_lshl_b32 s56, s46, 10")
    A("v_lshlrev_b32 v2, 4, v1")
    A("s_waitcnt lgkmcnt(0)")
    srd(A, S_X, P_X, 2097152)
    A(f"buffer_load_dwordx4 v[4:7], v2, {XR}, s56 offen {C.nt_x}")
    A(f"s_load_dword s{S_TAG}, s[{P_WS}:{P_WS+1}], 0")
    srd(A, S_WS, P_WS, WS_SIZE)

def code_prefetch(A, start, end, vt):
    Lh = A.label("L_cph")
    A(f"s_getpc_b64 s[60:61]\n{Lh}:")
    A(f"s_mul_i32 s59, s{S_SLOT}, 1280\ns_mul_i32 s57, s{S_WAVE}, 160\ns_add_u32 s59, s59, s57\nv_and_b32 v{vt}, 15, v1\nv_lshl_add_u32 v{vt}, v{vt}, 4, s59\nv_min_u32 v{vt}, {end} - {start} - 16, v{vt}")
    A(f"s_add_u32 s60, s60, {start} - {Lh}\ns_addc_u32 s61, s61, {'-1' if start == KN else '0'}")
    A(f"v_mov_b32 v{vt+1}, s61\nv_add_co_u32 v{vt}, vcc, s60, v{vt}\nv_addc_co_u32 v{vt+1}, vcc, 0, v{vt+1}, vcc")
    A(f"global_load_dwordx4 v[{vt+2}:{vt+5}], v[{vt}:{vt+1}], off")

def gemm_only(A, fn):
    L = A.label("L_go")
    A(f"s_cmp_ge_u32 s{S_SLOT}, 28\ns_cbranch_scc1 {L}")
    fn()
    A(f"{L}:")
def wait_role(A, n_gemm, n_cf):
    L = A.label("L_wr"); L2 = A.label("L_wr")
    A(f"s_cmp_ge_u32 s{S_SLOT}, 28\ns_cbranch_scc1 {L}\ns_waitcnt vmcnt({n_gemm})\ns_branch {L2}\n{L}:\ns_waitcnt vmcnt({n_cf})\n{L2}:")

def phase_p0(A):
    W = S_WAVE
    ZL = 2 * SLOT; XNL = 2 * SLOT + 16384; CL = XNL + 8192; WL = 151552; STL = WL + 8320
    B1RE, B1IM, A2RE, A2IM, S2RE, S2IM, TWC, TWS = 64, 68, 72, 76, 80, 84, 88, 92
    T = 32
    srd(A, S_A, P_WG, 512 * 3584)
    srd(A, S_B, P_WU, 512 * 3584)
    A("v_lshrrev_b32 v8, 3, v1")
    A("v_bfe_u32 v9, v1, 4, 1\nv_lshlrev_b32 v9, 2, v9\nv_and_b32 v10, 7, v1\nv_xor_b32 v9, v9, v10")
    A(f"v_mul_u32_u24 v11, 3584, v8\nv_lshl_add_u32 v{V_WDMA}, v9, 4, v11")
    A(f"s_mul_i32 s47, s{W}, {8*3584}\ns_lshl_b32 s52, s{S_CT}, 7\ns_add_u32 s{S_WOFF}, s47, s52\ns_lshl_b32 s{S_WLDS}, s{W}, 10")
    def w_flat():
        A(f"s_cmp_lt_u32 s{W}, 4\ns_cselect_b32 s{S_C}, s{P_WR}, s{P_WI}\ns_cselect_b32 s{S_C+1}, s{P_WR+1}, s{P_WI+1}")
        A(f"s_and_b32 s{S_C+1}, s{S_C+1}, 0xffff\ns_mov_b32 s{S_C+2}, {2048*514}\ns_mov_b32 s{S_C+3}, 0x00020000")
        A(f"s_mul_i32 s53, s{S_WG}, 4112\ns_and_b32 s54, s{W}, 3\ns_lshl_b32 s54, s54, 10\ns_add_u32 s55, s53, s54")
        A(f"s_lshr_b32 s61, s{W}, 2\ns_mul_i32 s61, s61, 4160\ns_add_u32 s61, s61, {WL}\ns_add_u32 m0, s61, s54")
        A(f"buffer_load_dwordx4 v2, {CR}, s55 offen {C.nt_w} lds")
        A("s_add_u32 m0, s61, 4096\ns_add_u32 s53, s53, 4096\ns_mov_b64 exec, 1")
        A(f"buffer_load_dwordx4 v2, {CR}, s53 offen {C.nt_w} lds")
        A("s_mov_b64 exec, -1")
    def bulk():
        L = A.label("L_bk"); L2 = A.label("L_bk")
        A(f"s_cmp_ge_u32 s{S_SLOT}, 28\ns_cbranch_scc1 {L}")
        for o in g1w_ops(0): A(o)
        A(f"{L}:")
        w_flat()
    if C.bulk == 0: bulk()
    A("v_lshrrev_b32 v9, 2, v8\nv_lshlrev_b32 v9, 3, v9\nv_and_b32 v8, 3, v8\nv_add_u32 v8, v8, v9\nv_lshlrev_b32 v8, 10, v8")
    A(f"v_lshrrev_b32 v9, 4, v1\nv_xor_b32 v9, v9, v10\nv_lshl_add_u32 v{V_ADE}, v9, 4, v8\nv_xor_b32 v{V_ADO}, 64, v{V_ADE}")
    A(f"s_lshl_b32 s47, s{S_RT}, 3\ns_add_u32 s47, s47, s{W}\ns_lshl_b32 s{S_AOFF}, s47, 15")
    if C.a0early == 1: gemm_only(A, lambda: [A(o) for o in g1a_ops(0)])
    M0 = "s[62:63]"
    A("v_and_b32 v30, 15, v1\nv_lshrrev_b32 v29, 4, v1")
    A(f"v_cmp_eq_u32 {M0}, 0, v30\nv_cmp_gt_u32 vcc, 8, v30")
    A("v_cvt_f32_u32 v26, v30\nv_cvt_f32_u32 v27, v29\nv_mul_f32 v27, 4.0, v27      ; k, 4g")
    Lc = A.label("L_c"); cases = [A.label("L_c") for _ in range(7)]
    A("s_mov_b32 s47, 0")
    for n in range(1, 7):
        A(f"s_cmp_eq_u32 s{W}, {n}\ns_cbranch_scc1 {cases[n]}")
    A(f"; wave 0 (and 7): B1RE\nv_mul_f32 v20, {fhex(1/32)}, v26\nv_mov_b32 v22, 0\ns_mov_b32 s47, {fhex(16.0)}\nv_mov_b32 v21, v20\nv_mov_b32 v23, 0\ns_branch {Lc}")
    A(f"{cases[1]}:\nv_mul_f32 v20, {fhex(1/32)}, v26\nv_mov_b32 v22, {fhex(0.25)}\nv_cndmask_b32 v20, v20, 0.5, {M0}\nv_cndmask_b32 v22, v22, 0, {M0}")
    A(f"s_mov_b32 s47, {fhex(16.0)}\nv_mov_b32 v21, v20\nv_mov_b32 v23, v22\ns_branch {Lc}")
    A(f"{cases[2]}:\nv_mul_f32 v20, {fhex(1/16)}, v26\nv_mov_b32 v22, 0\nv_mov_b32 v23, {fhex(0.75)}\nv_mov_b32 v21, v20\ns_branch {Lc}")
    A(f"{cases[3]}:\nv_mul_f32 v20, {fhex(1/16)}, v26\nv_cndmask_b32 v23, 0.5, 0, vcc\nv_add_f32 v22, {fhex(0.25)}, v23\nv_mov_b32 v21, v20\ns_branch {Lc}")
    for n in (4, 5):
        A(f"{cases[n]}:\nv_mul_f32 v20, {fhex(1/16)}, v26\nv_cndmask_b32 v21, v20, 0.5, {M0}\nv_sub_f32 v24, {fhex(31/32)}, v20")
        A("v_cndmask_b32 v20, 0, v21, vcc\nv_cndmask_b32 v21, v24, 0, vcc")
        if n == 4: A(f"v_mov_b32 v24, {fhex(0.25)}\nv_cndmask_b32 v22, v24, 0, vcc\nv_cndmask_b32 v23, 0, v24, vcc")
        else: A(f"v_mov_b32 v22, {fhex(0.25)}\nv_mov_b32 v23, v22")
        A(f"s_branch {Lc}")
    A(f"{cases[6]}:\nv_mul_f32 v20, {fhex(1/512)}, v26\nv_mov_b32 v22, 0\nv_mov_b32 v23, {fhex(0.75)}\nv_mov_b32 v21, v20")
    A(f"{Lc}:")
    A("v_fma_f32 v22, v27, v20, v22\nv_add_f32 v24, s47, v27\nv_fma_f32 v23, v24, v21, v23")
    for (b, v, o) in ((22, 20, T), (23, 21, T + 4)):
        A(f"v_cos_f32 v{o}, v{b}\nv_add_f32 v{o+1}, v{b}, v{v}\nv_fma_f32 v{o+2}, v{v}, 2.0, v{b}\nv_fmamk_f32 v{o+3}, v{v}, {fhex(3.0)}, v{b}")
        for q in (1, 2, 3): A(f"v_cos_f32 v{o+q}, v{o+q}")
    A(f"s_add_u32 s47, s{S_WLDS}, {CL}\nv_add_u32 v24, s47, v2")
    L6 = A.label("L_c6"); L7 = A.label("L_c7")
    A(f"s_cmp_eq_u32 s{W}, 6\ns_cbranch_scc1 {L6}\ns_cmp_eq_u32 s{W}, 7\ns_cbranch_scc1 {L7}")
    for q in range(4): A(f"v_cvt_pk_bf16_f32 v{T+q}, v{T+2*q}, v{T+2*q+1}")
    A(f"ds_write_b128 v24, v[{T}:{T+3}]\ns_branch {L7}")
    A(f"{L6}:\nds_write_b128 v24, v[{T}:{T+3}]\nds_write_b128 v24, v[{T+4}:{T+7}] offset:1024\n{L7}:")
    A(f"s_add_u32 s61, s{S_WLDS}, {XNL}")
    A("v_add_u32 v96, s61, v2\nv_lshl_add_u32 v97, v1, 3, s61")
    A(f"v_add_u32 v108, {CL}, v2")
    A(f"v_lshlrev_b32 v100, 11, v29\nv_lshl_add_u32 v100, v30, 5, v100\ns_lshl_b32 s61, s{W}, 1\ns_add_u32 s61, s61, {ZL}")
    A("v_add_u32 v100, s61, v100")
    A(f"s_waitcnt lgkmcnt(0)\ns_barrier\ns_add_u32 s{S_TAG}, s{S_TAG}, {TAGK}")
    for n in range(8): A(f"ds_read_b128 v[{64+4*n}:{67+4*n}], v108 offset:{1024*n}")
    if C.a0early == 2: gemm_only(A, lambda: [A(o) for o in g1a_ops(0)])
    if C.bulk == 1: bulk()
    A(f"v_lshlrev_b32 v101, 4, v0\nv_add_u32 v101, {ZL}, v101")
    A("s_and_b32 s61, s44, 15\nv_and_b32 v103, 15, v0\nv_xor_b32 v102, s61, v103\nv_lshlrev_b32 v102, 4, v102")
    A("v_lshrrev_b32 v12, 4, v0             ; cg")
    A("v_lshl_add_u32 v102, v12, 16, v102")
    A(f"s_lshl_b32 s46, s{S_WG}, 8\ns_add_u32 s45, s46, {WS_Z}\ns_add_u32 s46, s46, {WS_WP}")
    A("v_bfe_u32 v13, v0, 4, 4\nv_and_b32 v12, 15, v0\nv_lshlrev_b32 v14, 5, v13\nv_add_u32 v20, v14, v12\nv_sub_u32 v15, 0x200, v14")
    A("v_cmp_eq_u32 vcc, 0, v12\nv_cndmask_b32 v21, v12, 16, vcc\nv_sub_u32 v15, v15, v21\nv_cmp_gt_u32 vcc, 8, v13\nv_cndmask_b32 v20, v15, v20, vcc")
    A("v_and_b32 v12, 255, v0\nv_mov_b32 v15, 0x100\nv_cmp_eq_u32 vcc, 0, v12\nv_cndmask_b32 v20, v20, v15, vcc      ; bin")
    A(f"s_lshr_b32 s61, s{W}, 2\ns_mul_i32 s60, s61, {4*514}\ns_add_u32 s60, s60, {WL}\nv_lshl_add_u32 v127, v20, 1, s60")
    A(f"s_lshl_b32 s60, s{S_WG}, 1\ns_add_u32 s60, s60, s61\ns_and_b32 s60, s60, 7\nv_and_b32 v13, 7, v0\nv_xor_b32 v13, s60, v13\nv_lshlrev_b32 v13, 4, v13")
    A("v_lshrrev_b32 v12, 3, v12\nv_lshl_add_u32 v103, v12, 16, v13\ns_lshl_b32 s61, s61, 7\ns_add_u32 s46, s46, s61")
    A(f"s_lshl_b32 s57, s{S_WG}, 7\ns_add_u32 s57, s57, {FL_B}")
    A(f"v_lshlrev_b32 v126, 3, v1\nv_and_b32 v13, 63, v126\nv_add_u32 v99, {STL}, v13\ns_lshl_b32 s55, s{S_WG}, 7\ns_add_u32 s55, s55, {WS_ST}")
    A("v_mov_b32 v3, v102")
    if C.g1pos == 0: g1_setup(A)
    A("; ---- P0: layernorm")
    stamp(A, "consts")
    if C.bulk < 2: wait_role(A, 4, 2)
    else:
        A("s_waitcnt vmcnt(0)"); bulk()
    stamp(A, "x")
    if C.halfpf:
        L = A.label("L_hp")
        A(f"s_add_u32 s60, s{S_SLOT}, 4\ns_and_b32 s61, s{S_XCD}, 1\ns_cselect_b32 s61, 4, 28\ns_sub_u32 s60, s60, s61\ns_cmp_ge_u32 s60, 4\ns_cbranch_scc1 {L}")
        A(f"s_add_u32 s60, s{S_ST0}, 4\ns_and_b32 s60, s60, 7\ns_mul_i32 s60, s60, {64*3584}\ns_add_u32 s60, s60, s{S_WOFF}\ns_add_u32 m0, s{S_WLDS}, 131072")
        A(f"buffer_load_dwordx4 v{V_WDMA}, {AR}, s60 offen {C.nt_g1w} lds\nbuffer_load_dwordx4 v{V_WDMA}, {BR}, s60 offen {C.nt_g1w} lds\n{L}:")
    for q in range(4):
        A(f"v_lshlrev_b32 v{T+2*q}, 16, v{4+q}\nv_and_b32 v{T+2*q+1}, 0xffff0000, v{4+q}")
    A(f"v_pk_add_f32 v[{T+8}:{T+9}], v[{T}:{T+1}], v[{T+2}:{T+3}]\nv_pk_add_f32 v[{T+10}:{T+11}], v[{T+4}:{T+5}], v[{T+6}:{T+7}]")
    A(f"v_pk_add_f32 v[{T+8}:{T+9}], v[{T+8}:{T+9}], v[{T+10}:{T+11}]\nv_add_f32 v{T+8}, v{T+8}, v{T+9}")
    wave_sum(A, T + 8, 60)
    A(f"v_mov_b32 v{T+9}, {fhex(1.0/512)}\nv_mul_f32 v{T+9}, s60, v{T+9}")
    A(f"v_cvt_pk_bf16_f32 v{T+10}, v{T+9}, v{T+9}")
    for q in range(8): A(f"v_sub_f32 v{T+16+q}, v{T+q}, v{T+9}")
    A(f"v_lshlrev_b32 v{T+10}, 16, v{T+10}")
    A(f"v_mul_f32 v{T+8}, v{T+16}, v{T+16}\nv_mul_f32 v{T+11}, v{T+17}, v{T+17}")
    for q in range(2, 8, 2):
        A(f"v_fmac_f32 v{T+8}, v{T+16+q}, v{T+16+q}\nv_fmac_f32 v{T+11}, v{T+17+q}, v{T+17+q}")
    A(f"v_add_f32 v{T+8}, v{T+8}, v{T+11}")
    fill = [f"v_sub_f32 v{T+q}, v{T+q}, v{T+10}" for q in range(8)] + [f"v_cvt_pk_bf16_f32 v{T+16+q}, v{T+2*q}, v{T+2*q+1}" for q in range(4)]
    for n, mod in enumerate(("row_shr:1 row_mask:0xf", "row_shr:2 row_mask:0xf", "row_shr:4 row_mask:0xf", "row_shr:8 row_mask:0xf",
                "row_bcast:15 row_mask:0xa", "row_bcast:31 row_mask:0xc")):
        A(fill[2*n]); A(fill[2*n+1])
        A(f"v_add_f32_dpp v{T+8}, v{T+8}, v{T+8} {mod} bank_mask:0xf")
    A(f"v_mov_b32 v{T+9}, {fhex(1.0/512)}")
    A(f"v_readlane_b32 s60, v{T+8}, 63")
    for q in range(2):
        A(f"v_lshlrev_b32 v{T+2*q}, 16, v{T+16+q}\nv_and_b32 v{T+2*q+1}, 0xffff0000, v{T+16+q}")
    A(f"v_mul_f32 v{T+9}, s60, v{T+9}")
    A(f"v_cvt_pk_bf16_f32 v{T+9}, v{T+9}, v{T+9}\nv_lshlrev_b32 v{T+9}, 16, v{T+9}")
    A(f"v_add_f32 v{T+9}, {fhex(1e-5)}, v{T+9}")
    A(f"v_cvt_pk_bf16_f32 v{T+9}, v{T+9}, v{T+9}\nv_lshlrev_b32 v{T+9}, 16, v{T+9}")
    A(f"v_sqrt_f32 v{T+9}, v{T+9}")
    A(f"v_lshlrev_b32 v{T+4}, 16, v{T+18}")
    A(f"v_cvt_pk_bf16_f32 v{T+9}, v{T+9}, v{T+9}\nv_lshlrev_b32 v{T+9}, 16, v{T+9}")
    A(f"v_rcp_f32 v{T+9}, v{T+9}")
    A(f"v_and_b32 v{T+5}, 0xffff0000, v{T+18}\nv_lshlrev_b32 v{T+6}, 16, v{T+19}\nv_and_b32 v{T+7}, 0xffff0000, v{T+19}")
    for q in range(8): A(f"v_mul_f32 v{T+q}, v{T+9}, v{T+q}")
    for q in range(4): A(f"v_cvt_pk_bf16_f32 v{4+q}, v{T+2*q}, v{T+2*q+1}")
    stamp(A, "ln")
    A("ds_write_b128 v96, v[4:7]")
    A(f"v_lshrrev_b32 v18, 16, v{T+10}\nv_or_b32 v18, v18, v{T+10}\nv_xor_b32 v18, 0x80008000, v18\nv_mov_b32 v19, v{T+9}")
    A(f"s_lshl_b32 s61, s{W}, 3\ns_add_u32 s61, s61, {STL}\nv_mov_b32 v14, s61\nds_write_b64 v14, v[18:19]")
    A("s_waitcnt lgkmcnt(0)")
    A("ds_read_b64_tr_b16 v[8:9], v97\nds_read_b64_tr_b16 v[10:11], v97 offset:512")
    if C.a0pos == 0: gemm_only(A, lambda: [A(o) for o in g1a_ops(0)])
    stamp(A, "iss1")
    A("s_waitcnt lgkmcnt(0)")
    A(f"v_mfma_f32_16x16x32_bf16 v[{T}:{T+3}], v[8:11], v[{B1RE}:{B1RE+3}], 0")
    A(f"v_mfma_f32_16x16x32_bf16 v[{T+4}:{T+7}], v[8:11], v[{B1IM}:{B1IM+3}], 0")
    for i in range(0, 4, 2):
        A(f"v_pk_mul_f32 v[{T+8+i}:{T+9+i}], v[{T+i}:{T+i+1}], v[{TWC+i}:{TWC+i+1}]\nv_pk_mul_f32 v[{T+12+i}:{T+13+i}], v[{T+4+i}:{T+5+i}], v[{TWC+i}:{TWC+i+1}]")
    for i in range(0, 4, 2):
        A(f"v_pk_fma_f32 v[{T+8+i}:{T+9+i}], v[{T+4+i}:{T+5+i}], v[{TWS+i}:{TWS+i+1}], v[{T+8+i}:{T+9+i}]")
        A(f"v_pk_fma_f32 v[{T+12+i}:{T+13+i}], v[{T+i}:{T+i+1}], v[{TWS+i}:{TWS+i+1}], v[{T+12+i}:{T+13+i}] neg_lo:[1,0,0] neg_hi:[1,0,0]")
    for q in range(4): A(f"v_cvt_pk_bf16_f32 v{8+q}, v{T+8+2*q}, v{T+9+2*q}")
    A(f"v_mfma_f32_16x16x32_bf16 v[{T}:{T+3}], v[{A2RE}:{A2RE+3}], v[8:11], 0")
    A(f"v_mfma_f32_16x16x32_bf16 v[{T+4}:{T+7}], v[{A2IM}:{A2IM+3}], v[8:11], 0")
    A(f"v_mfma_f32_16x16x32_bf16 v[{T+8}:{T+11}], v[{S2RE}:{S2RE+3}], v[8:11], 0")
    A(f"v_mfma_f32_16x16x32_bf16 v[{T+12}:{T+15}], v[{S2IM}:{S2IM+3}], v[8:11], 0")
    for i in range(8): A(f"v_cndmask_b32 v{T+i}, v{T+i}, v{T+8+i}, {M0}")
    for i in range(4): A(f"v_cvt_pk_bf16_f32 v{T+i}, v{T+i}, v{T+4+i}")
    for i in range(4):
        A(f"ds_write_b16 v100, v{T+i} offset:{512*i}\nds_write_b16_d16_hi v100, v{T+i} offset:{512*i+16}")
    stamp(A, "fft")
    A("s_mov_b32 s62, s46\ns_mov_b32 s63, s55\nv_mov_b32 v30, v127\nv_mov_b32 v17, v126\nv_mov_b32 v28, v103")
    if C.a0pos == 1: gemm_only(A, lambda: [A(o) for o in g1a_ops(0)])
    if C.g1pos == 1: g1_setup(A)
    stamp(A, "pre2")
    wait_role(A, 63, 0)
    A("s_waitcnt lgkmcnt(0)\ns_barrier")
    stamp(A, "b2")
    A("ds_read_b128 v[20:23], v101\nds_read_b64 v[18:19], v99")
    if C.a0pos == 2: gemm_only(A, lambda: [A(o) for o in g1a_ops(0)])
    A("s_waitcnt lgkmcnt(0)")
    zs = p0_stores(A)
    A(zs[0]); A(zs[2])
    stamp(A, "p0end")
    A(f"s_cmp_ge_u32 s{S_SLOT}, 28\ns_cbranch_scc1 L_cf")
    for o in g1w_ops(1) + g1a_ops(1): A(o)
    if C.g1pos == 2: g1_setup(A)
    if C.fbgo:
        A("s_waitcnt vmcnt(6)\ns_barrier")
        set_flag(A, 57, 16)
        A(f"s_sub_u32 s57, s57, {FL_B - FL_W}")
    else:
        L = A.label("L_w0"); L2 = A.label("L_w0")
        A(f"s_cmp_eq_u32 s{W}, 0\ns_cbranch_scc1 {L}\ns_waitcnt vmcnt(7)\ns_branch {L2}\n{L}:\ns_waitcnt vmcnt(8)\n{L2}:\ns_barrier")

def wp_gather():
    return [f"ds_read_u16 v{24+q}, v30 offset:{514*q}\nds_read_u16 v{4+q}, v30 offset:{4160+514*q}" for q in range(4)]
def p0_stores(A):
    a = f"buffer_store_dwordx4 v[20:23], v3, {WSR}, s45 offen sc1"
    L = A.label("L_p0_st")
    c = f"s_cmp_lg_u32 s{S_WAVE}, 0\ns_cbranch_scc1 {L}\ns_mov_b64 exec, 0xffff\nbuffer_store_dwordx2 v[18:19], v17, {WSR}, s63 offen sc1\ns_mov_b64 exec, -1\n{L}:"
    b = "\n".join(f"v_lshl_or_b32 v{24+q}, v{4+q}, 16, v{24+q}" for q in range(4)) + f"\nbuffer_store_dwordx4 v[24:27], v28, {WSR}, s62 offen sc1"
    if "z" in C.dbg: return [f"buffer_load_dword v20, v2, {WSR}, 0 offen", f"buffer_load_dword v20, v2, {WSR}, 0 offen", c]
    if "y" in C.dbg: return [a, f"buffer_load_dword v20, v2, {WSR}, 0 offen"]
    return [a, b, c]

def wd_prefetch_ops(A):
    srd(A, S_C, P_WD, 1792 * 1024)
    A(f"s_lshl_b32 s100, s{S_SLOT}, 16\ns_lshl_b32 s101, s{S_WAVE}, 13\ns_add_u32 s100, s100, s101")
    if C.g2map == "48":
        A(f"v_mov_b32 v159, v2\ns_mov_b32 s101, s{S_XCD}"); n, sh = 8, 10
    else:
        A(f"v_and_b32 v159, 31, v1\nv_lshlrev_b32 v159, 4, v159\nv_lshrrev_b32 v158, 5, v1\nv_lshl_add_u32 v159, v158, 10, v159")
        A(f"s_and_b32 s101, s{S_XCD}, 1\ns_lshl_b32 s101, s101, 9\ns_add_u32 s100, s100, s101\ns_lshr_b32 s101, s{S_XCD}, 1"); n, sh = 4, 11
    return [f"s_add_u32 m0, s{S_WLDS}, {LDS_SINK}\ns_lshl_b32 s60, s101, {sh}\ns_add_u32 s60, s60, s100\n"
            f"buffer_load_dwordx4 v159, {CR}, s60 offen lds\ns_add_u32 s101, s101, 1\ns_and_b32 s101, s101, {n-1}"] * n

V_G2W = 13
V_G2X = 244
def g2_setup(A, vw=V_G2W, vx=V_G2X, t0=14, t1=15):
    W = S_WAVE
    if C.g2map == "48":
        A(f"s_lshl_b32 s44, s{S_XCD}, 2\ns_and_b32 s45, s{S_SLOT}, 3\ns_add_u32 s44, s44, s45\ns_lshr_b32 s45, s{S_SLOT}, 2")
    else:
        A(f"s_lshr_b32 s44, s{S_XCD}, 1\ns_lshl_b32 s44, s44, 3\ns_and_b32 s45, s{S_SLOT}, 7\ns_add_u32 s44, s44, s45")
        A(f"s_and_b32 s45, s{S_XCD}, 1\ns_lshl_b32 s45, s45, 2\ns_lshr_b32 s46, s{S_SLOT}, 3\ns_add_u32 s45, s45, s46")
    A(f"s_and_b32 s48, s{W}, 3\ns_lshr_b32 s49, s{W}, 2")
    A("s_lshl_b32 s50, s44, 2\ns_add_u32 s50, s50, s48       ; rb16")
    srd(A, S_A, P_WD, 1792 * 1024)
    A(f"v_lshrrev_b32 v{vw}, 3, v1\nv_bfe_u32 v{t0}, v1, 4, 2\nv_lshlrev_b32 v{t0}, 1, v{t0}\nv_and_b32 v{t1}, 7, v1\nv_xor_b32 v{t0}, v{t0}, v{t1}")
    A(f"v_lshlrev_b32 v{vw}, 10, v{vw}\nv_lshl_add_u32 v{vw}, v{t0}, 4, v{vw}")
    A(f"s_lshl_b32 s46, s48, 15\ns_lshl_b32 s51, s45, 7\ns_add_u32 s51, s51, s46\ns_mul_i32 s55, s49, {896*1024}\ns_add_u32 s51, s51, s55")
    A("s_lshl_b32 s46, s48, 12\ns_lshl_b32 s55, s49, 14\ns_add_u32 s55, s55, s46")
    if C.rot2:
        if C.g2map == "48": A("s_cmp_eq_u32 s45, 7\ns_cselect_b32 s52, 0, s45")
        else: A(f"s_and_b32 s52, s45, 3\ns_mul_i32 s52, s52, {C.rot2}")
        A("s_mov_b32 s53, s52\ns_lshl_b32 s46, s52, 17\ns_add_u32 s51, s51, s46")
    A(f"v_lshrrev_b32 v{t0}, 3, v1\nv_and_b32 v{vx}, 3, v{t0}\nv_lshrrev_b32 v{t0}, 2, v{t0}\nv_lshl_or_b32 v{vx}, v{t0}, 3, v{vx}")
    A(f"v_lshlrev_b32 v{vx}, 10, v{vx}\nv_and_b32 v{t1}, 7, v1\nv_lshl_add_u32 v{vx}, v{t1}, 4, v{vx}")
    A(f"s_and_b32 s56, s{W}, 6\ns_lshl_b32 s56, s56, 3\ns_and_b32 s46, s{W}, 1\ns_lshl_b32 s46, s46, 2\ns_add_u32 s56, s56, s46")
    A("s_lshl_b32 s46, s44, 6\ns_add_u32 s56, s56, s46\ns_lshl_b32 s56, s56, 10\ns_lshl_b32 s46, s45, 7\ns_add_u32 s56, s56, s46")
def g2w_ops(n, vw=V_G2W):
    L = []
    for k in range(4):
        if n < 7:
            L.append(f"s_add_u32 m0, s55, {(n % C.nsl)*32768 + k*1024}\nbuffer_load_dwordx4 v{vw}, {AR}, s51 offen lds\ns_add_u32 s51, s51, {8192 if k < 3 else 131072 - 3*8192}" +
                     (f"\ns_add_u32 s52, s52, 1\ns_cmp_eq_u32 s52, 7\ns_cselect_b32 s46, {7*131072}, 0\ns_sub_u32 s51, s51, s46" if (k == 3 and C.rot2) else ""))
        else:
            L.append(f"s_add_u32 m0, s55, {(n % C.nsl)*32768}\n" + f"buffer_load_dwordx4 v173, {WSR}, s58 offen offset:{1024*k} sc1 lds" + ("\ns_add_u32 s58, s58, 16384" if k == 3 else ""))
    return L
def g2_wdma(A, n):
    for o in g2w_ops(n): A(o)
def weave(A, mf, fill, skip=0):
    if C.wmax and len(fill) > C.wmax * (len(mf) - skip):
        k = 0
        for i, m in enumerate(mf):
            A(m)
            if i >= skip:
                for f in fill[k:k + C.wmax]: A(f)
                k += C.wmax
        for f in fill[k:]: A(f)
        return
    n = len(mf) - skip; k = 0
    for i, m in enumerate(mf):
        A(m)
        if i >= skip:
            e = (len(fill) * (i - skip + 1) + n - 1) // n
            for f in fill[k:e]: A(f)
            k = e

def gelu_block(g, u, T, K):
    P = lambda r: f"v[{r}:{r+1}]"
    L = []
    for n in range(0, 8, 2): L.append(f"v_pk_mul_f32 {P(T+n)}, {P(g+n)}, {P(g+n)}")
    for n in range(0, 8, 2): L.append(f"v_pk_fma_f32 {P(T+n)}, {P(T+n)}, {P(K)}, {P(K+2)}")
    for n in range(0, 8, 2): L.append(f"v_pk_mul_f32 {P(T+n)}, {P(T+n)}, {P(g+n)}")
    for n in range(8): L.append(f"v_exp_f32 v{T+n}, v{T+n}")
    for n in range(0, 8, 2): L.append(f"v_pk_mul_f32 {P(T+8+n)}, {P(g+n)}, {P(u+n)}")
    for n in range(0, 8, 2): L.append(f"v_pk_fma_f32 {P(T+n)}, {P(T+n)}, {P(K+4)}, {P(K+4)}")
    for n in range(8): L.append(f"v_rcp_f32 v{T+n}, v{T+n}")
    for n in range(0, 8, 2): L.append(f"v_pk_mul_f32 {P(T+n)}, {P(T+n)}, {P(T+8+n)}")
    for q in range(4): L.append(f"v_cvt_pk_bf16_f32 v{T+8+q}, v{T+2*q}, v{T+2*q+1}")
    return L

def g1_setup(A):
    W = S_WAVE; AD = 208
    A(f"s_and_b32 s48, s{W}, 3\ns_lshr_b32 s49, s{W}, 2")
    A("v_lshrrev_b32 v8, 5, v1\nv_lshlrev_b32 v11, 3, v8\nv_bfe_u32 v9, v1, 2, 2\nv_add_u32 v11, v11, v9\nv_lshlrev_b32 v11, 7, v11")
    A("v_and_b32 v10, 3, v1\nv_lshl_add_u32 v11, v10, 3, v11\nv_bfe_u32 v10, v1, 4, 1\nv_lshl_add_u32 v11, v10, 5, v11")
    A(f"v_lshrrev_b32 v9, 1, v9\nv_xor_b32 v9, s49, v9\nv_lshl_add_u32 v12, v9, 6, v11")
    A("v_and_b32 v9, 31, v1\nv_bfe_u32 v10, v1, 1, 3\nv_xor_b32 v10, v10, v8\nv_lshlrev_b32 v10, 4, v10\nv_lshl_add_u32 v10, v9, 7, v10")
    A(f"s_lshl_b32 s50, s48, 13\ns_add_u32 s50, s50, 16384\nv_add_u32 v10, s50, v10")
    for k in range(4):
        A(f"s_add_u32 s50, s48, {k}\ns_and_b32 s50, s50, 3\ns_lshl_b32 s52, s50, 5\nv_xor_b32 v{AD+4+k}, s52, v10\ns_lshl_b32 s52, s50, 11\nv_add_u32 v{AD+k}, s52, v12")
    for sl in (1, 2):
        for n in range(8): A(f"v_add_u32 v{AD+8*sl+n}, {sl*SLOT}, v{AD+n}")
    if C.csm == "v":
        for q in range(4): A(f"v_mov_b32 v{128+q}, 0")
    else:
        A("v_and_b32 v12, 15, v1\nv_bfe_u32 v11, v1, 4, 1\nv_mov_b32 v233, 0x3f803f80\nv_cmp_eq_u32 vcc, v11, v12\nv_cndmask_b32 v232, 0, v233, vcc")
        for q in range(1, 4): A(f"v_mov_b32 v{232+q}, v232")
        for q in range(8): A(f"v_mov_b32 v{128+q}, 0")
    A("v_and_b32 v157, 15, v1\nv_lshlrev_b32 v157, 4, v157\nv_lshl_add_u32 v157, v8, 8, v157")
    A("v_bfe_u32 v11, v1, 4, 1\nv_mul_u32_u24 v11, 57344, v11\nv_add_u32 v157, v157, v11")
    A(f"s_lshl_b32 s50, s{S_RT}, 3\ns_lshl_b32 s51, s48, 1\ns_add_u32 s50, s50, s51")
    A(f"s_mul_i32 s47, s50, {2*57344}\ns_lshl_b32 s52, s{S_CT}, 11\ns_add_u32 s47, s47, s52\ns_lshl_b32 s52, s49, 10\ns_add_u32 s47, s47, s52\ns_add_u32 s47, s47, {WS_H}")
    A(f"s_lshr_b32 s51, s{S_RT}, 2\ns_lshl_b32 s51, s51, 1\ns_and_b32 s52, s{S_RT}, 1\ns_add_u32 s51, s51, s52\ns_lshl_b32 s51, s51, 7\ns_add_u32 s51, s51, {FL_B}")
    A(f"s_lshl_b32 s52, s{W}, 12\ns_add_u32 s51, s51, s52\ns_lshl_b32 s50, s{S_RT}, 4\ns_and_b32 s50, s50, 32\ns_add_u32 s50, s50, s51\ns_add_u32 s50, s50, {WS_ST - FL_B}")
    A("v_and_b32 v149, 7, v1\nv_lshlrev_b32 v149, 9, v149\nv_bfe_u32 v153, v1, 1, 3\nv_lshlrev_b32 v153, 9, v153\nv_and_b32 v11, 1, v1\nv_lshl_or_b32 v153, v11, 4, v153")
    A("v_and_b32 v154, 0x13, v9\nv_bfe_u32 v11, v9, 2, 1\nv_lshl_or_b32 v154, v11, 3, v154\nv_bfe_u32 v11, v9, 3, 1\nv_lshl_or_b32 v154, v11, 2, v154")
    A(f"s_lshl_b32 s52, s48, 3\ns_add_u32 s52, s52, {LDS_ST}\nv_lshl_add_u32 v154, v154, 5, s52")
    if C.csm == "v": A(f"s_lshl_b32 s52, s49, 11\ns_add_u32 s52, s52, {LDS_CS}\nv_add_u32 v155, s52, v2\ns_lshl_b32 s52, s48, 2\nv_add_u32 v156, s52, v155")
    else: A(f"s_lshl_b32 s52, s49, 11\ns_add_u32 s52, s52, {LDS_CS}\nv_lshl_add_u32 v155, v9, 4, s52\ns_lshl_b32 s52, s48, 2\nv_add_u32 v156, s52, v155")

def phase_g1(A):
    W = S_WAVE
    ACC = 64; WF = 32; AD = 208
    vm = [("w", 1)] * 2 + [("a", 1)] * 4
    wps = p0_stores(A)[1]
    def reads(kk, st):
        j, k = kk // 4, kk % 4
        wa = AD + 8 * (j % 3) + k; aa = wa + 4; d = WF + 16 * st
        return [f"ds_read_b64_tr_b16 v[{d}:{d+1}], v{wa} offset:0", f"ds_read_b64_tr_b16 v[{d+2}:{d+3}], v{wa} offset:512",
                f"ds_read_b128 v[{d+8}:{d+11}], v{aa}",
                f"ds_read_b64_tr_b16 v[{d+4}:{d+5}], v{wa} offset:8192", f"ds_read_b64_tr_b16 v[{d+6}:{d+7}], v{wa} offset:8704",
                f"ds_read_b128 v[{d+12}:{d+15}], v{aa} offset:4096"]
    def younger(ops):
        return len(vm) - 1 - max(i for i, o in enumerate(vm) if o in ops)
    stamp(A, "go")
    if C.wj == 0:
        for o in wp_gather(): A(o)
    for r in reads(0, 0): A(r)
    pfo = wd_prefetch_ops(A); npf = len(pfo)
    pf = 0
    fill = []
    K1 = -2.0 * 0.7978845608028654 * 1.4426950408889634
    for kk in range(32):
        j, k = kk // 4, kk % 4
        st = kk & 1
        if k == 3 and kk < 31:
            A(f"s_waitcnt vmcnt({younger([('w', j + 1), ('a', j + 1), ('f', j + 1)])}) lgkmcnt(0)\ns_barrier")
            stamp(A, f"g{j+1}")
            if j == 0 and not C.fbgo:
                set_flag(A, 57, 16)
                A(f"s_sub_u32 s57, s57, {FL_B - FL_W}")
            if j + 1 == C.wj:
                for o in wp_gather(): A(o)
            if j + 1 == C.wj + C.wd: set_flag(A, 57, 16)
        if kk == 4 * C.sj - 1:
            L = A.label("L_g1_ok")
            A(f"v_cmp_ne_u32 vcc, s{S_TAG}, v16\ns_cmp_eq_u64 vcc, 0\ns_cbranch_scc1 {L}")
            poll(A, [(149, "s51")], 16)
            A(f"{L}:")
            A(f"s_lshl_b32 s52, s{W}, 8\ns_add_u32 m0, s52, {LDS_ST}\ns_mov_b64 exec, 0xffff\nbuffer_load_dwordx4 v153, {WSR}, s50 offen sc1 lds\ns_mov_b64 exec, -1")
            vm.append(("f", C.sj + 2))
        if kk == 27:
            A("ds_read_b64 v[150:151], v154\nds_read_b64 v[152:153], v154 offset:1024")
        if kk == 28:
            for b in range(2):
                m, r, K = 150 + 2 * b, 151 + 2 * b, 160 + 8 * b
                if C.csm == "m": fill += ["v_cmp_gt_u32 vcc, 32, v1", "s_nop 0", f"v_cndmask_b32 v{m}, 0, v{m}, vcc"]
                fill += [f"v_mov_b32 v{136+4*b+q}, v{m}" for q in range(4)]
                fill += (f"v_mul_f32 v{K+6}, v{r}, v{r}\nv_mul_f32 v{K+2}, {fhex(K1)}, v{r}\nv_rcp_f32 v{K+4}, v{K+6}\nv_mul_f32 v{K}, {fhex(0.044715)}, v{K+6}\n"
                         f"v_mul_f32 v{K}, v{K}, v{K+2}\nv_mov_b32 v{K+3}, v{K+2}\nv_mov_b32 v{K+5}, v{K+4}\nv_mov_b32 v{K+1}, v{K}").split("\n")
        if kk == 24:
            B = Asm(); g2_setup(B); fill += [l for l in B.lines if not l.startswith(";")]
        if kk == 30 and C.csm == "m":
            for r in (128, 129, 132, 133): fill += f"v_cvt_pk_bf16_f32 v16, v{r}, v{r}\nv_lshlrev_b32 v16, 16, v16\nv_sub_f32 v16, v{r}, v16\nv_cvt_pk_bf16_f32 v{r}, v{r}, v16".split("\n")
        nxt = reads(kk + 1, st ^ 1) if kk < 31 else []
        ops = []
        full = lambda jj: [(("w", jj), o) for o in g1w_ops(jj)] + [(("a", jj), o) for o in g1a_ops(jj)]
        if j + 2 < 8:
            if k == 0: ops += [(("w", j + 2), o) for o in g1w_ops(j + 2)]
            ops.append((("a", j + 2), g1a_ops(j + 2)[k]))
        if kk == 4 * C.wj: ops.insert(0, (("f", C.wj + C.wd), wps))
        if kk == 4 * C.sj - 5:
            ops.append((("f", C.sj), f"buffer_load_dword v16, v149, {WSR}, s51 offen sc1"))
        d = WF + 16 * st
        for m, (wo, ao) in enumerate(((0, 8), (4, 8), (0, 12), (4, 12))):
            if m < 3 and not (k == 3 and kk < 31):
                A(f"s_waitcnt lgkmcnt({(3, 1, 0)[m] + len(nxt[0:2*m])})")
            c = f"v[{ACC+16*m}:{ACC+16*m+15}]"
            if "S" in C.dbg:
                for z in range(2):
                    cc = f"v[{ACC+16*m+8*(kk&1)+4*z}:{ACC+16*m+8*(kk&1)+4*z+3}]"
                    A(f"v_mfma_f32_16x16x32_bf16 {cc}, v[{d+wo}:{d+wo+3}], v[{d+ao}:{d+ao+3}], {cc if kk > 1 else 0}")
            else:
                A(f"v_mfma_f32_32x32x16_bf16 {c}, v[{d+wo}:{d+wo+3}], v[{d+ao}:{d+ao+3}], {c if kk else 0}")
            for r in nxt[2*m:2*m+2]: A(r)
            if ops and (m >= 1 or len(ops) > 3):
                tag, o = ops.pop(0); A(o); vm.append(tag)
            if "c" not in C.dbg and C.csm == "m" and k == 0 and m in (1, 3):
                z = m >> 1
                A(f"v_mfma_f32_16x16x32_bf16 v[{128+4*z}:{131+4*z}], v[232:235], v[{d+4*z}:{d+4*z+3}], v[{128+4*z}:{131+4*z}]")
            if "c" not in C.dbg and C.csm == "v":
                src = d + 4 * (m & 1) + k
                if m < 2: A(f"v_lshlrev_b32 v{132+m}, 16, v{src}\nv_and_b32 v{134+m}, 0xffff0000, v{src}")
                else: A(f"v_add_f32 v{128+(m&1)}, v{128+(m&1)}, v{132+(m&1)}\nv_add_f32 v{130+(m&1)}, v{130+(m&1)}, v{134+(m&1)}")
            cnt = 0
            while fill and cnt < (2 if C.csm == 'v' else 4):
                l = fill.pop(0); A(l); cnt += 0.34 if l.startswith("s_") else 1
            if m == 2 and pf < npf and kk >= C.pf_start and (kk - C.pf_start) % C.pf_step == 0:
                A(pfo[pf]); vm.append(("p", pf)); pf += 1
        assert not ops
    assert (pf == npf or C.pf_start > 31) and not fill
    stamp(A, "main")
    if C.csm == "m": A("s_mov_b64 exec, 0xffff\nds_write_b32 v156, v128\nds_write_b32 v156, v129 offset:256\nds_write_b32 v156, v132 offset:1024\nds_write_b32 v156, v133 offset:1280\ns_mov_b64 exec, -1")
    def split(r): return f"v_cvt_pk_bf16_f32 v16, v{r}, v{r}\nv_lshlrev_b32 v16, 16, v16\nv_sub_f32 v16, v{r}, v16\nv_cvt_pk_bf16_f32 v{r}, v{r}, v16"
    if C.csm == "v":
        for r in (128, 129): A(f"v_add_f32 v{r}, v{r}, v{r+2}\n" + split(r))
        A("ds_write_b32 v156, v128\nds_write_b32 v156, v129 offset:1024")
    A("s_waitcnt lgkmcnt(0)\ns_barrier")
    A(f"ds_read_b128 v[{WF}:{WF+3}], v155\nds_read_b128 v[{WF+4}:{WF+7}], v155 offset:1024")
    A("s_waitcnt lgkmcnt(0)")
    for m in range(4):
        c = f"v[{ACC+16*m}:{ACC+16*m+15}]"
        A(f"v_mfma_f32_32x32x16_bf16 {c}, v[{WF+4*(m&1)}:{WF+4*(m&1)+3}], v[{136+4*(m>>1)}:{139+4*(m>>1)}], {c}")
    for b in range(2):
        for half in range(2):
            n = 2 * b + half
            T = 176 + 16 * (n & 1)
            for l in gelu_block(ACC + 32 * b + 8 * half, ACC + 32 * b + 16 + 8 * half, T, 160 + 8 * b): A(l)
            if n == 2: A(f"s_add_u32 s47, s47, {2*57344}")
            A(f"buffer_store_dwordx4 v[{T+8}:{T+11}], v157, {WSR}, s47 offen offset:{512*half} sc1")
    stamp(A, "epi")
    A("s_waitcnt vmcnt(0)\ns_barrier")
    A(f"s_lshl_b32 s57, s{S_RT}, 5\ns_add_u32 s57, s57, s{S_CT}\ns_lshl_b32 s57, s57, 7\ns_add_u32 s57, s57, {FL_H}")
    set_flag(A, 57, 16)
    stamp(A, "flag2")
    for n in range(C.nsl): g2_wdma(A, n)

def phase_cf(A):
    W = S_WAVE
    ZL = 0; WL = 65536; TW = 131072; FR = TW + 8192
    D0 = 64; D1 = 128; PK = 192; WW = 224
    FC, FS, FN = 8, 16, 24
    OC, OS, ON = 32, 40, 48
    A("; ---- CF")
    A(f"s_lshl_b32 s44, s{S_XCD}, 2\ns_add_u32 s44, s44, s{S_SLOT}\ns_sub_u32 s44, s44, 28    ; cg")
    for o in wp_gather(): A(o)
    A("s_waitcnt lgkmcnt(0)")
    A(p0_stores(A)[1])
    A(f"s_lshl_b32 s46, s{W}, 1\nv_lshrrev_b32 v8, 5, v1\nv_add_u32 v8, s46, v8")
    A("v_and_b32 v9, 3, v8\nv_bfe_u32 v10, v8, 3, 1\nv_lshl_or_b32 v9, v10, 2, v9      ; beta")
    A("s_and_b32 s46, s44, 1\ns_lshl_b32 s46, s46, 3\nv_or_b32 v9, s46, v9         ; k1")
    A("s_lshr_b32 s46, s44, 1\ns_lshl_b32 s47, s46, 5\ns_sub_u32 s48, 0x200, s47\ns_cmp_lt_u32 s46, 8")
    A(f"s_cselect_b32 s49, s47, s48\ns_cselect_b32 s50, 1, -1\ns_sub_u32 s48, s48, 16\ns_cmp_lt_u32 s46, 8\ns_cselect_b32 s48, s47, s48")
    A("s_cmp_eq_u32 s46, 0\ns_cselect_b32 s48, 0x100, s48")
    A("v_mov_b32 v11, s49\nv_mad_i32_i24 v10, v9, s50, v11\nv_mov_b32 v11, s48\nv_cmp_eq_u32 vcc, 0, v9\nv_cndmask_b32 v10, v10, v11, vcc   ; bin")
    A(f"v_mov_b32 v11, {fhex(2.0**-19)}\nv_mov_b32 v12, {fhex(2.0**-20)}\nv_cmp_eq_u32 vcc, 0x100, v10\nv_cndmask_b32 v12, v11, v12, vcc\nv_mov_b32 v13, v12")
    A(f"v_cvt_f32_u32 v10, v10\nv_mul_f32 v10, {fhex(1/512)}, v10")
    A(f"v_bfe_u32 v11, v8, 2, 1\nv_cvt_f32_u32 v11, v11\nv_mul_f32 v11, {fhex(0.25)}, v11")
    A("v_and_b32 v14, 31, v1\nv_lshlrev_b32 v15, 3, v14\nv_cvt_f32_u32 v15, v15\nv_fma_f32 v64, v15, v10, v11")
    A(f"v_fmamk_f32 v72, v10, {fhex(256.0)}, v64\nv_fract_f32 v72, v72")
    for b in (64, 72):
        for j in range(1, 8): A(f"v_fmamk_f32 v{b+j}, v10, {fhex(float(j))}, v{b}")
    for j in range(16): A(f"v_cos_f32 v{64+j}, v{64+j}")
    for j in range(0, 16, 2): A(f"v_pk_mul_f32 v[{64+j}:{65+j}], v[{64+j}:{65+j}], v[12:13]")
    for q in range(8): A(f"v_cvt_pk_bf16_f32 v{64+q}, v{64+2*q}, v{65+2*q}")
    A(f"v_lshrrev_b32 v15, 3, v14\nv_and_b32 v14, 7, v14\nv_lshlrev_b32 v14, 4, v14\nv_lshl_add_u32 v14, v8, 7, v14\nv_lshl_add_u32 v14, v15, 16, v14")
    A(f"s_lshl_b32 s46, s44, 11\ns_add_u32 s46, s46, {WS_G}\ns_add_u32 s47, s46, 0x40000")
    A(f"buffer_store_dwordx4 v[64:67], v14, {WSR}, s46 offen sc1\nbuffer_store_dwordx4 v[68:71], v14, {WSR}, s47 offen sc1")
    A("v_and_b32 v3, 31, v1\nv_lshrrev_b32 v4, 5, v1\nv_lshlrev_b32 v4, 2, v4")
    A(f"s_and_b32 s52, s{W}, 3\ns_lshl_b32 s52, s52, 3\ns_lshr_b32 s53, s{W}, 2\ns_mul_i32 s53, s53, 1536")
    A("v_add_u32 v5, s52, v4")
    for b in range(4):
        A(f"v_add_u32 v6, {b}, v5\nv_mad_u32_u24 v{64+b}, v6, v3, s53")
    def frag(dst, matsel):
        A(f"s_and_b32 s54, s{W}, 1\ns_lshl_b32 s54, s54, 4")
        A(f"s_lshr_b32 s55, s{W}, 1\ns_and_b32 s55, s55, 1\ns_mul_i32 s55, s55, 48")
        if matsel == 0: A(f"s_lshr_b32 s56, s{W}, 2\nv_lshl_add_u32 v7, v3, 1, s56")
        for j in range(8):
            A(f"v_add_u32 v6, s54, v4\nv_add_u32 v6, {8*(j>>2) + (j&3)}, v6")
            if matsel == 0: A(f"v_mad_u32_u24 v{dst+j}, v6, v7, s55")
            else: A(f"v_lshl_add_u32 v6, v6, 1, 1\nv_mad_u32_u24 v{dst+j}, v6, v3, s55")
    frag(80, 0); frag(88, 1)
    cos_batch(A, range(64, 68), 2047, 1.0 / 2048)
    cos_batch(A, range(80, 96), 63, 1.0 / 64)
    A(f"s_lshl_b32 s52, s52, 8\ns_lshr_b32 s53, s{W}, 2\ns_lshl_b32 s53, s53, 10\ns_add_u32 s52, s52, s53\ns_add_u32 s52, s52, {TW}")
    A("v_add_u32 v5, s52, v2\nds_write_b128 v5, v[64:67]")
    for q in range(8): A(f"v_cvt_pk_bf16_f32 v{80+q}, v{80+2*q}, v{81+2*q}")
    A(f"s_lshl_b32 s52, s{W}, 10\ns_add_u32 s52, s52, {FR}\nv_add_u32 v5, s52, v2")
    A("ds_write_b128 v5, v[80:83]")
    Ls = A.label("L_cf_skip")
    A(f"s_cmp_ge_u32 s{W}, 4\ns_cbranch_scc1 {Ls}\nds_write_b128 v5, v[84:87] offset:8192\n{Ls}:")
    A(f"v_add_u32 v56, {TW}, v2\nv_add_u32 v57, {FR}, v2")
    A(f"s_lshl_b32 s52, s{W}, 1\nv_and_b32 v6, 15, v1\nv_xor_b32 v6, s52, v6\nv_lshlrev_b32 v6, 4, v6")
    A("v_lshl_add_u32 v6, v3, 10, v6\nv_lshl_add_u32 v58, v4, 6, v6\nv_xor_b32 v59, 16, v58")
    A(f"v_lshrrev_b32 v5, 2, v3\nv_xor_b32 v6, s{W}, v5\nv_lshlrev_b32 v6, 4, v6\nv_lshl_add_u32 v6, v5, 7, v6\nv_and_b32 v5, 3, v3\nv_lshl_add_u32 v6, v5, 2, v6\nv_lshl_add_u32 v6, v4, 11, v6\nv_add_u32 v7, {WL}, v6")
    A("s_waitcnt vmcnt(2) lgkmcnt(0)\ns_barrier")
    set_flag(A, 57, 16)
    A(f"s_sub_u32 s57, s57, {FL_B - FL_W}")
    set_flag(A, 57, 16)
    stamp(A, "fd")
    A(f"v_lshlrev_b32 v6, 7, v3\ns_lshl_b32 s57, s{W}, 12\ns_add_u32 s57, s57, {FL_B}")
    poll(A, [(6, "s57")], 64)
    stamp(A, "rdy1")
    A(f"s_lshl_b32 s48, s44, 16\ns_lshl_b32 s49, s{W}, 13\ns_add_u32 s50, s48, s49")
    def dma64(base, lb):
        return [(f"s_add_u32 s51, s50, {base}\n" if k == 0 else "s_add_u32 s51, s51, 1024\n") +
                f"s_add_u32 m0, s49, {lb + k*1024}\nbuffer_load_dwordx4 v2, {WSR}, s51 offen sc1 lds" for k in range(8)]
    for o in dma64(WS_Z, ZL): A(o)
    P = lambda r: f"v[{r}:{r+1}]"
    def load_frags(Cc, S, mat):
        return [f"ds_read_b128 v[{R+4*m}:{R+4*m+3}], v57 offset:{(mat*4+o+m)*1024}" for m in range(2) for (R, o) in ((Cc, 0), (S, 2))]
    def neg_frags(S, N): return [f"v_xor_b32 v{N+q}, 0x80008000, v{S+q}" for q in range(8)]
    def pk(blk, c, m): return PK + 16 * blk + 8 * c + 4 * m
    def acc(D, c, blk): return D + 32 * c + 16 * blk
    def cstage(D, blk, data_is_A, Cc, Sre, Sim):
        L = []
        for (c, seq) in ((0, ((0, Cc), (1, Sre))), (1, ((1, Cc), (0, Sim)))):
            d = acc(D, c, blk); first = True
            for (cc, K) in seq:
                for m in range(2):
                    dat = f"v[{pk(blk,cc,m)}:{pk(blk,cc,m)+3}]"; con = f"v[{K+4*m}:{K+4*m+3}]"
                    a, b = (dat, con) if data_is_A else (con, dat)
                    L.append(f"v_mfma_f32_32x32x16_bf16 v[{d}:{d+15}], {a}, {b}, {0 if first else f'v[{d}:{d+15}]'}")
                    first = False
        return L
    def pack(D, blk):
        return [f"v_cvt_pk_bf16_f32 v{pk(blk,c,0)+q}, v{acc(D,c,blk)+2*q}, v{acc(D,c,blk)+2*q+1}" for c in range(2) for q in range(8)]
    def tw_load():
        return [f"ds_read_b128 v[{WW+16*comp+4*a}:{WW+16*comp+4*a+3}], v56 offset:{a*2048 + comp*1024}" for a in range(4) for comp in range(2)]
    NEG = lambda i: " neg_lo:[%s] neg_hi:[%s]" % ((",".join("1" if j == i else "0" for j in range(3)),) * 2)
    def radix2_tw(conj, extra=()):
        for i in range(0, 16, 2):
            if i % 4 == 2 and extra: A(extra[i // 4])
            er, ei, o_r, oi = acc(D0,0,0)+i, acc(D0,1,0)+i, acc(D0,0,1)+i, acc(D0,1,1)+i
            ur, ui, vr_, vi = acc(D1,0,0)+i, acc(D1,1,0)+i, acc(D1,0,1)+i, acc(D1,1,1)+i
            c0, s0 = P(WW + i), P(WW + 16 + i)
            A(f"v_pk_add_f32 {P(ur)}, {P(er)}, {P(o_r)}\nv_pk_add_f32 {P(vr_)}, {P(er)}, {P(o_r)} neg_lo:[0,1] neg_hi:[0,1]")
            A(f"v_pk_add_f32 {P(ui)}, {P(ei)}, {P(oi)}\nv_pk_add_f32 {P(vi)}, {P(ei)}, {P(oi)} neg_lo:[0,1] neg_hi:[0,1]")
            A(f"v_pk_mul_f32 v[60:61], {P(ur)}, {s0}\nv_pk_mul_f32 v[62:63], {P(vr_)}, {s0}")
            A(f"v_pk_mul_f32 {P(ur)}, {P(ur)}, {c0}\nv_pk_mul_f32 {P(vr_)}, {P(vr_)}, {c0}")
            n0 = NEG(0) if conj else ""; n2 = "" if conj else NEG(2)
            A(f"v_pk_fma_f32 {P(ur)}, {P(ui)}, {s0}, {P(ur)}{n0}\nv_pk_fma_f32 {P(vr_)}, {P(vi)}, {s0}, {P(vr_)}{n0}")
            A(f"v_pk_fma_f32 {P(ui)}, {P(ui)}, {c0}, v[60:61]{n2}\nv_pk_fma_f32 {P(vi)}, {P(vi)}, {c0}, v[62:63]{n2}")
    def wmul(e):
        L = []
        for i in range(0, 16, 2):
            w = WW + 16 * e + i; t = 60 + (i & 2)
            xr, xi, yr, yi = acc(D0,0,e)+i, acc(D0,1,e)+i, acc(D1,0,e)+i, acc(D1,1,e)+i
            L += [f"v_lshlrev_b32 v{t}, 16, v{w}", f"v_lshlrev_b32 v{t+1}, 16, v{w+1}", f"v_and_b32 v{w}, 0xffff0000, v{w}", f"v_and_b32 v{w+1}, 0xffff0000, v{w+1}",
                  ]
            if C.cfpk and not (C.cfpk == 2 and i < 6):
                L += [f"v_pk_mul_f32 {P(yr)}, {P(xr)}, {P(t)}", f"v_pk_mul_f32 {P(yi)}, {P(xi)}, {P(t)}",
                      f"v_pk_fma_f32 {P(yr)}, {P(xi)}, {P(w)}, {P(yr)}{NEG(0)}", f"v_pk_fma_f32 {P(yi)}, {P(xr)}, {P(w)}, {P(yi)}"]
            else:
                for z in range(2): L += [f"v_mul_f32 v{yr+z}, v{xr+z}, v{t+z}", f"v_mul_f32 v{yi+z}, v{xi+z}, v{t+z}"]
                for z in range(2): L += [f"v_fma_f32 v{yr+z}, -v{xi+z}, v{w+z}, v{yr+z}", f"v_fmac_f32 v{yi+z}, v{xr+z}, v{w+z}"]
        return L
    def E(L):
        for l in L: A(l)
    E(load_frags(FC, FS, 0) + load_frags(OC, OS, 2) + tw_load())
    A("s_waitcnt lgkmcnt(8)")
    E(neg_frags(FS, FN) + neg_frags(OS, ON))
    A(f"s_lshl_b32 s52, s{W}, 16\ns_lshl_b32 s53, s44, 9\ns_add_u32 s52, s52, s53\ns_add_u32 s47, s52, {WS_ZP}")
    A(f"s_lshl_b32 s57, s44, 7\ns_add_u32 s57, s57, {FL_C}")
    A("s_waitcnt vmcnt(0)\ns_barrier")
    stamp(A, "go")
    for mu in range(2):
        for c in range(2):
            for m in range(2):
                A(f"ds_read_b128 v[{pk(mu,c,m)}:{pk(mu,c,m)+3}], v{58+c} offset:{ZL + mu*32768 + m*512}")
    wp = dma64(WS_WP, WL)
    def wcheck():
        L = A.label("L_cf_ok")
        A(f"s_waitcnt vmcnt(0)\nv_cmp_ne_u32 vcc, s{S_TAG}, v5\ns_cmp_eq_u64 vcc, 0\ns_cbranch_scc1 {L}")
        poll(A, [(6, "s53")], 5)
        A(f"s_mov_b32 s{S_RDY}, 1\n{L}:")
    A(f"s_lshl_b32 s53, s{W}, 12\ns_add_u32 s53, s53, {FL_W}\nbuffer_load_dword v5, v6, {WSR}, s53 offen sc1")
    A("s_waitcnt lgkmcnt(4)")
    E(cstage(D0, 0, True, FC, FS, FN))
    A("s_waitcnt lgkmcnt(0)")
    m1 = cstage(D0, 1, True, OC, OS, ON)
    E(m1[:4]); wcheck(); weave(A, m1[4:], wp[:4])
    E(load_frags(OC, OS, 1))
    radix2_tw(False, wp[4:])
    E(pack(D1, 0))
    A("s_waitcnt lgkmcnt(0)")
    weave(A, cstage(D0, 0, False, FC, FS, FN), pack(D1, 1) + neg_frags(OS, ON))
    stamp(A, "main")
    A("s_waitcnt vmcnt(0)\ns_barrier")
    wr = [f"ds_read2st64_b32 {P(WW+16*e+4*a+b)}, v7 offset0:{a*64+b*8+e*4} offset1:{a*64+b*8+e*4+8}" for e in range(2) for a in range(4) for b in (0, 2)]
    E(wr[:8])
    m2 = cstage(D0, 1, False, OC, OS, ON)
    weave(A, m2[:2], wr[8:])
    A("s_waitcnt lgkmcnt(8)")
    weave(A, m2[2:], wmul(0))
    stamp(A, "wrdy")
    E(load_frags(OC, OS, 2))
    E(pack(D1, 0))
    g2_setup(A, 58, 59, 5, 6)
    A("s_waitcnt lgkmcnt(4)")
    weave(A, cstage(D0, 0, True, FC, FN, FS), wmul(1) + pack(D1, 1), 1)
    A("s_waitcnt lgkmcnt(0)")
    E(neg_frags(OS, ON) + tw_load())
    weave(A, cstage(D0, 1, True, OC, ON, OS), g2w_ops(0, 58))
    E(load_frags(OC, OS, 1))
    A("s_waitcnt lgkmcnt(4)")
    radix2_tw(True)
    E(pack(D1, 0))
    A("s_waitcnt lgkmcnt(0)")
    weave(A, cstage(D0, 0, True, FC, FN, FS), pack(D1, 1) + neg_frags(OS, ON))
    stamp(A, "epi")
    adr = (f"s_and_b32 s60, s{W}, 1\ns_lshl_b32 s60, s60, 2\nv_lshrrev_b32 v5, 5, v1\nv_or_b32 v5, s60, v5\n"
           "v_and_b32 v6, 7, v1\nv_xor_b32 v5, v5, v6\nv_lshlrev_b32 v5, 4, v5\nv_lshl_add_u32 v5, v3, 11, v5\n"
           f"s_lshr_b32 s60, s{W}, 1\ns_lshl_b32 s60, s60, 7\ns_add_u32 s60, s60, {WL}\nv_add_u32 v56, s60, v5\nv_xor_b32 v57, 32, v56\n"
           "v_bfe_u32 v5, v1, 2, 1\nv_lshlrev_b32 v5, 2, v5\nv_bfe_u32 v6, v1, 4, 1\nv_lshl_add_u32 v5, v6, 1, v5\nv_bfe_u32 v6, v1, 1, 1\nv_add_u32 v5, v5, v6\n"
           f"v_xor_b32 v5, s{W}, v5\nv_lshlrev_b32 v5, 4, v5\nv_and_b32 v6, 1, v1\nv_lshl_add_u32 v5, v6, 3, v5\n"
           "v_bfe_u32 v6, v1, 3, 1\nv_lshl_add_u32 v5, v6, 7, v5\nv_lshrrev_b32 v6, 5, v1\nv_lshl_add_u32 v5, v6, 9, v5\n"
           f"s_lshl_b32 s60, s{W}, 11\ns_add_u32 s60, s60, {WL}\nv_add_u32 v5, s60, v5\n"
           "v_and_b32 v6, 15, v1\nv_lshlrev_b32 v6, 4, v6\nv_lshrrev_b32 v7, 5, v1\nv_lshl_add_u32 v6, v7, 8, v6\n"
           "v_bfe_u32 v7, v1, 4, 1\nv_lshl_add_u32 v6, v7, 14, v6").split("\n")
    def xw(mu): return [f"ds_write_b128 v{56+m}, v[{pk(mu,c,m)}:{pk(mu,c,m)+3}] offset:{mu*1024 + c*512}" for c in range(2) for m in range(2)]
    def xr_store(mu):
        for n in range(4):
            d = D1 + 16 * mu + 4 * n
            A(f"ds_read_b64_tr_b16 v[{d}:{d+1}], v5 offset:{n*16384 + mu*1024}\nds_read_b64_tr_b16 v[{d+2}:{d+3}], v5 offset:{n*16384 + mu*1024 + 256}")
        for n in range(4):
            d = D1 + 16 * mu + 4 * n
            A(f"s_waitcnt lgkmcnt({6-2*n})")
            A(f"buffer_store_dwordx4 v[{d}:{d+3}], v6, {WSR}, s47 offen sc1")
            A(f"s_add_u32 s47, s47, {0x80000 if n < 3 else (0x8000 - 0x180000) & 0xffffffff}")
    m4 = cstage(D0, 1, True, OC, ON, OS)
    weave(A, m4[:4], adr)
    A("s_barrier")
    weave(A, m4[4:], pack(D0, 0) + xw(0))
    A("s_waitcnt lgkmcnt(0)\ns_barrier")
    stamp(A, "c1")
    xr_store(0)
    E(pack(D0, 1) + xw(1))
    A("s_waitcnt lgkmcnt(0)\ns_barrier")
    xr_store(1)
    stamp(A, "c3")
    A(f"v_mov_b32 v{V_G2W}, v58\nv_mov_b32 v{V_G2X}, v59")
    g2_wdma(A, 1)
    A("s_waitcnt vmcnt(4)\ns_barrier")
    stamp(A, "c5")
    set_flag(A, 57, 16)
    stamp(A, "flag2")
    for n in range(2, C.nsl): g2_wdma(A, n)

def phase_g2(A):
    W = S_WAVE
    ACT = 64; WF = 128; ACC = 16; NS = 9
    A("; ---- G2")
    srd(A, S_X, P_X, 2097152)
    srd(A, S_B, P_OUT, 2097152)
    A("v_lshlrev_b32 v3, 4, v1")
    A(f"s_mul_i32 s54, s50, 57344\ns_mul_i32 s46, s49, {28*1024}\ns_add_u32 s54, s54, s46\ns_add_u32 s54, s54, {WS_H}")
    if C.rot2: A("s_lshl_b32 s46, s53, 12\ns_add_u32 s54, s54, s46")
    A(f"s_lshl_b32 s57, s50, 14\ns_lshl_b32 s46, s49, 13\ns_add_u32 s57, s57, s46\ns_add_u32 s57, s57, {WS_ZP}")
    A("v_lshrrev_b32 v6, 5, v1\nv_lshlrev_b32 v6, 4, v6\nv_bfe_u32 v7, v1, 4, 1\nv_lshl_add_u32 v6, v7, 2, v6\nv_bfe_u32 v4, v1, 2, 2\nv_add_u32 v6, v6, v4")
    A("v_lshlrev_b32 v6, 7, v6\nv_lshrrev_b32 v4, 1, v4\nv_lshl_or_b32 v4, v7, 1, v4")
    A("v_lshl_add_u32 v6, v4, 5, v6\nv_and_b32 v4, 3, v1\nv_lshl_add_u32 v6, v4, 3, v6")
    A("s_lshl_b32 s46, s49, 14\nv_add_u32 v164, s46, v6")
    for nb in range(1, 4): A(f"v_xor_b32 v{164+nb}, {32*nb}, v164")
    for nb in range(4): A(f"v_add_u32 v{160+nb}, 0x10000, v{164+nb}\nv_add_u32 v{180+nb}, 0x20000, v{164+nb}")
    A("v_bfe_u32 v4, v1, 4, 2\nv_lshlrev_b32 v4, 5, v4\nv_xor_b32 v173, v3, v4")
    A(f"s_lshl_b32 s58, s45, 16\ns_lshl_b32 s46, s49, 15\ns_add_u32 s58, s58, s46\ns_lshl_b32 s46, s48, 12\ns_add_u32 s58, s58, s46\ns_add_u32 s58, s58, {WS_G}")
    A("v_min_u32 v170, 27, v1\nv_lshlrev_b32 v170, 7, v170\nv_and_b32 v172, 3, v1\nv_lshlrev_b32 v172, 7, v172")
    A(f"s_lshr_b32 s59, s44, 2\ns_lshl_b32 s59, s59, 12\ns_add_u32 s59, s59, {FL_H}\ns_lshl_b32 s47, s{W}, 9\ns_add_u32 s47, s47, {FL_C}")
    vm = []
    def act_ops(n):
        L = []
        for k in range(4):
            d = ACT + 16 * (n & 3) + 4 * k
            L.append((("a", n), ("s_mov_b32 s54, s57\n" if (n == 7 and k == 0) else "") +
                      f"buffer_load_dwordx4 v[{d}:{d+3}], v3, {WSR}, s54 offen offset:{1024*k} sc1" + ("\ns_add_u32 s54, s54, 4096" if k == 3 else "") +
                      (f"\ns_add_u32 s53, s53, 1\ns_cmp_eq_u32 s53, 7\ns_cselect_b32 s46, {7*4096}, 0\ns_sub_u32 s54, s54, s46" if (k == 3 and C.rot2 and n < 7) else "")))
        return L
    def w_ops(n): return [(("w", n), o) for o in g2w_ops(n)]
    def emit(op):
        A(op[1]); vm.append(op[0])
    L = A.label("L_g2_np")
    A(f"s_cmp_lg_u32 s{W}, 0\ns_cbranch_scc1 {L}\ns_waitcnt vmcnt(0)")
    poll(A, [(170, "s59")], 177)
    A(f"{L}:\ns_barrier")
    stamp(A, "hrdy")
    for op in act_ops(0): emit(op)
    A("s_barrier")
    for op in act_ops(1): emit(op)
    def reads(n, k, st):
        slot = n % C.nsl
        va = (164, 164, 160, 160, 180)[slot]
        off = (slot & 1) * 32768 + k * 4096
        r = []
        for nb in range(4):
            d = WF + 16 * st + 4 * nb
            r.append(f"ds_read_b64_tr_b16 v[{d}:{d+1}], v{va+nb} offset:{off}")
            r.append(f"ds_read_b64_tr_b16 v[{d+2}:{d+3}], v{va+nb} offset:{off+1024}")
        return r
    SCHED = {"A": "a2 a3|w4 a4|w5 a5|w6 a6|w7 a7|w8 a8|||", "B": "a2|w4 a3|w5 a4|w6 a5|w7 a6|w8 a7|a8||",
             "C": "a2|a3 w4l|a4 w4h w5l|a5 w5h w6l|a6 w6h|w7 a7|w8 a8||", "D": "a2|a3 w4|a4 w5l|a5 w5h w6l|a6 w6h w7l|a7 w7h w8l|a8 w8h||",
             "P": "a2|a3 w5l|a4 w5h|a5 w6|a6 w7l|a7 w7h w8l|a8 w8h||", "Q": "a2|a3|a4 w5|a5 w6|a6 w7|a7 w8|a8||", "R": "a2|a3 w5l|a4 w5h w6l|a5 w6h|a6 w7|a7 w8l|a8 w8h||",
             "E": "|a2 w4|a3 w5l|a4 w5h w6l|a5 w6h|a6 w7|a7 w8l|a8 w8h|"}[C.sched]
    SCHED = [x.split() for x in SCHED.split("|")]
    NZ = min(n for n in range(NS) if any(t[1] in "78" for t in SCHED[n]))
    fill = []
    EX = (4 % C.nsl) * 32768 if C.nsl == 5 else 131072
    TB = 0 if C.nsl == 5 else 69632
    A(f"s_lshl_b32 s46, s{W}, 12\ns_add_u32 s46, s46, {EX}\nv_add_u32 v6, s46, v3\nv_xor_b32 v7, 0x4000, v6")
    tail_adr = (f"v_and_b32 v4, 15, v1\nv_mul_u32_u24 v4, 144, v4\nv_lshrrev_b32 v5, 4, v1\nv_lshl_add_u32 v4, v5, 3, v4\n"
                f"s_mul_i32 s60, s48, {16*144}\ns_lshl_b32 s46, s49, 6\ns_add_u32 s60, s60, s46\ns_add_u32 s60, s60, {TB}\nv_add_u32 v4, s60, v4\n"
                f"v_lshrrev_b32 v5, 3, v1\nv_mul_u32_u24 v5, 144, v5\nv_and_b32 v8, 7, v1\nv_lshl_add_u32 v5, v8, 4, v5\ns_mul_i32 s60, s{W}, {8*144}\ns_add_u32 s60, s60, {TB}\nv_add_u32 v5, s60, v5").split("\n")
    for n in range(NS):
        need = [i for i, o in enumerate(vm) if o in (("a", n), ("w", n), ("f", n))]
        A(f"s_waitcnt vmcnt({len(vm) - 1 - max(need)})")
        if n == NZ:
            L = A.label("L_g2_ok")
            A(f"v_cmp_ne_u32 vcc, s{S_TAG}, v176\ns_cmp_eq_u64 vcc, 0\ns_cbranch_scc1 {L}")
            poll(A, [(172, "s47")], 176)
            A(f"s_mov_b32 s{S_RDY}, 1\n{L}:")
        A("s_barrier")
        stamp(A, f"st{n}")
        for r in reads(n, 0, 0): A(r)
        ops = []
        if n == NZ - 1: ops.append((("f", NZ), f"buffer_load_dword v176, v172, {WSR}, s47 offen sc1"))
        for tok in SCHED[n]:
            o = w_ops(int(tok[1])) if tok[0] == "w" else act_ops(int(tok[1]))
            if len(tok) == 3: o = o[:2] if tok[2] == "l" else o[2:]
            ops += o
        if n == C.xst:
            ops.append((("x", 0), f"buffer_load_dwordx4 v[240:243], v{V_G2X}, {XR}, s56 offen {C.nt_x2}"))
        if n == 7 and C.ytail:
            for q in range(2): A(f"ds_read_b128 v[{48+4*q}:{51+4*q}], v7 offset:{1024*q}")
            for i in range(8): fill.append(f"v_add_f32 v{48+i}, v{48+i}, v{184+i}")
            for i in range(8): fill.append(f"v_mul_f32 v{192+i}, {fhex(-1.4426950408889634)}, v{48+i}")
            for i in range(8): fill.append(f"v_exp_f32 v{192+i}, v{192+i}")
            for i in range(8): fill.append(f"v_add_f32 v{192+i}, 1.0, v{192+i}")
            for i in range(8): fill.append(f"v_rcp_f32 v{192+i}, v{192+i}")
            for i in range(8): fill.append(f"v_mul_f32 v{48+i}, v{48+i}, v{192+i}")
            fill += tail_adr
        slots = [[] for _ in range(16)]
        for i, op in enumerate(ops): slots[(i * 16) // max(len(ops), 8) if len(ops) > 8 else 2 * i].append(op)
        for k in range(4):
            st = k & 1
            nxt = reads(n, k + 1, st ^ 1) if k < 3 else []
            for nb in range(4):
                if nb % 2 == 0: A(f"s_waitcnt lgkmcnt({4 - 2*nb + len(nxt[0:2*nb])})")
                d = WF + 16 * st + 4 * nb; a = ACT + 16 * (n & 3) + 4 * k
                cb = ACC + (16 if n >= 7 else 0) + 4 * nb
                c = f"v[{cb}:{cb+3}]"
                A(f"v_mfma_f32_16x16x32_bf16 {c}, v[{d}:{d+3}], v[{a}:{a+3}], {0 if (n in (0, 7) and k == 0) else c}")
                for r in nxt[2*nb:2*nb+2]: A(r)
                for op in slots[4 * k + nb]: emit(op)
                if k or n == 8:
                    for _ in range(3):
                        if fill: A(fill.pop(0))
        if n == 6 and C.ytail:
            L1 = A.label("L_g2_y1"); L2 = A.label("L_g2_yj")
            A(f"s_cmp_eq_u32 s49, 1\ns_cbranch_scc1 {L1}")
            for (lab, keep) in ((None, 0), (L1, 8)):
                if lab: A(f"{lab}:")
                for q in range(2): A(f"ds_write_b128 v6, v[{ACC+8-keep+4*q}:{ACC+11-keep+4*q}] offset:{1024*q}")
                for i in range(0, 8, 2): A(f"v_mov_b64 v[{184+i}:{185+i}], v[{ACC+keep+i}:{ACC+keep+i+1}]")
                if not lab: A(f"s_branch {L2}")
            A(f"{L2}:\ns_waitcnt lgkmcnt(0)")
    assert not fill
    stamp(A, "g2m")
    P = lambda r: f"v[{r}:{r+1}]"
    L1 = A.label("L_g2_k1"); L2 = A.label("L_g2_j")
    A(f"s_cmp_eq_u32 s49, 1\ns_cbranch_scc1 {L1}")
    for (lab, keep) in ((None, 0), (L1, 8)):
        if lab: A(f"{lab}:")
        send = 8 - keep
        regs = (ACC + send, ACC + send + 4, ACC + 16 + send, ACC + 20 + send)
        for q in range(2 if C.ytail else 0, 4): A(f"ds_write_b128 v6, v[{regs[q]}:{regs[q]+3}] offset:{1024*q}")
        A("s_waitcnt lgkmcnt(0)\ns_barrier")
        for q in range(2 if C.ytail else 0, 4): A(f"ds_read_b128 v[{48+4*q}:{51+4*q}], v7 offset:{1024*q}")
        if not C.ytail:
            A("s_waitcnt lgkmcnt(2)")
            for i in range(0, 8, 2): A(f"v_pk_add_f32 {P(48+i)}, {P(48+i)}, {P(ACC+keep+i)}")
        A("s_waitcnt lgkmcnt(0)")
        for i in range(0, 8, 2): A(f"v_pk_add_f32 {P(56+i)}, {P(56+i)}, {P(ACC+16+keep+i)}")
        if not lab: A(f"s_branch {L2}")
    A(f"{L2}:")
    if not C.ytail:
        for i in range(8): A(f"v_mul_f32 v{64+i}, {fhex(-1.4426950408889634)}, v{48+i}")
        for i in range(8): A(f"v_exp_f32 v{64+i}, v{64+i}")
        for l in tail_adr: A(l)
        for i in range(8): A(f"v_add_f32 v{64+i}, 1.0, v{64+i}")
        for i in range(8): A(f"v_rcp_f32 v{64+i}, v{64+i}")
        for i in range(0, 8, 2): A(f"v_pk_mul_f32 {P(48+i)}, {P(48+i)}, {P(64+i)}")
    for i in range(0, 8, 2): A(f"v_pk_mul_f32 {P(56+i)}, {P(56+i)}, {P(48+i)}")
    for q in range(4): A(f"v_cvt_pk_bf16_f32 v{8+q}, v{56+2*q}, v{57+2*q}")
    A("ds_write_b64 v4, v[8:9]\nds_write_b64 v4, v[10:11] offset:32")
    A("s_waitcnt vmcnt(0)")
    for q in range(4): A(f"v_lshlrev_b32 v{72+2*q}, 16, v{240+q}\nv_and_b32 v{73+2*q}, 0xffff0000, v{240+q}")
    A("s_waitcnt lgkmcnt(0)\ns_barrier\nds_read_b128 v[8:11], v5\ns_waitcnt lgkmcnt(0)")
    for q in range(4): A(f"v_lshlrev_b32 v{64+2*q}, 16, v{8+q}\nv_and_b32 v{65+2*q}, 0xffff0000, v{8+q}")
    for i in range(0, 8, 2): A(f"v_pk_add_f32 {P(72+i)}, {P(72+i)}, {P(64+i)}")
    for q in range(4): A(f"v_cvt_pk_bf16_f32 v{8+q}, v{72+2*q}, v{73+2*q}")
    A(f"buffer_store_dwordx4 v[8:11], v{V_G2X}, {BR}, s56 offen {C.outf}")
    L = A.label("L_ep")
    A(f"s_cmp_lg_u32 s{S_WG}, 0\ns_cbranch_scc1 {L}\ns_mov_b32 s57, 0")
    set_flag(A, 57, 16)
    A(f"{L}:")

HDR = open("recurrent_scan__spectral_gfnet__geglu_ffn__prompt.s.ref").read().split("; Override")[0]
def gen(**kw):
    for k, v in kw.items(): setattr(C, k, v)
    A = Asm()
    A(HDR.rstrip())
    A("; @launch grid=(256,1,1) block=(512,1,1) lds=163840")
    A('.amdgcn_target "amdgcn-amd-amdhsa--gfx950"\n.text')
    kernel_begin(A, KN)
    prologue(A)
    phase_p0(A)
    phase_g1(A)
    A("s_branch L_g2\nL_cf:")
    phase_cf(A)
    A("L_g2:")
    phase_g2(A)
    if C.delay:
        A(f"s_memtime s[70:71]\ns_waitcnt lgkmcnt(0)\nL_dly:\ns_memtime s[72:73]\ns_waitcnt lgkmcnt(0)\ns_sub_u32 s72, s72, s70\ns_cmp_lt_u32 s72, {C.delay}\ns_cbranch_scc1 L_dly")
    if C.echo:
        A(f"s_memrealtime s[72:73]\ns_waitcnt lgkmcnt(0)")
        if C.echo == "end": A("s_mov_b32 s84, s72")
        A(f"s_sub_u32 s84, s84, s82\ns_mul_i32 s84, s84, {C.echo_k}")
        A(f"L_echo:\ns_memrealtime s[74:75]\ns_waitcnt lgkmcnt(0)\ns_sub_u32 s74, s74, s72\ns_cmp_lt_u32 s74, s84\ns_cbranch_scc1 L_echo")
    if C.dbgclk:
        A(f"s_cmp_lg_u32 s{S_WG}, 0\ns_cbranch_scc1 L_done\ns_cmp_lg_u32 s{S_WAVE}, 0\ns_cbranch_scc1 L_done")
        A("s_memtime s[74:75]\ns_memrealtime s[76:77]\ns_waitcnt lgkmcnt(0)\ns_sub_u32 s74, s74, s80\ns_sub_u32 s76, s76, s82")
        srd(A, S_A, P_DBG, 256)
        A(f"v_mov_b32 v2, 0\nv_mov_b32 v4, s74\nv_mov_b32 v5, s76\nbuffer_store_dwordx2 v[4:5], v2, {AR}, 0 offen")
    diag_end(A)
    A("L_done:\ns_endpgm")
    A('.section .rodata,"a"\n.p2align 6')
    A(descriptor(KN, 256, 102, 256))
    return hazard.fix(A.text(), verbose=False)
if __name__ == "__main__":
    kw = dict(a.split("=") for a in sys.argv[2:])
    kw = {k: (int(v) if v.isdigit() and k not in ("perm", "g2map") else v.replace("_", "")) for k, v in kw.items()}
    open(sys.argv[1], "w").write(gen(**kw))
```

```python
import struct, sys
from asmgen import *
import hazard

WS_FL = 0x0
FL_W = 0x1000
FL_B = 0x9000
FL_H = 0x11000
FL_C = 0x19000
WS_ST = 0x0100000
WS_Z  = 0x0300000
WS_WP = 0x0500000
WS_G  = 0x0700000
WS_ZP = 0x0800000
WS_H  = 0x0A00000
WS_DIAG = 0x1200000
WS_SIZE = 0x1400000
TAGK = 0x3C6EF35F

def fhex(x): return "0x%08x" % struct.unpack("<I", struct.pack("<f", x))[0]
S_WS, S_X, S_A, S_B = 4, 8, 12, 16
S_WAVE, S_WG, S_TAG, S_SLOT = 20, 21, 22, 23
S_PTR = 24
P_X, P_WR, P_WI, P_BX, P_WG, P_WU, P_WD, P_OUT, P_DBG, P_WS = [S_PTR + 2 * i for i in range(10)]
S_RT, S_CT, S_WOFF, S_RDY, S_XCD, S_SPIN = 64, 65, 66, 67, 68, 69
S_WLDS = 3
WSR = f"s[{S_WS}:{S_WS+3}]"; XR = f"s[{S_X}:{S_X+3}]"; AR = f"s[{S_A}:{S_A+3}]"; BR = f"s[{S_B}:{S_B+3}]"
S_C = 96; CR = f"s[{S_C}:{S_C+3}]"
LDS_P0 = 98304
SLOT = 49152
LDS_CS = 147456
LDS_SINK = 152576
LDS_ST = 160768

class Cfg:
    diag = False
    g1map = "col"
    g2map = "84"
    nt_x = ""; nt_x2 = ""; nt_w = "nt"; nt_g1w = ""
    E1, E2 = 2, 3
    D = 8
    xst = 6
    skew = -1
    fast = 0
    nfast = 2
    onepass = 0
    prio = 9
    prio0 = 9
    prioe = 9
    prio2 = 9
    prioc = 9
    psleep = 0
    nsl = 5
    ytail = 0
    csm = "m"
    rt = 0
    fbgo = 1
    a0pos = 1
    g1pos = 1
    halfpf = 1
    cfpk = 0
    wmax = 0
    sched = "R"
    sj = 4
    wj = 0
    wd = 2
    outf = "nt"
    cfstage = 0
    cfw0 = 1
    zfirst = 1
    fbj = 0
    a0early = 0
    bulk = 1
    cpf = 1
    rotc = 0
    rotr = 1
    perm = "01452367"
    j0early = 1
    delay = 0
    echo = ""
    echo_k = 1
    dbgclk = 0
    la2 = 3
    dbg = ""
    sc_act = "sc1"
    rot2 = 0
    nepi = 0
    pf_start, pf_step = 24, 2
    stamps = "x,p0end,go,main,epi,flag2,hrdy,st0,st8"
C = Cfg()

def stamp(A, name):
    if C.echo == name: A("s_memrealtime s[84:85]")
    if not C.diag: return
    names = ["entry"] + C.stamps.split(",") + ["end"]
    assert len(names) <= 11
    if name in names:
        n = names.index(name)
        A(f"{'s_memrealtime' if C.rt else 's_memtime'} s[{74+2*n}:{75+2*n}]")
def diag_end(A):
    if not C.diag: return
    A("s_waitcnt vmcnt(0)")
    stamp(A, "end")
    A("s_memrealtime s[72:73]\ns_waitcnt lgkmcnt(0)")
    A(f"s_lshl_b32 s3, s{S_WG}, 10\ns_lshl_b32 s44, s{S_WAVE}, 7\ns_add_u32 s3, s3, s44\ns_add_u32 s3, s3, {WS_DIAG}")
    A("v_mov_b32 v2, 0")
    for i, sreg in enumerate([70, 72, S_RDY] + [74 + 2*k for k in range(11)]):
        A(f"v_mov_b32 v3, s{sreg}\nbuffer_store_dword v3, v2, {WSR}, s3 offen offset:{4*i}")

def srd(A, s, ptr, nbytes):
    A(f"s_mov_b32 s{s}, s{ptr}\ns_and_b32 s{s+1}, s{ptr+1}, 0xffff\ns_mov_b32 s{s+2}, {nbytes}\ns_mov_b32 s{s+3}, 0x00020000")
def cos_batch(A, regs, mask, scale):
    for r in regs: A(f"v_and_b32 v{r}, {mask}, v{r}")
    for r in regs: A(f"v_cvt_f32_u32 v{r}, v{r}")
    for r in regs: A(f"v_mul_f32 v{r}, {fhex(scale)}, v{r}")
    for r in regs: A(f"v_cos_f32 v{r}, v{r}")
def wave_sum(A, v, sdst):
    for mod in ("row_shr:1 row_mask:0xf", "row_shr:2 row_mask:0xf", "row_shr:4 row_mask:0xf", "row_shr:8 row_mask:0xf",
                "row_bcast:15 row_mask:0xa", "row_bcast:31 row_mask:0xc"):
        A(f"v_add_f32_dpp v{v}, v{v}, v{v} {mod} bank_mask:0xf")
    A(f"v_readlane_b32 s{sdst}, v{v}, 63")
def set_flag(A, soff_expr_sreg, vt=3, anywave=False):
    L = A.label("L_fl")
    if not anywave: A(f"s_cmp_lg_u32 s{S_WAVE}, 0\ns_cbranch_scc1 {L}")
    A(f"v_mov_b32 v{vt}, s{S_TAG}\nv_lshlrev_b32 v{vt+1}, 2, v1\ns_mov_b32 exec_hi, 0")
    A(f"buffer_store_dword v{vt}, v{vt+1}, {WSR}, s{soff_expr_sreg} offen sc1")
    A("s_mov_b64 exec, -1")
    A(f"{L}:")
def poll(A, groups, vt, once=False):
    L = A.label("L_poll"); Lx = A.label("L_pollx")
    if not once: A(f"s_mov_b32 s{S_SPIN}, 0\n{L}:")
    for n, (va, so) in enumerate(groups):
        A(f"buffer_load_dword v{vt+n}, v{va}, {WSR}, {so} offen sc1")
    A("s_waitcnt vmcnt(0)")
    for n in range(1, len(groups)):
        A(f"v_xor_b32 v{vt+n}, s{S_TAG}, v{vt+n}")
    A(f"v_xor_b32 v{vt}, s{S_TAG}, v{vt}")
    for n in range(1, len(groups)):
        A(f"v_or_b32 v{vt}, v{vt}, v{vt+n}")
    A(f"v_cmp_ne_u32 vcc, 0, v{vt}")
    if once:
        A(f"s_cmp_eq_u64 vcc, 0\ns_cselect_b32 s{S_RDY}, 1, 0")
    else:
        A(f"s_cmp_eq_u64 vcc, 0\ns_cbranch_scc1 {Lx}")
        if C.psleep: A(f"s_sleep {C.psleep}")
        A(f"s_add_u32 s{S_SPIN}, s{S_SPIN}, 1\ns_cmp_lt_u32 s{S_SPIN}, 0x200000\ns_cbranch_scc1 {L}")
        A(f"{Lx}:")

V_WDMA, V_ADE, V_ADO = 146, 147, 148
S_ST0 = 2
S_AOFF = 58
def g1_stage(A, j, sreg):
    A(f"s_add_u32 s{sreg}, s{S_ST0}, {int(C.perm[j])}\ns_and_b32 s{sreg}, s{sreg}, 7")
def g1w_ops(j):
    sl = (j % 3) * SLOT
    if "W" in C.dbg: j = 0
    return [f"s_add_u32 s60, s{S_ST0}, {int(C.perm[j])}\ns_and_b32 s60, s60, 7\ns_mul_i32 s60, s60, {64*3584}\ns_add_u32 s60, s60, s{S_WOFF}\n"
            f"s_add_u32 m0, s{S_WLDS}, {sl}\nbuffer_load_dwordx4 v{V_WDMA}, {AR}, s60 offen {C.nt_g1w} lds",
            f"s_add_u32 m0, s{S_WLDS}, {sl + 8192}\nbuffer_load_dwordx4 v{V_WDMA}, {BR}, s60 offen {C.nt_g1w} lds"]
def g1a_ops(j):
    sl = (j % 3) * SLOT + 16384
    if "A" in C.dbg: j = 0
    L = []
    for i in range(4):
        pre = (f"s_add_u32 s61, s{S_ST0}, {int(C.perm[j])}\ns_and_b32 s61, s61, 7\ns_lshl_b32 s61, s61, 7\ns_add_u32 s61, s61, s{S_AOFF}\ns_lshl_b32 s59, s{S_WLDS}, 2\n" if i == 0
               else f"s_add_u32 s61, s61, {(4 if i & 1 else 12) * 1024}\n")
        L.append(pre + f"s_add_u32 m0, s59, {sl + i*1024}\nbuffer_load_dwordx4 v{V_ADO if i & 1 else V_ADE}, {XR}, s61 offen lds")
    return L

def prologue(A):
    if C.dbgclk or C.echo or C.skew >= 0: A("s_memtime s[80:81]\ns_memrealtime s[82:83]\ns_memrealtime s[84:85]")
    if C.diag:
        for k in range(11): A(f"s_mov_b32 s{74+2*k}, 0")
        A("s_memrealtime s[70:71]"); stamp(A, "entry")
    A("s_cmp_ge_u32 s2, 256\ns_cbranch_scc1 L_done")
    A(f"s_load_dwordx16 s[{S_PTR}:{S_PTR+15}], s[0:1], 0")
    A(f"s_load_dwordx4 s[{S_PTR+16}:{S_PTR+19}], s[0:1], 64")
    A("v_lshrrev_b32 v2, 6, v0\nv_and_b32 v1, 63, v0")
    A(f"v_readfirstlane_b32 s{S_WAVE}, v2")
    A(f"s_mov_b32 s{S_WG}, s2\ns_and_b32 s{S_XCD}, s2, 7\ns_lshr_b32 s{S_SLOT}, s2, 3\ns_mov_b32 s{S_RDY}, 0")
    code_prefetch(A, KN, "L_done", 112)
    if C.g1map == "col":
        A(f"s_mul_i32 s44, s{S_XCD}, 28\ns_add_u32 s44, s44, s{S_SLOT}\ns_and_b32 s{S_RT}, s44, 7\ns_lshr_b32 s{S_CT}, s44, 3")
    else:
        A(f"s_and_b32 s44, s{S_XCD}, 1\ns_lshl_b32 s44, s44, 2\ns_and_b32 s45, s{S_SLOT}, 3\ns_add_u32 s{S_RT}, s44, s45")
        A(f"s_lshr_b32 s44, s{S_XCD}, 1\ns_mul_i32 s44, s44, 7\ns_lshr_b32 s45, s{S_SLOT}, 2\ns_add_u32 s{S_CT}, s44, s45")
    A(f"s_mul_i32 s44, s{S_CT}, {C.rotc}\ns_mul_i32 s45, s{S_RT}, {C.rotr}\ns_add_u32 s44, s44, s45\ns_and_b32 s{S_ST0}, s44, 7")
    W = S_WAVE
    A(f"s_lshr_b32 s44, s{S_WG}, 2          ; r2")
    A(f"s_and_b32 s45, s{S_WG}, 3           ; mh")
    A(f"s_lshr_b32 s46, s45, 1\ns_lshl_b32 s46, s46, 4")
    A(f"s_and_b32 s47, s45, 1\ns_lshl_b32 s47, s47, 2\ns_add_u32 s46, s46, s47")
    A(f"s_lshr_b32 s47, s{W}, 2\ns_lshl_b32 s47, s47, 3\ns_add_u32 s46, s46, s47")
    A(f"s_and_b32 s47, s{W}, 3\ns_add_u32 s46, s46, s47     ; r1")
    A("s_lshl_b32 s46, s46, 6\ns_add_u32 s46, s46, s44\ns_lshl_b32 s56, s46, 10")
    A("v_lshlrev_b32 v2, 4, v1")
    A("s_waitcnt lgkmcnt(0)")
    srd(A, S_X, P_X, 2097152)
    A(f"buffer_load_dwordx4 v[4:7], v2, {XR}, s56 offen {C.nt_x}")
    A(f"s_load_dword s{S_TAG}, s[{P_WS}:{P_WS+1}], 0")
    srd(A, S_WS, P_WS, WS_SIZE)
    if C.skew >= 0:
        A(f"s_cmp_lg_u32 s{S_WG}, 0\ns_cbranch_scc1 L_sk0\nv_mov_b32 v8, s82\nv_mov_b32 v9, 0\nbuffer_store_dword v8, v9, {WSR}, 0 offen offset:512 sc1\ns_waitcnt vmcnt(0)\nL_sk0:")

def code_prefetch(A, start, end, vt):
    Lh = A.label("L_cph")
    A(f"s_getpc_b64 s[60:61]\n{Lh}:")
    A(f"s_mul_i32 s59, s{S_SLOT}, 1280\ns_mul_i32 s57, s{S_WAVE}, 160\ns_add_u32 s59, s59, s57\nv_and_b32 v{vt}, 15, v1\nv_lshl_add_u32 v{vt}, v{vt}, 4, s59\nv_min_u32 v{vt}, {end} - {start} - 16, v{vt}")
    A(f"s_add_u32 s60, s60, {start} - {Lh}\ns_addc_u32 s61, s61, {'-1' if start == KN else '0'}")
    A(f"v_mov_b32 v{vt+1}, s61\nv_add_co_u32 v{vt}, vcc, s60, v{vt}\nv_addc_co_u32 v{vt+1}, vcc, 0, v{vt+1}, vcc")
    A(f"global_load_dwordx4 v[{vt+2}:{vt+5}], v[{vt}:{vt+1}], off")

def gemm_only(A, fn):
    L = A.label("L_go")
    A(f"s_cmp_ge_u32 s{S_SLOT}, 28\ns_cbranch_scc1 {L}")
    fn()
    A(f"{L}:")
def wait_role(A, n_gemm, n_cf):
    L = A.label("L_wr"); L2 = A.label("L_wr")
    A(f"s_cmp_ge_u32 s{S_SLOT}, 28\ns_cbranch_scc1 {L}\ns_waitcnt vmcnt({n_gemm})\ns_branch {L2}\n{L}:\ns_waitcnt vmcnt({n_cf})\n{L2}:")

def setprio(A, mode):
    if mode == 9: return
    A("s_setprio 0")
    if mode:
        L = A.label("L_pr")
        A(f"s_cmp_{'lt' if mode == 1 else 'ge'}_u32 s{S_WAVE}, 4\ns_cbranch_scc1 {L}\ns_setprio 1\n{L}:")

def phase_p0(A):
    setprio(A, C.prio0)
    W = S_WAVE
    ZL = 2 * SLOT; XNL = 2 * SLOT + 16384; CL = XNL + 8192; WL = 151552; STL = WL + 8320
    B1RE, B1IM, A2RE, A2IM, S2RE, S2IM, TWC, TWS = 64, 68, 72, 76, 80, 84, 88, 92
    T = 32
    srd(A, S_A, P_WG, 512 * 3584)
    srd(A, S_B, P_WU, 512 * 3584)
    A("v_lshrrev_b32 v8, 3, v1")
    A("v_bfe_u32 v9, v1, 4, 1\nv_lshlrev_b32 v9, 2, v9\nv_and_b32 v10, 7, v1\nv_xor_b32 v9, v9, v10")
    A(f"v_mul_u32_u24 v11, 3584, v8\nv_lshl_add_u32 v{V_WDMA}, v9, 4, v11")
    A(f"s_mul_i32 s47, s{W}, {8*3584}\ns_lshl_b32 s52, s{S_CT}, 7\ns_add_u32 s{S_WOFF}, s47, s52\ns_lshl_b32 s{S_WLDS}, s{W}, 10")
    def w_flat():
        A(f"s_cmp_lt_u32 s{W}, 4\ns_cselect_b32 s{S_C}, s{P_WR}, s{P_WI}\ns_cselect_b32 s{S_C+1}, s{P_WR+1}, s{P_WI+1}")
        A(f"s_and_b32 s{S_C+1}, s{S_C+1}, 0xffff\ns_mov_b32 s{S_C+2}, {2048*514}\ns_mov_b32 s{S_C+3}, 0x00020000")
        A(f"s_mul_i32 s53, s{S_WG}, 4112\ns_and_b32 s54, s{W}, 3\ns_lshl_b32 s54, s54, 10\ns_add_u32 s55, s53, s54")
        A(f"s_lshr_b32 s61, s{W}, 2\ns_mul_i32 s61, s61, 4160\ns_add_u32 s61, s61, {WL}\ns_add_u32 m0, s61, s54")
        A(f"buffer_load_dwordx4 v2, {CR}, s55 offen {C.nt_w} lds")
        A("s_add_u32 m0, s61, 4096\ns_add_u32 s53, s53, 4096\ns_mov_b64 exec, 1")
        A(f"buffer_load_dwordx4 v2, {CR}, s53 offen {C.nt_w} lds")
        A("s_mov_b64 exec, -1")
    def bulk():
        L = A.label("L_bk"); L2 = A.label("L_bk")
        A(f"s_cmp_ge_u32 s{S_SLOT}, 28\ns_cbranch_scc1 {L}")
        for o in g1w_ops(0): A(o)
        A(f"{L}:")
        w_flat()
    if C.bulk == 0: bulk()
    A("v_lshrrev_b32 v9, 2, v8\nv_lshlrev_b32 v9, 3, v9\nv_and_b32 v8, 3, v8\nv_add_u32 v8, v8, v9\nv_lshlrev_b32 v8, 10, v8")
    A(f"v_lshrrev_b32 v9, 4, v1\nv_xor_b32 v9, v9, v10\nv_lshl_add_u32 v{V_ADE}, v9, 4, v8\nv_xor_b32 v{V_ADO}, 64, v{V_ADE}")
    A(f"s_lshl_b32 s47, s{S_RT}, 3\ns_add_u32 s47, s47, s{W}\ns_lshl_b32 s{S_AOFF}, s47, 15")
    if C.a0early == 1: gemm_only(A, lambda: [A(o) for o in g1a_ops(0)])
    M0 = "s[62:63]"
    A("v_and_b32 v30, 15, v1\nv_lshrrev_b32 v29, 4, v1")
    A(f"v_cmp_eq_u32 {M0}, 0, v30\nv_cmp_gt_u32 vcc, 8, v30")
    A("v_cvt_f32_u32 v26, v30\nv_cvt_f32_u32 v27, v29\nv_mul_f32 v27, 4.0, v27      ; k, 4g")
    Lc = A.label("L_c"); cases = [A.label("L_c") for _ in range(7)]
    A("s_mov_b32 s47, 0")
    for n in range(1, 7):
        A(f"s_cmp_eq_u32 s{W}, {n}\ns_cbranch_scc1 {cases[n]}")
    A(f"; wave 0 (and 7): B1RE\nv_mul_f32 v20, {fhex(1/32)}, v26\nv_mov_b32 v22, 0\ns_mov_b32 s47, {fhex(16.0)}\nv_mov_b32 v21, v20\nv_mov_b32 v23, 0\ns_branch {Lc}")
    A(f"{cases[1]}:\nv_mul_f32 v20, {fhex(1/32)}, v26\nv_mov_b32 v22, {fhex(0.25)}\nv_cndmask_b32 v20, v20, 0.5, {M0}\nv_cndmask_b32 v22, v22, 0, {M0}")
    A(f"s_mov_b32 s47, {fhex(16.0)}\nv_mov_b32 v21, v20\nv_mov_b32 v23, v22\ns_branch {Lc}")
    A(f"{cases[2]}:\nv_mul_f32 v20, {fhex(1/16)}, v26\nv_mov_b32 v22, 0\nv_mov_b32 v23, {fhex(0.75)}\nv_mov_b32 v21, v20\ns_branch {Lc}")
    A(f"{cases[3]}:\nv_mul_f32 v20, {fhex(1/16)}, v26\nv_cndmask_b32 v23, 0.5, 0, vcc\nv_add_f32 v22, {fhex(0.25)}, v23\nv_mov_b32 v21, v20\ns_branch {Lc}")
    for n in (4, 5):
        A(f"{cases[n]}:\nv_mul_f32 v20, {fhex(1/16)}, v26\nv_cndmask_b32 v21, v20, 0.5, {M0}\nv_sub_f32 v24, {fhex(31/32)}, v20")
        A("v_cndmask_b32 v20, 0, v21, vcc\nv_cndmask_b32 v21, v24, 0, vcc")
        if n == 4: A(f"v_mov_b32 v24, {fhex(0.25)}\nv_cndmask_b32 v22, v24, 0, vcc\nv_cndmask_b32 v23, 0, v24, vcc")
        else: A(f"v_mov_b32 v22, {fhex(0.25)}\nv_mov_b32 v23, v22")
        A(f"s_branch {Lc}")
    A(f"{cases[6]}:\nv_mul_f32 v20, {fhex(1/512)}, v26\nv_mov_b32 v22, 0\nv_mov_b32 v23, {fhex(0.75)}\nv_mov_b32 v21, v20")
    A(f"{Lc}:")
    A("v_fma_f32 v22, v27, v20, v22\nv_add_f32 v24, s47, v27\nv_fma_f32 v23, v24, v21, v23")
    for (b, v, o) in ((22, 20, T), (23, 21, T + 4)):
        A(f"v_cos_f32 v{o}, v{b}\nv_add_f32 v{o+1}, v{b}, v{v}\nv_fma_f32 v{o+2}, v{v}, 2.0, v{b}\nv_fmamk_f32 v{o+3}, v{v}, {fhex(3.0)}, v{b}")
        for q in (1, 2, 3): A(f"v_cos_f32 v{o+q}, v{o+q}")
    A(f"s_add_u32 s47, s{S_WLDS}, {CL}\nv_add_u32 v24, s47, v2")
    L6 = A.label("L_c6"); L7 = A.label("L_c7")
    A(f"s_cmp_eq_u32 s{W}, 6\ns_cbranch_scc1 {L6}\ns_cmp_eq_u32 s{W}, 7\ns_cbranch_scc1 {L7}")
    for q in range(4): A(f"v_cvt_pk_bf16_f32 v{T+q}, v{T+2*q}, v{T+2*q+1}")
    A(f"ds_write_b128 v24, v[{T}:{T+3}]\ns_branch {L7}")
    A(f"{L6}:\nds_write_b128 v24, v[{T}:{T+3}]\nds_write_b128 v24, v[{T+4}:{T+7}] offset:1024\n{L7}:")
    A(f"s_add_u32 s61, s{S_WLDS}, {XNL}")
    A("v_add_u32 v96, s61, v2\nv_lshl_add_u32 v97, v1, 3, s61")
    A(f"v_add_u32 v108, {CL}, v2")
    A(f"v_lshlrev_b32 v100, 11, v29\nv_lshl_add_u32 v100, v30, 5, v100\ns_lshl_b32 s61, s{W}, 1\ns_add_u32 s61, s61, {ZL}")
    A("v_add_u32 v100, s61, v100")
    A(f"s_waitcnt lgkmcnt(0)\ns_barrier\ns_add_u32 s{S_TAG}, s{S_TAG}, {TAGK}")
    for n in range(8): A(f"ds_read_b128 v[{64+4*n}:{67+4*n}], v108 offset:{1024*n}")
    if C.a0early == 2: gemm_only(A, lambda: [A(o) for o in g1a_ops(0)])
    if C.bulk == 1: bulk()
    A(f"v_lshlrev_b32 v101, 4, v0\nv_add_u32 v101, {ZL}, v101")
    A("s_and_b32 s61, s44, 15\nv_and_b32 v103, 15, v0\nv_xor_b32 v102, s61, v103\nv_lshlrev_b32 v102, 4, v102")
    A("v_lshrrev_b32 v12, 4, v0             ; cg")
    A("v_lshl_add_u32 v102, v12, 16, v102")
    A(f"s_lshl_b32 s46, s{S_WG}, 8\ns_add_u32 s45, s46, {WS_Z}\ns_add_u32 s46, s46, {WS_WP}")
    A("v_bfe_u32 v13, v0, 4, 4\nv_and_b32 v12, 15, v0\nv_lshlrev_b32 v14, 5, v13\nv_add_u32 v20, v14, v12\nv_sub_u32 v15, 0x200, v14")
    A("v_cmp_eq_u32 vcc, 0, v12\nv_cndmask_b32 v21, v12, 16, vcc\nv_sub_u32 v15, v15, v21\nv_cmp_gt_u32 vcc, 8, v13\nv_cndmask_b32 v20, v15, v20, vcc")
    A("v_and_b32 v12, 255, v0\nv_mov_b32 v15, 0x100\nv_cmp_eq_u32 vcc, 0, v12\nv_cndmask_b32 v20, v20, v15, vcc      ; bin")
    A(f"s_lshr_b32 s61, s{W}, 2\ns_mul_i32 s60, s61, {4*514}\ns_add_u32 s60, s60, {WL}\nv_lshl_add_u32 v127, v20, 1, s60")
    A(f"s_lshl_b32 s60, s{S_WG}, 1\ns_add_u32 s60, s60, s61\ns_and_b32 s60, s60, 7\nv_and_b32 v13, 7, v0\nv_xor_b32 v13, s60, v13\nv_lshlrev_b32 v13, 4, v13")
    A("v_lshrrev_b32 v12, 3, v12\nv_lshl_add_u32 v103, v12, 16, v13\ns_lshl_b32 s61, s61, 7\ns_add_u32 s46, s46, s61")
    A(f"s_lshl_b32 s57, s{S_WG}, 7\ns_add_u32 s57, s57, {FL_B}")
    A(f"v_lshlrev_b32 v126, 3, v1\nv_and_b32 v13, 63, v126\nv_add_u32 v99, {STL}, v13\ns_lshl_b32 s55, s{S_WG}, 7\ns_add_u32 s55, s55, {WS_ST}")
    A("v_mov_b32 v3, v102")
    if C.g1pos == 0: g1_setup(A)
    A("; ---- P0: layernorm")
    stamp(A, "consts")
    if C.bulk < 2: wait_role(A, 4, 2)
    else:
        A("s_waitcnt vmcnt(0)"); bulk()
    stamp(A, "x")
    if C.halfpf:
        L = A.label("L_hp")
        A(f"s_add_u32 s60, s{S_SLOT}, 4\ns_and_b32 s61, s{S_XCD}, 1\ns_cselect_b32 s61, 4, 28\ns_sub_u32 s60, s60, s61\ns_cmp_ge_u32 s60, 4\ns_cbranch_scc1 {L}")
        A(f"s_add_u32 s60, s{S_ST0}, 4\ns_and_b32 s60, s60, 7\ns_mul_i32 s60, s60, {64*3584}\ns_add_u32 s60, s60, s{S_WOFF}\ns_add_u32 m0, s{S_WLDS}, 131072")
        A(f"buffer_load_dwordx4 v{V_WDMA}, {AR}, s60 offen {C.nt_g1w} lds\nbuffer_load_dwordx4 v{V_WDMA}, {BR}, s60 offen {C.nt_g1w} lds\n{L}:")
    for q in range(4):
        A(f"v_lshlrev_b32 v{T+2*q}, 16, v{4+q}\nv_and_b32 v{T+2*q+1}, 0xffff0000, v{4+q}")
    if C.onepass:
        A(f"v_readfirstlane_b32 s61, v{T}")
        for q in range(8): A(f"v_subrev_f32 v{T+16+q}, s61, v{T+q}")
        A(f"v_pk_add_f32 v[{T+8}:{T+9}], v[{T+16}:{T+17}], v[{T+18}:{T+19}]\nv_pk_add_f32 v[{T+10}:{T+11}], v[{T+20}:{T+21}], v[{T+22}:{T+23}]")
        A(f"v_pk_mul_f32 v[{T+12}:{T+13}], v[{T+16}:{T+17}], v[{T+16}:{T+17}]\nv_pk_mul_f32 v[{T+14}:{T+15}], v[{T+18}:{T+19}], v[{T+18}:{T+19}]")
        A(f"v_pk_add_f32 v[{T+8}:{T+9}], v[{T+8}:{T+9}], v[{T+10}:{T+11}]")
        A(f"v_pk_fma_f32 v[{T+12}:{T+13}], v[{T+20}:{T+21}], v[{T+20}:{T+21}], v[{T+12}:{T+13}]\nv_pk_fma_f32 v[{T+14}:{T+15}], v[{T+22}:{T+23}], v[{T+22}:{T+23}], v[{T+14}:{T+15}]")
        A(f"v_add_f32 v{T+8}, v{T+8}, v{T+9}\nv_pk_add_f32 v[{T+12}:{T+13}], v[{T+12}:{T+13}], v[{T+14}:{T+15}]\nv_mov_b32 v{T+9}, {fhex(1.0/512)}\nv_add_f32 v{T+12}, v{T+12}, v{T+13}")
        for mod in ("row_shr:1 row_mask:0xf", "row_shr:2 row_mask:0xf", "row_shr:4 row_mask:0xf", "row_shr:8 row_mask:0xf", "row_bcast:15 row_mask:0xa", "row_bcast:31 row_mask:0xc"):
            A(f"v_add_f32_dpp v{T+8}, v{T+8}, v{T+8} {mod} bank_mask:0xf\nv_add_f32_dpp v{T+12}, v{T+12}, v{T+12} {mod} bank_mask:0xf")
        A(f"v_readlane_b32 s60, v{T+8}, 63\nv_readlane_b32 s53, v{T+12}, 63")
        A(f"v_mul_f32 v{T+11}, s60, v{T+9}\nv_mul_f32 v{T+9}, s53, v{T+9}\nv_add_f32 v{T+10}, s61, v{T+11}\nv_fma_f32 v{T+9}, -v{T+11}, v{T+11}, v{T+9}\nv_max_f32 v{T+9}, 0, v{T+9}")
        A(f"v_cvt_pk_bf16_f32 v{T+10}, v{T+10}, v{T+10}\nv_lshlrev_b32 v{T+10}, 16, v{T+10}")
        for q in range(8): A(f"v_sub_f32 v{T+q}, v{T+q}, v{T+10}")
        for q in range(4): A(f"v_cvt_pk_bf16_f32 v{T+16+q}, v{T+2*q}, v{T+2*q+1}")
    else:
        A(f"v_pk_add_f32 v[{T+8}:{T+9}], v[{T}:{T+1}], v[{T+2}:{T+3}]\nv_pk_add_f32 v[{T+10}:{T+11}], v[{T+4}:{T+5}], v[{T+6}:{T+7}]")
        A(f"v_pk_add_f32 v[{T+8}:{T+9}], v[{T+8}:{T+9}], v[{T+10}:{T+11}]\nv_add_f32 v{T+8}, v{T+8}, v{T+9}")
        wave_sum(A, T + 8, 60)
        A(f"v_mov_b32 v{T+9}, {fhex(1.0/512)}\nv_mul_f32 v{T+9}, s60, v{T+9}")
        A(f"v_cvt_pk_bf16_f32 v{T+10}, v{T+9}, v{T+9}")
        for q in range(8): A(f"v_sub_f32 v{T+16+q}, v{T+q}, v{T+9}")
        A(f"v_lshlrev_b32 v{T+10}, 16, v{T+10}")
        A(f"v_mul_f32 v{T+8}, v{T+16}, v{T+16}\nv_mul_f32 v{T+11}, v{T+17}, v{T+17}")
        for q in range(2, 8, 2):
            A(f"v_fmac_f32 v{T+8}, v{T+16+q}, v{T+16+q}\nv_fmac_f32 v{T+11}, v{T+17+q}, v{T+17+q}")
        A(f"v_add_f32 v{T+8}, v{T+8}, v{T+11}")
        fill = [f"v_sub_f32 v{T+q}, v{T+q}, v{T+10}" for q in range(8)] + [f"v_cvt_pk_bf16_f32 v{T+16+q}, v{T+2*q}, v{T+2*q+1}" for q in range(4)]
        for n, mod in enumerate(("row_shr:1 row_mask:0xf", "row_shr:2 row_mask:0xf", "row_shr:4 row_mask:0xf", "row_shr:8 row_mask:0xf",
                    "row_bcast:15 row_mask:0xa", "row_bcast:31 row_mask:0xc")):
            A(fill[2*n]); A(fill[2*n+1])
            A(f"v_add_f32_dpp v{T+8}, v{T+8}, v{T+8} {mod} bank_mask:0xf")
        A(f"v_mov_b32 v{T+9}, {fhex(1.0/512)}")
        A(f"v_readlane_b32 s60, v{T+8}, 63")
    for q in range(2):
        A(f"v_lshlrev_b32 v{T+2*q}, 16, v{T+16+q}\nv_and_b32 v{T+2*q+1}, 0xffff0000, v{T+16+q}")
    if not C.onepass: A(f"v_mul_f32 v{T+9}, s60, v{T+9}")
    A(f"v_cvt_pk_bf16_f32 v{T+9}, v{T+9}, v{T+9}\nv_lshlrev_b32 v{T+9}, 16, v{T+9}")
    A(f"v_add_f32 v{T+9}, {fhex(1e-5)}, v{T+9}")
    A(f"v_cvt_pk_bf16_f32 v{T+9}, v{T+9}, v{T+9}\nv_lshlrev_b32 v{T+9}, 16, v{T+9}")
    A(f"v_sqrt_f32 v{T+9}, v{T+9}")
    A(f"v_lshlrev_b32 v{T+4}, 16, v{T+18}")
    A(f"v_cvt_pk_bf16_f32 v{T+9}, v{T+9}, v{T+9}\nv_lshlrev_b32 v{T+9}, 16, v{T+9}")
    A(f"v_rcp_f32 v{T+9}, v{T+9}")
    A(f"v_and_b32 v{T+5}, 0xffff0000, v{T+18}\nv_lshlrev_b32 v{T+6}, 16, v{T+19}\nv_and_b32 v{T+7}, 0xffff0000, v{T+19}")
    for q in range(8): A(f"v_mul_f32 v{T+q}, v{T+9}, v{T+q}")
    for q in range(4): A(f"v_cvt_pk_bf16_f32 v{4+q}, v{T+2*q}, v{T+2*q+1}")
    stamp(A, "ln")
    A("ds_write_b128 v96, v[4:7]")
    A(f"v_lshrrev_b32 v18, 16, v{T+10}\nv_or_b32 v18, v18, v{T+10}\nv_xor_b32 v18, 0x80008000, v18\nv_mov_b32 v19, v{T+9}")
    A(f"s_lshl_b32 s61, s{W}, 3\ns_add_u32 s61, s61, {STL}\nv_mov_b32 v14, s61\nds_write_b64 v14, v[18:19]")
    A("s_waitcnt lgkmcnt(0)")
    A("ds_read_b64_tr_b16 v[8:9], v97\nds_read_b64_tr_b16 v[10:11], v97 offset:512")
    if C.a0pos == 0: gemm_only(A, lambda: [A(o) for o in g1a_ops(0)])
    stamp(A, "iss1")
    A("s_waitcnt lgkmcnt(0)")
    A(f"v_mfma_f32_16x16x32_bf16 v[{T}:{T+3}], v[8:11], v[{B1RE}:{B1RE+3}], 0")
    A(f"v_mfma_f32_16x16x32_bf16 v[{T+4}:{T+7}], v[8:11], v[{B1IM}:{B1IM+3}], 0")
    for i in range(0, 4, 2):
        A(f"v_pk_mul_f32 v[{T+8+i}:{T+9+i}], v[{T+i}:{T+i+1}], v[{TWC+i}:{TWC+i+1}]\nv_pk_mul_f32 v[{T+12+i}:{T+13+i}], v[{T+4+i}:{T+5+i}], v[{TWC+i}:{TWC+i+1}]")
    for i in range(0, 4, 2):
        A(f"v_pk_fma_f32 v[{T+8+i}:{T+9+i}], v[{T+4+i}:{T+5+i}], v[{TWS+i}:{TWS+i+1}], v[{T+8+i}:{T+9+i}]")
        A(f"v_pk_fma_f32 v[{T+12+i}:{T+13+i}], v[{T+i}:{T+i+1}], v[{TWS+i}:{TWS+i+1}], v[{T+12+i}:{T+13+i}] neg_lo:[1,0,0] neg_hi:[1,0,0]")
    for q in range(4): A(f"v_cvt_pk_bf16_f32 v{8+q}, v{T+8+2*q}, v{T+9+2*q}")
    A(f"v_mfma_f32_16x16x32_bf16 v[{T}:{T+3}], v[{A2RE}:{A2RE+3}], v[8:11], 0")
    A(f"v_mfma_f32_16x16x32_bf16 v[{T+4}:{T+7}], v[{A2IM}:{A2IM+3}], v[8:11], 0")
    A(f"v_mfma_f32_16x16x32_bf16 v[{T+8}:{T+11}], v[{S2RE}:{S2RE+3}], v[8:11], 0")
    A(f"v_mfma_f32_16x16x32_bf16 v[{T+12}:{T+15}], v[{S2IM}:{S2IM+3}], v[8:11], 0")
    for i in range(8): A(f"v_cndmask_b32 v{T+i}, v{T+i}, v{T+8+i}, {M0}")
    for i in range(4): A(f"v_cvt_pk_bf16_f32 v{T+i}, v{T+i}, v{T+4+i}")
    for i in range(4):
        A(f"ds_write_b16 v100, v{T+i} offset:{512*i}\nds_write_b16_d16_hi v100, v{T+i} offset:{512*i+16}")
    stamp(A, "fft")
    A("s_mov_b32 s62, s46\ns_mov_b32 s63, s55\nv_mov_b32 v30, v127\nv_mov_b32 v17, v126\nv_mov_b32 v28, v103")
    if C.a0pos == 1: gemm_only(A, lambda: [A(o) for o in g1a_ops(0)])
    if C.g1pos == 1: g1_setup(A)
    stamp(A, "pre2")
    wait_role(A, 63, 0)
    A("s_waitcnt lgkmcnt(0)\ns_barrier")
    stamp(A, "b2")
    A("ds_read_b128 v[20:23], v101\nds_read_b64 v[18:19], v99")
    if C.a0pos == 2: gemm_only(A, lambda: [A(o) for o in g1a_ops(0)])
    A("s_waitcnt lgkmcnt(0)")
    zs = p0_stores(A)
    A(zs[0]); A(zs[2])
    stamp(A, "p0end")
    A(f"s_cmp_ge_u32 s{S_SLOT}, 28\ns_cbranch_scc1 L_cf")
    if C.a0pos == 3:
        for o in g1a_ops(0): A(o)
        if C.g1pos == 3: g1_setup(A)
    for o in g1w_ops(1) + g1a_ops(1): A(o)
    if C.g1pos == 2: g1_setup(A)
    if C.fbgo:
        A("s_waitcnt vmcnt(6)\ns_barrier")
        set_flag(A, 57, 16)
        A(f"s_sub_u32 s57, s57, {FL_B - FL_W}")
    else:
        L = A.label("L_w0"); L2 = A.label("L_w0")
        A(f"s_cmp_eq_u32 s{W}, 0\ns_cbranch_scc1 {L}\ns_waitcnt vmcnt(7)\ns_branch {L2}\n{L}:\ns_waitcnt vmcnt(8)\n{L2}:\ns_barrier")

def wp_gather():
    return [f"ds_read_u16 v{24+q}, v30 offset:{514*q}\nds_read_u16 v{4+q}, v30 offset:{4160+514*q}" for q in range(4)]
def p0_stores(A):
    a = f"buffer_store_dwordx4 v[20:23], v3, {WSR}, s45 offen sc1"
    L = A.label("L_p0_st")
    c = f"s_cmp_lg_u32 s{S_WAVE}, 0\ns_cbranch_scc1 {L}\ns_mov_b64 exec, 0xffff\nbuffer_store_dwordx2 v[18:19], v17, {WSR}, s63 offen sc1\ns_mov_b64 exec, -1\n{L}:"
    b = "\n".join(f"v_lshl_or_b32 v{24+q}, v{4+q}, 16, v{24+q}" for q in range(4)) + f"\nbuffer_store_dwordx4 v[24:27], v28, {WSR}, s62 offen sc1"
    if "z" in C.dbg: return [f"buffer_load_dword v20, v2, {WSR}, 0 offen", f"buffer_load_dword v20, v2, {WSR}, 0 offen", c]
    if "y" in C.dbg: return [a, f"buffer_load_dword v20, v2, {WSR}, 0 offen"]
    return [a, b, c]

def wd_prefetch_ops(A):
    srd(A, S_C, P_WD, 1792 * 1024)
    A(f"s_lshl_b32 s100, s{S_SLOT}, 16\ns_lshl_b32 s101, s{S_WAVE}, 13\ns_add_u32 s100, s100, s101")
    if C.g2map == "48":
        A(f"v_mov_b32 v159, v2\ns_mov_b32 s101, s{S_XCD}"); n, sh = 8, 10
    else:
        A(f"v_and_b32 v159, 31, v1\nv_lshlrev_b32 v159, 4, v159\nv_lshrrev_b32 v158, 5, v1\nv_lshl_add_u32 v159, v158, 10, v159")
        A(f"s_and_b32 s101, s{S_XCD}, 1\ns_lshl_b32 s101, s101, 9\ns_add_u32 s100, s100, s101\ns_lshr_b32 s101, s{S_XCD}, 1"); n, sh = 4, 11
    return [f"s_add_u32 m0, s{S_WLDS}, {LDS_SINK}\ns_lshl_b32 s60, s101, {sh}\ns_add_u32 s60, s60, s100\n"
            f"buffer_load_dwordx4 v159, {CR}, s60 offen lds\ns_add_u32 s101, s101, 1\ns_and_b32 s101, s101, {n-1}"] * n

V_G2W = 13
V_G2X = 244
def g2_setup(A, vw=V_G2W, vx=V_G2X, t0=14, t1=15):
    W = S_WAVE
    if C.g2map == "48":
        A(f"s_lshl_b32 s44, s{S_XCD}, 2\ns_and_b32 s45, s{S_SLOT}, 3\ns_add_u32 s44, s44, s45\ns_lshr_b32 s45, s{S_SLOT}, 2")
    else:
        A(f"s_lshr_b32 s44, s{S_XCD}, 1\ns_lshl_b32 s44, s44, 3\ns_and_b32 s45, s{S_SLOT}, 7\ns_add_u32 s44, s44, s45")
        A(f"s_and_b32 s45, s{S_XCD}, 1\ns_lshl_b32 s45, s45, 2\ns_lshr_b32 s46, s{S_SLOT}, 3\ns_add_u32 s45, s45, s46")
    A(f"s_and_b32 s48, s{W}, 3\ns_lshr_b32 s49, s{W}, 2")
    A("s_lshl_b32 s50, s44, 2\ns_add_u32 s50, s50, s48       ; rb16")
    srd(A, S_A, P_WD, 1792 * 1024)
    A(f"v_lshrrev_b32 v{vw}, 3, v1\nv_bfe_u32 v{t0}, v1, 4, 2\nv_lshlrev_b32 v{t0}, 1, v{t0}\nv_and_b32 v{t1}, 7, v1\nv_xor_b32 v{t0}, v{t0}, v{t1}")
    A(f"v_lshlrev_b32 v{vw}, 10, v{vw}\nv_lshl_add_u32 v{vw}, v{t0}, 4, v{vw}")
    A(f"s_lshl_b32 s46, s48, 15\ns_lshl_b32 s51, s45, 7\ns_add_u32 s51, s51, s46\ns_mul_i32 s55, s49, {896*1024}\ns_add_u32 s51, s51, s55")
    A("s_lshl_b32 s46, s48, 12\ns_lshl_b32 s55, s49, 14\ns_add_u32 s55, s55, s46")
    if C.rot2:
        if C.g2map == "48": A("s_cmp_eq_u32 s45, 7\ns_cselect_b32 s52, 0, s45")
        else: A(f"s_and_b32 s52, s45, 3\ns_mul_i32 s52, s52, {C.rot2}")
        A("s_mov_b32 s53, s52\ns_lshl_b32 s46, s52, 17\ns_add_u32 s51, s51, s46")
    A(f"v_lshrrev_b32 v{t0}, 3, v1\nv_and_b32 v{vx}, 3, v{t0}\nv_lshrrev_b32 v{t0}, 2, v{t0}\nv_lshl_or_b32 v{vx}, v{t0}, 3, v{vx}")
    A(f"v_lshlrev_b32 v{vx}, 10, v{vx}\nv_and_b32 v{t1}, 7, v1\nv_lshl_add_u32 v{vx}, v{t1}, 4, v{vx}")
    A(f"s_and_b32 s56, s{W}, 6\ns_lshl_b32 s56, s56, 3\ns_and_b32 s46, s{W}, 1\ns_lshl_b32 s46, s46, 2\ns_add_u32 s56, s56, s46")
    A("s_lshl_b32 s46, s44, 6\ns_add_u32 s56, s56, s46\ns_lshl_b32 s56, s56, 10\ns_lshl_b32 s46, s45, 7\ns_add_u32 s56, s56, s46")
def g2w_ops(n, vw=V_G2W):
    L = []
    for k in range(4):
        if n < 7:
            L.append(f"s_add_u32 m0, s55, {(n % C.nsl)*32768 + k*1024}\ns_add_u32 s52, s51, {n*131072 + k*8192}\nbuffer_load_dwordx4 v{vw}, {AR}, s52 offen lds")
        else:
            L.append(f"s_add_u32 m0, s55, {(n % C.nsl)*32768}\n" + f"buffer_load_dwordx4 v173, {WSR}, s58 offen offset:{1024*k} sc1 lds" + ("\ns_add_u32 s58, s58, 16384" if k == 3 else ""))
    return L
def g2_wdma(A, n):
    for o in g2w_ops(n): A(o)
def weave(A, mf, fill, skip=0):
    if C.wmax and len(fill) > C.wmax * (len(mf) - skip):
        k = 0
        for i, m in enumerate(mf):
            A(m)
            if i >= skip:
                for f in fill[k:k + C.wmax]: A(f)
                k += C.wmax
        for f in fill[k:]: A(f)
        return
    n = len(mf) - skip; k = 0
    for i, m in enumerate(mf):
        A(m)
        if i >= skip:
            e = (len(fill) * (i - skip + 1) + n - 1) // n
            for f in fill[k:e]: A(f)
            k = e

def gelu_block(g, u, T, K):
    P = lambda r: f"v[{r}:{r+1}]"
    L = []
    for n in range(0, 8, 2): L.append(f"v_pk_mul_f32 {P(T+n)}, {P(g+n)}, {P(g+n)}")
    for n in range(0, 8, 2): L.append(f"v_pk_fma_f32 {P(T+n)}, {P(T+n)}, {P(K)}, {P(K+2)}")
    for n in range(0, 8, 2): L.append(f"v_pk_mul_f32 {P(T+n)}, {P(T+n)}, {P(g+n)}")
    for n in range(8): L.append(f"v_exp_f32 v{T+n}, v{T+n}")
    for n in range(0, 8, 2): L.append(f"v_pk_mul_f32 {P(T+8+n)}, {P(g+n)}, {P(u+n)}")
    for n in range(0, 8, 2): L.append(f"v_pk_fma_f32 {P(T+n)}, {P(T+n)}, {P(K+4)}, {P(K+4)}")
    for n in range(8): L.append(f"v_rcp_f32 v{T+n}, v{T+n}")
    for n in range(0, 8, 2): L.append(f"v_pk_mul_f32 {P(T+n)}, {P(T+n)}, {P(T+8+n)}")
    for q in range(4): L.append(f"v_cvt_pk_bf16_f32 v{T+8+q}, v{T+2*q}, v{T+2*q+1}")
    return L

def g1_setup(A):
    W = S_WAVE; AD = 208
    A(f"s_and_b32 s48, s{W}, 3\ns_lshr_b32 s49, s{W}, 2")
    A("v_lshrrev_b32 v8, 5, v1\nv_lshlrev_b32 v11, 3, v8\nv_bfe_u32 v9, v1, 2, 2\nv_add_u32 v11, v11, v9\nv_lshlrev_b32 v11, 7, v11")
    A("v_and_b32 v10, 3, v1\nv_lshl_add_u32 v11, v10, 3, v11\nv_bfe_u32 v10, v1, 4, 1\nv_lshl_add_u32 v11, v10, 5, v11")
    A(f"v_lshrrev_b32 v9, 1, v9\nv_xor_b32 v9, s49, v9\nv_lshl_add_u32 v12, v9, 6, v11")
    A("v_and_b32 v9, 31, v1\nv_bfe_u32 v10, v1, 1, 3\nv_xor_b32 v10, v10, v8\nv_lshlrev_b32 v10, 4, v10\nv_lshl_add_u32 v10, v9, 7, v10")
    A(f"s_lshl_b32 s50, s48, 13\ns_add_u32 s50, s50, 16384\nv_add_u32 v10, s50, v10")
    for k in range(4):
        A(f"s_add_u32 s50, s48, {k}\ns_and_b32 s50, s50, 3\ns_lshl_b32 s52, s50, 5\nv_xor_b32 v{AD+4+k}, s52, v10\ns_lshl_b32 s52, s50, 11\nv_add_u32 v{AD+k}, s52, v12")
    for sl in (1, 2):
        for n in range(8): A(f"v_add_u32 v{AD+8*sl+n}, {sl*SLOT}, v{AD+n}")
    if C.csm == "v":
        for q in range(4): A(f"v_mov_b32 v{128+q}, 0")
    else:
        A("v_and_b32 v12, 15, v1\nv_bfe_u32 v11, v1, 4, 1\nv_mov_b32 v233, 0x3f803f80\nv_cmp_eq_u32 vcc, v11, v12\nv_cndmask_b32 v232, 0, v233, vcc")
        for q in range(1, 4): A(f"v_mov_b32 v{232+q}, v232")
        for q in range(8): A(f"v_mov_b32 v{128+q}, 0")
    A("v_and_b32 v157, 15, v1\nv_lshlrev_b32 v157, 4, v157\nv_lshl_add_u32 v157, v8, 8, v157")
    A("v_bfe_u32 v11, v1, 4, 1\nv_mul_u32_u24 v11, 57344, v11\nv_add_u32 v157, v157, v11")
    A(f"s_lshl_b32 s50, s{S_RT}, 3\ns_lshl_b32 s51, s48, 1\ns_add_u32 s50, s50, s51")
    A(f"s_mul_i32 s47, s50, {2*57344}\ns_lshl_b32 s52, s{S_CT}, 11\ns_add_u32 s47, s47, s52\ns_lshl_b32 s52, s49, 10\ns_add_u32 s47, s47, s52\ns_add_u32 s47, s47, {WS_H}")
    A(f"s_lshr_b32 s51, s{S_RT}, 2\ns_lshl_b32 s51, s51, 1\ns_and_b32 s52, s{S_RT}, 1\ns_add_u32 s51, s51, s52\ns_lshl_b32 s51, s51, 7\ns_add_u32 s51, s51, {FL_B}")
    A(f"s_lshl_b32 s52, s{W}, 12\ns_add_u32 s51, s51, s52\ns_lshl_b32 s50, s{S_RT}, 4\ns_and_b32 s50, s50, 32\ns_add_u32 s50, s50, s51\ns_add_u32 s50, s50, {WS_ST - FL_B}")
    A("v_and_b32 v149, 7, v1\nv_lshlrev_b32 v149, 9, v149\nv_bfe_u32 v153, v1, 1, 3\nv_lshlrev_b32 v153, 9, v153\nv_and_b32 v11, 1, v1\nv_lshl_or_b32 v153, v11, 4, v153")
    A("v_and_b32 v154, 0x13, v9\nv_bfe_u32 v11, v9, 2, 1\nv_lshl_or_b32 v154, v11, 3, v154\nv_bfe_u32 v11, v9, 3, 1\nv_lshl_or_b32 v154, v11, 2, v154")
    A(f"s_lshl_b32 s52, s48, 3\ns_add_u32 s52, s52, {LDS_ST}\nv_lshl_add_u32 v154, v154, 5, s52")
    if C.csm == "v": A(f"s_lshl_b32 s52, s49, 11\ns_add_u32 s52, s52, {LDS_CS}\nv_add_u32 v155, s52, v2\ns_lshl_b32 s52, s48, 2\nv_add_u32 v156, s52, v155")
    else: A(f"s_lshl_b32 s52, s49, 11\ns_add_u32 s52, s52, {LDS_CS}\nv_lshl_add_u32 v155, v9, 4, s52\ns_lshl_b32 s52, s48, 2\nv_add_u32 v156, s52, v155")

def phase_g1(A):
    W = S_WAVE
    ACC = 64; WF = 32; AD = 208
    vm = [("w", 1)] * 2 + [("a", 1)] * 4
    wps = p0_stores(A)[1]
    def reads(kk, st):
        j, k = kk // 4, kk % 4
        wa = AD + 8 * (j % 3) + k; aa = wa + 4; d = WF + 16 * st
        return [f"ds_read_b64_tr_b16 v[{d}:{d+1}], v{wa} offset:0", f"ds_read_b64_tr_b16 v[{d+2}:{d+3}], v{wa} offset:512",
                f"ds_read_b128 v[{d+8}:{d+11}], v{aa}",
                f"ds_read_b64_tr_b16 v[{d+4}:{d+5}], v{wa} offset:8192", f"ds_read_b64_tr_b16 v[{d+6}:{d+7}], v{wa} offset:8704",
                f"ds_read_b128 v[{d+12}:{d+15}], v{aa} offset:4096"]
    def younger(ops):
        return len(vm) - 1 - max(i for i, o in enumerate(vm) if o in ops)
    stamp(A, "go")
    setprio(A, C.prio)
    if C.wj == 0:
        for o in wp_gather(): A(o)
    for r in reads(0, 0): A(r)
    pfo = wd_prefetch_ops(A); npf = len(pfo)
    pf = 0
    fill = []
    K1 = -2.0 * 0.7978845608028654 * 1.4426950408889634
    for kk in range(32):
        j, k = kk // 4, kk % 4
        st = kk & 1
        if k == 3 and kk < 31:
            A(f"s_waitcnt vmcnt({younger([('w', j + 1), ('a', j + 1), ('f', j + 1)])}) lgkmcnt(0)\ns_barrier")
            stamp(A, f"g{j+1}")
            if j == 0 and not C.fbgo:
                set_flag(A, 57, 16)
                A(f"s_sub_u32 s57, s57, {FL_B - FL_W}")
            if j + 1 == C.wj:
                for o in wp_gather(): A(o)
            if j + 1 == C.wj + C.wd: set_flag(A, 57, 16)
        if kk == 4 * C.sj - 1:
            L = A.label("L_g1_ok")
            A(f"v_cmp_ne_u32 vcc, s{S_TAG}, v16\ns_cmp_eq_u64 vcc, 0\ns_cbranch_scc1 {L}")
            poll(A, [(149, "s51")], 16)
            A(f"{L}:")
            A(f"s_lshl_b32 s52, s{W}, 8\ns_add_u32 m0, s52, {LDS_ST}\ns_mov_b64 exec, 0xffff\nbuffer_load_dwordx4 v153, {WSR}, s50 offen sc1 lds\ns_mov_b64 exec, -1")
            vm.append(("f", C.sj + 2))
        if kk == 27:
            A("ds_read_b64 v[150:151], v154\nds_read_b64 v[152:153], v154 offset:1024")
        if kk == 28:
            for b in range(2):
                m, r, K = 150 + 2 * b, 151 + 2 * b, 160 + 8 * b
                if C.csm == "m": fill += ["v_cmp_gt_u32 vcc, 32, v1", "s_nop 0", f"v_cndmask_b32 v{m}, 0, v{m}, vcc"]
                fill += [f"v_mov_b32 v{136+4*b+q}, v{m}" for q in range(4)]
                fill += (f"v_mul_f32 v{K+6}, v{r}, v{r}\nv_mul_f32 v{K+2}, {fhex(K1)}, v{r}\nv_rcp_f32 v{K+4}, v{K+6}\nv_mul_f32 v{K}, {fhex(0.044715)}, v{K+6}\n"
                         f"v_mul_f32 v{K}, v{K}, v{K+2}\nv_mov_b32 v{K+3}, v{K+2}\nv_mov_b32 v{K+5}, v{K+4}\nv_mov_b32 v{K+1}, v{K}").split("\n")
        if kk == 24:
            B = Asm(); g2_setup(B); fill += [l for l in B.lines if not l.startswith(";")]
        if kk == 30 and C.csm == "m":
            for r in (128, 129, 132, 133): fill += f"v_cvt_pk_bf16_f32 v16, v{r}, v{r}\nv_lshlrev_b32 v16, 16, v16\nv_sub_f32 v16, v{r}, v16\nv_cvt_pk_bf16_f32 v{r}, v{r}, v16".split("\n")
        nxt = reads(kk + 1, st ^ 1) if kk < 31 else []
        ops = []
        full = lambda jj: [(("w", jj), o) for o in g1w_ops(jj)] + [(("a", jj), o) for o in g1a_ops(jj)]
        if j + 2 < 8:
            if k == 0: ops += [(("w", j + 2), o) for o in g1w_ops(j + 2)]
            ops.append((("a", j + 2), g1a_ops(j + 2)[k]))
        if kk == 4 * C.wj: ops.insert(0, (("f", C.wj + C.wd), wps))
        if kk == 4 * C.sj - 5:
            ops.append((("f", C.sj), f"buffer_load_dword v16, v149, {WSR}, s51 offen sc1"))
        d = WF + 16 * st
        for m, (wo, ao) in enumerate(((0, 8), (4, 8), (0, 12), (4, 12))):
            if m < 3 and not (k == 3 and kk < 31):
                A(f"s_waitcnt lgkmcnt({(3, 1, 0)[m] + len(nxt[0:2*m])})")
            c = f"v[{ACC+16*m}:{ACC+16*m+15}]"
            if "S" in C.dbg:
                for z in range(2):
                    cc = f"v[{ACC+16*m+8*(kk&1)+4*z}:{ACC+16*m+8*(kk&1)+4*z+3}]"
                    A(f"v_mfma_f32_16x16x32_bf16 {cc}, v[{d+wo}:{d+wo+3}], v[{d+ao}:{d+ao+3}], {cc if kk > 1 else 0}")
            else:
                A(f"v_mfma_f32_32x32x16_bf16 {c}, v[{d+wo}:{d+wo+3}], v[{d+ao}:{d+ao+3}], {c if kk else 0}")
            for r in nxt[2*m:2*m+2]: A(r)
            if ops and (m >= 1 or len(ops) > 3):
                tag, o = ops.pop(0); A(o); vm.append(tag)
            if "c" not in C.dbg and C.csm == "m" and k == 0 and m in (1, 3):
                z = m >> 1
                A(f"v_mfma_f32_16x16x32_bf16 v[{128+4*z}:{131+4*z}], v[232:235], v[{d+4*z}:{d+4*z+3}], v[{128+4*z}:{131+4*z}]")
            if "c" not in C.dbg and C.csm == "v":
                src = d + 4 * (m & 1) + k
                if m < 2: A(f"v_lshlrev_b32 v{132+m}, 16, v{src}\nv_and_b32 v{134+m}, 0xffff0000, v{src}")
                else: A(f"v_add_f32 v{128+(m&1)}, v{128+(m&1)}, v{132+(m&1)}\nv_add_f32 v{130+(m&1)}, v{130+(m&1)}, v{134+(m&1)}")
            cnt = 0
            while fill and cnt < (2 if C.csm == 'v' else 4):
                l = fill.pop(0); A(l); cnt += 0.34 if l.startswith("s_") else 1
            if m == 2 and pf < npf and kk >= C.pf_start and (kk - C.pf_start) % C.pf_step == 0:
                A(pfo[pf]); vm.append(("p", pf)); pf += 1
        assert not ops
    assert (pf == npf or C.pf_start > 31) and not fill
    stamp(A, "main")
    setprio(A, C.prioe)
    if C.csm == "m": A("s_mov_b64 exec, 0xffff\nds_write_b32 v156, v128\nds_write_b32 v156, v129 offset:256\nds_write_b32 v156, v132 offset:1024\nds_write_b32 v156, v133 offset:1280\ns_mov_b64 exec, -1")
    def split(r): return f"v_cvt_pk_bf16_f32 v16, v{r}, v{r}\nv_lshlrev_b32 v16, 16, v16\nv_sub_f32 v16, v{r}, v16\nv_cvt_pk_bf16_f32 v{r}, v{r}, v16"
    if C.csm == "v":
        for r in (128, 129): A(f"v_add_f32 v{r}, v{r}, v{r+2}\n" + split(r))
        A("ds_write_b32 v156, v128\nds_write_b32 v156, v129 offset:1024")
    A("s_waitcnt lgkmcnt(0)\ns_barrier")
    A(f"ds_read_b128 v[{WF}:{WF+3}], v155\nds_read_b128 v[{WF+4}:{WF+7}], v155 offset:1024")
    A("s_waitcnt lgkmcnt(0)")
    for m in range(4):
        c = f"v[{ACC+16*m}:{ACC+16*m+15}]"
        A(f"v_mfma_f32_32x32x16_bf16 {c}, v[{WF+4*(m&1)}:{WF+4*(m&1)+3}], v[{136+4*(m>>1)}:{139+4*(m>>1)}], {c}")
    for b in range(2):
        for half in range(2):
            n = 2 * b + half
            T = 176 + 16 * (n & 1)
            for l in gelu_block(ACC + 32 * b + 8 * half, ACC + 32 * b + 16 + 8 * half, T, 160 + 8 * b): A(l)
            if n == 2: A(f"s_add_u32 s47, s47, {2*57344}")
            A(f"buffer_store_dwordx4 v[{T+8}:{T+11}], v157, {WSR}, s47 offen offset:{512*half} sc1")
    stamp(A, "epi")
    A("s_waitcnt vmcnt(0)\ns_barrier")
    A(f"s_lshl_b32 s57, s{S_RT}, 5\ns_add_u32 s57, s57, s{S_CT}\ns_lshl_b32 s57, s57, 7\ns_add_u32 s57, s57, {FL_H}")
    set_flag(A, 57, 16)
    stamp(A, "flag2")
    for n in range(C.nfast if C.fast else C.nsl): g2_wdma(A, n)

def phase_cf(A):
    W = S_WAVE
    ZL = 0; WL = 65536; TW = 131072; FR = TW + 8192
    D0 = 64; D1 = 128; PK = 192; WW = 224
    FC, FS, FN = 8, 16, 24
    OC, OS, ON = 32, 40, 48
    A("; ---- CF")
    setprio(A, C.prioc)
    A(f"s_lshl_b32 s44, s{S_XCD}, 2\ns_add_u32 s44, s44, s{S_SLOT}\ns_sub_u32 s44, s44, 28    ; cg")
    for o in wp_gather(): A(o)
    A("s_waitcnt lgkmcnt(0)")
    A(p0_stores(A)[1])
    A(f"s_lshl_b32 s46, s{W}, 1\nv_lshrrev_b32 v8, 5, v1\nv_add_u32 v8, s46, v8")
    A("v_and_b32 v9, 3, v8\nv_bfe_u32 v10, v8, 3, 1\nv_lshl_or_b32 v9, v10, 2, v9      ; beta")
    A("s_and_b32 s46, s44, 1\ns_lshl_b32 s46, s46, 3\nv_or_b32 v9, s46, v9         ; k1")
    A("s_lshr_b32 s46, s44, 1\ns_lshl_b32 s47, s46, 5\ns_sub_u32 s48, 0x200, s47\ns_cmp_lt_u32 s46, 8")
    A(f"s_cselect_b32 s49, s47, s48\ns_cselect_b32 s50, 1, -1\ns_sub_u32 s48, s48, 16\ns_cmp_lt_u32 s46, 8\ns_cselect_b32 s48, s47, s48")
    A("s_cmp_eq_u32 s46, 0\ns_cselect_b32 s48, 0x100, s48")
    A("v_mov_b32 v11, s49\nv_mad_i32_i24 v10, v9, s50, v11\nv_mov_b32 v11, s48\nv_cmp_eq_u32 vcc, 0, v9\nv_cndmask_b32 v10, v10, v11, vcc   ; bin")
    A(f"v_mov_b32 v11, {fhex(2.0**-19)}\nv_mov_b32 v12, {fhex(2.0**-20)}\nv_cmp_eq_u32 vcc, 0x100, v10\nv_cndmask_b32 v12, v11, v12, vcc\nv_mov_b32 v13, v12")
    A(f"v_cvt_f32_u32 v10, v10\nv_mul_f32 v10, {fhex(1/512)}, v10")
    A(f"v_bfe_u32 v11, v8, 2, 1\nv_cvt_f32_u32 v11, v11\nv_mul_f32 v11, {fhex(0.25)}, v11")
    A("v_and_b32 v14, 31, v1\nv_lshlrev_b32 v15, 3, v14\nv_cvt_f32_u32 v15, v15\nv_fma_f32 v64, v15, v10, v11")
    A(f"v_fmamk_f32 v72, v10, {fhex(256.0)}, v64\nv_fract_f32 v72, v72")
    for b in (64, 72):
        for j in range(1, 8): A(f"v_fmamk_f32 v{b+j}, v10, {fhex(float(j))}, v{b}")
    for j in range(16): A(f"v_cos_f32 v{64+j}, v{64+j}")
    for j in range(0, 16, 2): A(f"v_pk_mul_f32 v[{64+j}:{65+j}], v[{64+j}:{65+j}], v[12:13]")
    for q in range(8): A(f"v_cvt_pk_bf16_f32 v{64+q}, v{64+2*q}, v{65+2*q}")
    A(f"v_lshrrev_b32 v15, 3, v14\nv_and_b32 v14, 7, v14\nv_lshlrev_b32 v14, 4, v14\nv_lshl_add_u32 v14, v8, 7, v14\nv_lshl_add_u32 v14, v15, 16, v14")
    A(f"s_lshl_b32 s46, s44, 11\ns_add_u32 s46, s46, {WS_G}\ns_add_u32 s47, s46, 0x40000")
    A(f"buffer_store_dwordx4 v[64:67], v14, {WSR}, s46 offen sc1\nbuffer_store_dwordx4 v[68:71], v14, {WSR}, s47 offen sc1")
    A("v_and_b32 v3, 31, v1\nv_lshrrev_b32 v4, 5, v1\nv_lshlrev_b32 v4, 2, v4")
    A(f"s_and_b32 s52, s{W}, 3\ns_lshl_b32 s52, s52, 3\ns_lshr_b32 s53, s{W}, 2\ns_mul_i32 s53, s53, 1536")
    A("v_add_u32 v5, s52, v4")
    for b in range(4):
        A(f"v_add_u32 v6, {b}, v5\nv_mad_u32_u24 v{64+b}, v6, v3, s53")
    def frag(dst, matsel):
        A(f"s_and_b32 s54, s{W}, 1\ns_lshl_b32 s54, s54, 4")
        A(f"s_lshr_b32 s55, s{W}, 1\ns_and_b32 s55, s55, 1\ns_mul_i32 s55, s55, 48")
        if matsel == 0: A(f"s_lshr_b32 s56, s{W}, 2\nv_lshl_add_u32 v7, v3, 1, s56")
        for j in range(8):
            A(f"v_add_u32 v6, s54, v4\nv_add_u32 v6, {8*(j>>2) + (j&3)}, v6")
            if matsel == 0: A(f"v_mad_u32_u24 v{dst+j}, v6, v7, s55")
            else: A(f"v_lshl_add_u32 v6, v6, 1, 1\nv_mad_u32_u24 v{dst+j}, v6, v3, s55")
    frag(80, 0); frag(88, 1)
    cos_batch(A, range(64, 68), 2047, 1.0 / 2048)
    cos_batch(A, range(80, 96), 63, 1.0 / 64)
    A(f"s_lshl_b32 s52, s52, 8\ns_lshr_b32 s53, s{W}, 2\ns_lshl_b32 s53, s53, 10\ns_add_u32 s52, s52, s53\ns_add_u32 s52, s52, {TW}")
    A("v_add_u32 v5, s52, v2\nds_write_b128 v5, v[64:67]")
    for q in range(8): A(f"v_cvt_pk_bf16_f32 v{80+q}, v{80+2*q}, v{81+2*q}")
    A(f"s_lshl_b32 s52, s{W}, 10\ns_add_u32 s52, s52, {FR}\nv_add_u32 v5, s52, v2")
    A("ds_write_b128 v5, v[80:83]")
    Ls = A.label("L_cf_skip")
    A(f"s_cmp_ge_u32 s{W}, 4\ns_cbranch_scc1 {Ls}\nds_write_b128 v5, v[84:87] offset:8192\n{Ls}:")
    A(f"v_add_u32 v56, {TW}, v2\nv_add_u32 v57, {FR}, v2")
    A(f"s_lshl_b32 s52, s{W}, 1\nv_and_b32 v6, 15, v1\nv_xor_b32 v6, s52, v6\nv_lshlrev_b32 v6, 4, v6")
    A("v_lshl_add_u32 v6, v3, 10, v6\nv_lshl_add_u32 v58, v4, 6, v6\nv_xor_b32 v59, 16, v58")
    A(f"v_lshrrev_b32 v5, 2, v3\nv_xor_b32 v6, s{W}, v5\nv_lshlrev_b32 v6, 4, v6\nv_lshl_add_u32 v6, v5, 7, v6\nv_and_b32 v5, 3, v3\nv_lshl_add_u32 v6, v5, 2, v6\nv_lshl_add_u32 v6, v4, 11, v6\nv_add_u32 v7, {WL}, v6")
    A("s_waitcnt vmcnt(2) lgkmcnt(0)\ns_barrier")
    set_flag(A, 57, 16)
    A(f"s_sub_u32 s57, s57, {FL_B - FL_W}")
    set_flag(A, 57, 16)
    stamp(A, "fd")
    A(f"v_lshlrev_b32 v6, 7, v3\ns_lshl_b32 s57, s{W}, 12\ns_add_u32 s57, s57, {FL_B}")
    poll(A, [(6, "s57")], 64)
    stamp(A, "rdy1")
    A(f"s_lshl_b32 s48, s44, 16\ns_lshl_b32 s49, s{W}, 13\ns_add_u32 s50, s48, s49")
    def dma64(base, lb):
        return [(f"s_add_u32 s51, s50, {base}\n" if k == 0 else "s_add_u32 s51, s51, 1024\n") +
                f"s_add_u32 m0, s49, {lb + k*1024}\nbuffer_load_dwordx4 v2, {WSR}, s51 offen sc1 lds" for k in range(8)]
    for o in dma64(WS_Z, ZL): A(o)
    P = lambda r: f"v[{r}:{r+1}]"
    def load_frags(Cc, S, mat):
        return [f"ds_read_b128 v[{R+4*m}:{R+4*m+3}], v57 offset:{(mat*4+o+m)*1024}" for m in range(2) for (R, o) in ((Cc, 0), (S, 2))]
    def neg_frags(S, N): return [f"v_xor_b32 v{N+q}, 0x80008000, v{S+q}" for q in range(8)]
    def pk(blk, c, m): return PK + 16 * blk + 8 * c + 4 * m
    def acc(D, c, blk): return D + 32 * c + 16 * blk
    def cstage(D, blk, data_is_A, Cc, Sre, Sim):
        L = []
        for (c, seq) in ((0, ((0, Cc), (1, Sre))), (1, ((1, Cc), (0, Sim)))):
            d = acc(D, c, blk); first = True
            for (cc, K) in seq:
                for m in range(2):
                    dat = f"v[{pk(blk,cc,m)}:{pk(blk,cc,m)+3}]"; con = f"v[{K+4*m}:{K+4*m+3}]"
                    a, b = (dat, con) if data_is_A else (con, dat)
                    L.append(f"v_mfma_f32_32x32x16_bf16 v[{d}:{d+15}], {a}, {b}, {0 if first else f'v[{d}:{d+15}]'}")
                    first = False
        return L
    def pack(D, blk):
        return [f"v_cvt_pk_bf16_f32 v{pk(blk,c,0)+q}, v{acc(D,c,blk)+2*q}, v{acc(D,c,blk)+2*q+1}" for c in range(2) for q in range(8)]
    def tw_load():
        return [f"ds_read_b128 v[{WW+16*comp+4*a}:{WW+16*comp+4*a+3}], v56 offset:{a*2048 + comp*1024}" for a in range(4) for comp in range(2)]
    NEG = lambda i: " neg_lo:[%s] neg_hi:[%s]" % ((",".join("1" if j == i else "0" for j in range(3)),) * 2)
    def radix2_tw(conj, extra=()):
        for i in range(0, 16, 2):
            if i % 4 == 2 and extra: A(extra[i // 4])
            er, ei, o_r, oi = acc(D0,0,0)+i, acc(D0,1,0)+i, acc(D0,0,1)+i, acc(D0,1,1)+i
            ur, ui, vr_, vi = acc(D1,0,0)+i, acc(D1,1,0)+i, acc(D1,0,1)+i, acc(D1,1,1)+i
            c0, s0 = P(WW + i), P(WW + 16 + i)
            A(f"v_pk_add_f32 {P(ur)}, {P(er)}, {P(o_r)}\nv_pk_add_f32 {P(vr_)}, {P(er)}, {P(o_r)} neg_lo:[0,1] neg_hi:[0,1]")
            A(f"v_pk_add_f32 {P(ui)}, {P(ei)}, {P(oi)}\nv_pk_add_f32 {P(vi)}, {P(ei)}, {P(oi)} neg_lo:[0,1] neg_hi:[0,1]")
            A(f"v_pk_mul_f32 v[60:61], {P(ur)}, {s0}\nv_pk_mul_f32 v[62:63], {P(vr_)}, {s0}")
            A(f"v_pk_mul_f32 {P(ur)}, {P(ur)}, {c0}\nv_pk_mul_f32 {P(vr_)}, {P(vr_)}, {c0}")
            n0 = NEG(0) if conj else ""; n2 = "" if conj else NEG(2)
            A(f"v_pk_fma_f32 {P(ur)}, {P(ui)}, {s0}, {P(ur)}{n0}\nv_pk_fma_f32 {P(vr_)}, {P(vi)}, {s0}, {P(vr_)}{n0}")
            A(f"v_pk_fma_f32 {P(ui)}, {P(ui)}, {c0}, v[60:61]{n2}\nv_pk_fma_f32 {P(vi)}, {P(vi)}, {c0}, v[62:63]{n2}")
    def wmul(e):
        L = []
        for i in range(0, 16, 2):
            w = WW + 16 * e + i; t = 60 + (i & 2)
            xr, xi, yr, yi = acc(D0,0,e)+i, acc(D0,1,e)+i, acc(D1,0,e)+i, acc(D1,1,e)+i
            L += [f"v_lshlrev_b32 v{t}, 16, v{w}", f"v_lshlrev_b32 v{t+1}, 16, v{w+1}", f"v_and_b32 v{w}, 0xffff0000, v{w}", f"v_and_b32 v{w+1}, 0xffff0000, v{w+1}",
                  ]
            if C.cfpk and not (C.cfpk == 2 and i < 6):
                L += [f"v_pk_mul_f32 {P(yr)}, {P(xr)}, {P(t)}", f"v_pk_mul_f32 {P(yi)}, {P(xi)}, {P(t)}",
                      f"v_pk_fma_f32 {P(yr)}, {P(xi)}, {P(w)}, {P(yr)}{NEG(0)}", f"v_pk_fma_f32 {P(yi)}, {P(xr)}, {P(w)}, {P(yi)}"]
            else:
                for z in range(2): L += [f"v_mul_f32 v{yr+z}, v{xr+z}, v{t+z}", f"v_mul_f32 v{yi+z}, v{xi+z}, v{t+z}"]
                for z in range(2): L += [f"v_fma_f32 v{yr+z}, -v{xi+z}, v{w+z}, v{yr+z}", f"v_fmac_f32 v{yi+z}, v{xr+z}, v{w+z}"]
        return L
    def E(L):
        for l in L: A(l)
    E(load_frags(FC, FS, 0) + load_frags(OC, OS, 2) + tw_load())
    A("s_waitcnt lgkmcnt(8)")
    E(neg_frags(FS, FN) + neg_frags(OS, ON))
    A(f"s_lshl_b32 s52, s{W}, 16\ns_lshl_b32 s53, s44, 9\ns_add_u32 s52, s52, s53\ns_add_u32 s47, s52, {WS_ZP}")
    A(f"s_lshl_b32 s57, s44, 7\ns_add_u32 s57, s57, {FL_C}")
    A("s_waitcnt vmcnt(0)\ns_barrier")
    stamp(A, "go")
    for mu in range(2):
        for c in range(2):
            for m in range(2):
                A(f"ds_read_b128 v[{pk(mu,c,m)}:{pk(mu,c,m)+3}], v{58+c} offset:{ZL + mu*32768 + m*512}")
    wp = dma64(WS_WP, WL)
    def wcheck():
        L = A.label("L_cf_ok")
        A(f"s_waitcnt vmcnt(0)\nv_cmp_ne_u32 vcc, s{S_TAG}, v5\ns_cmp_eq_u64 vcc, 0\ns_cbranch_scc1 {L}")
        poll(A, [(6, "s53")], 5)
        A(f"s_mov_b32 s{S_RDY}, 1\n{L}:")
    A(f"s_lshl_b32 s53, s{W}, 12\ns_add_u32 s53, s53, {FL_W}\nbuffer_load_dword v5, v6, {WSR}, s53 offen sc1")
    A("s_waitcnt lgkmcnt(4)")
    E(cstage(D0, 0, True, FC, FS, FN))
    A("s_waitcnt lgkmcnt(0)")
    m1 = cstage(D0, 1, True, OC, OS, ON)
    E(m1[:4]); wcheck(); weave(A, m1[4:], wp[:4])
    E(load_frags(OC, OS, 1))
    radix2_tw(False, wp[4:])
    E(pack(D1, 0))
    A("s_waitcnt lgkmcnt(0)")
    weave(A, cstage(D0, 0, False, FC, FS, FN), pack(D1, 1) + neg_frags(OS, ON))
    stamp(A, "main")
    A("s_waitcnt vmcnt(0)\ns_barrier")
    wr = [f"ds_read2st64_b32 {P(WW+16*e+4*a+b)}, v7 offset0:{a*64+b*8+e*4} offset1:{a*64+b*8+e*4+8}" for e in range(2) for a in range(4) for b in (0, 2)]
    E(wr[:8])
    m2 = cstage(D0, 1, False, OC, OS, ON)
    weave(A, m2[:2], wr[8:])
    A("s_waitcnt lgkmcnt(8)")
    weave(A, m2[2:], wmul(0))
    stamp(A, "wrdy")
    E(load_frags(OC, OS, 2))
    E(pack(D1, 0))
    g2_setup(A, 58, 59, 5, 6)
    A("s_waitcnt lgkmcnt(4)")
    weave(A, cstage(D0, 0, True, FC, FN, FS), wmul(1) + pack(D1, 1), 1)
    A("s_waitcnt lgkmcnt(0)")
    E(neg_frags(OS, ON) + tw_load())
    weave(A, cstage(D0, 1, True, OC, ON, OS), g2w_ops(0, 58))
    E(load_frags(OC, OS, 1))
    A("s_waitcnt lgkmcnt(4)")
    radix2_tw(True)
    E(pack(D1, 0))
    A("s_waitcnt lgkmcnt(0)")
    weave(A, cstage(D0, 0, True, FC, FN, FS), pack(D1, 1) + neg_frags(OS, ON))
    stamp(A, "epi")
    adr = (f"s_and_b32 s60, s{W}, 1\ns_lshl_b32 s60, s60, 2\nv_lshrrev_b32 v5, 5, v1\nv_or_b32 v5, s60, v5\n"
           "v_and_b32 v6, 7, v1\nv_xor_b32 v5, v5, v6\nv_lshlrev_b32 v5, 4, v5\nv_lshl_add_u32 v5, v3, 11, v5\n"
           f"s_lshr_b32 s60, s{W}, 1\ns_lshl_b32 s60, s60, 7\ns_add_u32 s60, s60, {WL}\nv_add_u32 v56, s60, v5\nv_xor_b32 v57, 32, v56\n"
           "v_bfe_u32 v5, v1, 2, 1\nv_lshlrev_b32 v5, 2, v5\nv_bfe_u32 v6, v1, 4, 1\nv_lshl_add_u32 v5, v6, 1, v5\nv_bfe_u32 v6, v1, 1, 1\nv_add_u32 v5, v5, v6\n"
           f"v_xor_b32 v5, s{W}, v5\nv_lshlrev_b32 v5, 4, v5\nv_and_b32 v6, 1, v1\nv_lshl_add_u32 v5, v6, 3, v5\n"
           "v_bfe_u32 v6, v1, 3, 1\nv_lshl_add_u32 v5, v6, 7, v5\nv_lshrrev_b32 v6, 5, v1\nv_lshl_add_u32 v5, v6, 9, v5\n"
           f"s_lshl_b32 s60, s{W}, 11\ns_add_u32 s60, s60, {WL}\nv_add_u32 v5, s60, v5\n"
           "v_and_b32 v6, 15, v1\nv_lshlrev_b32 v6, 4, v6\nv_lshrrev_b32 v7, 5, v1\nv_lshl_add_u32 v6, v7, 8, v6\n"
           "v_bfe_u32 v7, v1, 4, 1\nv_lshl_add_u32 v6, v7, 14, v6").split("\n")
    def xw(mu): return [f"ds_write_b128 v{56+m}, v[{pk(mu,c,m)}:{pk(mu,c,m)+3}] offset:{mu*1024 + c*512}" for c in range(2) for m in range(2)]
    def xr_store(mu):
        for n in range(4):
            d = D1 + 16 * mu + 4 * n
            A(f"ds_read_b64_tr_b16 v[{d}:{d+1}], v5 offset:{n*16384 + mu*1024}\nds_read_b64_tr_b16 v[{d+2}:{d+3}], v5 offset:{n*16384 + mu*1024 + 256}")
        for n in range(4):
            d = D1 + 16 * mu + 4 * n
            A(f"s_waitcnt lgkmcnt({6-2*n})")
            A(f"buffer_store_dwordx4 v[{d}:{d+3}], v6, {WSR}, s47 offen sc1")
            A(f"s_add_u32 s47, s47, {0x80000 if n < 3 else (0x8000 - 0x180000) & 0xffffffff}")
    m4 = cstage(D0, 1, True, OC, ON, OS)
    weave(A, m4[:4], adr)
    A("s_barrier")
    weave(A, m4[4:], pack(D0, 0) + xw(0))
    A("s_waitcnt lgkmcnt(0)\ns_barrier")
    stamp(A, "c1")
    xr_store(0)
    E(pack(D0, 1) + xw(1))
    A("s_waitcnt lgkmcnt(0)\ns_barrier")
    xr_store(1)
    stamp(A, "c3")
    A(f"v_mov_b32 v{V_G2W}, v58\nv_mov_b32 v{V_G2X}, v59")
    g2_wdma(A, 1)
    A("s_waitcnt vmcnt(4)\ns_barrier")
    stamp(A, "c5")
    set_flag(A, 57, 16)
    stamp(A, "flag2")
    for n in range(2, C.nfast if C.fast else C.nsl): g2_wdma(A, n)

def phase_g2(A):
    W = S_WAVE
    ACT = 64; WF = 128; ACC = 16; NS = 9
    A("; ---- G2")
    setprio(A, C.prio2)
    srd(A, S_X, P_X, 2097152)
    srd(A, S_B, P_OUT, 2097152)
    A("v_lshlrev_b32 v3, 4, v1")
    A(f"s_mul_i32 s54, s50, 57344\ns_mul_i32 s46, s49, {28*1024}\ns_add_u32 s54, s54, s46\ns_add_u32 s54, s54, {WS_H}")
    if C.rot2: A("s_lshl_b32 s46, s53, 12\ns_add_u32 s54, s54, s46")
    A(f"s_lshl_b32 s57, s50, 14\ns_lshl_b32 s46, s49, 13\ns_add_u32 s57, s57, s46\ns_add_u32 s57, s57, {WS_ZP}")
    A("v_lshrrev_b32 v6, 5, v1\nv_lshlrev_b32 v6, 4, v6\nv_bfe_u32 v7, v1, 4, 1\nv_lshl_add_u32 v6, v7, 2, v6\nv_bfe_u32 v4, v1, 2, 2\nv_add_u32 v6, v6, v4")
    A("v_lshlrev_b32 v6, 7, v6\nv_lshrrev_b32 v4, 1, v4\nv_lshl_or_b32 v4, v7, 1, v4")
    A("v_lshl_add_u32 v6, v4, 5, v6\nv_and_b32 v4, 3, v1\nv_lshl_add_u32 v6, v4, 3, v6")
    A("s_lshl_b32 s46, s49, 14\nv_add_u32 v164, s46, v6")
    for nb in range(1, 4): A(f"v_xor_b32 v{164+nb}, {32*nb}, v164")
    for nb in range(4): A(f"v_add_u32 v{160+nb}, 0x10000, v{164+nb}\nv_add_u32 v{180+nb}, 0x20000, v{164+nb}")
    A("v_bfe_u32 v4, v1, 4, 2\nv_lshlrev_b32 v4, 5, v4\nv_xor_b32 v173, v3, v4")
    A(f"s_lshl_b32 s58, s45, 16\ns_lshl_b32 s46, s49, 15\ns_add_u32 s58, s58, s46\ns_lshl_b32 s46, s48, 12\ns_add_u32 s58, s58, s46\ns_add_u32 s58, s58, {WS_G}")
    A("v_min_u32 v170, 27, v1\nv_lshlrev_b32 v170, 7, v170\nv_and_b32 v172, 3, v1\nv_lshlrev_b32 v172, 7, v172")
    A(f"s_lshr_b32 s59, s44, 2\ns_lshl_b32 s59, s59, 12\ns_add_u32 s59, s59, {FL_H}\ns_lshl_b32 s47, s{W}, 9\ns_add_u32 s47, s47, {FL_C}")
    vm = []
    def act_ops(n):
        L = []
        for k in range(4):
            d = ACT + 16 * (n & 3) + 4 * k
            L.append((("a", n), ("s_mov_b32 s54, s57\n" if (n == 7 and k == 0) else "") +
                      f"buffer_load_dwordx4 v[{d}:{d+3}], v3, {WSR}, s54 offen offset:{1024*k} sc1" + ("\ns_add_u32 s54, s54, 4096" if k == 3 else "") +
                      (f"\ns_add_u32 s53, s53, 1\ns_cmp_eq_u32 s53, 7\ns_cselect_b32 s46, {7*4096}, 0\ns_sub_u32 s54, s54, s46" if (k == 3 and C.rot2 and n < 7) else "")))
        return L
    def w_ops(n): return [(("w", n), o) for o in g2w_ops(n)]
    def emit(op):
        A(op[1]); vm.extend([op[0]] * (op[2] if len(op) > 2 else 1))
    def w_or_dummy(n):
        L = A.label("L_wd"); Le = A.label("L_wd")
        return [(("w", n), f"s_cmp_eq_u32 s63, 0\ns_cbranch_scc1 {L}\n" + "\n".join(g2w_ops(n)) + f"\ns_branch {Le}\n{L}:\n" +
                 "\n".join([f"buffer_load_dword v177, v178, {WSR}, 0 offen"] * 4) + f"\n{Le}:", 4)]
    L = A.label("L_g2_np")
    if C.fast:
        A(f"v_mov_b32 v178, 0\nv_mov_b32 v179, 163836\ns_cmp_lg_u32 s{W}, 0\ns_cbranch_scc1 {L}")
        poll(A, [(170, "s59")], 177, once=True)
        A(f"v_mov_b32 v177, s{S_RDY}\nds_write_b32 v179, v177\ns_waitcnt lgkmcnt(0)")
        A(f"{L}:\ns_barrier\nds_read_b32 v177, v179\ns_waitcnt lgkmcnt(0)\nv_readfirstlane_b32 s63, v177")
        L = A.label("L_g2_np")
        A(f"s_cmp_lg_u32 s63, 0\ns_cbranch_scc1 {L}\ns_barrier")
        for n in range(C.nfast, C.nsl): g2_wdma(A, n)
        L3 = A.label("L_g2_np")
        A(f"s_cmp_lg_u32 s{W}, 0\ns_cbranch_scc1 {L3}\ns_waitcnt vmcnt(0)")
        poll(A, [(170, "s59")], 177)
        A(f"{L3}:\ns_barrier\n{L}:")
    else:
        A(f"s_cmp_lg_u32 s{W}, 0\ns_cbranch_scc1 {L}\ns_waitcnt vmcnt(0)")
        poll(A, [(170, "s59")], 177)
        A(f"{L}:\ns_barrier")
    stamp(A, "hrdy")
    for op in act_ops(0): emit(op)
    A("s_barrier")
    for op in act_ops(1): emit(op)
    def reads(n, k, st):
        slot = n % C.nsl
        va = (164, 164, 160, 160, 180)[slot]
        off = (slot & 1) * 32768 + k * 4096
        r = []
        for nb in range(4):
            d = WF + 16 * st + 4 * nb
            r.append(f"ds_read_b64_tr_b16 v[{d}:{d+1}], v{va+nb} offset:{off}")
            r.append(f"ds_read_b64_tr_b16 v[{d+2}:{d+3}], v{va+nb} offset:{off+1024}")
        return r
    SCHED = {"A": "a2 a3|w4 a4|w5 a5|w6 a6|w7 a7|w8 a8|||", "B": "a2|w4 a3|w5 a4|w6 a5|w7 a6|w8 a7|a8||",
             "C": "a2|a3 w4l|a4 w4h w5l|a5 w5h w6l|a6 w6h|w7 a7|w8 a8||", "D": "a2|a3 w4|a4 w5l|a5 w5h w6l|a6 w6h w7l|a7 w7h w8l|a8 w8h||",
             "P": "a2|a3 w5l|a4 w5h|a5 w6|a6 w7l|a7 w7h w8l|a8 w8h||", "Q": "a2|a3|a4 w5|a5 w6|a6 w7|a7 w8|a8||", "R": "a2|a3 w5l|a4 w5h w6l|a5 w6h|a6 w7|a7 w8l|a8 w8h||",
             "E": "|a2 w4|a3 w5l|a4 w5h w6l|a5 w6h|a6 w7|a7 w8l|a8 w8h|"}[C.sched]
    SCHED = [x.split() for x in SCHED.split("|")]
    NZ = min(n for n in range(NS) if any(t[1] in "78" for t in SCHED[n]))
    fill = []
    EX = (4 % C.nsl) * 32768 if C.nsl == 5 else 131072
    TB = 0 if C.nsl == 5 else 69632
    A(f"s_lshl_b32 s46, s{W}, 12\ns_add_u32 s46, s46, {EX}\nv_add_u32 v6, s46, v3\nv_xor_b32 v7, 0x4000, v6")
    tail_adr = (f"v_and_b32 v4, 15, v1\nv_mul_u32_u24 v4, 144, v4\nv_lshrrev_b32 v5, 4, v1\nv_lshl_add_u32 v4, v5, 3, v4\n"
                f"s_mul_i32 s60, s48, {16*144}\ns_lshl_b32 s46, s49, 6\ns_add_u32 s60, s60, s46\ns_add_u32 s60, s60, {TB}\nv_add_u32 v4, s60, v4\n"
                f"v_lshrrev_b32 v5, 3, v1\nv_mul_u32_u24 v5, 144, v5\nv_and_b32 v8, 7, v1\nv_lshl_add_u32 v5, v8, 4, v5\ns_mul_i32 s60, s{W}, {8*144}\ns_add_u32 s60, s60, {TB}\nv_add_u32 v5, s60, v5").split("\n")
    for n in range(NS):
        need = [i for i, o in enumerate(vm) if o in (("a", n), ("w", n), ("f", n))]
        A(f"s_waitcnt vmcnt({len(vm) - 1 - max(need)})")
        if n == NZ:
            L = A.label("L_g2_ok")
            A(f"v_cmp_ne_u32 vcc, s{S_TAG}, v176\ns_cmp_eq_u64 vcc, 0\ns_cbranch_scc1 {L}")
            poll(A, [(172, "s47")], 176)
            A(f"s_mov_b32 s{S_RDY}, 1\n{L}:")
        A("s_barrier")
        stamp(A, f"st{n}")
        for r in reads(n, 0, 0): A(r)
        ops = []
        if n == NZ - 1: ops.append((("f", NZ), f"buffer_load_dword v176, v172, {WSR}, s47 offen sc1"))
        if C.fast and C.nfast + n < C.nsl: ops += w_or_dummy(C.nfast + n)
        for tok in SCHED[n]:
            o = w_ops(int(tok[1])) if tok[0] == "w" else act_ops(int(tok[1]))
            if len(tok) == 3: o = o[:2] if tok[2] == "l" else o[2:]
            ops += o
        if n == C.xst:
            ops.append((("x", 0), f"buffer_load_dwordx4 v[240:243], v{V_G2X}, {XR}, s56 offen {C.nt_x2}"))
        if n == 7 and C.ytail:
            for q in range(2): A(f"ds_read_b128 v[{48+4*q}:{51+4*q}], v7 offset:{1024*q}")
            for i in range(8): fill.append(f"v_add_f32 v{48+i}, v{48+i}, v{184+i}")
            for i in range(8): fill.append(f"v_mul_f32 v{192+i}, {fhex(-1.4426950408889634)}, v{48+i}")
            for i in range(8): fill.append(f"v_exp_f32 v{192+i}, v{192+i}")
            for i in range(8): fill.append(f"v_add_f32 v{192+i}, 1.0, v{192+i}")
            for i in range(8): fill.append(f"v_rcp_f32 v{192+i}, v{192+i}")
            for i in range(8): fill.append(f"v_mul_f32 v{48+i}, v{48+i}, v{192+i}")
            fill += tail_adr
        slots = [[] for _ in range(16)]
        for i, op in enumerate(ops): slots[(i * 16) // max(len(ops), 8) if len(ops) > 8 else 2 * i].append(op)
        for k in range(4):
            st = k & 1
            nxt = reads(n, k + 1, st ^ 1) if k < 3 else []
            for nb in range(4):
                if nb % 2 == 0: A(f"s_waitcnt lgkmcnt({4 - 2*nb + len(nxt[0:2*nb])})")
                d = WF + 16 * st + 4 * nb; a = ACT + 16 * (n & 3) + 4 * k
                cb = ACC + (16 if n >= 7 else 0) + 4 * nb
                c = f"v[{cb}:{cb+3}]"
                A(f"v_mfma_f32_16x16x32_bf16 {c}, v[{d}:{d+3}], v[{a}:{a+3}], {0 if (n in (0, 7) and k == 0) else c}")
                for r in nxt[2*nb:2*nb+2]: A(r)
                for op in slots[4 * k + nb]: emit(op)
                if k or n == 8:
                    for _ in range(3):
                        if fill: A(fill.pop(0))
        if n == 6 and C.ytail:
            L1 = A.label("L_g2_y1"); L2 = A.label("L_g2_yj")
            A(f"s_cmp_eq_u32 s49, 1\ns_cbranch_scc1 {L1}")
            for (lab, keep) in ((None, 0), (L1, 8)):
                if lab: A(f"{lab}:")
                for q in range(2): A(f"ds_write_b128 v6, v[{ACC+8-keep+4*q}:{ACC+11-keep+4*q}] offset:{1024*q}")
                for i in range(0, 8, 2): A(f"v_mov_b64 v[{184+i}:{185+i}], v[{ACC+keep+i}:{ACC+keep+i+1}]")
                if not lab: A(f"s_branch {L2}")
            A(f"{L2}:\ns_waitcnt lgkmcnt(0)")
    assert not fill
    stamp(A, "g2m")
    P = lambda r: f"v[{r}:{r+1}]"
    L1 = A.label("L_g2_k1"); L2 = A.label("L_g2_j")
    A(f"s_cmp_eq_u32 s49, 1\ns_cbranch_scc1 {L1}")
    for (lab, keep) in ((None, 0), (L1, 8)):
        if lab: A(f"{lab}:")
        send = 8 - keep
        regs = (ACC + send, ACC + send + 4, ACC + 16 + send, ACC + 20 + send)
        for q in range(2 if C.ytail else 0, 4): A(f"ds_write_b128 v6, v[{regs[q]}:{regs[q]+3}] offset:{1024*q}")
        A("s_waitcnt lgkmcnt(0)\ns_barrier")
        for q in range(2 if C.ytail else 0, 4): A(f"ds_read_b128 v[{48+4*q}:{51+4*q}], v7 offset:{1024*q}")
        if not C.ytail:
            A("s_waitcnt lgkmcnt(2)")
            for i in range(0, 8, 2): A(f"v_pk_add_f32 {P(48+i)}, {P(48+i)}, {P(ACC+keep+i)}")
        A("s_waitcnt lgkmcnt(0)")
        for i in range(0, 8, 2): A(f"v_pk_add_f32 {P(56+i)}, {P(56+i)}, {P(ACC+16+keep+i)}")
        if not lab: A(f"s_branch {L2}")
    A(f"{L2}:")
    if not C.ytail:
        for i in range(8): A(f"v_mul_f32 v{64+i}, {fhex(-1.4426950408889634)}, v{48+i}")
        for i in range(8): A(f"v_exp_f32 v{64+i}, v{64+i}")
        for l in tail_adr: A(l)
        for i in range(8): A(f"v_add_f32 v{64+i}, 1.0, v{64+i}")
        for i in range(8): A(f"v_rcp_f32 v{64+i}, v{64+i}")
        for i in range(0, 8, 2): A(f"v_pk_mul_f32 {P(48+i)}, {P(48+i)}, {P(64+i)}")
    for i in range(0, 8, 2): A(f"v_pk_mul_f32 {P(56+i)}, {P(56+i)}, {P(48+i)}")
    for q in range(4): A(f"v_cvt_pk_bf16_f32 v{8+q}, v{56+2*q}, v{57+2*q}")
    A("ds_write_b64 v4, v[8:9]\nds_write_b64 v4, v[10:11] offset:32")
    A("s_waitcnt vmcnt(0)")
    for q in range(4): A(f"v_lshlrev_b32 v{72+2*q}, 16, v{240+q}\nv_and_b32 v{73+2*q}, 0xffff0000, v{240+q}")
    A("s_waitcnt lgkmcnt(0)\ns_barrier\nds_read_b128 v[8:11], v5\ns_waitcnt lgkmcnt(0)")
    for q in range(4): A(f"v_lshlrev_b32 v{64+2*q}, 16, v{8+q}\nv_and_b32 v{65+2*q}, 0xffff0000, v{8+q}")
    for i in range(0, 8, 2): A(f"v_pk_add_f32 {P(72+i)}, {P(72+i)}, {P(64+i)}")
    for q in range(4): A(f"v_cvt_pk_bf16_f32 v{8+q}, v{72+2*q}, v{73+2*q}")
    A(f"buffer_store_dwordx4 v[8:11], v{V_G2X}, {BR}, s56 offen {C.outf}")
    L = A.label("L_ep")
    A(f"s_cmp_lg_u32 s{S_WG}, 0\ns_cbranch_scc1 {L}\ns_mov_b32 s57, 0")
    set_flag(A, 57, 16)
    A(f"{L}:")

HDR = open("recurrent_scan__spectral_gfnet__geglu_ffn__prompt.s.ref").read().split("; Override")[0]
DOC = r'''; ======================================================================================================
;    makes zero, so the 256 columns that are carried are bins 1..256.
;    (-mean x column sums of the weights) and 1/den is folded into the gelu constants; writes h (bf16).
; CF (32 workgroups, one bin per wave): 2048-point column FFT (32 x 2 x 32), times W, inverse FFT, all in
; Hand-offs between workgroups go through d_ws: write-through (sc1) stores, s_waitcnt vmcnt, barrier, then one
; workgroup 0 stores the tag to ws[0] at the end, so flags of an earlier launch never match.  Spins are bounded.
; ======================================================================================================
'''
def gen(**kw):
    for k, v in kw.items(): setattr(C, k, v)
    A = Asm()
    A(HDR.rstrip())
    A("; @launch grid=(256,1,1) block=(512,1,1) lds=163840")
    A(DOC.rstrip())
    A('.amdgcn_target "amdgcn-amd-amdhsa--gfx950"\n.text')
    kernel_begin(A, KN)
    prologue(A)
    phase_p0(A)
    phase_g1(A)
    A("s_branch L_g2\nL_cf:")
    phase_cf(A)
    A("L_g2:")
    phase_g2(A)
    if C.delay:
        A(f"s_memtime s[70:71]\ns_waitcnt lgkmcnt(0)\nL_dly:\ns_memtime s[72:73]\ns_waitcnt lgkmcnt(0)\ns_sub_u32 s72, s72, s70\ns_cmp_lt_u32 s72, {C.delay}\ns_cbranch_scc1 L_dly")
    if C.echo:
        A(f"s_memrealtime s[72:73]\ns_waitcnt lgkmcnt(0)")
        if C.echo == "end": A("s_mov_b32 s84, s72")
        A(f"s_sub_u32 s84, s84, s82\ns_mul_i32 s84, s84, {C.echo_k}")
        A(f"L_echo:\ns_memrealtime s[74:75]\ns_waitcnt lgkmcnt(0)\ns_sub_u32 s74, s74, s72\ns_cmp_lt_u32 s74, s84\ns_cbranch_scc1 L_echo")
    if C.skew >= 0:
        A(f"s_cmp_lg_u32 s{S_XCD}, {C.skew}\ns_cbranch_scc1 L_done\nv_mov_b32 v2, 0\nbuffer_load_dword v3, v2, {WSR}, 0 offen offset:512 sc1\ns_waitcnt vmcnt(0)\nv_readfirstlane_b32 s84, v3")
        A(f"s_memrealtime s[72:73]\ns_waitcnt lgkmcnt(0)\ns_sub_u32 s84, s82, s84\ns_add_u32 s84, s84, 50\ns_max_i32 s84, s84, 0\ns_min_u32 s84, s84, 1000\ns_mul_i32 s84, s84, 4")
        A(f"L_sk:\ns_memrealtime s[74:75]\ns_waitcnt lgkmcnt(0)\ns_sub_u32 s74, s74, s72\ns_cmp_lt_u32 s74, s84\ns_cbranch_scc1 L_sk")
    if C.dbgclk:
        A(f"s_cmp_lg_u32 s{S_WG}, 0\ns_cbranch_scc1 L_done\ns_cmp_lg_u32 s{S_WAVE}, 0\ns_cbranch_scc1 L_done")
        A("s_memtime s[74:75]\ns_memrealtime s[76:77]\ns_waitcnt lgkmcnt(0)\ns_sub_u32 s74, s74, s80\ns_sub_u32 s76, s76, s82")
        srd(A, S_A, P_DBG, 256)
        A(f"v_mov_b32 v2, 0\nv_mov_b32 v4, s74\nv_mov_b32 v5, s76\nbuffer_store_dwordx2 v[4:5], v2, {AR}, 0 offen")
    diag_end(A)
    A("L_done:\ns_endpgm")
    A('.section .rodata,"a"\n.p2align 6')
    A(descriptor(KN, 256, 102, 256))
    return hazard.fix(A.text(), verbose=False)
if __name__ == "__main__":
    kw = dict(a.split("=") for a in sys.argv[2:])
    kw = {k: (int(v) if v.isdigit() and k not in ("perm", "g2map") else v.replace("_", "")) for k, v in kw.items()}
    open(sys.argv[1], "w").write(gen(**kw))
```

```python
import struct, sys
from asmgen import *
import hazard

WS_FL = 0x0
FL_W = 0x1000
FL_B = 0x9000
FL_H = 0x11000
FL_C = 0x19000
WS_ST = 0x0100000
WS_Z  = 0x0300000
WS_WP = 0x0500000
WS_G  = 0x0700000
WS_ZP = 0x0800000
WS_H  = 0x0A00000
WS_DIAG = 0x1200000
WS_SIZE = 0x1400000
TAGK = 0x3C6EF35F

def fhex(x): return "0x%08x" % struct.unpack("<I", struct.pack("<f", x))[0]
S_WS, S_X, S_A, S_B = 4, 8, 12, 16
S_WAVE, S_WG, S_TAG, S_SLOT = 20, 21, 22, 23
S_PTR = 24
P_X, P_WR, P_WI, P_BX, P_WG, P_WU, P_WD, P_OUT, P_DBG, P_WS = [S_PTR + 2 * i for i in range(10)]
S_RT, S_CT, S_WOFF, S_RDY, S_XCD, S_SPIN = 64, 65, 66, 67, 68, 69
S_WLDS = 3
WSR = f"s[{S_WS}:{S_WS+3}]"; XR = f"s[{S_X}:{S_X+3}]"; AR = f"s[{S_A}:{S_A+3}]"; BR = f"s[{S_B}:{S_B+3}]"
S_C = 96; CR = f"s[{S_C}:{S_C+3}]"
LDS_P0 = 98304
SLOT = 49152
LDS_CS = 147456
LDS_SINK = 152576
LDS_ST = 160768

class Cfg:
    diag = False
    g1map = "col"
    g2map = "84"
    nt_x = ""; nt_x2 = ""; nt_w = "nt"; nt_g1w = ""; nt_g1w0 = ""
    E1, E2 = 2, 3
    D = 8
    xst = 6
    skew = -1
    fast = 0
    nfast = 2
    onepass = 0
    prio = 9
    prio0 = 9
    prioe = 9
    prio2 = 9
    prioc = 9
    psleep = 0
    nsl = 5
    ytail = 0
    csm = "m"
    rt = 0
    fbgo = 1
    a0pos = 1
    g1pos = 1
    halfpf = 0
    cfpk = 0
    wmax = 0
    sched = "R"
    sj = 4
    wj = 0
    wd = 2
    outf = "nt"
    cfstage = 0
    cfw0 = 1
    zfirst = 1
    fbj = 0
    a0early = 0
    bulk = 1
    cpf = 1
    rotc = 0
    rotr = 1
    perm = "01452367"
    j0early = 1
    delay = 0
    echo = ""
    echo_k = 1
    dbgclk = 0
    la2 = 3
    dbg = ""
    sc_act = "sc1"
    rot2 = 0
    nepi = 0
    pf_start, pf_step = 24, 2
    stamps = "x,p0end,go,main,epi,flag2,hrdy,st0,st8"
C = Cfg()

def stamp(A, name):
    if C.echo == name: A("s_memrealtime s[84:85]")
    if not C.diag: return
    names = ["entry"] + C.stamps.split(",") + ["end"]
    assert len(names) <= 11
    if name in names:
        n = names.index(name)
        A(f"{'s_memrealtime' if C.rt else 's_memtime'} s[{74+2*n}:{75+2*n}]")
def diag_end(A):
    if not C.diag: return
    A("s_waitcnt vmcnt(0)")
    stamp(A, "end")
    A("s_memrealtime s[72:73]\ns_waitcnt lgkmcnt(0)")
    A(f"s_lshl_b32 s3, s{S_WG}, 10\ns_lshl_b32 s44, s{S_WAVE}, 7\ns_add_u32 s3, s3, s44\ns_add_u32 s3, s3, {WS_DIAG}")
    A("v_mov_b32 v2, 0")
    for i, sreg in enumerate([70, 72, S_RDY] + [74 + 2*k for k in range(11)]):
        A(f"v_mov_b32 v3, s{sreg}\nbuffer_store_dword v3, v2, {WSR}, s3 offen offset:{4*i}")

def srd(A, s, ptr, nbytes):
    A(f"s_mov_b32 s{s}, s{ptr}\ns_and_b32 s{s+1}, s{ptr+1}, 0xffff\ns_mov_b32 s{s+2}, {nbytes}\ns_mov_b32 s{s+3}, 0x00020000")
def cos_batch(A, regs, mask, scale):
    for r in regs: A(f"v_and_b32 v{r}, {mask}, v{r}")
    for r in regs: A(f"v_cvt_f32_u32 v{r}, v{r}")
    for r in regs: A(f"v_mul_f32 v{r}, {fhex(scale)}, v{r}")
    for r in regs: A(f"v_cos_f32 v{r}, v{r}")
def wave_sum(A, v, sdst):
    for mod in ("row_shr:1 row_mask:0xf", "row_shr:2 row_mask:0xf", "row_shr:4 row_mask:0xf", "row_shr:8 row_mask:0xf",
                "row_bcast:15 row_mask:0xa", "row_bcast:31 row_mask:0xc"):
        A(f"v_add_f32_dpp v{v}, v{v}, v{v} {mod} bank_mask:0xf")
    A(f"v_readlane_b32 s{sdst}, v{v}, 63")
def set_flag(A, soff_expr_sreg, vt=3, anywave=False):
    L = A.label("L_fl")
    if not anywave: A(f"s_cmp_lg_u32 s{S_WAVE}, 0\ns_cbranch_scc1 {L}")
    A(f"v_mov_b32 v{vt}, s{S_TAG}\nv_lshlrev_b32 v{vt+1}, 2, v1\ns_mov_b32 exec_hi, 0")
    A(f"buffer_store_dword v{vt}, v{vt+1}, {WSR}, s{soff_expr_sreg} offen sc1")
    A("s_mov_b64 exec, -1")
    A(f"{L}:")
def poll(A, groups, vt, once=False):
    L = A.label("L_poll"); Lx = A.label("L_pollx")
    if not once: A(f"s_mov_b32 s{S_SPIN}, 0\n{L}:")
    for n, (va, so) in enumerate(groups):
        A(f"buffer_load_dword v{vt+n}, v{va}, {WSR}, {so} offen sc1")
    A("s_waitcnt vmcnt(0)")
    for n in range(1, len(groups)):
        A(f"v_xor_b32 v{vt+n}, s{S_TAG}, v{vt+n}")
    A(f"v_xor_b32 v{vt}, s{S_TAG}, v{vt}")
    for n in range(1, len(groups)):
        A(f"v_or_b32 v{vt}, v{vt}, v{vt+n}")
    A(f"v_cmp_ne_u32 vcc, 0, v{vt}")
    if once:
        A(f"s_cmp_eq_u64 vcc, 0\ns_cselect_b32 s{S_RDY}, 1, 0")
    else:
        A(f"s_cmp_eq_u64 vcc, 0\ns_cbranch_scc1 {Lx}")
        if C.psleep: A(f"s_sleep {C.psleep}")
        A(f"s_add_u32 s{S_SPIN}, s{S_SPIN}, 1\ns_cmp_lt_u32 s{S_SPIN}, 0x200000\ns_cbranch_scc1 {L}")
        A(f"{Lx}:")

V_WDMA, V_ADE, V_ADO = 146, 147, 148
S_ST0 = 2
S_AOFF = 58
def g1_stage(A, j, sreg):
    A(f"s_add_u32 s{sreg}, s{S_ST0}, {int(C.perm[j])}\ns_and_b32 s{sreg}, s{sreg}, 7")
def g1w_ops(j):
    sl = (j % 3) * SLOT
    nt = C.nt_g1w0 if j == 0 else C.nt_g1w
    if "W" in C.dbg: j = 0
    return [f"s_add_u32 s60, s{S_ST0}, {int(C.perm[j])}\ns_and_b32 s60, s60, 7\ns_mul_i32 s60, s60, {64*3584}\ns_add_u32 s60, s60, s{S_WOFF}\n"
            f"s_add_u32 m0, s{S_WLDS}, {sl}\nbuffer_load_dwordx4 v{V_WDMA}, {AR}, s60 offen {nt} lds",
            f"s_add_u32 m0, s{S_WLDS}, {sl + 8192}\nbuffer_load_dwordx4 v{V_WDMA}, {BR}, s60 offen {nt} lds"]
def g1a_ops(j):
    sl = (j % 3) * SLOT + 16384
    if "A" in C.dbg: j = 0
    L = []
    for i in range(4):
        pre = (f"s_add_u32 s61, s{S_ST0}, {int(C.perm[j])}\ns_and_b32 s61, s61, 7\ns_lshl_b32 s61, s61, 7\ns_add_u32 s61, s61, s{S_AOFF}\ns_lshl_b32 s59, s{S_WLDS}, 2\n" if i == 0
               else f"s_add_u32 s61, s61, {(4 if i & 1 else 12) * 1024}\n")
        L.append(pre + f"s_add_u32 m0, s59, {sl + i*1024}\nbuffer_load_dwordx4 v{V_ADO if i & 1 else V_ADE}, {XR}, s61 offen lds")
    return L

def prologue(A):
    if C.dbgclk or C.echo or C.skew >= 0: A("s_memtime s[80:81]\ns_memrealtime s[82:83]\ns_memrealtime s[84:85]")
    if C.diag:
        for k in range(11): A(f"s_mov_b32 s{74+2*k}, 0")
        A("s_memrealtime s[70:71]"); stamp(A, "entry")
    A("s_cmp_ge_u32 s2, 256\ns_cbranch_scc1 L_done")
    A(f"s_load_dwordx16 s[{S_PTR}:{S_PTR+15}], s[0:1], 0")
    A(f"s_load_dwordx4 s[{S_PTR+16}:{S_PTR+19}], s[0:1], 64")
    A("v_lshrrev_b32 v2, 6, v0\nv_and_b32 v1, 63, v0")
    A(f"v_readfirstlane_b32 s{S_WAVE}, v2")
    A(f"s_mov_b32 s{S_WG}, s2\ns_and_b32 s{S_XCD}, s2, 7\ns_lshr_b32 s{S_SLOT}, s2, 3\ns_mov_b32 s{S_RDY}, 0")
    code_prefetch(A, KN, "L_done", 112)
    if C.g1map == "col":
        A(f"s_mul_i32 s44, s{S_XCD}, 28\ns_add_u32 s44, s44, s{S_SLOT}\ns_and_b32 s{S_RT}, s44, 7\ns_lshr_b32 s{S_CT}, s44, 3")
    else:
        A(f"s_and_b32 s44, s{S_XCD}, 1\ns_lshl_b32 s44, s44, 2\ns_and_b32 s45, s{S_SLOT}, 3\ns_add_u32 s{S_RT}, s44, s45")
        A(f"s_lshr_b32 s44, s{S_XCD}, 1\ns_mul_i32 s44, s44, 7\ns_lshr_b32 s45, s{S_SLOT}, 2\ns_add_u32 s{S_CT}, s44, s45")
    A(f"s_mul_i32 s44, s{S_CT}, {C.rotc}\ns_mul_i32 s45, s{S_RT}, {C.rotr}\ns_add_u32 s44, s44, s45\ns_and_b32 s{S_ST0}, s44, 7")
    W = S_WAVE
    A(f"s_lshr_b32 s44, s{S_WG}, 2          ; r2")
    A(f"s_and_b32 s45, s{S_WG}, 3           ; mh")
    A(f"s_lshr_b32 s46, s45, 1\ns_lshl_b32 s46, s46, 4")
    A(f"s_and_b32 s47, s45, 1\ns_lshl_b32 s47, s47, 2\ns_add_u32 s46, s46, s47")
    A(f"s_lshr_b32 s47, s{W}, 2\ns_lshl_b32 s47, s47, 3\ns_add_u32 s46, s46, s47")
    A(f"s_and_b32 s47, s{W}, 3\ns_add_u32 s46, s46, s47     ; r1")
    A("s_lshl_b32 s46, s46, 6\ns_add_u32 s46, s46, s44\ns_lshl_b32 s56, s46, 10")
    A("v_lshlrev_b32 v2, 4, v1")
    A("s_waitcnt lgkmcnt(0)")
    srd(A, S_X, P_X, 2097152)
    A(f"buffer_load_dwordx4 v[4:7], v2, {XR}, s56 offen {C.nt_x}")
    A(f"s_load_dword s{S_TAG}, s[{P_WS}:{P_WS+1}], 0")
    srd(A, S_WS, P_WS, WS_SIZE)
    if C.skew >= 0:
        A(f"s_cmp_lg_u32 s{S_WG}, 0\ns_cbranch_scc1 L_sk0\nv_mov_b32 v8, s82\nv_mov_b32 v9, 0\nbuffer_store_dword v8, v9, {WSR}, 0 offen offset:512 sc1\ns_waitcnt vmcnt(0)\nL_sk0:")

def code_prefetch(A, start, end, vt):
    Lh = A.label("L_cph")
    A(f"s_getpc_b64 s[60:61]\n{Lh}:")
    A(f"s_mul_i32 s59, s{S_SLOT}, 1280\ns_mul_i32 s57, s{S_WAVE}, 160\ns_add_u32 s59, s59, s57\nv_and_b32 v{vt}, 15, v1\nv_lshl_add_u32 v{vt}, v{vt}, 4, s59\nv_min_u32 v{vt}, {end} - {start} - 16, v{vt}")
    A(f"s_add_u32 s60, s60, {start} - {Lh}\ns_addc_u32 s61, s61, {'-1' if start == KN else '0'}")
    A(f"v_mov_b32 v{vt+1}, s61\nv_add_co_u32 v{vt}, vcc, s60, v{vt}\nv_addc_co_u32 v{vt+1}, vcc, 0, v{vt+1}, vcc")
    A(f"global_load_dwordx4 v[{vt+2}:{vt+5}], v[{vt}:{vt+1}], off")

def gemm_only(A, fn):
    L = A.label("L_go")
    A(f"s_cmp_ge_u32 s{S_SLOT}, 28\ns_cbranch_scc1 {L}")
    fn()
    A(f"{L}:")
def wait_role(A, n_gemm, n_cf):
    L = A.label("L_wr"); L2 = A.label("L_wr")
    A(f"s_cmp_ge_u32 s{S_SLOT}, 28\ns_cbranch_scc1 {L}\ns_waitcnt vmcnt({n_gemm})\ns_branch {L2}\n{L}:\ns_waitcnt vmcnt({n_cf})\n{L2}:")

def setprio(A, mode):
    if mode == 9: return
    A("s_setprio 0")
    if mode:
        L = A.label("L_pr")
        A(f"s_cmp_{'lt' if mode == 1 else 'ge'}_u32 s{S_WAVE}, 4\ns_cbranch_scc1 {L}\ns_setprio 1\n{L}:")

def phase_p0(A):
    setprio(A, C.prio0)
    W = S_WAVE
    ZL = 2 * SLOT; XNL = 2 * SLOT + 16384; CL = XNL + 8192; WL = 151552; STL = WL + 8320
    B1RE, B1IM, A2RE, A2IM, S2RE, S2IM, TWC, TWS = 64, 68, 72, 76, 80, 84, 88, 92
    T = 32
    srd(A, S_A, P_WG, 512 * 3584)
    srd(A, S_B, P_WU, 512 * 3584)
    A("v_lshrrev_b32 v8, 3, v1")
    A("v_bfe_u32 v9, v1, 4, 1\nv_lshlrev_b32 v9, 2, v9\nv_and_b32 v10, 7, v1\nv_xor_b32 v9, v9, v10")
    A(f"v_mul_u32_u24 v11, 3584, v8\nv_lshl_add_u32 v{V_WDMA}, v9, 4, v11")
    A(f"s_mul_i32 s47, s{W}, {8*3584}\ns_lshl_b32 s52, s{S_CT}, 7\ns_add_u32 s{S_WOFF}, s47, s52\ns_lshl_b32 s{S_WLDS}, s{W}, 10")
    def w_flat():
        A(f"s_cmp_lt_u32 s{W}, 4\ns_cselect_b32 s{S_C}, s{P_WR}, s{P_WI}\ns_cselect_b32 s{S_C+1}, s{P_WR+1}, s{P_WI+1}")
        A(f"s_and_b32 s{S_C+1}, s{S_C+1}, 0xffff\ns_mov_b32 s{S_C+2}, {2048*514}\ns_mov_b32 s{S_C+3}, 0x00020000")
        A(f"s_mul_i32 s53, s{S_WG}, 4112\ns_and_b32 s54, s{W}, 3\ns_lshl_b32 s54, s54, 10\ns_add_u32 s55, s53, s54")
        A(f"s_lshr_b32 s61, s{W}, 2\ns_mul_i32 s61, s61, 4160\ns_add_u32 s61, s61, {WL}\ns_add_u32 m0, s61, s54")
        A(f"buffer_load_dwordx4 v2, {CR}, s55 offen {C.nt_w} lds")
        A("s_add_u32 m0, s61, 4096\ns_add_u32 s53, s53, 4096\ns_mov_b64 exec, 1")
        A(f"buffer_load_dwordx4 v2, {CR}, s53 offen {C.nt_w} lds")
        A("s_mov_b64 exec, -1")
    def bulk():
        L = A.label("L_bk"); L2 = A.label("L_bk")
        A(f"s_cmp_ge_u32 s{S_SLOT}, 28\ns_cbranch_scc1 {L}")
        for o in g1w_ops(0): A(o)
        A(f"{L}:")
        w_flat()
    if C.bulk == 0: bulk()
    A("v_lshrrev_b32 v9, 2, v8\nv_lshlrev_b32 v9, 3, v9\nv_and_b32 v8, 3, v8\nv_add_u32 v8, v8, v9\nv_lshlrev_b32 v8, 10, v8")
    A(f"v_lshrrev_b32 v9, 4, v1\nv_xor_b32 v9, v9, v10\nv_lshl_add_u32 v{V_ADE}, v9, 4, v8\nv_xor_b32 v{V_ADO}, 64, v{V_ADE}")
    A(f"s_lshl_b32 s47, s{S_RT}, 3\ns_add_u32 s47, s47, s{W}\ns_lshl_b32 s{S_AOFF}, s47, 15")
    if C.a0early == 1: gemm_only(A, lambda: [A(o) for o in g1a_ops(0)])
    M0 = "s[62:63]"
    A("v_and_b32 v30, 15, v1\nv_lshrrev_b32 v29, 4, v1")
    A(f"v_cmp_eq_u32 {M0}, 0, v30\nv_cmp_gt_u32 vcc, 8, v30")
    A("v_cvt_f32_u32 v26, v30\nv_cvt_f32_u32 v27, v29\nv_mul_f32 v27, 4.0, v27      ; k, 4g")
    Lc = A.label("L_c"); cases = [A.label("L_c") for _ in range(7)]
    A("s_mov_b32 s47, 0")
    for n in range(1, 7):
        A(f"s_cmp_eq_u32 s{W}, {n}\ns_cbranch_scc1 {cases[n]}")
    A(f"; wave 0 (and 7): B1RE\nv_mul_f32 v20, {fhex(1/32)}, v26\nv_mov_b32 v22, 0\ns_mov_b32 s47, {fhex(16.0)}\nv_mov_b32 v21, v20\nv_mov_b32 v23, 0\ns_branch {Lc}")
    A(f"{cases[1]}:\nv_mul_f32 v20, {fhex(1/32)}, v26\nv_mov_b32 v22, {fhex(0.25)}\nv_cndmask_b32 v20, v20, 0.5, {M0}\nv_cndmask_b32 v22, v22, 0, {M0}")
    A(f"s_mov_b32 s47, {fhex(16.0)}\nv_mov_b32 v21, v20\nv_mov_b32 v23, v22\ns_branch {Lc}")
    A(f"{cases[2]}:\nv_mul_f32 v20, {fhex(1/16)}, v26\nv_mov_b32 v22, 0\nv_mov_b32 v23, {fhex(0.75)}\nv_mov_b32 v21, v20\ns_branch {Lc}")
    A(f"{cases[3]}:\nv_mul_f32 v20, {fhex(1/16)}, v26\nv_cndmask_b32 v23, 0.5, 0, vcc\nv_add_f32 v22, {fhex(0.25)}, v23\nv_mov_b32 v21, v20\ns_branch {Lc}")
    for n in (4, 5):
        A(f"{cases[n]}:\nv_mul_f32 v20, {fhex(1/16)}, v26\nv_cndmask_b32 v21, v20, 0.5, {M0}\nv_sub_f32 v24, {fhex(31/32)}, v20")
        A("v_cndmask_b32 v20, 0, v21, vcc\nv_cndmask_b32 v21, v24, 0, vcc")
        if n == 4: A(f"v_mov_b32 v24, {fhex(0.25)}\nv_cndmask_b32 v22, v24, 0, vcc\nv_cndmask_b32 v23, 0, v24, vcc")
        else: A(f"v_mov_b32 v22, {fhex(0.25)}\nv_mov_b32 v23, v22")
        A(f"s_branch {Lc}")
    A(f"{cases[6]}:\nv_mul_f32 v20, {fhex(1/512)}, v26\nv_mov_b32 v22, 0\nv_mov_b32 v23, {fhex(0.75)}\nv_mov_b32 v21, v20")
    A(f"{Lc}:")
    A("v_fma_f32 v22, v27, v20, v22\nv_add_f32 v24, s47, v27\nv_fma_f32 v23, v24, v21, v23")
    for (b, v, o) in ((22, 20, T), (23, 21, T + 4)):
        A(f"v_cos_f32 v{o}, v{b}\nv_add_f32 v{o+1}, v{b}, v{v}\nv_fma_f32 v{o+2}, v{v}, 2.0, v{b}\nv_fmamk_f32 v{o+3}, v{v}, {fhex(3.0)}, v{b}")
        for q in (1, 2, 3): A(f"v_cos_f32 v{o+q}, v{o+q}")
    A(f"s_add_u32 s47, s{S_WLDS}, {CL}\nv_add_u32 v24, s47, v2")
    L6 = A.label("L_c6"); L7 = A.label("L_c7")
    A(f"s_cmp_eq_u32 s{W}, 6\ns_cbranch_scc1 {L6}\ns_cmp_eq_u32 s{W}, 7\ns_cbranch_scc1 {L7}")
    for q in range(4): A(f"v_cvt_pk_bf16_f32 v{T+q}, v{T+2*q}, v{T+2*q+1}")
    A(f"ds_write_b128 v24, v[{T}:{T+3}]\ns_branch {L7}")
    A(f"{L6}:\nds_write_b128 v24, v[{T}:{T+3}]\nds_write_b128 v24, v[{T+4}:{T+7}] offset:1024\n{L7}:")
    A(f"s_add_u32 s61, s{S_WLDS}, {XNL}")
    A("v_add_u32 v96, s61, v2\nv_lshl_add_u32 v97, v1, 3, s61")
    A(f"v_add_u32 v108, {CL}, v2")
    A(f"v_lshlrev_b32 v100, 11, v29\nv_lshl_add_u32 v100, v30, 5, v100\ns_lshl_b32 s61, s{W}, 1\ns_add_u32 s61, s61, {ZL}")
    A("v_add_u32 v100, s61, v100")
    A(f"s_waitcnt lgkmcnt(0)\ns_barrier\ns_add_u32 s{S_TAG}, s{S_TAG}, {TAGK}")
    for n in range(8): A(f"ds_read_b128 v[{64+4*n}:{67+4*n}], v108 offset:{1024*n}")
    if C.a0early == 2: gemm_only(A, lambda: [A(o) for o in g1a_ops(0)])
    if C.bulk == 1: bulk()
    A(f"v_lshlrev_b32 v101, 4, v0\nv_add_u32 v101, {ZL}, v101")
    A("s_and_b32 s61, s44, 15\nv_and_b32 v103, 15, v0\nv_xor_b32 v102, s61, v103\nv_lshlrev_b32 v102, 4, v102")
    A("v_lshrrev_b32 v12, 4, v0             ; cg")
    A("v_lshl_add_u32 v102, v12, 16, v102")
    A(f"s_lshl_b32 s46, s{S_WG}, 8\ns_add_u32 s45, s46, {WS_Z}\ns_add_u32 s46, s46, {WS_WP}")
    A("v_bfe_u32 v13, v0, 4, 4\nv_and_b32 v12, 15, v0\nv_lshlrev_b32 v14, 5, v13\nv_add_u32 v20, v14, v12\nv_sub_u32 v15, 0x200, v14")
    A("v_cmp_eq_u32 vcc, 0, v12\nv_cndmask_b32 v21, v12, 16, vcc\nv_sub_u32 v15, v15, v21\nv_cmp_gt_u32 vcc, 8, v13\nv_cndmask_b32 v20, v15, v20, vcc")
    A("v_and_b32 v12, 255, v0\nv_mov_b32 v15, 0x100\nv_cmp_eq_u32 vcc, 0, v12\nv_cndmask_b32 v20, v20, v15, vcc      ; bin")
    A(f"s_lshr_b32 s61, s{W}, 2\ns_mul_i32 s60, s61, {4*514}\ns_add_u32 s60, s60, {WL}\nv_lshl_add_u32 v127, v20, 1, s60")
    A(f"s_lshl_b32 s60, s{S_WG}, 1\ns_add_u32 s60, s60, s61\ns_and_b32 s60, s60, 7\nv_and_b32 v13, 7, v0\nv_xor_b32 v13, s60, v13\nv_lshlrev_b32 v13, 4, v13")
    A("v_lshrrev_b32 v12, 3, v12\nv_lshl_add_u32 v103, v12, 16, v13\ns_lshl_b32 s61, s61, 7\ns_add_u32 s46, s46, s61")
    A(f"s_lshl_b32 s57, s{S_WG}, 7\ns_add_u32 s57, s57, {FL_B}")
    A(f"v_lshlrev_b32 v126, 3, v1\nv_and_b32 v13, 63, v126\nv_add_u32 v99, {STL}, v13\ns_lshl_b32 s55, s{S_WG}, 7\ns_add_u32 s55, s55, {WS_ST}")
    A("v_mov_b32 v3, v102")
    if C.g1pos == 0: g1_setup(A)
    A("; ---- P0: layernorm")
    stamp(A, "consts")
    if C.bulk < 2: wait_role(A, 4, 2)
    else:
        A("s_waitcnt vmcnt(0)"); bulk()
    stamp(A, "x")
    if C.halfpf:
        L = A.label("L_hp")
        A(f"s_add_u32 s60, s{S_SLOT}, 4\ns_and_b32 s61, s{S_XCD}, 1\ns_cselect_b32 s61, 4, 28\ns_sub_u32 s60, s60, s61\ns_cmp_ge_u32 s60, 4\ns_cbranch_scc1 {L}")
        A(f"s_add_u32 s60, s{S_ST0}, 4\ns_and_b32 s60, s60, 7\ns_mul_i32 s60, s60, {64*3584}\ns_add_u32 s60, s60, s{S_WOFF}\ns_add_u32 m0, s{S_WLDS}, 131072")
        A(f"buffer_load_dwordx4 v{V_WDMA}, {AR}, s60 offen {C.nt_g1w0} lds\nbuffer_load_dwordx4 v{V_WDMA}, {BR}, s60 offen {C.nt_g1w0} lds\n{L}:")
    for q in range(4):
        A(f"v_lshlrev_b32 v{T+2*q}, 16, v{4+q}\nv_and_b32 v{T+2*q+1}, 0xffff0000, v{4+q}")
    if C.onepass:
        A(f"v_readfirstlane_b32 s61, v{T}")
        for q in range(8): A(f"v_subrev_f32 v{T+16+q}, s61, v{T+q}")
        A(f"v_pk_add_f32 v[{T+8}:{T+9}], v[{T+16}:{T+17}], v[{T+18}:{T+19}]\nv_pk_add_f32 v[{T+10}:{T+11}], v[{T+20}:{T+21}], v[{T+22}:{T+23}]")
        A(f"v_pk_mul_f32 v[{T+12}:{T+13}], v[{T+16}:{T+17}], v[{T+16}:{T+17}]\nv_pk_mul_f32 v[{T+14}:{T+15}], v[{T+18}:{T+19}], v[{T+18}:{T+19}]")
        A(f"v_pk_add_f32 v[{T+8}:{T+9}], v[{T+8}:{T+9}], v[{T+10}:{T+11}]")
        A(f"v_pk_fma_f32 v[{T+12}:{T+13}], v[{T+20}:{T+21}], v[{T+20}:{T+21}], v[{T+12}:{T+13}]\nv_pk_fma_f32 v[{T+14}:{T+15}], v[{T+22}:{T+23}], v[{T+22}:{T+23}], v[{T+14}:{T+15}]")
        A(f"v_add_f32 v{T+8}, v{T+8}, v{T+9}\nv_pk_add_f32 v[{T+12}:{T+13}], v[{T+12}:{T+13}], v[{T+14}:{T+15}]\nv_mov_b32 v{T+9}, {fhex(1.0/512)}\nv_add_f32 v{T+12}, v{T+12}, v{T+13}")
        for mod in ("row_shr:1 row_mask:0xf", "row_shr:2 row_mask:0xf", "row_shr:4 row_mask:0xf", "row_shr:8 row_mask:0xf", "row_bcast:15 row_mask:0xa", "row_bcast:31 row_mask:0xc"):
            A(f"v_add_f32_dpp v{T+8}, v{T+8}, v{T+8} {mod} bank_mask:0xf\nv_add_f32_dpp v{T+12}, v{T+12}, v{T+12} {mod} bank_mask:0xf")
        A(f"v_readlane_b32 s60, v{T+8}, 63\nv_readlane_b32 s53, v{T+12}, 63")
        A(f"v_mul_f32 v{T+11}, s60, v{T+9}\nv_mul_f32 v{T+9}, s53, v{T+9}\nv_add_f32 v{T+10}, s61, v{T+11}\nv_fma_f32 v{T+9}, -v{T+11}, v{T+11}, v{T+9}\nv_max_f32 v{T+9}, 0, v{T+9}")
        A(f"v_cvt_pk_bf16_f32 v{T+10}, v{T+10}, v{T+10}\nv_lshlrev_b32 v{T+10}, 16, v{T+10}")
        for q in range(8): A(f"v_sub_f32 v{T+q}, v{T+q}, v{T+10}")
        for q in range(4): A(f"v_cvt_pk_bf16_f32 v{T+16+q}, v{T+2*q}, v{T+2*q+1}")
    else:
        A(f"v_pk_add_f32 v[{T+8}:{T+9}], v[{T}:{T+1}], v[{T+2}:{T+3}]\nv_pk_add_f32 v[{T+10}:{T+11}], v[{T+4}:{T+5}], v[{T+6}:{T+7}]")
        A(f"v_pk_add_f32 v[{T+8}:{T+9}], v[{T+8}:{T+9}], v[{T+10}:{T+11}]\nv_add_f32 v{T+8}, v{T+8}, v{T+9}")
        wave_sum(A, T + 8, 60)
        A(f"v_mov_b32 v{T+9}, {fhex(1.0/512)}\nv_mul_f32 v{T+9}, s60, v{T+9}")
        A(f"v_cvt_pk_bf16_f32 v{T+10}, v{T+9}, v{T+9}")
        for q in range(8): A(f"v_sub_f32 v{T+16+q}, v{T+q}, v{T+9}")
        A(f"v_lshlrev_b32 v{T+10}, 16, v{T+10}")
        A(f"v_mul_f32 v{T+8}, v{T+16}, v{T+16}\nv_mul_f32 v{T+11}, v{T+17}, v{T+17}")
        for q in range(2, 8, 2):
            A(f"v_fmac_f32 v{T+8}, v{T+16+q}, v{T+16+q}\nv_fmac_f32 v{T+11}, v{T+17+q}, v{T+17+q}")
        A(f"v_add_f32 v{T+8}, v{T+8}, v{T+11}")
        fill = [f"v_sub_f32 v{T+q}, v{T+q}, v{T+10}" for q in range(8)] + [f"v_cvt_pk_bf16_f32 v{T+16+q}, v{T+2*q}, v{T+2*q+1}" for q in range(4)]
        for n, mod in enumerate(("row_shr:1 row_mask:0xf", "row_shr:2 row_mask:0xf", "row_shr:4 row_mask:0xf", "row_shr:8 row_mask:0xf",
                    "row_bcast:15 row_mask:0xa", "row_bcast:31 row_mask:0xc")):
            A(fill[2*n]); A(fill[2*n+1])
            A(f"v_add_f32_dpp v{T+8}, v{T+8}, v{T+8} {mod} bank_mask:0xf")
        A(f"v_mov_b32 v{T+9}, {fhex(1.0/512)}")
        A(f"v_readlane_b32 s60, v{T+8}, 63")
    for q in range(2):
        A(f"v_lshlrev_b32 v{T+2*q}, 16, v{T+16+q}\nv_and_b32 v{T+2*q+1}, 0xffff0000, v{T+16+q}")
    if not C.onepass: A(f"v_mul_f32 v{T+9}, s60, v{T+9}")
    A(f"v_cvt_pk_bf16_f32 v{T+9}, v{T+9}, v{T+9}\nv_lshlrev_b32 v{T+9}, 16, v{T+9}")
    A(f"v_add_f32 v{T+9}, {fhex(1e-5)}, v{T+9}")
    A(f"v_cvt_pk_bf16_f32 v{T+9}, v{T+9}, v{T+9}\nv_lshlrev_b32 v{T+9}, 16, v{T+9}")
    A(f"v_sqrt_f32 v{T+9}, v{T+9}")
    A(f"v_lshlrev_b32 v{T+4}, 16, v{T+18}")
    A(f"v_cvt_pk_bf16_f32 v{T+9}, v{T+9}, v{T+9}\nv_lshlrev_b32 v{T+9}, 16, v{T+9}")
    A(f"v_rcp_f32 v{T+9}, v{T+9}")
    A(f"v_and_b32 v{T+5}, 0xffff0000, v{T+18}\nv_lshlrev_b32 v{T+6}, 16, v{T+19}\nv_and_b32 v{T+7}, 0xffff0000, v{T+19}")
    for q in range(8): A(f"v_mul_f32 v{T+q}, v{T+9}, v{T+q}")
    for q in range(4): A(f"v_cvt_pk_bf16_f32 v{4+q}, v{T+2*q}, v{T+2*q+1}")
    stamp(A, "ln")
    A("ds_write_b128 v96, v[4:7]")
    A(f"v_lshrrev_b32 v18, 16, v{T+10}\nv_or_b32 v18, v18, v{T+10}\nv_xor_b32 v18, 0x80008000, v18\nv_mov_b32 v19, v{T+9}")
    A(f"s_lshl_b32 s61, s{W}, 3\ns_add_u32 s61, s61, {STL}\nv_mov_b32 v14, s61\nds_write_b64 v14, v[18:19]")
    A("s_waitcnt lgkmcnt(0)")
    A("ds_read_b64_tr_b16 v[8:9], v97\nds_read_b64_tr_b16 v[10:11], v97 offset:512")
    if C.a0pos == 0: gemm_only(A, lambda: [A(o) for o in g1a_ops(0)])
    stamp(A, "iss1")
    A("s_waitcnt lgkmcnt(0)")
    A(f"v_mfma_f32_16x16x32_bf16 v[{T}:{T+3}], v[8:11], v[{B1RE}:{B1RE+3}], 0")
    A(f"v_mfma_f32_16x16x32_bf16 v[{T+4}:{T+7}], v[8:11], v[{B1IM}:{B1IM+3}], 0")
    for i in range(0, 4, 2):
        A(f"v_pk_mul_f32 v[{T+8+i}:{T+9+i}], v[{T+i}:{T+i+1}], v[{TWC+i}:{TWC+i+1}]\nv_pk_mul_f32 v[{T+12+i}:{T+13+i}], v[{T+4+i}:{T+5+i}], v[{TWC+i}:{TWC+i+1}]")
    for i in range(0, 4, 2):
        A(f"v_pk_fma_f32 v[{T+8+i}:{T+9+i}], v[{T+4+i}:{T+5+i}], v[{TWS+i}:{TWS+i+1}], v[{T+8+i}:{T+9+i}]")
        A(f"v_pk_fma_f32 v[{T+12+i}:{T+13+i}], v[{T+i}:{T+i+1}], v[{TWS+i}:{TWS+i+1}], v[{T+12+i}:{T+13+i}] neg_lo:[1,0,0] neg_hi:[1,0,0]")
    for q in range(4): A(f"v_cvt_pk_bf16_f32 v{8+q}, v{T+8+2*q}, v{T+9+2*q}")
    A(f"v_mfma_f32_16x16x32_bf16 v[{T}:{T+3}], v[{A2RE}:{A2RE+3}], v[8:11], 0")
    A(f"v_mfma_f32_16x16x32_bf16 v[{T+4}:{T+7}], v[{A2IM}:{A2IM+3}], v[8:11], 0")
    A(f"v_mfma_f32_16x16x32_bf16 v[{T+8}:{T+11}], v[{S2RE}:{S2RE+3}], v[8:11], 0")
    A(f"v_mfma_f32_16x16x32_bf16 v[{T+12}:{T+15}], v[{S2IM}:{S2IM+3}], v[8:11], 0")
    for i in range(8): A(f"v_cndmask_b32 v{T+i}, v{T+i}, v{T+8+i}, {M0}")
    for i in range(4): A(f"v_cvt_pk_bf16_f32 v{T+i}, v{T+i}, v{T+4+i}")
    for i in range(4):
        A(f"ds_write_b16 v100, v{T+i} offset:{512*i}\nds_write_b16_d16_hi v100, v{T+i} offset:{512*i+16}")
    stamp(A, "fft")
    A("s_mov_b32 s62, s46\ns_mov_b32 s63, s55\nv_mov_b32 v30, v127\nv_mov_b32 v17, v126\nv_mov_b32 v28, v103")
    if C.a0pos == 1: gemm_only(A, lambda: [A(o) for o in g1a_ops(0)])
    if C.g1pos == 1: g1_setup(A)
    stamp(A, "pre2")
    wait_role(A, 63, 0)
    A("s_waitcnt lgkmcnt(0)\ns_barrier")
    stamp(A, "b2")
    A("ds_read_b128 v[20:23], v101\nds_read_b64 v[18:19], v99")
    if C.a0pos == 2: gemm_only(A, lambda: [A(o) for o in g1a_ops(0)])
    A("s_waitcnt lgkmcnt(0)")
    zs = p0_stores(A)
    A(zs[0]); A(zs[2])
    stamp(A, "p0end")
    A(f"s_cmp_ge_u32 s{S_SLOT}, 28\ns_cbranch_scc1 L_cf")
    if C.a0pos == 3:
        for o in g1a_ops(0): A(o)
        if C.g1pos == 3: g1_setup(A)
    for o in g1w_ops(1) + g1a_ops(1): A(o)
    if C.g1pos == 2: g1_setup(A)
    if C.fbgo:
        A("s_waitcnt vmcnt(6)\ns_barrier")
        set_flag(A, 57, 16)
        A(f"s_sub_u32 s57, s57, {FL_B - FL_W}")
    else:
        L = A.label("L_w0"); L2 = A.label("L_w0")
        A(f"s_cmp_eq_u32 s{W}, 0\ns_cbranch_scc1 {L}\ns_waitcnt vmcnt(7)\ns_branch {L2}\n{L}:\ns_waitcnt vmcnt(8)\n{L2}:\ns_barrier")

def wp_gather():
    return [f"ds_read_u16 v{24+q}, v30 offset:{514*q}\nds_read_u16 v{4+q}, v30 offset:{4160+514*q}" for q in range(4)]
def p0_stores(A):
    a = f"buffer_store_dwordx4 v[20:23], v3, {WSR}, s45 offen sc1"
    L = A.label("L_p0_st")
    c = f"s_cmp_lg_u32 s{S_WAVE}, 0\ns_cbranch_scc1 {L}\ns_mov_b64 exec, 0xffff\nbuffer_store_dwordx2 v[18:19], v17, {WSR}, s63 offen sc1\ns_mov_b64 exec, -1\n{L}:"
    b = "\n".join(f"v_lshl_or_b32 v{24+q}, v{4+q}, 16, v{24+q}" for q in range(4)) + f"\nbuffer_store_dwordx4 v[24:27], v28, {WSR}, s62 offen sc1"
    if "z" in C.dbg: return [f"buffer_load_dword v20, v2, {WSR}, 0 offen", f"buffer_load_dword v20, v2, {WSR}, 0 offen", c]
    if "y" in C.dbg: return [a, f"buffer_load_dword v20, v2, {WSR}, 0 offen"]
    return [a, b, c]

def wd_prefetch_ops(A):
    srd(A, S_C, P_WD, 1792 * 1024)
    A(f"s_lshl_b32 s100, s{S_SLOT}, 16\ns_lshl_b32 s101, s{S_WAVE}, 13\ns_add_u32 s100, s100, s101")
    if C.g2map == "48":
        A(f"v_mov_b32 v159, v2\ns_mov_b32 s101, s{S_XCD}"); n, sh = 8, 10
    else:
        A(f"v_and_b32 v159, 31, v1\nv_lshlrev_b32 v159, 4, v159\nv_lshrrev_b32 v158, 5, v1\nv_lshl_add_u32 v159, v158, 10, v159")
        A(f"s_and_b32 s101, s{S_XCD}, 1\ns_lshl_b32 s101, s101, 9\ns_add_u32 s100, s100, s101\ns_lshr_b32 s101, s{S_XCD}, 1"); n, sh = 4, 11
    return [f"s_add_u32 m0, s{S_WLDS}, {LDS_SINK}\ns_lshl_b32 s60, s101, {sh}\ns_add_u32 s60, s60, s100\n"
            f"buffer_load_dwordx4 v159, {CR}, s60 offen lds\ns_add_u32 s101, s101, 1\ns_and_b32 s101, s101, {n-1}"] * n

V_G2W = 13
V_G2X = 244
def g2_setup(A, vw=V_G2W, vx=V_G2X, t0=14, t1=15):
    W = S_WAVE
    if C.g2map == "48":
        A(f"s_lshl_b32 s44, s{S_XCD}, 2\ns_and_b32 s45, s{S_SLOT}, 3\ns_add_u32 s44, s44, s45\ns_lshr_b32 s45, s{S_SLOT}, 2")
    else:
        A(f"s_lshr_b32 s44, s{S_XCD}, 1\ns_lshl_b32 s44, s44, 3\ns_and_b32 s45, s{S_SLOT}, 7\ns_add_u32 s44, s44, s45")
        A(f"s_and_b32 s45, s{S_XCD}, 1\ns_lshl_b32 s45, s45, 2\ns_lshr_b32 s46, s{S_SLOT}, 3\ns_add_u32 s45, s45, s46")
    A(f"s_and_b32 s48, s{W}, 3\ns_lshr_b32 s49, s{W}, 2")
    A("s_lshl_b32 s50, s44, 2\ns_add_u32 s50, s50, s48       ; rb16")
    srd(A, S_A, P_WD, 1792 * 1024)
    A(f"v_lshrrev_b32 v{vw}, 3, v1\nv_bfe_u32 v{t0}, v1, 4, 2\nv_lshlrev_b32 v{t0}, 1, v{t0}\nv_and_b32 v{t1}, 7, v1\nv_xor_b32 v{t0}, v{t0}, v{t1}")
    A(f"v_lshlrev_b32 v{vw}, 10, v{vw}\nv_lshl_add_u32 v{vw}, v{t0}, 4, v{vw}")
    A(f"s_lshl_b32 s46, s48, 15\ns_lshl_b32 s51, s45, 7\ns_add_u32 s51, s51, s46\ns_mul_i32 s55, s49, {896*1024}\ns_add_u32 s51, s51, s55")
    A("s_lshl_b32 s46, s48, 12\ns_lshl_b32 s55, s49, 14\ns_add_u32 s55, s55, s46")
    if C.rot2:
        if C.g2map == "48": A("s_cmp_eq_u32 s45, 7\ns_cselect_b32 s52, 0, s45")
        else: A(f"s_and_b32 s52, s45, 3\ns_mul_i32 s52, s52, {C.rot2}")
        A("s_mov_b32 s53, s52\ns_lshl_b32 s46, s52, 17\ns_add_u32 s51, s51, s46")
    A(f"v_lshrrev_b32 v{t0}, 3, v1\nv_and_b32 v{vx}, 3, v{t0}\nv_lshrrev_b32 v{t0}, 2, v{t0}\nv_lshl_or_b32 v{vx}, v{t0}, 3, v{vx}")
    A(f"v_lshlrev_b32 v{vx}, 10, v{vx}\nv_and_b32 v{t1}, 7, v1\nv_lshl_add_u32 v{vx}, v{t1}, 4, v{vx}")
    A(f"s_and_b32 s56, s{W}, 6\ns_lshl_b32 s56, s56, 3\ns_and_b32 s46, s{W}, 1\ns_lshl_b32 s46, s46, 2\ns_add_u32 s56, s56, s46")
    A("s_lshl_b32 s46, s44, 6\ns_add_u32 s56, s56, s46\ns_lshl_b32 s56, s56, 10\ns_lshl_b32 s46, s45, 7\ns_add_u32 s56, s56, s46")
def g2w_ops(n, vw=V_G2W):
    L = []
    for k in range(4):
        if n < 7:
            L.append(f"s_add_u32 m0, s55, {(n % C.nsl)*32768 + k*1024}\ns_add_u32 s52, s51, {n*131072 + k*8192}\nbuffer_load_dwordx4 v{vw}, {AR}, s52 offen lds")
        else:
            L.append(f"s_add_u32 m0, s55, {(n % C.nsl)*32768}\n" + f"buffer_load_dwordx4 v173, {WSR}, s58 offen offset:{1024*k} sc1 lds" + ("\ns_add_u32 s58, s58, 16384" if k == 3 else ""))
    return L
def g2_wdma(A, n):
    for o in g2w_ops(n): A(o)
def weave(A, mf, fill, skip=0):
    if C.wmax and len(fill) > C.wmax * (len(mf) - skip):
        k = 0
        for i, m in enumerate(mf):
            A(m)
            if i >= skip:
                for f in fill[k:k + C.wmax]: A(f)
                k += C.wmax
        for f in fill[k:]: A(f)
        return
    n = len(mf) - skip; k = 0
    for i, m in enumerate(mf):
        A(m)
        if i >= skip:
            e = (len(fill) * (i - skip + 1) + n - 1) // n
            for f in fill[k:e]: A(f)
            k = e

def gelu_block(g, u, T, K):
    P = lambda r: f"v[{r}:{r+1}]"
    L = []
    for n in range(0, 8, 2): L.append(f"v_pk_mul_f32 {P(T+n)}, {P(g+n)}, {P(g+n)}")
    for n in range(0, 8, 2): L.append(f"v_pk_fma_f32 {P(T+n)}, {P(T+n)}, {P(K)}, {P(K+2)}")
    for n in range(0, 8, 2): L.append(f"v_pk_mul_f32 {P(T+n)}, {P(T+n)}, {P(g+n)}")
    for n in range(8): L.append(f"v_exp_f32 v{T+n}, v{T+n}")
    for n in range(0, 8, 2): L.append(f"v_pk_mul_f32 {P(T+8+n)}, {P(g+n)}, {P(u+n)}")
    for n in range(0, 8, 2): L.append(f"v_pk_fma_f32 {P(T+n)}, {P(T+n)}, {P(K+4)}, {P(K+4)}")
    for n in range(8): L.append(f"v_rcp_f32 v{T+n}, v{T+n}")
    for n in range(0, 8, 2): L.append(f"v_pk_mul_f32 {P(T+n)}, {P(T+n)}, {P(T+8+n)}")
    for q in range(4): L.append(f"v_cvt_pk_bf16_f32 v{T+8+q}, v{T+2*q}, v{T+2*q+1}")
    return L

def g1_setup(A):
    W = S_WAVE; AD = 208
    A(f"s_and_b32 s48, s{W}, 3\ns_lshr_b32 s49, s{W}, 2")
    A("v_lshrrev_b32 v8, 5, v1\nv_lshlrev_b32 v11, 3, v8\nv_bfe_u32 v9, v1, 2, 2\nv_add_u32 v11, v11, v9\nv_lshlrev_b32 v11, 7, v11")
    A("v_and_b32 v10, 3, v1\nv_lshl_add_u32 v11, v10, 3, v11\nv_bfe_u32 v10, v1, 4, 1\nv_lshl_add_u32 v11, v10, 5, v11")
    A(f"v_lshrrev_b32 v9, 1, v9\nv_xor_b32 v9, s49, v9\nv_lshl_add_u32 v12, v9, 6, v11")
    A("v_and_b32 v9, 31, v1\nv_bfe_u32 v10, v1, 1, 3\nv_xor_b32 v10, v10, v8\nv_lshlrev_b32 v10, 4, v10\nv_lshl_add_u32 v10, v9, 7, v10")
    A(f"s_lshl_b32 s50, s48, 13\ns_add_u32 s50, s50, 16384\nv_add_u32 v10, s50, v10")
    for k in range(4):
        A(f"s_add_u32 s50, s48, {k}\ns_and_b32 s50, s50, 3\ns_lshl_b32 s52, s50, 5\nv_xor_b32 v{AD+4+k}, s52, v10\ns_lshl_b32 s52, s50, 11\nv_add_u32 v{AD+k}, s52, v12")
    for sl in (1, 2):
        for n in range(8): A(f"v_add_u32 v{AD+8*sl+n}, {sl*SLOT}, v{AD+n}")
    if C.csm == "v":
        for q in range(4): A(f"v_mov_b32 v{128+q}, 0")
    else:
        A("v_and_b32 v12, 15, v1\nv_bfe_u32 v11, v1, 4, 1\nv_mov_b32 v233, 0x3f803f80\nv_cmp_eq_u32 vcc, v11, v12\nv_cndmask_b32 v232, 0, v233, vcc")
        for q in range(1, 4): A(f"v_mov_b32 v{232+q}, v232")
        for q in range(8): A(f"v_mov_b32 v{128+q}, 0")
    A("v_and_b32 v157, 15, v1\nv_lshlrev_b32 v157, 4, v157\nv_lshl_add_u32 v157, v8, 8, v157")
    A("v_bfe_u32 v11, v1, 4, 1\nv_mul_u32_u24 v11, 57344, v11\nv_add_u32 v157, v157, v11")
    A(f"s_lshl_b32 s50, s{S_RT}, 3\ns_lshl_b32 s51, s48, 1\ns_add_u32 s50, s50, s51")
    A(f"s_mul_i32 s47, s50, {2*57344}\ns_lshl_b32 s52, s{S_CT}, 11\ns_add_u32 s47, s47, s52\ns_lshl_b32 s52, s49, 10\ns_add_u32 s47, s47, s52\ns_add_u32 s47, s47, {WS_H}")
    A(f"s_lshr_b32 s51, s{S_RT}, 2\ns_lshl_b32 s51, s51, 1\ns_and_b32 s52, s{S_RT}, 1\ns_add_u32 s51, s51, s52\ns_lshl_b32 s51, s51, 7\ns_add_u32 s51, s51, {FL_B}")
    A(f"s_lshl_b32 s52, s{W}, 12\ns_add_u32 s51, s51, s52\ns_lshl_b32 s50, s{S_RT}, 4\ns_and_b32 s50, s50, 32\ns_add_u32 s50, s50, s51\ns_add_u32 s50, s50, {WS_ST - FL_B}")
    A("v_and_b32 v149, 7, v1\nv_lshlrev_b32 v149, 9, v149\nv_bfe_u32 v153, v1, 1, 3\nv_lshlrev_b32 v153, 9, v153\nv_and_b32 v11, 1, v1\nv_lshl_or_b32 v153, v11, 4, v153")
    A("v_and_b32 v154, 0x13, v9\nv_bfe_u32 v11, v9, 2, 1\nv_lshl_or_b32 v154, v11, 3, v154\nv_bfe_u32 v11, v9, 3, 1\nv_lshl_or_b32 v154, v11, 2, v154")
    A(f"s_lshl_b32 s52, s48, 3\ns_add_u32 s52, s52, {LDS_ST}\nv_lshl_add_u32 v154, v154, 5, s52")
    if C.csm == "v": A(f"s_lshl_b32 s52, s49, 11\ns_add_u32 s52, s52, {LDS_CS}\nv_add_u32 v155, s52, v2\ns_lshl_b32 s52, s48, 2\nv_add_u32 v156, s52, v155")
    else: A(f"s_lshl_b32 s52, s49, 11\ns_add_u32 s52, s52, {LDS_CS}\nv_lshl_add_u32 v155, v9, 4, s52\ns_lshl_b32 s52, s48, 2\nv_add_u32 v156, s52, v155")

def phase_g1(A):
    W = S_WAVE
    ACC = 64; WF = 32; AD = 208
    vm = [("w", 1)] * 2 + [("a", 1)] * 4
    wps = p0_stores(A)[1]
    def reads(kk, st):
        j, k = kk // 4, kk % 4
        wa = AD + 8 * (j % 3) + k; aa = wa + 4; d = WF + 16 * st
        return [f"ds_read_b64_tr_b16 v[{d}:{d+1}], v{wa} offset:0", f"ds_read_b64_tr_b16 v[{d+2}:{d+3}], v{wa} offset:512",
                f"ds_read_b128 v[{d+8}:{d+11}], v{aa}",
                f"ds_read_b64_tr_b16 v[{d+4}:{d+5}], v{wa} offset:8192", f"ds_read_b64_tr_b16 v[{d+6}:{d+7}], v{wa} offset:8704",
                f"ds_read_b128 v[{d+12}:{d+15}], v{aa} offset:4096"]
    def younger(ops):
        return len(vm) - 1 - max(i for i, o in enumerate(vm) if o in ops)
    stamp(A, "go")
    setprio(A, C.prio)
    if C.wj == 0:
        for o in wp_gather(): A(o)
    for r in reads(0, 0): A(r)
    pfo = wd_prefetch_ops(A); npf = len(pfo)
    pf = 0
    fill = []
    K1 = -2.0 * 0.7978845608028654 * 1.4426950408889634
    for kk in range(32):
        j, k = kk // 4, kk % 4
        st = kk & 1
        if k == 3 and kk < 31:
            A(f"s_waitcnt vmcnt({younger([('w', j + 1), ('a', j + 1), ('f', j + 1)])}) lgkmcnt(0)\ns_barrier")
            stamp(A, f"g{j+1}")
            if j == 0 and not C.fbgo:
                set_flag(A, 57, 16)
                A(f"s_sub_u32 s57, s57, {FL_B - FL_W}")
            if j + 1 == C.wj:
                for o in wp_gather(): A(o)
            if j + 1 == C.wj + C.wd: set_flag(A, 57, 16)
        if kk == 4 * C.sj - 1:
            L = A.label("L_g1_ok")
            A(f"v_cmp_ne_u32 vcc, s{S_TAG}, v16\ns_cmp_eq_u64 vcc, 0\ns_cbranch_scc1 {L}")
            poll(A, [(149, "s51")], 16)
            A(f"{L}:")
            A(f"s_lshl_b32 s52, s{W}, 8\ns_add_u32 m0, s52, {LDS_ST}\ns_mov_b64 exec, 0xffff\nbuffer_load_dwordx4 v153, {WSR}, s50 offen sc1 lds\ns_mov_b64 exec, -1")
            vm.append(("f", C.sj + 2))
        if kk == 27:
            A("ds_read_b64 v[150:151], v154\nds_read_b64 v[152:153], v154 offset:1024")
        if kk == 28:
            for b in range(2):
                m, r, K = 150 + 2 * b, 151 + 2 * b, 160 + 8 * b
                if C.csm == "m": fill += ["v_cmp_gt_u32 vcc, 32, v1", "s_nop 0", f"v_cndmask_b32 v{m}, 0, v{m}, vcc"]
                fill += [f"v_mov_b32 v{136+4*b+q}, v{m}" for q in range(4)]
                fill += (f"v_mul_f32 v{K+6}, v{r}, v{r}\nv_mul_f32 v{K+2}, {fhex(K1)}, v{r}\nv_rcp_f32 v{K+4}, v{K+6}\nv_mul_f32 v{K}, {fhex(0.044715)}, v{K+6}\n"
                         f"v_mul_f32 v{K}, v{K}, v{K+2}\nv_mov_b32 v{K+3}, v{K+2}\nv_mov_b32 v{K+5}, v{K+4}\nv_mov_b32 v{K+1}, v{K}").split("\n")
        if kk == 24:
            B = Asm(); g2_setup(B); fill += [l for l in B.lines if not l.startswith(";")]
        if kk == 30 and C.csm == "m":
            for r in (128, 129, 132, 133): fill += f"v_cvt_pk_bf16_f32 v16, v{r}, v{r}\nv_lshlrev_b32 v16, 16, v16\nv_sub_f32 v16, v{r}, v16\nv_cvt_pk_bf16_f32 v{r}, v{r}, v16".split("\n")
        nxt = reads(kk + 1, st ^ 1) if kk < 31 else []
        ops = []
        full = lambda jj: [(("w", jj), o) for o in g1w_ops(jj)] + [(("a", jj), o) for o in g1a_ops(jj)]
        if j + 2 < 8:
            if k == 0: ops += [(("w", j + 2), o) for o in g1w_ops(j + 2)]
            ops.append((("a", j + 2), g1a_ops(j + 2)[k]))
        if kk == 4 * C.wj: ops.insert(0, (("f", C.wj + C.wd), wps))
        if kk == 4 * C.sj - 5:
            ops.append((("f", C.sj), f"buffer_load_dword v16, v149, {WSR}, s51 offen sc1"))
        d = WF + 16 * st
        for m, (wo, ao) in enumerate(((0, 8), (4, 8), (0, 12), (4, 12))):
            if m < 3 and not (k == 3 and kk < 31):
                A(f"s_waitcnt lgkmcnt({(3, 1, 0)[m] + len(nxt[0:2*m])})")
            c = f"v[{ACC+16*m}:{ACC+16*m+15}]"
            if "S" in C.dbg:
                for z in range(2):
                    cc = f"v[{ACC+16*m+8*(kk&1)+4*z}:{ACC+16*m+8*(kk&1)+4*z+3}]"
                    A(f"v_mfma_f32_16x16x32_bf16 {cc}, v[{d+wo}:{d+wo+3}], v[{d+ao}:{d+ao+3}], {cc if kk > 1 else 0}")
            else:
                A(f"v_mfma_f32_32x32x16_bf16 {c}, v[{d+wo}:{d+wo+3}], v[{d+ao}:{d+ao+3}], {c if kk else 0}")
            for r in nxt[2*m:2*m+2]: A(r)
            if ops and (m >= 1 or len(ops) > 3):
                tag, o = ops.pop(0); A(o); vm.append(tag)
            if "c" not in C.dbg and C.csm == "m" and k == 0 and m in (1, 3):
                z = m >> 1
                A(f"v_mfma_f32_16x16x32_bf16 v[{128+4*z}:{131+4*z}], v[232:235], v[{d+4*z}:{d+4*z+3}], v[{128+4*z}:{131+4*z}]")
            if "c" not in C.dbg and C.csm == "v":
                src = d + 4 * (m & 1) + k
                if m < 2: A(f"v_lshlrev_b32 v{132+m}, 16, v{src}\nv_and_b32 v{134+m}, 0xffff0000, v{src}")
                else: A(f"v_add_f32 v{128+(m&1)}, v{128+(m&1)}, v{132+(m&1)}\nv_add_f32 v{130+(m&1)}, v{130+(m&1)}, v{134+(m&1)}")
            cnt = 0
            while fill and cnt < (2 if C.csm == 'v' else 4):
                l = fill.pop(0); A(l); cnt += 0.34 if l.startswith("s_") else 1
            if m == 2 and pf < npf and kk >= C.pf_start and (kk - C.pf_start) % C.pf_step == 0:
                A(pfo[pf]); vm.append(("p", pf)); pf += 1
        assert not ops
    assert (pf == npf or C.pf_start > 31) and not fill
    stamp(A, "main")
    setprio(A, C.prioe)
    if C.csm == "m": A("s_mov_b64 exec, 0xffff\nds_write_b32 v156, v128\nds_write_b32 v156, v129 offset:256\nds_write_b32 v156, v132 offset:1024\nds_write_b32 v156, v133 offset:1280\ns_mov_b64 exec, -1")
    def split(r): return f"v_cvt_pk_bf16_f32 v16, v{r}, v{r}\nv_lshlrev_b32 v16, 16, v16\nv_sub_f32 v16, v{r}, v16\nv_cvt_pk_bf16_f32 v{r}, v{r}, v16"
    if C.csm == "v":
        for r in (128, 129): A(f"v_add_f32 v{r}, v{r}, v{r+2}\n" + split(r))
        A("ds_write_b32 v156, v128\nds_write_b32 v156, v129 offset:1024")
    A("s_waitcnt lgkmcnt(0)\ns_barrier")
    A(f"ds_read_b128 v[{WF}:{WF+3}], v155\nds_read_b128 v[{WF+4}:{WF+7}], v155 offset:1024")
    A("s_waitcnt lgkmcnt(0)")
    for m in range(4):
        c = f"v[{ACC+16*m}:{ACC+16*m+15}]"
        A(f"v_mfma_f32_32x32x16_bf16 {c}, v[{WF+4*(m&1)}:{WF+4*(m&1)+3}], v[{136+4*(m>>1)}:{139+4*(m>>1)}], {c}")
    for b in range(2):
        for half in range(2):
            n = 2 * b + half
            T = 176 + 16 * (n & 1)
            for l in gelu_block(ACC + 32 * b + 8 * half, ACC + 32 * b + 16 + 8 * half, T, 160 + 8 * b): A(l)
            if n == 2: A(f"s_add_u32 s47, s47, {2*57344}")
            A(f"buffer_store_dwordx4 v[{T+8}:{T+11}], v157, {WSR}, s47 offen offset:{512*half} sc1")
    stamp(A, "epi")
    A("s_waitcnt vmcnt(0)\ns_barrier")
    A(f"s_lshl_b32 s57, s{S_RT}, 5\ns_add_u32 s57, s57, s{S_CT}\ns_lshl_b32 s57, s57, 7\ns_add_u32 s57, s57, {FL_H}")
    set_flag(A, 57, 16)
    stamp(A, "flag2")
    for n in range(C.nfast if C.fast else C.nsl): g2_wdma(A, n)

def phase_cf(A):
    W = S_WAVE
    ZL = 0; WL = 65536; TW = 131072; FR = TW + 8192
    D0 = 64; D1 = 128; PK = 192; WW = 224
    FC, FS, FN = 8, 16, 24
    OC, OS, ON = 32, 40, 48
    A("; ---- CF")
    setprio(A, C.prioc)
    A(f"s_lshl_b32 s44, s{S_XCD}, 2\ns_add_u32 s44, s44, s{S_SLOT}\ns_sub_u32 s44, s44, 28    ; cg")
    for o in wp_gather(): A(o)
    A("s_waitcnt lgkmcnt(0)")
    A(p0_stores(A)[1])
    A(f"s_lshl_b32 s46, s{W}, 1\nv_lshrrev_b32 v8, 5, v1\nv_add_u32 v8, s46, v8")
    A("v_and_b32 v9, 3, v8\nv_bfe_u32 v10, v8, 3, 1\nv_lshl_or_b32 v9, v10, 2, v9      ; beta")
    A("s_and_b32 s46, s44, 1\ns_lshl_b32 s46, s46, 3\nv_or_b32 v9, s46, v9         ; k1")
    A("s_lshr_b32 s46, s44, 1\ns_lshl_b32 s47, s46, 5\ns_sub_u32 s48, 0x200, s47\ns_cmp_lt_u32 s46, 8")
    A(f"s_cselect_b32 s49, s47, s48\ns_cselect_b32 s50, 1, -1\ns_sub_u32 s48, s48, 16\ns_cmp_lt_u32 s46, 8\ns_cselect_b32 s48, s47, s48")
    A("s_cmp_eq_u32 s46, 0\ns_cselect_b32 s48, 0x100, s48")
    A("v_mov_b32 v11, s49\nv_mad_i32_i24 v10, v9, s50, v11\nv_mov_b32 v11, s48\nv_cmp_eq_u32 vcc, 0, v9\nv_cndmask_b32 v10, v10, v11, vcc   ; bin")
    A(f"v_mov_b32 v11, {fhex(2.0**-19)}\nv_mov_b32 v12, {fhex(2.0**-20)}\nv_cmp_eq_u32 vcc, 0x100, v10\nv_cndmask_b32 v12, v11, v12, vcc\nv_mov_b32 v13, v12")
    A(f"v_cvt_f32_u32 v10, v10\nv_mul_f32 v10, {fhex(1/512)}, v10")
    A(f"v_bfe_u32 v11, v8, 2, 1\nv_cvt_f32_u32 v11, v11\nv_mul_f32 v11, {fhex(0.25)}, v11")
    A("v_and_b32 v14, 31, v1\nv_lshlrev_b32 v15, 3, v14\nv_cvt_f32_u32 v15, v15\nv_fma_f32 v64, v15, v10, v11")
    A(f"v_fmamk_f32 v72, v10, {fhex(256.0)}, v64\nv_fract_f32 v72, v72")
    for b in (64, 72):
        for j in range(1, 8): A(f"v_fmamk_f32 v{b+j}, v10, {fhex(float(j))}, v{b}")
    for j in range(16): A(f"v_cos_f32 v{64+j}, v{64+j}")
    for j in range(0, 16, 2): A(f"v_pk_mul_f32 v[{64+j}:{65+j}], v[{64+j}:{65+j}], v[12:13]")
    for q in range(8): A(f"v_cvt_pk_bf16_f32 v{64+q}, v{64+2*q}, v{65+2*q}")
    A(f"v_lshrrev_b32 v15, 3, v14\nv_and_b32 v14, 7, v14\nv_lshlrev_b32 v14, 4, v14\nv_lshl_add_u32 v14, v8, 7, v14\nv_lshl_add_u32 v14, v15, 16, v14")
    A(f"s_lshl_b32 s46, s44, 11\ns_add_u32 s46, s46, {WS_G}\ns_add_u32 s47, s46, 0x40000")
    A(f"buffer_store_dwordx4 v[64:67], v14, {WSR}, s46 offen sc1\nbuffer_store_dwordx4 v[68:71], v14, {WSR}, s47 offen sc1")
    A("v_and_b32 v3, 31, v1\nv_lshrrev_b32 v4, 5, v1\nv_lshlrev_b32 v4, 2, v4")
    A(f"s_and_b32 s52, s{W}, 3\ns_lshl_b32 s52, s52, 3\ns_lshr_b32 s53, s{W}, 2\ns_mul_i32 s53, s53, 1536")
    A("v_add_u32 v5, s52, v4")
    for b in range(4):
        A(f"v_add_u32 v6, {b}, v5\nv_mad_u32_u24 v{64+b}, v6, v3, s53")
    def frag(dst, matsel):
        A(f"s_and_b32 s54, s{W}, 1\ns_lshl_b32 s54, s54, 4")
        A(f"s_lshr_b32 s55, s{W}, 1\ns_and_b32 s55, s55, 1\ns_mul_i32 s55, s55, 48")
        if matsel == 0: A(f"s_lshr_b32 s56, s{W}, 2\nv_lshl_add_u32 v7, v3, 1, s56")
        for j in range(8):
            A(f"v_add_u32 v6, s54, v4\nv_add_u32 v6, {8*(j>>2) + (j&3)}, v6")
            if matsel == 0: A(f"v_mad_u32_u24 v{dst+j}, v6, v7, s55")
            else: A(f"v_lshl_add_u32 v6, v6, 1, 1\nv_mad_u32_u24 v{dst+j}, v6, v3, s55")
    frag(80, 0); frag(88, 1)
    cos_batch(A, range(64, 68), 2047, 1.0 / 2048)
    cos_batch(A, range(80, 96), 63, 1.0 / 64)
    A(f"s_lshl_b32 s52, s52, 8\ns_lshr_b32 s53, s{W}, 2\ns_lshl_b32 s53, s53, 10\ns_add_u32 s52, s52, s53\ns_add_u32 s52, s52, {TW}")
    A("v_add_u32 v5, s52, v2\nds_write_b128 v5, v[64:67]")
    for q in range(8): A(f"v_cvt_pk_bf16_f32 v{80+q}, v{80+2*q}, v{81+2*q}")
    A(f"s_lshl_b32 s52, s{W}, 10\ns_add_u32 s52, s52, {FR}\nv_add_u32 v5, s52, v2")
    A("ds_write_b128 v5, v[80:83]")
    Ls = A.label("L_cf_skip")
    A(f"s_cmp_ge_u32 s{W}, 4\ns_cbranch_scc1 {Ls}\nds_write_b128 v5, v[84:87] offset:8192\n{Ls}:")
    A(f"v_add_u32 v56, {TW}, v2\nv_add_u32 v57, {FR}, v2")
    A(f"s_lshl_b32 s52, s{W}, 1\nv_and_b32 v6, 15, v1\nv_xor_b32 v6, s52, v6\nv_lshlrev_b32 v6, 4, v6")
    A("v_lshl_add_u32 v6, v3, 10, v6\nv_lshl_add_u32 v58, v4, 6, v6\nv_xor_b32 v59, 16, v58")
    A(f"v_lshrrev_b32 v5, 2, v3\nv_xor_b32 v6, s{W}, v5\nv_lshlrev_b32 v6, 4, v6\nv_lshl_add_u32 v6, v5, 7, v6\nv_and_b32 v5, 3, v3\nv_lshl_add_u32 v6, v5, 2, v6\nv_lshl_add_u32 v6, v4, 11, v6\nv_add_u32 v7, {WL}, v6")
    A("s_waitcnt vmcnt(2) lgkmcnt(0)\ns_barrier")
    set_flag(A, 57, 16)
    A(f"s_sub_u32 s57, s57, {FL_B - FL_W}")
    set_flag(A, 57, 16)
    stamp(A, "fd")
    A(f"v_lshlrev_b32 v6, 7, v3\ns_lshl_b32 s57, s{W}, 12\ns_add_u32 s57, s57, {FL_B}")
    poll(A, [(6, "s57")], 64)
    stamp(A, "rdy1")
    A(f"s_lshl_b32 s48, s44, 16\ns_lshl_b32 s49, s{W}, 13\ns_add_u32 s50, s48, s49")
    def dma64(base, lb):
        return [(f"s_add_u32 s51, s50, {base}\n" if k == 0 else "s_add_u32 s51, s51, 1024\n") +
                f"s_add_u32 m0, s49, {lb + k*1024}\nbuffer_load_dwordx4 v2, {WSR}, s51 offen sc1 lds" for k in range(8)]
    for o in dma64(WS_Z, ZL): A(o)
    P = lambda r: f"v[{r}:{r+1}]"
    def load_frags(Cc, S, mat):
        return [f"ds_read_b128 v[{R+4*m}:{R+4*m+3}], v57 offset:{(mat*4+o+m)*1024}" for m in range(2) for (R, o) in ((Cc, 0), (S, 2))]
    def neg_frags(S, N): return [f"v_xor_b32 v{N+q}, 0x80008000, v{S+q}" for q in range(8)]
    def pk(blk, c, m): return PK + 16 * blk + 8 * c + 4 * m
    def acc(D, c, blk): return D + 32 * c + 16 * blk
    def cstage(D, blk, data_is_A, Cc, Sre, Sim):
        L = []
        for (c, seq) in ((0, ((0, Cc), (1, Sre))), (1, ((1, Cc), (0, Sim)))):
            d = acc(D, c, blk); first = True
            for (cc, K) in seq:
                for m in range(2):
                    dat = f"v[{pk(blk,cc,m)}:{pk(blk,cc,m)+3}]"; con = f"v[{K+4*m}:{K+4*m+3}]"
                    a, b = (dat, con) if data_is_A else (con, dat)
                    L.append(f"v_mfma_f32_32x32x16_bf16 v[{d}:{d+15}], {a}, {b}, {0 if first else f'v[{d}:{d+15}]'}")
                    first = False
        return L
    def pack(D, blk):
        return [f"v_cvt_pk_bf16_f32 v{pk(blk,c,0)+q}, v{acc(D,c,blk)+2*q}, v{acc(D,c,blk)+2*q+1}" for c in range(2) for q in range(8)]
    def tw_load():
        return [f"ds_read_b128 v[{WW+16*comp+4*a}:{WW+16*comp+4*a+3}], v56 offset:{a*2048 + comp*1024}" for a in range(4) for comp in range(2)]
    NEG = lambda i: " neg_lo:[%s] neg_hi:[%s]" % ((",".join("1" if j == i else "0" for j in range(3)),) * 2)
    def radix2_tw(conj, extra=()):
        for i in range(0, 16, 2):
            if i % 4 == 2 and extra: A(extra[i // 4])
            er, ei, o_r, oi = acc(D0,0,0)+i, acc(D0,1,0)+i, acc(D0,0,1)+i, acc(D0,1,1)+i
            ur, ui, vr_, vi = acc(D1,0,0)+i, acc(D1,1,0)+i, acc(D1,0,1)+i, acc(D1,1,1)+i
            c0, s0 = P(WW + i), P(WW + 16 + i)
            A(f"v_pk_add_f32 {P(ur)}, {P(er)}, {P(o_r)}\nv_pk_add_f32 {P(vr_)}, {P(er)}, {P(o_r)} neg_lo:[0,1] neg_hi:[0,1]")
            A(f"v_pk_add_f32 {P(ui)}, {P(ei)}, {P(oi)}\nv_pk_add_f32 {P(vi)}, {P(ei)}, {P(oi)} neg_lo:[0,1] neg_hi:[0,1]")
            A(f"v_pk_mul_f32 v[60:61], {P(ur)}, {s0}\nv_pk_mul_f32 v[62:63], {P(vr_)}, {s0}")
            A(f"v_pk_mul_f32 {P(ur)}, {P(ur)}, {c0}\nv_pk_mul_f32 {P(vr_)}, {P(vr_)}, {c0}")
            n0 = NEG(0) if conj else ""; n2 = "" if conj else NEG(2)
            A(f"v_pk_fma_f32 {P(ur)}, {P(ui)}, {s0}, {P(ur)}{n0}\nv_pk_fma_f32 {P(vr_)}, {P(vi)}, {s0}, {P(vr_)}{n0}")
            A(f"v_pk_fma_f32 {P(ui)}, {P(ui)}, {c0}, v[60:61]{n2}\nv_pk_fma_f32 {P(vi)}, {P(vi)}, {c0}, v[62:63]{n2}")
    def wmul(e):
        L = []
        for i in range(0, 16, 2):
            w = WW + 16 * e + i; t = 60 + (i & 2)
            xr, xi, yr, yi = acc(D0,0,e)+i, acc(D0,1,e)+i, acc(D1,0,e)+i, acc(D1,1,e)+i
            L += [f"v_lshlrev_b32 v{t}, 16, v{w}", f"v_lshlrev_b32 v{t+1}, 16, v{w+1}", f"v_and_b32 v{w}, 0xffff0000, v{w}", f"v_and_b32 v{w+1}, 0xffff0000, v{w+1}",
                  ]
            if C.cfpk and not (C.cfpk == 2 and i < 6):
                L += [f"v_pk_mul_f32 {P(yr)}, {P(xr)}, {P(t)}", f"v_pk_mul_f32 {P(yi)}, {P(xi)}, {P(t)}",
                      f"v_pk_fma_f32 {P(yr)}, {P(xi)}, {P(w)}, {P(yr)}{NEG(0)}", f"v_pk_fma_f32 {P(yi)}, {P(xr)}, {P(w)}, {P(yi)}"]
            else:
                for z in range(2): L += [f"v_mul_f32 v{yr+z}, v{xr+z}, v{t+z}", f"v_mul_f32 v{yi+z}, v{xi+z}, v{t+z}"]
                for z in range(2): L += [f"v_fma_f32 v{yr+z}, -v{xi+z}, v{w+z}, v{yr+z}", f"v_fmac_f32 v{yi+z}, v{xr+z}, v{w+z}"]
        return L
    def E(L):
        for l in L: A(l)
    E(load_frags(FC, FS, 0) + load_frags(OC, OS, 2) + tw_load())
    A("s_waitcnt lgkmcnt(8)")
    E(neg_frags(FS, FN) + neg_frags(OS, ON))
    A(f"s_lshl_b32 s52, s{W}, 16\ns_lshl_b32 s53, s44, 9\ns_add_u32 s52, s52, s53\ns_add_u32 s47, s52, {WS_ZP}")
    A(f"s_lshl_b32 s57, s44, 7\ns_add_u32 s57, s57, {FL_C}")
    A("s_waitcnt vmcnt(0)\ns_barrier")
    stamp(A, "go")
    for mu in range(2):
        for c in range(2):
            for m in range(2):
                A(f"ds_read_b128 v[{pk(mu,c,m)}:{pk(mu,c,m)+3}], v{58+c} offset:{ZL + mu*32768 + m*512}")
    wp = dma64(WS_WP, WL)
    def wcheck():
        L = A.label("L_cf_ok")
        A(f"s_waitcnt vmcnt(0)\nv_cmp_ne_u32 vcc, s{S_TAG}, v5\ns_cmp_eq_u64 vcc, 0\ns_cbranch_scc1 {L}")
        poll(A, [(6, "s53")], 5)
        A(f"s_mov_b32 s{S_RDY}, 1\n{L}:")
    A(f"s_lshl_b32 s53, s{W}, 12\ns_add_u32 s53, s53, {FL_W}\nbuffer_load_dword v5, v6, {WSR}, s53 offen sc1")
    A("s_waitcnt lgkmcnt(4)")
    E(cstage(D0, 0, True, FC, FS, FN))
    A("s_waitcnt lgkmcnt(0)")
    m1 = cstage(D0, 1, True, OC, OS, ON)
    E(m1[:4]); wcheck(); weave(A, m1[4:], wp[:4])
    E(load_frags(OC, OS, 1))
    radix2_tw(False, wp[4:])
    E(pack(D1, 0))
    A("s_waitcnt lgkmcnt(0)")
    weave(A, cstage(D0, 0, False, FC, FS, FN), pack(D1, 1) + neg_frags(OS, ON))
    stamp(A, "main")
    A("s_waitcnt vmcnt(0)\ns_barrier")
    wr = [f"ds_read2st64_b32 {P(WW+16*e+4*a+b)}, v7 offset0:{a*64+b*8+e*4} offset1:{a*64+b*8+e*4+8}" for e in range(2) for a in range(4) for b in (0, 2)]
    E(wr[:8])
    m2 = cstage(D0, 1, False, OC, OS, ON)
    weave(A, m2[:2], wr[8:])
    A("s_waitcnt lgkmcnt(8)")
    weave(A, m2[2:], wmul(0))
    stamp(A, "wrdy")
    E(load_frags(OC, OS, 2))
    E(pack(D1, 0))
    g2_setup(A, 58, 59, 5, 6)
    A("s_waitcnt lgkmcnt(4)")
    weave(A, cstage(D0, 0, True, FC, FN, FS), wmul(1) + pack(D1, 1), 1)
    A("s_waitcnt lgkmcnt(0)")
    E(neg_frags(OS, ON) + tw_load())
    weave(A, cstage(D0, 1, True, OC, ON, OS), g2w_ops(0, 58))
    E(load_frags(OC, OS, 1))
    A("s_waitcnt lgkmcnt(4)")
    radix2_tw(True)
    E(pack(D1, 0))
    A("s_waitcnt lgkmcnt(0)")
    weave(A, cstage(D0, 0, True, FC, FN, FS), pack(D1, 1) + neg_frags(OS, ON))
    stamp(A, "epi")
    adr = (f"s_and_b32 s60, s{W}, 1\ns_lshl_b32 s60, s60, 2\nv_lshrrev_b32 v5, 5, v1\nv_or_b32 v5, s60, v5\n"
           "v_and_b32 v6, 7, v1\nv_xor_b32 v5, v5, v6\nv_lshlrev_b32 v5, 4, v5\nv_lshl_add_u32 v5, v3, 11, v5\n"
           f"s_lshr_b32 s60, s{W}, 1\ns_lshl_b32 s60, s60, 7\ns_add_u32 s60, s60, {WL}\nv_add_u32 v56, s60, v5\nv_xor_b32 v57, 32, v56\n"
           "v_bfe_u32 v5, v1, 2, 1\nv_lshlrev_b32 v5, 2, v5\nv_bfe_u32 v6, v1, 4, 1\nv_lshl_add_u32 v5, v6, 1, v5\nv_bfe_u32 v6, v1, 1, 1\nv_add_u32 v5, v5, v6\n"
           f"v_xor_b32 v5, s{W}, v5\nv_lshlrev_b32 v5, 4, v5\nv_and_b32 v6, 1, v1\nv_lshl_add_u32 v5, v6, 3, v5\n"
           "v_bfe_u32 v6, v1, 3, 1\nv_lshl_add_u32 v5, v6, 7, v5\nv_lshrrev_b32 v6, 5, v1\nv_lshl_add_u32 v5, v6, 9, v5\n"
           f"s_lshl_b32 s60, s{W}, 11\ns_add_u32 s60, s60, {WL}\nv_add_u32 v5, s60, v5\n"
           "v_and_b32 v6, 15, v1\nv_lshlrev_b32 v6, 4, v6\nv_lshrrev_b32 v7, 5, v1\nv_lshl_add_u32 v6, v7, 8, v6\n"
           "v_bfe_u32 v7, v1, 4, 1\nv_lshl_add_u32 v6, v7, 14, v6").split("\n")
    def xw(mu): return [f"ds_write_b128 v{56+m}, v[{pk(mu,c,m)}:{pk(mu,c,m)+3}] offset:{mu*1024 + c*512}" for c in range(2) for m in range(2)]
    def xr_store(mu):
        for n in range(4):
            d = D1 + 16 * mu + 4 * n
            A(f"ds_read_b64_tr_b16 v[{d}:{d+1}], v5 offset:{n*16384 + mu*1024}\nds_read_b64_tr_b16 v[{d+2}:{d+3}], v5 offset:{n*16384 + mu*1024 + 256}")
        for n in range(4):
            d = D1 + 16 * mu + 4 * n
            A(f"s_waitcnt lgkmcnt({6-2*n})")
            A(f"buffer_store_dwordx4 v[{d}:{d+3}], v6, {WSR}, s47 offen sc1")
            A(f"s_add_u32 s47, s47, {0x80000 if n < 3 else (0x8000 - 0x180000) & 0xffffffff}")
    m4 = cstage(D0, 1, True, OC, ON, OS)
    weave(A, m4[:4], adr)
    A("s_barrier")
    weave(A, m4[4:], pack(D0, 0) + xw(0))
    A("s_waitcnt lgkmcnt(0)\ns_barrier")
    stamp(A, "c1")
    xr_store(0)
    E(pack(D0, 1) + xw(1))
    A("s_waitcnt lgkmcnt(0)\ns_barrier")
    xr_store(1)
    stamp(A, "c3")
    A(f"v_mov_b32 v{V_G2W}, v58\nv_mov_b32 v{V_G2X}, v59")
    g2_wdma(A, 1)
    A("s_waitcnt vmcnt(4)\ns_barrier")
    stamp(A, "c5")
    set_flag(A, 57, 16)
    stamp(A, "flag2")
    for n in range(2, C.nfast if C.fast else C.nsl): g2_wdma(A, n)

def phase_g2(A):
    W = S_WAVE
    ACT = 64; WF = 128; ACC = 16; NS = 9
    A("; ---- G2")
    setprio(A, C.prio2)
    srd(A, S_X, P_X, 2097152)
    srd(A, S_B, P_OUT, 2097152)
    A("v_lshlrev_b32 v3, 4, v1")
    A(f"s_mul_i32 s54, s50, 57344\ns_mul_i32 s46, s49, {28*1024}\ns_add_u32 s54, s54, s46\ns_add_u32 s54, s54, {WS_H}")
    if C.rot2: A("s_lshl_b32 s46, s53, 12\ns_add_u32 s54, s54, s46")
    A(f"s_lshl_b32 s57, s50, 14\ns_lshl_b32 s46, s49, 13\ns_add_u32 s57, s57, s46\ns_add_u32 s57, s57, {WS_ZP}")
    A("v_lshrrev_b32 v6, 5, v1\nv_lshlrev_b32 v6, 4, v6\nv_bfe_u32 v7, v1, 4, 1\nv_lshl_add_u32 v6, v7, 2, v6\nv_bfe_u32 v4, v1, 2, 2\nv_add_u32 v6, v6, v4")
    A("v_lshlrev_b32 v6, 7, v6\nv_lshrrev_b32 v4, 1, v4\nv_lshl_or_b32 v4, v7, 1, v4")
    A("v_lshl_add_u32 v6, v4, 5, v6\nv_and_b32 v4, 3, v1\nv_lshl_add_u32 v6, v4, 3, v6")
    A("s_lshl_b32 s46, s49, 14\nv_add_u32 v164, s46, v6")
    for nb in range(1, 4): A(f"v_xor_b32 v{164+nb}, {32*nb}, v164")
    for nb in range(4): A(f"v_add_u32 v{160+nb}, 0x10000, v{164+nb}\nv_add_u32 v{180+nb}, 0x20000, v{164+nb}")
    A("v_bfe_u32 v4, v1, 4, 2\nv_lshlrev_b32 v4, 5, v4\nv_xor_b32 v173, v3, v4")
    A(f"s_lshl_b32 s58, s45, 16\ns_lshl_b32 s46, s49, 15\ns_add_u32 s58, s58, s46\ns_lshl_b32 s46, s48, 12\ns_add_u32 s58, s58, s46\ns_add_u32 s58, s58, {WS_G}")
    A("v_min_u32 v170, 27, v1\nv_lshlrev_b32 v170, 7, v170\nv_and_b32 v172, 3, v1\nv_lshlrev_b32 v172, 7, v172")
    A(f"s_lshr_b32 s59, s44, 2\ns_lshl_b32 s59, s59, 12\ns_add_u32 s59, s59, {FL_H}\ns_lshl_b32 s47, s{W}, 9\ns_add_u32 s47, s47, {FL_C}")
    vm = []
    def act_ops(n):
        L = []
        for k in range(4):
            d = ACT + 16 * (n & 3) + 4 * k
            L.append((("a", n), ("s_mov_b32 s54, s57\n" if (n == 7 and k == 0) else "") +
                      f"buffer_load_dwordx4 v[{d}:{d+3}], v3, {WSR}, s54 offen offset:{1024*k} sc1" + ("\ns_add_u32 s54, s54, 4096" if k == 3 else "") +
                      (f"\ns_add_u32 s53, s53, 1\ns_cmp_eq_u32 s53, 7\ns_cselect_b32 s46, {7*4096}, 0\ns_sub_u32 s54, s54, s46" if (k == 3 and C.rot2 and n < 7) else "")))
        return L
    def w_ops(n): return [(("w", n), o) for o in g2w_ops(n)]
    def emit(op):
        A(op[1]); vm.extend([op[0]] * (op[2] if len(op) > 2 else 1))
    def w_or_dummy(n):
        L = A.label("L_wd"); Le = A.label("L_wd")
        return [(("w", n), f"s_cmp_eq_u32 s63, 0\ns_cbranch_scc1 {L}\n" + "\n".join(g2w_ops(n)) + f"\ns_branch {Le}\n{L}:\n" +
                 "\n".join([f"buffer_load_dword v177, v178, {WSR}, 0 offen"] * 4) + f"\n{Le}:", 4)]
    L = A.label("L_g2_np")
    if C.fast:
        A(f"v_mov_b32 v178, 0\nv_mov_b32 v179, 163836\ns_cmp_lg_u32 s{W}, 0\ns_cbranch_scc1 {L}")
        poll(A, [(170, "s59")], 177, once=True)
        A(f"v_mov_b32 v177, s{S_RDY}\nds_write_b32 v179, v177\ns_waitcnt lgkmcnt(0)")
        A(f"{L}:\ns_barrier\nds_read_b32 v177, v179\ns_waitcnt lgkmcnt(0)\nv_readfirstlane_b32 s63, v177")
        L = A.label("L_g2_np")
        A(f"s_cmp_lg_u32 s63, 0\ns_cbranch_scc1 {L}\ns_barrier")
        for n in range(C.nfast, C.nsl): g2_wdma(A, n)
        L3 = A.label("L_g2_np")
        A(f"s_cmp_lg_u32 s{W}, 0\ns_cbranch_scc1 {L3}\ns_waitcnt vmcnt(0)")
        poll(A, [(170, "s59")], 177)
        A(f"{L3}:\ns_barrier\n{L}:")
    else:
        A(f"s_cmp_lg_u32 s{W}, 0\ns_cbranch_scc1 {L}\ns_waitcnt vmcnt(0)")
        poll(A, [(170, "s59")], 177)
        A(f"{L}:\ns_barrier")
    stamp(A, "hrdy")
    for op in act_ops(0): emit(op)
    A("s_barrier")
    for op in act_ops(1): emit(op)
    def reads(n, k, st):
        slot = n % C.nsl
        va = (164, 164, 160, 160, 180)[slot]
        off = (slot & 1) * 32768 + k * 4096
        r = []
        for nb in range(4):
            d = WF + 16 * st + 4 * nb
            r.append(f"ds_read_b64_tr_b16 v[{d}:{d+1}], v{va+nb} offset:{off}")
            r.append(f"ds_read_b64_tr_b16 v[{d+2}:{d+3}], v{va+nb} offset:{off+1024}")
        return r
    SCHED = {"A": "a2 a3|w4 a4|w5 a5|w6 a6|w7 a7|w8 a8|||", "B": "a2|w4 a3|w5 a4|w6 a5|w7 a6|w8 a7|a8||",
             "C": "a2|a3 w4l|a4 w4h w5l|a5 w5h w6l|a6 w6h|w7 a7|w8 a8||", "D": "a2|a3 w4|a4 w5l|a5 w5h w6l|a6 w6h w7l|a7 w7h w8l|a8 w8h||",
             "P": "a2|a3 w5l|a4 w5h|a5 w6|a6 w7l|a7 w7h w8l|a8 w8h||", "Q": "a2|a3|a4 w5|a5 w6|a6 w7|a7 w8|a8||", "R": "a2|a3 w5l|a4 w5h w6l|a5 w6h|a6 w7|a7 w8l|a8 w8h||",
             "S": "a2|a3 w5l|a4 w5h|a5 w6|a6 w7l|a7 w7h|a8 w8l|w8h|", "T": "a2|a3 w5l|a4 w5h w6l|a5 w6h|a6 w7l|a7 w7h|w8l a8|w8h|",
             "U": "a2 a3l|a3h a4l w5l|a4h a5l w5h|a5h w6|a6 w7l|a7 w7h|a8 w8l|w8h|", "V": "a2|a3 w5l|a4 w5h w6l|a5 w6h|a6 w7|a7 w8l|w8h a8l|a8h|",
             "E": "|a2 w4|a3 w5l|a4 w5h w6l|a5 w6h|a6 w7|a7 w8l|a8 w8h|"}[C.sched]
    SCHED = [x.split() for x in SCHED.split("|")]
    NZ = min(n for n in range(NS) if any(t[1] in "78" for t in SCHED[n]))
    fill = []
    EX = (4 % C.nsl) * 32768 if C.nsl == 5 else 131072
    TB = 0 if C.nsl == 5 else 69632
    A(f"s_lshl_b32 s46, s{W}, 12\ns_add_u32 s46, s46, {EX}\nv_add_u32 v6, s46, v3\nv_xor_b32 v7, 0x4000, v6")
    tail_adr = (f"v_and_b32 v4, 15, v1\nv_mul_u32_u24 v4, 144, v4\nv_lshrrev_b32 v5, 4, v1\nv_lshl_add_u32 v4, v5, 3, v4\n"
                f"s_mul_i32 s60, s48, {16*144}\ns_lshl_b32 s46, s49, 6\ns_add_u32 s60, s60, s46\ns_add_u32 s60, s60, {TB}\nv_add_u32 v4, s60, v4\n"
                f"v_lshrrev_b32 v5, 3, v1\nv_mul_u32_u24 v5, 144, v5\nv_and_b32 v8, 7, v1\nv_lshl_add_u32 v5, v8, 4, v5\ns_mul_i32 s60, s{W}, {8*144}\ns_add_u32 s60, s60, {TB}\nv_add_u32 v5, s60, v5").split("\n")
    for n in range(NS):
        need = [i for i, o in enumerate(vm) if o in (("a", n), ("w", n), ("f", n))]
        A(f"s_waitcnt vmcnt({len(vm) - 1 - max(need)})")
        if n == NZ:
            L = A.label("L_g2_ok")
            A(f"v_cmp_ne_u32 vcc, s{S_TAG}, v176\ns_cmp_eq_u64 vcc, 0\ns_cbranch_scc1 {L}")
            poll(A, [(172, "s47")], 176)
            A(f"s_mov_b32 s{S_RDY}, 1\n{L}:")
        A("s_barrier")
        stamp(A, f"st{n}")
        for r in reads(n, 0, 0): A(r)
        ops = []
        if n == NZ - 1: ops.append((("f", NZ), f"buffer_load_dword v176, v172, {WSR}, s47 offen sc1"))
        if C.fast and C.nfast + n < C.nsl: ops += w_or_dummy(C.nfast + n)
        for tok in SCHED[n]:
            o = w_ops(int(tok[1])) if tok[0] == "w" else act_ops(int(tok[1]))
            if len(tok) == 3: o = o[:2] if tok[2] == "l" else o[2:]
            ops += o
        if n == C.xst:
            ops.append((("x", 0), f"buffer_load_dwordx4 v[240:243], v{V_G2X}, {XR}, s56 offen {C.nt_x2}"))
        if n == 7 and C.ytail:
            for q in range(2): A(f"ds_read_b128 v[{48+4*q}:{51+4*q}], v7 offset:{1024*q}")
            for i in range(8): fill.append(f"v_add_f32 v{48+i}, v{48+i}, v{184+i}")
            for i in range(8): fill.append(f"v_mul_f32 v{192+i}, {fhex(-1.4426950408889634)}, v{48+i}")
            for i in range(8): fill.append(f"v_exp_f32 v{192+i}, v{192+i}")
            for i in range(8): fill.append(f"v_add_f32 v{192+i}, 1.0, v{192+i}")
            for i in range(8): fill.append(f"v_rcp_f32 v{192+i}, v{192+i}")
            for i in range(8): fill.append(f"v_mul_f32 v{48+i}, v{48+i}, v{192+i}")
            fill += tail_adr
        slots = [[] for _ in range(16)]
        for i, op in enumerate(ops): slots[(i * 16) // max(len(ops), 8) if len(ops) > 8 else 2 * i].append(op)
        for k in range(4):
            st = k & 1
            nxt = reads(n, k + 1, st ^ 1) if k < 3 else []
            for nb in range(4):
                if nb % 2 == 0: A(f"s_waitcnt lgkmcnt({4 - 2*nb + len(nxt[0:2*nb])})")
                d = WF + 16 * st + 4 * nb; a = ACT + 16 * (n & 3) + 4 * k
                cb = ACC + (16 if n >= 7 else 0) + 4 * nb
                c = f"v[{cb}:{cb+3}]"
                A(f"v_mfma_f32_16x16x32_bf16 {c}, v[{d}:{d+3}], v[{a}:{a+3}], {0 if (n in (0, 7) and k == 0) else c}")
                for r in nxt[2*nb:2*nb+2]: A(r)
                for op in slots[4 * k + nb]: emit(op)
                if k or n == 8:
                    for _ in range(3):
                        if fill: A(fill.pop(0))
        if n == 6 and C.ytail:
            L1 = A.label("L_g2_y1"); L2 = A.label("L_g2_yj")
            A(f"s_cmp_eq_u32 s49, 1\ns_cbranch_scc1 {L1}")
            for (lab, keep) in ((None, 0), (L1, 8)):
                if lab: A(f"{lab}:")
                for q in range(2): A(f"ds_write_b128 v6, v[{ACC+8-keep+4*q}:{ACC+11-keep+4*q}] offset:{1024*q}")
                for i in range(0, 8, 2): A(f"v_mov_b64 v[{184+i}:{185+i}], v[{ACC+keep+i}:{ACC+keep+i+1}]")
                if not lab: A(f"s_branch {L2}")
            A(f"{L2}:\ns_waitcnt lgkmcnt(0)")
    assert not fill
    stamp(A, "g2m")
    P = lambda r: f"v[{r}:{r+1}]"
    L1 = A.label("L_g2_k1"); L2 = A.label("L_g2_j")
    A(f"s_cmp_eq_u32 s49, 1\ns_cbranch_scc1 {L1}")
    for (lab, keep) in ((None, 0), (L1, 8)):
        if lab: A(f"{lab}:")
        send = 8 - keep
        regs = (ACC + send, ACC + send + 4, ACC + 16 + send, ACC + 20 + send)
        for q in range(2 if C.ytail else 0, 4): A(f"ds_write_b128 v6, v[{regs[q]}:{regs[q]+3}] offset:{1024*q}")
        A("s_waitcnt lgkmcnt(0)\ns_barrier")
        for q in range(2 if C.ytail else 0, 4): A(f"ds_read_b128 v[{48+4*q}:{51+4*q}], v7 offset:{1024*q}")
        if not C.ytail:
            A("s_waitcnt lgkmcnt(2)")
            for i in range(0, 8, 2): A(f"v_pk_add_f32 {P(48+i)}, {P(48+i)}, {P(ACC+keep+i)}")
        A("s_waitcnt lgkmcnt(0)")
        for i in range(0, 8, 2): A(f"v_pk_add_f32 {P(56+i)}, {P(56+i)}, {P(ACC+16+keep+i)}")
        if not lab: A(f"s_branch {L2}")
    A(f"{L2}:")
    if not C.ytail:
        for i in range(8): A(f"v_mul_f32 v{64+i}, {fhex(-1.4426950408889634)}, v{48+i}")
        for i in range(8): A(f"v_exp_f32 v{64+i}, v{64+i}")
        for l in tail_adr: A(l)
        for i in range(8): A(f"v_add_f32 v{64+i}, 1.0, v{64+i}")
        for i in range(8): A(f"v_rcp_f32 v{64+i}, v{64+i}")
        for i in range(0, 8, 2): A(f"v_pk_mul_f32 {P(48+i)}, {P(48+i)}, {P(64+i)}")
    for i in range(0, 8, 2): A(f"v_pk_mul_f32 {P(56+i)}, {P(56+i)}, {P(48+i)}")
    for q in range(4): A(f"v_cvt_pk_bf16_f32 v{8+q}, v{56+2*q}, v{57+2*q}")
    A("ds_write_b64 v4, v[8:9]\nds_write_b64 v4, v[10:11] offset:32")
    A("s_waitcnt vmcnt(0)")
    for q in range(4): A(f"v_lshlrev_b32 v{72+2*q}, 16, v{240+q}\nv_and_b32 v{73+2*q}, 0xffff0000, v{240+q}")
    A("s_waitcnt lgkmcnt(0)\ns_barrier\nds_read_b128 v[8:11], v5\ns_waitcnt lgkmcnt(0)")
    for q in range(4): A(f"v_lshlrev_b32 v{64+2*q}, 16, v{8+q}\nv_and_b32 v{65+2*q}, 0xffff0000, v{8+q}")
    for i in range(0, 8, 2): A(f"v_pk_add_f32 {P(72+i)}, {P(72+i)}, {P(64+i)}")
    for q in range(4): A(f"v_cvt_pk_bf16_f32 v{8+q}, v{72+2*q}, v{73+2*q}")
    A(f"buffer_store_dwordx4 v[8:11], v{V_G2X}, {BR}, s56 offen {C.outf}")
    L = A.label("L_ep")
    A(f"s_cmp_lg_u32 s{S_WG}, 0\ns_cbranch_scc1 {L}\ns_mov_b32 s57, 0")
    set_flag(A, 57, 16)
    A(f"{L}:")

HDR = open("recurrent_scan__spectral_gfnet__geglu_ffn__prompt.s.ref").read().split("; Override")[0]
DOC = r'''; ======================================================================================================
;    makes zero, so the 256 columns that are carried are bins 1..256.
;    (-mean x column sums of the weights) and 1/den is folded into the gelu constants; writes h (bf16).
; CF (32 workgroups, one bin per wave): 2048-point column FFT (32 x 2 x 32), times W, inverse FFT, all in
; Hand-offs between workgroups go through d_ws: write-through (sc1) stores, s_waitcnt vmcnt, barrier, then one
; workgroup 0 stores the tag to ws[0] at the end, so flags of an earlier launch never match.  Spins are bounded.
; ======================================================================================================
'''
def gen(**kw):
    for k, v in kw.items(): setattr(C, k, v)
    A = Asm()
    A(HDR.rstrip())
    A("; @launch grid=(256,1,1) block=(512,1,1) lds=163840")
    A(DOC.rstrip())
    A('.amdgcn_target "amdgcn-amd-amdhsa--gfx950"\n.text')
    kernel_begin(A, KN)
    prologue(A)
    phase_p0(A)
    phase_g1(A)
    A("s_branch L_g2\nL_cf:")
    phase_cf(A)
    A("L_g2:")
    phase_g2(A)
    if C.delay:
        A(f"s_memtime s[70:71]\ns_waitcnt lgkmcnt(0)\nL_dly:\ns_memtime s[72:73]\ns_waitcnt lgkmcnt(0)\ns_sub_u32 s72, s72, s70\ns_cmp_lt_u32 s72, {C.delay}\ns_cbranch_scc1 L_dly")
    if C.echo:
        A(f"s_memrealtime s[72:73]\ns_waitcnt lgkmcnt(0)")
        if C.echo == "end": A("s_mov_b32 s84, s72")
        A(f"s_sub_u32 s84, s84, s82\ns_mul_i32 s84, s84, {C.echo_k}")
        A(f"L_echo:\ns_memrealtime s[74:75]\ns_waitcnt lgkmcnt(0)\ns_sub_u32 s74, s74, s72\ns_cmp_lt_u32 s74, s84\ns_cbranch_scc1 L_echo")
    if C.skew >= 0:
        A(f"s_cmp_lg_u32 s{S_XCD}, {C.skew}\ns_cbranch_scc1 L_done\nv_mov_b32 v2, 0\nbuffer_load_dword v3, v2, {WSR}, 0 offen offset:512 sc1\ns_waitcnt vmcnt(0)\nv_readfirstlane_b32 s84, v3")
        A(f"s_memrealtime s[72:73]\ns_waitcnt lgkmcnt(0)\ns_sub_u32 s84, s82, s84\ns_add_u32 s84, s84, 50\ns_max_i32 s84, s84, 0\ns_min_u32 s84, s84, 1000\ns_mul_i32 s84, s84, 4")
        A(f"L_sk:\ns_memrealtime s[74:75]\ns_waitcnt lgkmcnt(0)\ns_sub_u32 s74, s74, s72\ns_cmp_lt_u32 s74, s84\ns_cbranch_scc1 L_sk")
    if C.dbgclk:
        A(f"s_cmp_lg_u32 s{S_WG}, 0\ns_cbranch_scc1 L_done\ns_cmp_lg_u32 s{S_WAVE}, 0\ns_cbranch_scc1 L_done")
        A("s_memtime s[74:75]\ns_memrealtime s[76:77]\ns_waitcnt lgkmcnt(0)\ns_sub_u32 s74, s74, s80\ns_sub_u32 s76, s76, s82")
        srd(A, S_A, P_DBG, 256)
        A(f"v_mov_b32 v2, 0\nv_mov_b32 v4, s74\nv_mov_b32 v5, s76\nbuffer_store_dwordx2 v[4:5], v2, {AR}, 0 offen")
    diag_end(A)
    A("L_done:\ns_endpgm")
    A('.section .rodata,"a"\n.p2align 6')
    A(descriptor(KN, 256, 102, 256))
    return hazard.fix(A.text(), verbose=False)
if __name__ == "__main__":
    kw = dict(a.split("=") for a in sys.argv[2:])
    kw = {k: (int(v) if v.isdigit() and k not in ("perm", "g2map") else v.replace("_", "")) for k, v in kw.items()}
    open(sys.argv[1], "w").write(gen(**kw))
```

```python
import struct, sys
from asmgen import *
import hazard

WS_FL = 0x0
FL_W = 0x1000
FL_B = 0x9000
FL_H = 0x11000
FL_C = 0x19000
WS_ST = 0x0100000
WS_Z  = 0x0300000
WS_WP = 0x0500000
WS_G  = 0x0700000
WS_ZP = 0x0800000
WS_H  = 0x0A00000
WS_DIAG = 0x1200000
WS_SIZE = 0x1400000
TAGK = 0x3C6EF35F

def fhex(x): return "0x%08x" % struct.unpack("<I", struct.pack("<f", x))[0]
S_WS, S_X, S_A, S_B = 4, 8, 12, 16
S_WAVE, S_WG, S_TAG, S_SLOT = 20, 21, 22, 23
S_PTR = 24
P_X, P_WR, P_WI, P_BX, P_WG, P_WU, P_WD, P_OUT, P_DBG, P_WS = [S_PTR + 2 * i for i in range(10)]
S_RT, S_CT, S_WOFF, S_RDY, S_XCD, S_SPIN = 64, 65, 66, 67, 68, 69
S_WLDS = 3
WSR = f"s[{S_WS}:{S_WS+3}]"; XR = f"s[{S_X}:{S_X+3}]"; AR = f"s[{S_A}:{S_A+3}]"; BR = f"s[{S_B}:{S_B+3}]"
S_C = 96; CR = f"s[{S_C}:{S_C+3}]"
LDS_P0 = 98304
SLOT = 49152
LDS_CS = 147456
LDS_SINK = 152576
LDS_ST = 160768

class Cfg:
    diag = False
    g1map = "col"
    g2map = "84"
    nt_x = ""; nt_x2 = ""; nt_w = ""; nt_a = ""; nt_z = ""; nt_h = ""; nt_g1w = ""; nt_g1w0 = ""
    E1, E2 = 2, 3
    D = 8
    xst = 6
    stage = 0
    stk = 5
    wpz = 1
    skew = -1
    fast = 0
    nfast = 2
    onepass = 0
    prio = 9
    prio0 = 9
    prioe = 9
    prio2 = 9
    prioc = 9
    psleep = 0
    nsl = 5
    ytail = 0
    csm = "m"
    rt = 0
    fbgo = 1
    a0pos = 1
    g1pos = 1
    halfpf = 0
    cfpk = 0
    wmax = 0
    sched = "U"
    sj = 4
    wj = 0
    wd = 2
    outf = ""
    cfstage = 0
    cfw0 = 1
    zfirst = 1
    fbj = 0
    a0early = 0
    bulk = 1
    cpf = 1
    rotc = 0
    rotr = 1
    perm = "01452367"
    j0early = 1
    delay = 0
    echo = ""
    echo_k = 1
    dbgclk = 0
    la2 = 3
    dbg = ""
    sc_act = "sc1"
    rot2 = 0
    nepi = 0
    pf_start, pf_step = 24, 2
    stamps = "x,p0end,go,main,epi,flag2,hrdy,st0,st8"
C = Cfg()

def stamp(A, name):
    if C.echo == name: A("s_memrealtime s[84:85]")
    if not C.diag: return
    names = ["entry"] + C.stamps.split(",") + ["end"]
    assert len(names) <= 11
    if name in names:
        n = names.index(name)
        A(f"{'s_memrealtime' if C.rt else 's_memtime'} s[{74+2*n}:{75+2*n}]")
def diag_end(A):
    if not C.diag: return
    A("s_waitcnt vmcnt(0)")
    stamp(A, "end")
    A("s_memrealtime s[72:73]\ns_waitcnt lgkmcnt(0)")
    A(f"s_lshl_b32 s3, s{S_WG}, 10\ns_lshl_b32 s44, s{S_WAVE}, 7\ns_add_u32 s3, s3, s44\ns_add_u32 s3, s3, {WS_DIAG}")
    A("v_mov_b32 v2, 0")
    for i, sreg in enumerate([70, 72, S_RDY] + [74 + 2*k for k in range(11)]):
        A(f"v_mov_b32 v3, s{sreg}\nbuffer_store_dword v3, v2, {WSR}, s3 offen offset:{4*i}")

def srd(A, s, ptr, nbytes):
    A(f"s_mov_b32 s{s}, s{ptr}\ns_and_b32 s{s+1}, s{ptr+1}, 0xffff\ns_mov_b32 s{s+2}, {nbytes}\ns_mov_b32 s{s+3}, 0x00020000")
def cos_batch(A, regs, mask, scale):
    for r in regs: A(f"v_and_b32 v{r}, {mask}, v{r}")
    for r in regs: A(f"v_cvt_f32_u32 v{r}, v{r}")
    for r in regs: A(f"v_mul_f32 v{r}, {fhex(scale)}, v{r}")
    for r in regs: A(f"v_cos_f32 v{r}, v{r}")
def wave_sum(A, v, sdst):
    for mod in ("row_shr:1 row_mask:0xf", "row_shr:2 row_mask:0xf", "row_shr:4 row_mask:0xf", "row_shr:8 row_mask:0xf",
                "row_bcast:15 row_mask:0xa", "row_bcast:31 row_mask:0xc"):
        A(f"v_add_f32_dpp v{v}, v{v}, v{v} {mod} bank_mask:0xf")
    A(f"v_readlane_b32 s{sdst}, v{v}, 63")
def set_flag(A, soff_expr_sreg, vt=3, anywave=False):
    L = A.label("L_fl")
    if not anywave: A(f"s_cmp_lg_u32 s{S_WAVE}, 0\ns_cbranch_scc1 {L}")
    A(f"v_mov_b32 v{vt}, s{S_TAG}\nv_lshlrev_b32 v{vt+1}, 2, v1\ns_mov_b32 exec_hi, 0")
    A(f"buffer_store_dword v{vt}, v{vt+1}, {WSR}, s{soff_expr_sreg} offen sc1")
    A("s_mov_b64 exec, -1")
    A(f"{L}:")
def poll(A, groups, vt, once=False):
    L = A.label("L_poll"); Lx = A.label("L_pollx")
    if not once: A(f"s_mov_b32 s{S_SPIN}, 0\n{L}:")
    for n, (va, so) in enumerate(groups):
        A(f"buffer_load_dword v{vt+n}, v{va}, {WSR}, {so} offen sc1")
    A("s_waitcnt vmcnt(0)")
    for n in range(1, len(groups)):
        A(f"v_xor_b32 v{vt+n}, s{S_TAG}, v{vt+n}")
    A(f"v_xor_b32 v{vt}, s{S_TAG}, v{vt}")
    for n in range(1, len(groups)):
        A(f"v_or_b32 v{vt}, v{vt}, v{vt+n}")
    A(f"v_cmp_ne_u32 vcc, 0, v{vt}")
    if once:
        A(f"s_cmp_eq_u64 vcc, 0\ns_cselect_b32 s{S_RDY}, 1, 0")
    else:
        A(f"s_cmp_eq_u64 vcc, 0\ns_cbranch_scc1 {Lx}")
        if C.psleep: A(f"s_sleep {C.psleep}")
        A(f"s_add_u32 s{S_SPIN}, s{S_SPIN}, 1\ns_cmp_lt_u32 s{S_SPIN}, 0x200000\ns_cbranch_scc1 {L}")
        A(f"{Lx}:")

V_WDMA, V_ADE, V_ADO = 146, 147, 148
S_ST0 = 2
S_AOFF = 58
def g1_stage(A, j, sreg):
    A(f"s_add_u32 s{sreg}, s{S_ST0}, {int(C.perm[j])}\ns_and_b32 s{sreg}, s{sreg}, 7")
def g1w_ops(j):
    sl = (j % 3) * SLOT
    nt = C.nt_g1w0 if j == 0 else C.nt_g1w
    if "W" in C.dbg: j = 0
    return [f"s_add_u32 s60, s{S_ST0}, {int(C.perm[j])}\ns_and_b32 s60, s60, 7\ns_mul_i32 s60, s60, {64*3584}\ns_add_u32 s60, s60, s{S_WOFF}\n"
            f"s_add_u32 m0, s{S_WLDS}, {sl}\nbuffer_load_dwordx4 v{V_WDMA}, {AR}, s60 offen {nt} lds",
            f"s_add_u32 m0, s{S_WLDS}, {sl + 8192}\nbuffer_load_dwordx4 v{V_WDMA}, {BR}, s60 offen {nt} lds"]
def g1a_ops(j):
    sl = (j % 3) * SLOT + 16384
    if "A" in C.dbg: j = 0
    L = []
    for i in range(4):
        pre = (f"s_add_u32 s61, s{S_ST0}, {int(C.perm[j])}\ns_and_b32 s61, s61, 7\ns_lshl_b32 s61, s61, 7\ns_add_u32 s61, s61, s{S_AOFF}\ns_lshl_b32 s59, s{S_WLDS}, 2\n" if i == 0
               else f"s_add_u32 s61, s61, {(4 if i & 1 else 12) * 1024}\n")
        L.append(pre + f"s_add_u32 m0, s59, {sl + i*1024}\nbuffer_load_dwordx4 v{V_ADO if i & 1 else V_ADE}, {XR}, s61 offen {C.nt_a} lds")
    return L

def prologue(A):
    if C.dbgclk or C.echo or C.skew >= 0: A("s_memtime s[80:81]\ns_memrealtime s[82:83]\ns_memrealtime s[84:85]")
    if C.diag:
        for k in range(11): A(f"s_mov_b32 s{74+2*k}, 0")
        A("s_memrealtime s[70:71]"); stamp(A, "entry")
    A("s_cmp_ge_u32 s2, 256\ns_cbranch_scc1 L_done")
    A(f"s_load_dwordx16 s[{S_PTR}:{S_PTR+15}], s[0:1], 0")
    A(f"s_load_dwordx4 s[{S_PTR+16}:{S_PTR+19}], s[0:1], 64")
    A("v_lshrrev_b32 v2, 6, v0\nv_and_b32 v1, 63, v0")
    A(f"v_readfirstlane_b32 s{S_WAVE}, v2")
    A(f"s_mov_b32 s{S_WG}, s2\ns_and_b32 s{S_XCD}, s2, 7\ns_lshr_b32 s{S_SLOT}, s2, 3\ns_mov_b32 s{S_RDY}, 0")
    code_prefetch(A, KN, "L_done", 112)
    if C.g1map == "col":
        A(f"s_mul_i32 s44, s{S_XCD}, 28\ns_add_u32 s44, s44, s{S_SLOT}\ns_and_b32 s{S_RT}, s44, 7\ns_lshr_b32 s{S_CT}, s44, 3")
    else:
        A(f"s_and_b32 s44, s{S_XCD}, 1\ns_lshl_b32 s44, s44, 2\ns_and_b32 s45, s{S_SLOT}, 3\ns_add_u32 s{S_RT}, s44, s45")
        A(f"s_lshr_b32 s44, s{S_XCD}, 1\ns_mul_i32 s44, s44, 7\ns_lshr_b32 s45, s{S_SLOT}, 2\ns_add_u32 s{S_CT}, s44, s45")
    A(f"s_mul_i32 s44, s{S_CT}, {C.rotc}\ns_mul_i32 s45, s{S_RT}, {C.rotr}\ns_add_u32 s44, s44, s45\ns_and_b32 s{S_ST0}, s44, 7")
    W = S_WAVE
    A(f"s_lshr_b32 s44, s{S_WG}, 2          ; r2")
    A(f"s_and_b32 s45, s{S_WG}, 3           ; mh")
    A(f"s_lshr_b32 s46, s45, 1\ns_lshl_b32 s46, s46, 4")
    A(f"s_and_b32 s47, s45, 1\ns_lshl_b32 s47, s47, 2\ns_add_u32 s46, s46, s47")
    A(f"s_lshr_b32 s47, s{W}, 2\ns_lshl_b32 s47, s47, 3\ns_add_u32 s46, s46, s47")
    A(f"s_and_b32 s47, s{W}, 3\ns_add_u32 s46, s46, s47     ; r1")
    A("s_lshl_b32 s46, s46, 6\ns_add_u32 s46, s46, s44\ns_lshl_b32 s56, s46, 10")
    A("v_lshlrev_b32 v2, 4, v1")
    A("s_waitcnt lgkmcnt(0)")
    srd(A, S_X, P_X, 2097152)
    A(f"buffer_load_dwordx4 v[4:7], v2, {XR}, s56 offen {C.nt_x}")
    A(f"s_load_dword s{S_TAG}, s[{P_WS}:{P_WS+1}], 0")
    srd(A, S_WS, P_WS, WS_SIZE)
    if C.skew >= 0:
        A(f"s_cmp_lg_u32 s{S_WG}, 0\ns_cbranch_scc1 L_sk0\nv_mov_b32 v8, s82\nv_mov_b32 v9, 0\nbuffer_store_dword v8, v9, {WSR}, 0 offen offset:512 sc1\ns_waitcnt vmcnt(0)\nL_sk0:")

def code_prefetch(A, start, end, vt):
    Lh = A.label("L_cph")
    A(f"s_getpc_b64 s[60:61]\n{Lh}:")
    A(f"s_mul_i32 s59, s{S_SLOT}, 1280\ns_mul_i32 s57, s{S_WAVE}, 160\ns_add_u32 s59, s59, s57\nv_and_b32 v{vt}, 15, v1\nv_lshl_add_u32 v{vt}, v{vt}, 4, s59\nv_min_u32 v{vt}, {end} - {start} - 16, v{vt}")
    A(f"s_add_u32 s60, s60, {start} - {Lh}\ns_addc_u32 s61, s61, {'-1' if start == KN else '0'}")
    A(f"v_mov_b32 v{vt+1}, s61\nv_add_co_u32 v{vt}, vcc, s60, v{vt}\nv_addc_co_u32 v{vt+1}, vcc, 0, v{vt+1}, vcc")
    A(f"global_load_dwordx4 v[{vt+2}:{vt+5}], v[{vt}:{vt+1}], off")

def gemm_only(A, fn):
    L = A.label("L_go")
    A(f"s_cmp_ge_u32 s{S_SLOT}, 28\ns_cbranch_scc1 {L}")
    fn()
    A(f"{L}:")
def wait_role(A, n_gemm, n_cf):
    L = A.label("L_wr"); L2 = A.label("L_wr")
    A(f"s_cmp_ge_u32 s{S_SLOT}, 28\ns_cbranch_scc1 {L}\ns_waitcnt vmcnt({n_gemm})\ns_branch {L2}\n{L}:\ns_waitcnt vmcnt({n_cf})\n{L2}:")

def setprio(A, mode):
    if mode == 9: return
    A("s_setprio 0")
    if mode:
        L = A.label("L_pr")
        A(f"s_cmp_{'lt' if mode == 1 else 'ge'}_u32 s{S_WAVE}, 4\ns_cbranch_scc1 {L}\ns_setprio 1\n{L}:")

def wd_stage(n, first, lds):
    B = Asm(); srd(B, S_C, P_WD, 1792 * 1024)
    L = ["\n".join(B.lines) + f"\n{first}\ns_add_u32 m0, s{S_WLDS}, {lds}\nbuffer_load_dwordx4 v2, {CR}, s60 offen lds"]
    for k in range(1, n): L.append(f"s_add_u32 s60, s60, 1024\nbuffer_load_dwordx4 v2, {CR}, s60 offen lds")
    return L
WD_ALL = f"s_mul_i32 s60, s{S_WG}, 7168\ns_min_u32 s61, s{S_WAVE}, 6\ns_lshl_b32 s61, s61, 10\ns_add_u32 s60, s60, s61"

def phase_p0(A):
    setprio(A, C.prio0)
    W = S_WAVE
    ZL = 2 * SLOT; XNL = 2 * SLOT + 16384; CL = XNL + 8192; WL = 151552; STL = WL + 8320
    B1RE, B1IM, A2RE, A2IM, S2RE, S2IM, TWC, TWS = 64, 68, 72, 76, 80, 84, 88, 92
    T = 32
    srd(A, S_A, P_WG, 512 * 3584)
    srd(A, S_B, P_WU, 512 * 3584)
    A("v_lshrrev_b32 v8, 3, v1")
    A("v_bfe_u32 v9, v1, 4, 1\nv_lshlrev_b32 v9, 2, v9\nv_and_b32 v10, 7, v1\nv_xor_b32 v9, v9, v10")
    A(f"v_mul_u32_u24 v11, 3584, v8\nv_lshl_add_u32 v{V_WDMA}, v9, 4, v11")
    A(f"s_mul_i32 s47, s{W}, {8*3584}\ns_lshl_b32 s52, s{S_CT}, 7\ns_add_u32 s{S_WOFF}, s47, s52\ns_lshl_b32 s{S_WLDS}, s{W}, 10")
    def w_flat():
        A(f"s_cmp_lt_u32 s{W}, 4\ns_cselect_b32 s{S_C}, s{P_WR}, s{P_WI}\ns_cselect_b32 s{S_C+1}, s{P_WR+1}, s{P_WI+1}")
        A(f"s_and_b32 s{S_C+1}, s{S_C+1}, 0xffff\ns_mov_b32 s{S_C+2}, {2048*514}\ns_mov_b32 s{S_C+3}, 0x00020000")
        A(f"s_mul_i32 s53, s{S_WG}, 4112\ns_and_b32 s54, s{W}, 3\ns_lshl_b32 s54, s54, 10\ns_add_u32 s55, s53, s54")
        A(f"s_lshr_b32 s61, s{W}, 2\ns_mul_i32 s61, s61, 4160\ns_add_u32 s61, s61, {WL}\ns_add_u32 m0, s61, s54")
        A(f"buffer_load_dwordx4 v2, {CR}, s55 offen {C.nt_w} lds")
        A("s_add_u32 m0, s61, 4096\ns_add_u32 s53, s53, 4096\ns_mov_b64 exec, 1")
        A(f"buffer_load_dwordx4 v2, {CR}, s53 offen {C.nt_w} lds")
        A("s_mov_b64 exec, -1")
    def bulk():
        L = A.label("L_bk"); L2 = A.label("L_bk")
        A(f"s_cmp_ge_u32 s{S_SLOT}, 28\ns_cbranch_scc1 {L}")
        for o in g1w_ops(0): A(o)
        A(f"{L}:")
        w_flat()
    if C.bulk == 0: bulk()
    A("v_lshrrev_b32 v9, 2, v8\nv_lshlrev_b32 v9, 3, v9\nv_and_b32 v8, 3, v8\nv_add_u32 v8, v8, v9\nv_lshlrev_b32 v8, 10, v8")
    A(f"v_lshrrev_b32 v9, 4, v1\nv_xor_b32 v9, v9, v10\nv_lshl_add_u32 v{V_ADE}, v9, 4, v8\nv_xor_b32 v{V_ADO}, 64, v{V_ADE}")
    A(f"s_lshl_b32 s47, s{S_RT}, 3\ns_add_u32 s47, s47, s{W}\ns_lshl_b32 s{S_AOFF}, s47, 15")
    if C.a0early == 1: gemm_only(A, lambda: [A(o) for o in g1a_ops(0)])
    M0 = "s[62:63]"
    A("v_and_b32 v30, 15, v1\nv_lshrrev_b32 v29, 4, v1")
    A(f"v_cmp_eq_u32 {M0}, 0, v30\nv_cmp_gt_u32 vcc, 8, v30")
    A("v_cvt_f32_u32 v26, v30\nv_cvt_f32_u32 v27, v29\nv_mul_f32 v27, 4.0, v27      ; k, 4g")
    Lc = A.label("L_c"); cases = [A.label("L_c") for _ in range(7)]
    A("s_mov_b32 s47, 0")
    for n in range(1, 7):
        A(f"s_cmp_eq_u32 s{W}, {n}\ns_cbranch_scc1 {cases[n]}")
    A(f"; wave 0 (and 7): B1RE\nv_mul_f32 v20, {fhex(1/32)}, v26\nv_mov_b32 v22, 0\ns_mov_b32 s47, {fhex(16.0)}\nv_mov_b32 v21, v20\nv_mov_b32 v23, 0\ns_branch {Lc}")
    A(f"{cases[1]}:\nv_mul_f32 v20, {fhex(1/32)}, v26\nv_mov_b32 v22, {fhex(0.25)}\nv_cndmask_b32 v20, v20, 0.5, {M0}\nv_cndmask_b32 v22, v22, 0, {M0}")
    A(f"s_mov_b32 s47, {fhex(16.0)}\nv_mov_b32 v21, v20\nv_mov_b32 v23, v22\ns_branch {Lc}")
    A(f"{cases[2]}:\nv_mul_f32 v20, {fhex(1/16)}, v26\nv_mov_b32 v22, 0\nv_mov_b32 v23, {fhex(0.75)}\nv_mov_b32 v21, v20\ns_branch {Lc}")
    A(f"{cases[3]}:\nv_mul_f32 v20, {fhex(1/16)}, v26\nv_cndmask_b32 v23, 0.5, 0, vcc\nv_add_f32 v22, {fhex(0.25)}, v23\nv_mov_b32 v21, v20\ns_branch {Lc}")
    for n in (4, 5):
        A(f"{cases[n]}:\nv_mul_f32 v20, {fhex(1/16)}, v26\nv_cndmask_b32 v21, v20, 0.5, {M0}\nv_sub_f32 v24, {fhex(31/32)}, v20")
        A("v_cndmask_b32 v20, 0, v21, vcc\nv_cndmask_b32 v21, v24, 0, vcc")
        if n == 4: A(f"v_mov_b32 v24, {fhex(0.25)}\nv_cndmask_b32 v22, v24, 0, vcc\nv_cndmask_b32 v23, 0, v24, vcc")
        else: A(f"v_mov_b32 v22, {fhex(0.25)}\nv_mov_b32 v23, v22")
        A(f"s_branch {Lc}")
    A(f"{cases[6]}:\nv_mul_f32 v20, {fhex(1/512)}, v26\nv_mov_b32 v22, 0\nv_mov_b32 v23, {fhex(0.75)}\nv_mov_b32 v21, v20")
    A(f"{Lc}:")
    A("v_fma_f32 v22, v27, v20, v22\nv_add_f32 v24, s47, v27\nv_fma_f32 v23, v24, v21, v23")
    for (b, v, o) in ((22, 20, T), (23, 21, T + 4)):
        A(f"v_cos_f32 v{o}, v{b}\nv_add_f32 v{o+1}, v{b}, v{v}\nv_fma_f32 v{o+2}, v{v}, 2.0, v{b}\nv_fmamk_f32 v{o+3}, v{v}, {fhex(3.0)}, v{b}")
        for q in (1, 2, 3): A(f"v_cos_f32 v{o+q}, v{o+q}")
    A(f"s_add_u32 s47, s{S_WLDS}, {CL}\nv_add_u32 v24, s47, v2")
    L6 = A.label("L_c6"); L7 = A.label("L_c7")
    A(f"s_cmp_eq_u32 s{W}, 6\ns_cbranch_scc1 {L6}\ns_cmp_eq_u32 s{W}, 7\ns_cbranch_scc1 {L7}")
    for q in range(4): A(f"v_cvt_pk_bf16_f32 v{T+q}, v{T+2*q}, v{T+2*q+1}")
    A(f"ds_write_b128 v24, v[{T}:{T+3}]\ns_branch {L7}")
    A(f"{L6}:\nds_write_b128 v24, v[{T}:{T+3}]\nds_write_b128 v24, v[{T+4}:{T+7}] offset:1024\n{L7}:")
    A(f"s_add_u32 s61, s{S_WLDS}, {XNL}")
    A("v_add_u32 v96, s61, v2\nv_lshl_add_u32 v97, v1, 3, s61")
    A(f"v_add_u32 v108, {CL}, v2")
    A(f"v_lshlrev_b32 v100, 11, v29\nv_lshl_add_u32 v100, v30, 5, v100\ns_lshl_b32 s61, s{W}, 1\ns_add_u32 s61, s61, {ZL}")
    A("v_add_u32 v100, s61, v100")
    A(f"s_waitcnt lgkmcnt(0)\ns_barrier\ns_add_u32 s{S_TAG}, s{S_TAG}, {TAGK}")
    for n in range(8): A(f"ds_read_b128 v[{64+4*n}:{67+4*n}], v108 offset:{1024*n}")
    if C.a0early == 2: gemm_only(A, lambda: [A(o) for o in g1a_ops(0)])
    if C.bulk == 1: bulk()
    A(f"v_lshlrev_b32 v101, 4, v0\nv_add_u32 v101, {ZL}, v101")
    A("s_and_b32 s61, s44, 15\nv_and_b32 v103, 15, v0\nv_xor_b32 v102, s61, v103\nv_lshlrev_b32 v102, 4, v102")
    A("v_lshrrev_b32 v12, 4, v0             ; cg")
    A("v_lshl_add_u32 v102, v12, 16, v102")
    A(f"s_lshl_b32 s46, s{S_WG}, 8\ns_add_u32 s45, s46, {WS_Z}\ns_add_u32 s46, s46, {WS_WP}")
    A("v_bfe_u32 v13, v0, 4, 4\nv_and_b32 v12, 15, v0\nv_lshlrev_b32 v14, 5, v13\nv_add_u32 v20, v14, v12\nv_sub_u32 v15, 0x200, v14")
    A("v_cmp_eq_u32 vcc, 0, v12\nv_cndmask_b32 v21, v12, 16, vcc\nv_sub_u32 v15, v15, v21\nv_cmp_gt_u32 vcc, 8, v13\nv_cndmask_b32 v20, v15, v20, vcc")
    A("v_and_b32 v12, 255, v0\nv_mov_b32 v15, 0x100\nv_cmp_eq_u32 vcc, 0, v12\nv_cndmask_b32 v20, v20, v15, vcc      ; bin")
    A(f"s_lshr_b32 s61, s{W}, 2\ns_mul_i32 s60, s61, {4*514}\ns_add_u32 s60, s60, {WL}\nv_lshl_add_u32 v127, v20, 1, s60")
    A(f"s_lshl_b32 s60, s{S_WG}, 1\ns_add_u32 s60, s60, s61\ns_and_b32 s60, s60, 7\nv_and_b32 v13, 7, v0\nv_xor_b32 v13, s60, v13\nv_lshlrev_b32 v13, 4, v13")
    A("v_lshrrev_b32 v12, 3, v12\nv_lshl_add_u32 v103, v12, 16, v13\ns_lshl_b32 s61, s61, 7\ns_add_u32 s46, s46, s61")
    A(f"s_lshl_b32 s57, s{S_WG}, 7\ns_add_u32 s57, s57, {FL_B}")
    A(f"v_lshlrev_b32 v126, 3, v1\nv_and_b32 v13, 63, v126\nv_add_u32 v99, {STL}, v13\ns_lshl_b32 s55, s{S_WG}, 7\ns_add_u32 s55, s55, {WS_ST}")
    A("v_mov_b32 v3, v102")
    if C.g1pos == 0: g1_setup(A)
    A("; ---- P0: layernorm")
    stamp(A, "consts")
    if C.bulk < 2: wait_role(A, 4, 2)
    else:
        A("s_waitcnt vmcnt(0)"); bulk()
    stamp(A, "x")
    if C.stage == 2: A(wd_stage(1, WD_ALL, 131072)[0])
    if C.halfpf:
        L = A.label("L_hp")
        A(f"s_add_u32 s60, s{S_SLOT}, 4\ns_and_b32 s61, s{S_XCD}, 1\ns_cselect_b32 s61, 4, 28\ns_sub_u32 s60, s60, s61\ns_cmp_ge_u32 s60, 4\ns_cbranch_scc1 {L}")
        A(f"s_add_u32 s60, s{S_ST0}, 4\ns_and_b32 s60, s60, 7\ns_mul_i32 s60, s60, {64*3584}\ns_add_u32 s60, s60, s{S_WOFF}\ns_add_u32 m0, s{S_WLDS}, 131072")
        A(f"buffer_load_dwordx4 v{V_WDMA}, {AR}, s60 offen {C.nt_g1w0} lds\nbuffer_load_dwordx4 v{V_WDMA}, {BR}, s60 offen {C.nt_g1w0} lds\n{L}:")
    for q in range(4):
        A(f"v_lshlrev_b32 v{T+2*q}, 16, v{4+q}\nv_and_b32 v{T+2*q+1}, 0xffff0000, v{4+q}")
    if C.onepass:
        A(f"v_readfirstlane_b32 s61, v{T}")
        for q in range(8): A(f"v_subrev_f32 v{T+16+q}, s61, v{T+q}")
        A(f"v_pk_add_f32 v[{T+8}:{T+9}], v[{T+16}:{T+17}], v[{T+18}:{T+19}]\nv_pk_add_f32 v[{T+10}:{T+11}], v[{T+20}:{T+21}], v[{T+22}:{T+23}]")
        A(f"v_pk_mul_f32 v[{T+12}:{T+13}], v[{T+16}:{T+17}], v[{T+16}:{T+17}]\nv_pk_mul_f32 v[{T+14}:{T+15}], v[{T+18}:{T+19}], v[{T+18}:{T+19}]")
        A(f"v_pk_add_f32 v[{T+8}:{T+9}], v[{T+8}:{T+9}], v[{T+10}:{T+11}]")
        A(f"v_pk_fma_f32 v[{T+12}:{T+13}], v[{T+20}:{T+21}], v[{T+20}:{T+21}], v[{T+12}:{T+13}]\nv_pk_fma_f32 v[{T+14}:{T+15}], v[{T+22}:{T+23}], v[{T+22}:{T+23}], v[{T+14}:{T+15}]")
        A(f"v_add_f32 v{T+8}, v{T+8}, v{T+9}\nv_pk_add_f32 v[{T+12}:{T+13}], v[{T+12}:{T+13}], v[{T+14}:{T+15}]\nv_mov_b32 v{T+9}, {fhex(1.0/512)}\nv_add_f32 v{T+12}, v{T+12}, v{T+13}")
        for mod in ("row_shr:1 row_mask:0xf", "row_shr:2 row_mask:0xf", "row_shr:4 row_mask:0xf", "row_shr:8 row_mask:0xf", "row_bcast:15 row_mask:0xa", "row_bcast:31 row_mask:0xc"):
            A(f"v_add_f32_dpp v{T+8}, v{T+8}, v{T+8} {mod} bank_mask:0xf\nv_add_f32_dpp v{T+12}, v{T+12}, v{T+12} {mod} bank_mask:0xf")
        A(f"v_readlane_b32 s60, v{T+8}, 63\nv_readlane_b32 s53, v{T+12}, 63")
        A(f"v_mul_f32 v{T+11}, s60, v{T+9}\nv_mul_f32 v{T+9}, s53, v{T+9}\nv_add_f32 v{T+10}, s61, v{T+11}\nv_fma_f32 v{T+9}, -v{T+11}, v{T+11}, v{T+9}\nv_max_f32 v{T+9}, 0, v{T+9}")
        A(f"v_cvt_pk_bf16_f32 v{T+10}, v{T+10}, v{T+10}\nv_lshlrev_b32 v{T+10}, 16, v{T+10}")
        for q in range(8): A(f"v_sub_f32 v{T+q}, v{T+q}, v{T+10}")
        for q in range(4): A(f"v_cvt_pk_bf16_f32 v{T+16+q}, v{T+2*q}, v{T+2*q+1}")
    else:
        A(f"v_pk_add_f32 v[{T+8}:{T+9}], v[{T}:{T+1}], v[{T+2}:{T+3}]\nv_pk_add_f32 v[{T+10}:{T+11}], v[{T+4}:{T+5}], v[{T+6}:{T+7}]")
        A(f"v_pk_add_f32 v[{T+8}:{T+9}], v[{T+8}:{T+9}], v[{T+10}:{T+11}]\nv_add_f32 v{T+8}, v{T+8}, v{T+9}")
        wave_sum(A, T + 8, 60)
        A(f"v_mov_b32 v{T+9}, {fhex(1.0/512)}\nv_mul_f32 v{T+9}, s60, v{T+9}")
        A(f"v_cvt_pk_bf16_f32 v{T+10}, v{T+9}, v{T+9}")
        for q in range(8): A(f"v_sub_f32 v{T+16+q}, v{T+q}, v{T+9}")
        A(f"v_lshlrev_b32 v{T+10}, 16, v{T+10}")
        A(f"v_mul_f32 v{T+8}, v{T+16}, v{T+16}\nv_mul_f32 v{T+11}, v{T+17}, v{T+17}")
        for q in range(2, 8, 2):
            A(f"v_fmac_f32 v{T+8}, v{T+16+q}, v{T+16+q}\nv_fmac_f32 v{T+11}, v{T+17+q}, v{T+17+q}")
        A(f"v_add_f32 v{T+8}, v{T+8}, v{T+11}")
        fill = [f"v_sub_f32 v{T+q}, v{T+q}, v{T+10}" for q in range(8)] + [f"v_cvt_pk_bf16_f32 v{T+16+q}, v{T+2*q}, v{T+2*q+1}" for q in range(4)]
        for n, mod in enumerate(("row_shr:1 row_mask:0xf", "row_shr:2 row_mask:0xf", "row_shr:4 row_mask:0xf", "row_shr:8 row_mask:0xf",
                    "row_bcast:15 row_mask:0xa", "row_bcast:31 row_mask:0xc")):
            A(fill[2*n]); A(fill[2*n+1])
            A(f"v_add_f32_dpp v{T+8}, v{T+8}, v{T+8} {mod} bank_mask:0xf")
        A(f"v_mov_b32 v{T+9}, {fhex(1.0/512)}")
        A(f"v_readlane_b32 s60, v{T+8}, 63")
    for q in range(2):
        A(f"v_lshlrev_b32 v{T+2*q}, 16, v{T+16+q}\nv_and_b32 v{T+2*q+1}, 0xffff0000, v{T+16+q}")
    if not C.onepass: A(f"v_mul_f32 v{T+9}, s60, v{T+9}")
    A(f"v_cvt_pk_bf16_f32 v{T+9}, v{T+9}, v{T+9}\nv_lshlrev_b32 v{T+9}, 16, v{T+9}")
    A(f"v_add_f32 v{T+9}, {fhex(1e-5)}, v{T+9}")
    A(f"v_cvt_pk_bf16_f32 v{T+9}, v{T+9}, v{T+9}\nv_lshlrev_b32 v{T+9}, 16, v{T+9}")
    A(f"v_sqrt_f32 v{T+9}, v{T+9}")
    A(f"v_lshlrev_b32 v{T+4}, 16, v{T+18}")
    A(f"v_cvt_pk_bf16_f32 v{T+9}, v{T+9}, v{T+9}\nv_lshlrev_b32 v{T+9}, 16, v{T+9}")
    A(f"v_rcp_f32 v{T+9}, v{T+9}")
    A(f"v_and_b32 v{T+5}, 0xffff0000, v{T+18}\nv_lshlrev_b32 v{T+6}, 16, v{T+19}\nv_and_b32 v{T+7}, 0xffff0000, v{T+19}")
    for q in range(8): A(f"v_mul_f32 v{T+q}, v{T+9}, v{T+q}")
    for q in range(4): A(f"v_cvt_pk_bf16_f32 v{4+q}, v{T+2*q}, v{T+2*q+1}")
    stamp(A, "ln")
    A("ds_write_b128 v96, v[4:7]")
    A(f"v_lshrrev_b32 v18, 16, v{T+10}\nv_or_b32 v18, v18, v{T+10}\nv_xor_b32 v18, 0x80008000, v18\nv_mov_b32 v19, v{T+9}")
    A(f"s_lshl_b32 s61, s{W}, 3\ns_add_u32 s61, s61, {STL}\nv_mov_b32 v14, s61\nds_write_b64 v14, v[18:19]")
    A("s_waitcnt lgkmcnt(0)")
    A("ds_read_b64_tr_b16 v[8:9], v97\nds_read_b64_tr_b16 v[10:11], v97 offset:512")
    if C.a0pos == 0: gemm_only(A, lambda: [A(o) for o in g1a_ops(0)])
    stamp(A, "iss1")
    A("s_waitcnt lgkmcnt(0)")
    A(f"v_mfma_f32_16x16x32_bf16 v[{T}:{T+3}], v[8:11], v[{B1RE}:{B1RE+3}], 0")
    A(f"v_mfma_f32_16x16x32_bf16 v[{T+4}:{T+7}], v[8:11], v[{B1IM}:{B1IM+3}], 0")
    for i in range(0, 4, 2):
        A(f"v_pk_mul_f32 v[{T+8+i}:{T+9+i}], v[{T+i}:{T+i+1}], v[{TWC+i}:{TWC+i+1}]\nv_pk_mul_f32 v[{T+12+i}:{T+13+i}], v[{T+4+i}:{T+5+i}], v[{TWC+i}:{TWC+i+1}]")
    for i in range(0, 4, 2):
        A(f"v_pk_fma_f32 v[{T+8+i}:{T+9+i}], v[{T+4+i}:{T+5+i}], v[{TWS+i}:{TWS+i+1}], v[{T+8+i}:{T+9+i}]")
        A(f"v_pk_fma_f32 v[{T+12+i}:{T+13+i}], v[{T+i}:{T+i+1}], v[{TWS+i}:{TWS+i+1}], v[{T+12+i}:{T+13+i}] neg_lo:[1,0,0] neg_hi:[1,0,0]")
    for q in range(4): A(f"v_cvt_pk_bf16_f32 v{8+q}, v{T+8+2*q}, v{T+9+2*q}")
    A(f"v_mfma_f32_16x16x32_bf16 v[{T}:{T+3}], v[{A2RE}:{A2RE+3}], v[8:11], 0")
    A(f"v_mfma_f32_16x16x32_bf16 v[{T+4}:{T+7}], v[{A2IM}:{A2IM+3}], v[8:11], 0")
    A(f"v_mfma_f32_16x16x32_bf16 v[{T+8}:{T+11}], v[{S2RE}:{S2RE+3}], v[8:11], 0")
    A(f"v_mfma_f32_16x16x32_bf16 v[{T+12}:{T+15}], v[{S2IM}:{S2IM+3}], v[8:11], 0")
    for i in range(8): A(f"v_cndmask_b32 v{T+i}, v{T+i}, v{T+8+i}, {M0}")
    for i in range(4): A(f"v_cvt_pk_bf16_f32 v{T+i}, v{T+i}, v{T+4+i}")
    for i in range(4):
        A(f"ds_write_b16 v100, v{T+i} offset:{512*i}\nds_write_b16_d16_hi v100, v{T+i} offset:{512*i+16}")
    stamp(A, "fft")
    A("s_mov_b32 s62, s46\ns_mov_b32 s63, s55\nv_mov_b32 v30, v127\nv_mov_b32 v17, v126\nv_mov_b32 v28, v103")
    if C.a0pos == 1: gemm_only(A, lambda: [A(o) for o in g1a_ops(0)])
    if C.g1pos == 1: g1_setup(A)
    stamp(A, "pre2")
    wait_role(A, 4 if C.wpz else 63, 0)
    A("s_waitcnt lgkmcnt(0)\ns_barrier")
    stamp(A, "b2")
    A("ds_read_b128 v[20:23], v101\nds_read_b64 v[18:19], v99")
    if C.a0pos == 2: gemm_only(A, lambda: [A(o) for o in g1a_ops(0)])
    if C.wpz:
        for o in wp_gather(): A(o)
    A(f"s_waitcnt lgkmcnt({8 if C.wpz else 0})")
    zs = p0_stores(A)
    A(zs[0]); A(zs[2])
    if C.wpz:
        A("s_waitcnt lgkmcnt(0)"); A(zs[1])
    stamp(A, "p0end")
    A(f"s_cmp_ge_u32 s{S_SLOT}, 28\ns_cbranch_scc1 L_cf")
    if C.a0pos == 3:
        for o in g1a_ops(0): A(o)
        if C.g1pos == 3: g1_setup(A)
    for o in g1w_ops(1) + g1a_ops(1): A(o)
    if C.g1pos == 2: g1_setup(A)
    if C.fbgo:
        A("s_waitcnt vmcnt(6)\ns_barrier")
        set_flag(A, 57, 16)
        A(f"s_sub_u32 s57, s57, {FL_B - FL_W}")
    else:
        L = A.label("L_w0"); L2 = A.label("L_w0")
        A(f"s_cmp_eq_u32 s{W}, 0\ns_cbranch_scc1 {L}\ns_waitcnt vmcnt(7)\ns_branch {L2}\n{L}:\ns_waitcnt vmcnt(8)\n{L2}:\ns_barrier")

def wp_gather():
    return [f"ds_read_u16 v{24+q}, v30 offset:{514*q}\nds_read_u16 v{4+q}, v30 offset:{4160+514*q}" for q in range(4)]
def p0_stores(A):
    a = f"buffer_store_dwordx4 v[20:23], v3, {WSR}, s45 offen sc1"
    L = A.label("L_p0_st")
    c = f"s_cmp_lg_u32 s{S_WAVE}, 0\ns_cbranch_scc1 {L}\ns_mov_b64 exec, 0xffff\nbuffer_store_dwordx2 v[18:19], v17, {WSR}, s63 offen sc1\ns_mov_b64 exec, -1\n{L}:"
    b = "\n".join(f"v_lshl_or_b32 v{24+q}, v{4+q}, 16, v{24+q}" for q in range(4)) + f"\nbuffer_store_dwordx4 v[24:27], v28, {WSR}, s62 offen sc1"
    if "z" in C.dbg: return [f"buffer_load_dword v20, v2, {WSR}, 0 offen", f"buffer_load_dword v20, v2, {WSR}, 0 offen", c]
    if "y" in C.dbg: return [a, f"buffer_load_dword v20, v2, {WSR}, 0 offen"]
    return [a, b, c]

def wd_prefetch_ops(A):
    srd(A, S_C, P_WD, 1792 * 1024)
    A(f"s_lshl_b32 s100, s{S_SLOT}, 16\ns_lshl_b32 s101, s{S_WAVE}, 13\ns_add_u32 s100, s100, s101")
    if C.g2map == "48":
        A(f"v_mov_b32 v159, v2\ns_mov_b32 s101, s{S_XCD}"); n, sh = 8, 10
    else:
        A(f"v_and_b32 v159, 31, v1\nv_lshlrev_b32 v159, 4, v159\nv_lshrrev_b32 v158, 5, v1\nv_lshl_add_u32 v159, v158, 10, v159")
        A(f"s_and_b32 s101, s{S_XCD}, 1\ns_lshl_b32 s101, s101, 9\ns_add_u32 s100, s100, s101\ns_lshr_b32 s101, s{S_XCD}, 1"); n, sh = 4, 11
    return [f"s_add_u32 m0, s{S_WLDS}, {LDS_SINK}\ns_lshl_b32 s60, s101, {sh}\ns_add_u32 s60, s60, s100\n"
            f"buffer_load_dwordx4 v159, {CR}, s60 offen lds\ns_add_u32 s101, s101, 1\ns_and_b32 s101, s101, {n-1}"] * n

V_G2W = 13
V_G2X = 244
def g2_setup(A, vw=V_G2W, vx=V_G2X, t0=14, t1=15):
    W = S_WAVE
    if C.g2map == "48":
        A(f"s_lshl_b32 s44, s{S_XCD}, 2\ns_and_b32 s45, s{S_SLOT}, 3\ns_add_u32 s44, s44, s45\ns_lshr_b32 s45, s{S_SLOT}, 2")
    else:
        A(f"s_lshr_b32 s44, s{S_XCD}, 1\ns_lshl_b32 s44, s44, 3\ns_and_b32 s45, s{S_SLOT}, 7\ns_add_u32 s44, s44, s45")
        A(f"s_and_b32 s45, s{S_XCD}, 1\ns_lshl_b32 s45, s45, 2\ns_lshr_b32 s46, s{S_SLOT}, 3\ns_add_u32 s45, s45, s46")
    A(f"s_and_b32 s48, s{W}, 3\ns_lshr_b32 s49, s{W}, 2")
    A("s_lshl_b32 s50, s44, 2\ns_add_u32 s50, s50, s48       ; rb16")
    srd(A, S_A, P_WD, 1792 * 1024)
    A(f"v_lshrrev_b32 v{vw}, 3, v1\nv_bfe_u32 v{t0}, v1, 4, 2\nv_lshlrev_b32 v{t0}, 1, v{t0}\nv_and_b32 v{t1}, 7, v1\nv_xor_b32 v{t0}, v{t0}, v{t1}")
    A(f"v_lshlrev_b32 v{vw}, 10, v{vw}\nv_lshl_add_u32 v{vw}, v{t0}, 4, v{vw}")
    A(f"s_lshl_b32 s46, s48, 15\ns_lshl_b32 s51, s45, 7\ns_add_u32 s51, s51, s46\ns_mul_i32 s55, s49, {896*1024}\ns_add_u32 s51, s51, s55")
    A("s_lshl_b32 s46, s48, 12\ns_lshl_b32 s55, s49, 14\ns_add_u32 s55, s55, s46")
    if C.rot2:
        if C.g2map == "48": A("s_cmp_eq_u32 s45, 7\ns_cselect_b32 s52, 0, s45")
        else: A(f"s_and_b32 s52, s45, 3\ns_mul_i32 s52, s52, {C.rot2}")
        A("s_mov_b32 s53, s52\ns_lshl_b32 s46, s52, 17\ns_add_u32 s51, s51, s46")
    A(f"v_lshrrev_b32 v{t0}, 3, v1\nv_and_b32 v{vx}, 3, v{t0}\nv_lshrrev_b32 v{t0}, 2, v{t0}\nv_lshl_or_b32 v{vx}, v{t0}, 3, v{vx}")
    A(f"v_lshlrev_b32 v{vx}, 10, v{vx}\nv_and_b32 v{t1}, 7, v1\nv_lshl_add_u32 v{vx}, v{t1}, 4, v{vx}")
    A(f"s_and_b32 s56, s{W}, 6\ns_lshl_b32 s56, s56, 3\ns_and_b32 s46, s{W}, 1\ns_lshl_b32 s46, s46, 2\ns_add_u32 s56, s56, s46")
    A("s_lshl_b32 s46, s44, 6\ns_add_u32 s56, s56, s46\ns_lshl_b32 s56, s56, 10\ns_lshl_b32 s46, s45, 7\ns_add_u32 s56, s56, s46")
def g2w_ops(n, vw=V_G2W):
    L = []
    for k in range(4):
        if n < 7:
            L.append(f"s_add_u32 m0, s55, {(n % C.nsl)*32768 + k*1024}\ns_add_u32 s52, s51, {n*131072 + k*8192}\nbuffer_load_dwordx4 v{vw}, {AR}, s52 offen lds")
        else:
            L.append(f"s_add_u32 m0, s55, {(n % C.nsl)*32768}\n" + f"buffer_load_dwordx4 v173, {WSR}, s58 offen offset:{1024*k} sc1 lds" + ("\ns_add_u32 s58, s58, 16384" if k == 3 else ""))
    return L
def g2_wdma(A, n):
    for o in g2w_ops(n): A(o)
def weave(A, mf, fill, skip=0):
    if C.wmax and len(fill) > C.wmax * (len(mf) - skip):
        k = 0
        for i, m in enumerate(mf):
            A(m)
            if i >= skip:
                for f in fill[k:k + C.wmax]: A(f)
                k += C.wmax
        for f in fill[k:]: A(f)
        return
    n = len(mf) - skip; k = 0
    for i, m in enumerate(mf):
        A(m)
        if i >= skip:
            e = (len(fill) * (i - skip + 1) + n - 1) // n
            for f in fill[k:e]: A(f)
            k = e

def gelu_block(g, u, T, K):
    P = lambda r: f"v[{r}:{r+1}]"
    L = []
    for n in range(0, 8, 2): L.append(f"v_pk_mul_f32 {P(T+n)}, {P(g+n)}, {P(g+n)}")
    for n in range(0, 8, 2): L.append(f"v_pk_fma_f32 {P(T+n)}, {P(T+n)}, {P(K)}, {P(K+2)}")
    for n in range(0, 8, 2): L.append(f"v_pk_mul_f32 {P(T+n)}, {P(T+n)}, {P(g+n)}")
    for n in range(8): L.append(f"v_exp_f32 v{T+n}, v{T+n}")
    for n in range(0, 8, 2): L.append(f"v_pk_mul_f32 {P(T+8+n)}, {P(g+n)}, {P(u+n)}")
    for n in range(0, 8, 2): L.append(f"v_pk_fma_f32 {P(T+n)}, {P(T+n)}, {P(K+4)}, {P(K+4)}")
    for n in range(8): L.append(f"v_rcp_f32 v{T+n}, v{T+n}")
    for n in range(0, 8, 2): L.append(f"v_pk_mul_f32 {P(T+n)}, {P(T+n)}, {P(T+8+n)}")
    for q in range(4): L.append(f"v_cvt_pk_bf16_f32 v{T+8+q}, v{T+2*q}, v{T+2*q+1}")
    return L

def g1_setup(A):
    W = S_WAVE; AD = 208
    A(f"s_and_b32 s48, s{W}, 3\ns_lshr_b32 s49, s{W}, 2")
    A("v_lshrrev_b32 v8, 5, v1\nv_lshlrev_b32 v11, 3, v8\nv_bfe_u32 v9, v1, 2, 2\nv_add_u32 v11, v11, v9\nv_lshlrev_b32 v11, 7, v11")
    A("v_and_b32 v10, 3, v1\nv_lshl_add_u32 v11, v10, 3, v11\nv_bfe_u32 v10, v1, 4, 1\nv_lshl_add_u32 v11, v10, 5, v11")
    A(f"v_lshrrev_b32 v9, 1, v9\nv_xor_b32 v9, s49, v9\nv_lshl_add_u32 v12, v9, 6, v11")
    A("v_and_b32 v9, 31, v1\nv_bfe_u32 v10, v1, 1, 3\nv_xor_b32 v10, v10, v8\nv_lshlrev_b32 v10, 4, v10\nv_lshl_add_u32 v10, v9, 7, v10")
    A(f"s_lshl_b32 s50, s48, 13\ns_add_u32 s50, s50, 16384\nv_add_u32 v10, s50, v10")
    for k in range(4):
        A(f"s_add_u32 s50, s48, {k}\ns_and_b32 s50, s50, 3\ns_lshl_b32 s52, s50, 5\nv_xor_b32 v{AD+4+k}, s52, v10\ns_lshl_b32 s52, s50, 11\nv_add_u32 v{AD+k}, s52, v12")
    for sl in (1, 2):
        for n in range(8): A(f"v_add_u32 v{AD+8*sl+n}, {sl*SLOT}, v{AD+n}")
    if C.csm == "v":
        for q in range(4): A(f"v_mov_b32 v{128+q}, 0")
    else:
        A("v_and_b32 v12, 15, v1\nv_bfe_u32 v11, v1, 4, 1\nv_mov_b32 v233, 0x3f803f80\nv_cmp_eq_u32 vcc, v11, v12\nv_cndmask_b32 v232, 0, v233, vcc")
        for q in range(1, 4): A(f"v_mov_b32 v{232+q}, v232")
        for q in range(8): A(f"v_mov_b32 v{128+q}, 0")
    A("v_and_b32 v157, 15, v1\nv_lshlrev_b32 v157, 4, v157\nv_lshl_add_u32 v157, v8, 8, v157")
    A("v_bfe_u32 v11, v1, 4, 1\nv_mul_u32_u24 v11, 57344, v11\nv_add_u32 v157, v157, v11")
    A(f"s_lshl_b32 s50, s{S_RT}, 3\ns_lshl_b32 s51, s48, 1\ns_add_u32 s50, s50, s51")
    A(f"s_mul_i32 s47, s50, {2*57344}\ns_lshl_b32 s52, s{S_CT}, 11\ns_add_u32 s47, s47, s52\ns_lshl_b32 s52, s49, 10\ns_add_u32 s47, s47, s52\ns_add_u32 s47, s47, {WS_H}")
    A(f"s_lshr_b32 s51, s{S_RT}, 2\ns_lshl_b32 s51, s51, 1\ns_and_b32 s52, s{S_RT}, 1\ns_add_u32 s51, s51, s52\ns_lshl_b32 s51, s51, 7\ns_add_u32 s51, s51, {FL_B}")
    A(f"s_lshl_b32 s52, s{W}, 12\ns_add_u32 s51, s51, s52\ns_lshl_b32 s50, s{S_RT}, 4\ns_and_b32 s50, s50, 32\ns_add_u32 s50, s50, s51\ns_add_u32 s50, s50, {WS_ST - FL_B}")
    A("v_and_b32 v149, 7, v1\nv_lshlrev_b32 v149, 9, v149\nv_bfe_u32 v153, v1, 1, 3\nv_lshlrev_b32 v153, 9, v153\nv_and_b32 v11, 1, v1\nv_lshl_or_b32 v153, v11, 4, v153")
    A("v_and_b32 v154, 0x13, v9\nv_bfe_u32 v11, v9, 2, 1\nv_lshl_or_b32 v154, v11, 3, v154\nv_bfe_u32 v11, v9, 3, 1\nv_lshl_or_b32 v154, v11, 2, v154")
    A(f"s_lshl_b32 s52, s48, 3\ns_add_u32 s52, s52, {LDS_ST}\nv_lshl_add_u32 v154, v154, 5, s52")
    if C.csm == "v": A(f"s_lshl_b32 s52, s49, 11\ns_add_u32 s52, s52, {LDS_CS}\nv_add_u32 v155, s52, v2\ns_lshl_b32 s52, s48, 2\nv_add_u32 v156, s52, v155")
    else: A(f"s_lshl_b32 s52, s49, 11\ns_add_u32 s52, s52, {LDS_CS}\nv_lshl_add_u32 v155, v9, 4, s52\ns_lshl_b32 s52, s48, 2\nv_add_u32 v156, s52, v155")

def phase_g1(A):
    W = S_WAVE
    ACC = 64; WF = 32; AD = 208
    vm = [("w", 1)] * 2 + [("a", 1)] * 4
    wps = p0_stores(A)[1]
    def reads(kk, st):
        j, k = kk // 4, kk % 4
        wa = AD + 8 * (j % 3) + k; aa = wa + 4; d = WF + 16 * st
        return [f"ds_read_b64_tr_b16 v[{d}:{d+1}], v{wa} offset:0", f"ds_read_b64_tr_b16 v[{d+2}:{d+3}], v{wa} offset:512",
                f"ds_read_b128 v[{d+8}:{d+11}], v{aa}",
                f"ds_read_b64_tr_b16 v[{d+4}:{d+5}], v{wa} offset:8192", f"ds_read_b64_tr_b16 v[{d+6}:{d+7}], v{wa} offset:8704",
                f"ds_read_b128 v[{d+12}:{d+15}], v{aa} offset:4096"]
    def younger(ops):
        return len(vm) - 1 - max(i for i, o in enumerate(vm) if o in ops)
    stamp(A, "go")
    setprio(A, C.prio)
    if C.wj == 0 and not C.wpz:
        for o in wp_gather(): A(o)
    for r in reads(0, 0): A(r)
    pfo = wd_prefetch_ops(A); npf = len(pfo)
    pf = 0
    fill = []
    K1 = -2.0 * 0.7978845608028654 * 1.4426950408889634
    for kk in range(32):
        j, k = kk // 4, kk % 4
        st = kk & 1
        if k == 3 and kk < 31:
            A(f"s_waitcnt vmcnt({younger([('w', j + 1), ('a', j + 1), ('f', j + 1)])}) lgkmcnt(0)\ns_barrier")
            stamp(A, f"g{j+1}")
            if j == 0 and not C.fbgo:
                set_flag(A, 57, 16)
                A(f"s_sub_u32 s57, s57, {FL_B - FL_W}")
            if j + 1 == C.wj and not C.wpz:
                for o in wp_gather(): A(o)
            if j + 1 == C.wj + C.wd and not C.wpz: set_flag(A, 57, 16)
        if kk == 4 * C.sj - 1:
            L = A.label("L_g1_ok")
            A(f"v_cmp_ne_u32 vcc, s{S_TAG}, v16\ns_cmp_eq_u64 vcc, 0\ns_cbranch_scc1 {L}")
            poll(A, [(149, "s51")], 16)
            A(f"{L}:")
            A(f"s_lshl_b32 s52, s{W}, 8\ns_add_u32 m0, s52, {LDS_ST}\ns_mov_b64 exec, 0xffff\nbuffer_load_dwordx4 v153, {WSR}, s50 offen sc1 lds\ns_mov_b64 exec, -1")
            vm.append(("f", C.sj + 2))
        if kk == 27:
            A("ds_read_b64 v[150:151], v154\nds_read_b64 v[152:153], v154 offset:1024")
        if kk == 28:
            for b in range(2):
                m, r, K = 150 + 2 * b, 151 + 2 * b, 160 + 8 * b
                if C.csm == "m": fill += ["v_cmp_gt_u32 vcc, 32, v1", "s_nop 0", f"v_cndmask_b32 v{m}, 0, v{m}, vcc"]
                fill += [f"v_mov_b32 v{136+4*b+q}, v{m}" for q in range(4)]
                fill += (f"v_mul_f32 v{K+6}, v{r}, v{r}\nv_mul_f32 v{K+2}, {fhex(K1)}, v{r}\nv_rcp_f32 v{K+4}, v{K+6}\nv_mul_f32 v{K}, {fhex(0.044715)}, v{K+6}\n"
                         f"v_mul_f32 v{K}, v{K}, v{K+2}\nv_mov_b32 v{K+3}, v{K+2}\nv_mov_b32 v{K+5}, v{K+4}\nv_mov_b32 v{K+1}, v{K}").split("\n")
        if kk == C.stk + 1 and C.stage == 3: pass
        if kk == 24:
            B = Asm(); g2_setup(B); fill += [l for l in B.lines if not l.startswith(";")]
        if kk == 30 and C.csm == "m":
            for r in (128, 129, 132, 133): fill += f"v_cvt_pk_bf16_f32 v16, v{r}, v{r}\nv_lshlrev_b32 v16, 16, v16\nv_sub_f32 v16, v{r}, v16\nv_cvt_pk_bf16_f32 v{r}, v{r}, v16".split("\n")
        nxt = reads(kk + 1, st ^ 1) if kk < 31 else []
        ops = []
        full = lambda jj: [(("w", jj), o) for o in g1w_ops(jj)] + [(("a", jj), o) for o in g1a_ops(jj)]
        if j + 2 < 8:
            if k == 0: ops += [(("w", j + 2), o) for o in g1w_ops(j + 2)]
            ops.append((("a", j + 2), g1a_ops(j + 2)[k]))
        if kk == 4 * C.wj and not C.wpz: ops.insert(0, (("f", C.wj + C.wd), wps))
        if kk == C.stk and C.stage == 3: ops.append((("p", 0), wd_stage(1, WD_ALL.replace("s61", "s53"), LDS_SINK)[0]))
        if kk == 4 * C.sj - 5:
            ops.append((("f", C.sj), f"buffer_load_dword v16, v149, {WSR}, s51 offen sc1"))
        d = WF + 16 * st
        for m, (wo, ao) in enumerate(((0, 8), (4, 8), (0, 12), (4, 12))):
            if m < 3 and not (k == 3 and kk < 31):
                A(f"s_waitcnt lgkmcnt({(3, 1, 0)[m] + len(nxt[0:2*m])})")
            c = f"v[{ACC+16*m}:{ACC+16*m+15}]"
            if "S" in C.dbg:
                for z in range(2):
                    cc = f"v[{ACC+16*m+8*(kk&1)+4*z}:{ACC+16*m+8*(kk&1)+4*z+3}]"
                    A(f"v_mfma_f32_16x16x32_bf16 {cc}, v[{d+wo}:{d+wo+3}], v[{d+ao}:{d+ao+3}], {cc if kk > 1 else 0}")
            else:
                A(f"v_mfma_f32_32x32x16_bf16 {c}, v[{d+wo}:{d+wo+3}], v[{d+ao}:{d+ao+3}], {c if kk else 0}")
            for r in nxt[2*m:2*m+2]: A(r)
            if ops and (m >= 1 or len(ops) > 3):
                tag, o = ops.pop(0); A(o); vm.append(tag)
            if "c" not in C.dbg and C.csm == "m" and k == 0 and m in (1, 3):
                z = m >> 1
                A(f"v_mfma_f32_16x16x32_bf16 v[{128+4*z}:{131+4*z}], v[232:235], v[{d+4*z}:{d+4*z+3}], v[{128+4*z}:{131+4*z}]")
            if "c" not in C.dbg and C.csm == "v":
                src = d + 4 * (m & 1) + k
                if m < 2: A(f"v_lshlrev_b32 v{132+m}, 16, v{src}\nv_and_b32 v{134+m}, 0xffff0000, v{src}")
                else: A(f"v_add_f32 v{128+(m&1)}, v{128+(m&1)}, v{132+(m&1)}\nv_add_f32 v{130+(m&1)}, v{130+(m&1)}, v{134+(m&1)}")
            cnt = 0
            while fill and cnt < (2 if C.csm == 'v' else 4):
                l = fill.pop(0); A(l); cnt += 0.34 if l.startswith("s_") else 1
            if m == 2 and pf < npf and kk >= C.pf_start and (kk - C.pf_start) % C.pf_step == 0:
                A(pfo[pf]); vm.append(("p", pf)); pf += 1
        assert not ops
    assert (pf == npf or C.pf_start > 31) and not fill
    stamp(A, "main")
    setprio(A, C.prioe)
    if C.csm == "m": A("s_mov_b64 exec, 0xffff\nds_write_b32 v156, v128\nds_write_b32 v156, v129 offset:256\nds_write_b32 v156, v132 offset:1024\nds_write_b32 v156, v133 offset:1280\ns_mov_b64 exec, -1")
    def split(r): return f"v_cvt_pk_bf16_f32 v16, v{r}, v{r}\nv_lshlrev_b32 v16, 16, v16\nv_sub_f32 v16, v{r}, v16\nv_cvt_pk_bf16_f32 v{r}, v{r}, v16"
    if C.csm == "v":
        for r in (128, 129): A(f"v_add_f32 v{r}, v{r}, v{r+2}\n" + split(r))
        A("ds_write_b32 v156, v128\nds_write_b32 v156, v129 offset:1024")
    A("s_waitcnt lgkmcnt(0)\ns_barrier")
    A(f"ds_read_b128 v[{WF}:{WF+3}], v155\nds_read_b128 v[{WF+4}:{WF+7}], v155 offset:1024")
    A("s_waitcnt lgkmcnt(0)")
    for m in range(4):
        c = f"v[{ACC+16*m}:{ACC+16*m+15}]"
        A(f"v_mfma_f32_32x32x16_bf16 {c}, v[{WF+4*(m&1)}:{WF+4*(m&1)+3}], v[{136+4*(m>>1)}:{139+4*(m>>1)}], {c}")
    for b in range(2):
        for half in range(2):
            n = 2 * b + half
            T = 176 + 16 * (n & 1)
            for l in gelu_block(ACC + 32 * b + 8 * half, ACC + 32 * b + 16 + 8 * half, T, 160 + 8 * b): A(l)
            if n == 2: A(f"s_add_u32 s47, s47, {2*57344}")
            A(f"buffer_store_dwordx4 v[{T+8}:{T+11}], v157, {WSR}, s47 offen offset:{512*half} sc1")
    stamp(A, "epi")
    A("s_waitcnt vmcnt(0)\ns_barrier")
    A(f"s_lshl_b32 s57, s{S_RT}, 5\ns_add_u32 s57, s57, s{S_CT}\ns_lshl_b32 s57, s57, 7\ns_add_u32 s57, s57, {FL_H}")
    set_flag(A, 57, 16)
    stamp(A, "flag2")
    for n in range(C.nfast if C.fast else C.nsl): g2_wdma(A, n)

def phase_cf(A):
    W = S_WAVE
    ZL = 0; WL = 65536; TW = 131072; FR = TW + 8192
    D0 = 64; D1 = 128; PK = 192; WW = 224
    FC, FS, FN = 8, 16, 24
    OC, OS, ON = 32, 40, 48
    A("; ---- CF")
    setprio(A, C.prioc)
    A(f"s_lshl_b32 s44, s{S_XCD}, 2\ns_add_u32 s44, s44, s{S_SLOT}\ns_sub_u32 s44, s44, 28    ; cg")
    if not C.wpz:
        for o in wp_gather(): A(o)
        A("s_waitcnt lgkmcnt(0)")
        A(p0_stores(A)[1])
    if C.stage == 1:
        for o in wd_stage(7, f"s_mul_i32 s60, s44, 57344\ns_mul_i32 s61, s{W}, 7168\ns_add_u32 s60, s60, s61", 122880): A(o)
    if C.stage == 3: A(wd_stage(1, WD_ALL, 122880)[0])
    A(f"s_lshl_b32 s46, s{W}, 1\nv_lshrrev_b32 v8, 5, v1\nv_add_u32 v8, s46, v8")
    A("v_and_b32 v9, 3, v8\nv_bfe_u32 v10, v8, 3, 1\nv_lshl_or_b32 v9, v10, 2, v9      ; beta")
    A("s_and_b32 s46, s44, 1\ns_lshl_b32 s46, s46, 3\nv_or_b32 v9, s46, v9         ; k1")
    A("s_lshr_b32 s46, s44, 1\ns_lshl_b32 s47, s46, 5\ns_sub_u32 s48, 0x200, s47\ns_cmp_lt_u32 s46, 8")
    A(f"s_cselect_b32 s49, s47, s48\ns_cselect_b32 s50, 1, -1\ns_sub_u32 s48, s48, 16\ns_cmp_lt_u32 s46, 8\ns_cselect_b32 s48, s47, s48")
    A("s_cmp_eq_u32 s46, 0\ns_cselect_b32 s48, 0x100, s48")
    A("v_mov_b32 v11, s49\nv_mad_i32_i24 v10, v9, s50, v11\nv_mov_b32 v11, s48\nv_cmp_eq_u32 vcc, 0, v9\nv_cndmask_b32 v10, v10, v11, vcc   ; bin")
    A(f"v_mov_b32 v11, {fhex(2.0**-19)}\nv_mov_b32 v12, {fhex(2.0**-20)}\nv_cmp_eq_u32 vcc, 0x100, v10\nv_cndmask_b32 v12, v11, v12, vcc\nv_mov_b32 v13, v12")
    A(f"v_cvt_f32_u32 v10, v10\nv_mul_f32 v10, {fhex(1/512)}, v10")
    A(f"v_bfe_u32 v11, v8, 2, 1\nv_cvt_f32_u32 v11, v11\nv_mul_f32 v11, {fhex(0.25)}, v11")
    A("v_and_b32 v14, 31, v1\nv_lshlrev_b32 v15, 3, v14\nv_cvt_f32_u32 v15, v15\nv_fma_f32 v64, v15, v10, v11")
    A(f"v_fmamk_f32 v72, v10, {fhex(256.0)}, v64\nv_fract_f32 v72, v72")
    for b in (64, 72):
        for j in range(1, 8): A(f"v_fmamk_f32 v{b+j}, v10, {fhex(float(j))}, v{b}")
    for j in range(16): A(f"v_cos_f32 v{64+j}, v{64+j}")
    for j in range(0, 16, 2): A(f"v_pk_mul_f32 v[{64+j}:{65+j}], v[{64+j}:{65+j}], v[12:13]")
    for q in range(8): A(f"v_cvt_pk_bf16_f32 v{64+q}, v{64+2*q}, v{65+2*q}")
    A(f"v_lshrrev_b32 v15, 3, v14\nv_and_b32 v14, 7, v14\nv_lshlrev_b32 v14, 4, v14\nv_lshl_add_u32 v14, v8, 7, v14\nv_lshl_add_u32 v14, v15, 16, v14")
    A(f"s_lshl_b32 s46, s44, 11\ns_add_u32 s46, s46, {WS_G}\ns_add_u32 s47, s46, 0x40000")
    A(f"buffer_store_dwordx4 v[64:67], v14, {WSR}, s46 offen sc1\nbuffer_store_dwordx4 v[68:71], v14, {WSR}, s47 offen sc1")
    A("v_and_b32 v3, 31, v1\nv_lshrrev_b32 v4, 5, v1\nv_lshlrev_b32 v4, 2, v4")
    A(f"s_and_b32 s52, s{W}, 3\ns_lshl_b32 s52, s52, 3\ns_lshr_b32 s53, s{W}, 2\ns_mul_i32 s53, s53, 1536")
    A("v_add_u32 v5, s52, v4")
    for b in range(4):
        A(f"v_add_u32 v6, {b}, v5\nv_mad_u32_u24 v{64+b}, v6, v3, s53")
    def frag(dst, matsel):
        A(f"s_and_b32 s54, s{W}, 1\ns_lshl_b32 s54, s54, 4")
        A(f"s_lshr_b32 s55, s{W}, 1\ns_and_b32 s55, s55, 1\ns_mul_i32 s55, s55, 48")
        if matsel == 0: A(f"s_lshr_b32 s56, s{W}, 2\nv_lshl_add_u32 v7, v3, 1, s56")
        for j in range(8):
            A(f"v_add_u32 v6, s54, v4\nv_add_u32 v6, {8*(j>>2) + (j&3)}, v6")
            if matsel == 0: A(f"v_mad_u32_u24 v{dst+j}, v6, v7, s55")
            else: A(f"v_lshl_add_u32 v6, v6, 1, 1\nv_mad_u32_u24 v{dst+j}, v6, v3, s55")
    frag(80, 0); frag(88, 1)
    cos_batch(A, range(64, 68), 2047, 1.0 / 2048)
    cos_batch(A, range(80, 96), 63, 1.0 / 64)
    A(f"s_lshl_b32 s52, s52, 8\ns_lshr_b32 s53, s{W}, 2\ns_lshl_b32 s53, s53, 10\ns_add_u32 s52, s52, s53\ns_add_u32 s52, s52, {TW}")
    A("v_add_u32 v5, s52, v2\nds_write_b128 v5, v[64:67]")
    for q in range(8): A(f"v_cvt_pk_bf16_f32 v{80+q}, v{80+2*q}, v{81+2*q}")
    A(f"s_lshl_b32 s52, s{W}, 10\ns_add_u32 s52, s52, {FR}\nv_add_u32 v5, s52, v2")
    A("ds_write_b128 v5, v[80:83]")
    Ls = A.label("L_cf_skip")
    A(f"s_cmp_ge_u32 s{W}, 4\ns_cbranch_scc1 {Ls}\nds_write_b128 v5, v[84:87] offset:8192\n{Ls}:")
    A(f"v_add_u32 v56, {TW}, v2\nv_add_u32 v57, {FR}, v2")
    A(f"s_lshl_b32 s52, s{W}, 1\nv_and_b32 v6, 15, v1\nv_xor_b32 v6, s52, v6\nv_lshlrev_b32 v6, 4, v6")
    A("v_lshl_add_u32 v6, v3, 10, v6\nv_lshl_add_u32 v58, v4, 6, v6\nv_xor_b32 v59, 16, v58")
    A(f"v_lshrrev_b32 v5, 2, v3\nv_xor_b32 v6, s{W}, v5\nv_lshlrev_b32 v6, 4, v6\nv_lshl_add_u32 v6, v5, 7, v6\nv_and_b32 v5, 3, v3\nv_lshl_add_u32 v6, v5, 2, v6\nv_lshl_add_u32 v6, v4, 11, v6\nv_add_u32 v7, {WL}, v6")
    A(f"s_waitcnt vmcnt({2 + {1: 7, 3: 1}.get(C.stage, 0)}) lgkmcnt(0)\ns_barrier")
    set_flag(A, 57, 16)
    if not C.wpz:
        A(f"s_sub_u32 s57, s57, {FL_B - FL_W}")
        set_flag(A, 57, 16)
    stamp(A, "fd")
    A(f"v_lshlrev_b32 v6, 7, v3\ns_lshl_b32 s57, s{W}, 12\ns_add_u32 s57, s57, {FL_B}")
    poll(A, [(6, "s57")], 64)
    stamp(A, "rdy1")
    A(f"s_lshl_b32 s48, s44, 16\ns_lshl_b32 s49, s{W}, 13\ns_add_u32 s50, s48, s49")
    def dma64(base, lb):
        return [(f"s_add_u32 s51, s50, {base}\n" if k == 0 else "s_add_u32 s51, s51, 1024\n") +
                f"s_add_u32 m0, s49, {lb + k*1024}\nbuffer_load_dwordx4 v2, {WSR}, s51 offen sc1 {C.nt_z} lds" for k in range(8)]
    for o in dma64(WS_Z, ZL): A(o)
    P = lambda r: f"v[{r}:{r+1}]"
    def load_frags(Cc, S, mat):
        return [f"ds_read_b128 v[{R+4*m}:{R+4*m+3}], v57 offset:{(mat*4+o+m)*1024}" for m in range(2) for (R, o) in ((Cc, 0), (S, 2))]
    def neg_frags(S, N): return [f"v_xor_b32 v{N+q}, 0x80008000, v{S+q}" for q in range(8)]
    def pk(blk, c, m): return PK + 16 * blk + 8 * c + 4 * m
    def acc(D, c, blk): return D + 32 * c + 16 * blk
    def cstage(D, blk, data_is_A, Cc, Sre, Sim):
        L = []
        for (c, seq) in ((0, ((0, Cc), (1, Sre))), (1, ((1, Cc), (0, Sim)))):
            d = acc(D, c, blk); first = True
            for (cc, K) in seq:
                for m in range(2):
                    dat = f"v[{pk(blk,cc,m)}:{pk(blk,cc,m)+3}]"; con = f"v[{K+4*m}:{K+4*m+3}]"
                    a, b = (dat, con) if data_is_A else (con, dat)
                    L.append(f"v_mfma_f32_32x32x16_bf16 v[{d}:{d+15}], {a}, {b}, {0 if first else f'v[{d}:{d+15}]'}")
                    first = False
        return L
    def pack(D, blk):
        return [f"v_cvt_pk_bf16_f32 v{pk(blk,c,0)+q}, v{acc(D,c,blk)+2*q}, v{acc(D,c,blk)+2*q+1}" for c in range(2) for q in range(8)]
    def tw_load():
        return [f"ds_read_b128 v[{WW+16*comp+4*a}:{WW+16*comp+4*a+3}], v56 offset:{a*2048 + comp*1024}" for a in range(4) for comp in range(2)]
    NEG = lambda i: " neg_lo:[%s] neg_hi:[%s]" % ((",".join("1" if j == i else "0" for j in range(3)),) * 2)
    def radix2_tw(conj, extra=()):
        for i in range(0, 16, 2):
            if i % 4 == 2 and extra: A(extra[i // 4])
            er, ei, o_r, oi = acc(D0,0,0)+i, acc(D0,1,0)+i, acc(D0,0,1)+i, acc(D0,1,1)+i
            ur, ui, vr_, vi = acc(D1,0,0)+i, acc(D1,1,0)+i, acc(D1,0,1)+i, acc(D1,1,1)+i
            c0, s0 = P(WW + i), P(WW + 16 + i)
            A(f"v_pk_add_f32 {P(ur)}, {P(er)}, {P(o_r)}\nv_pk_add_f32 {P(vr_)}, {P(er)}, {P(o_r)} neg_lo:[0,1] neg_hi:[0,1]")
            A(f"v_pk_add_f32 {P(ui)}, {P(ei)}, {P(oi)}\nv_pk_add_f32 {P(vi)}, {P(ei)}, {P(oi)} neg_lo:[0,1] neg_hi:[0,1]")
            A(f"v_pk_mul_f32 v[60:61], {P(ur)}, {s0}\nv_pk_mul_f32 v[62:63], {P(vr_)}, {s0}")
            A(f"v_pk_mul_f32 {P(ur)}, {P(ur)}, {c0}\nv_pk_mul_f32 {P(vr_)}, {P(vr_)}, {c0}")
            n0 = NEG(0) if conj else ""; n2 = "" if conj else NEG(2)
            A(f"v_pk_fma_f32 {P(ur)}, {P(ui)}, {s0}, {P(ur)}{n0}\nv_pk_fma_f32 {P(vr_)}, {P(vi)}, {s0}, {P(vr_)}{n0}")
            A(f"v_pk_fma_f32 {P(ui)}, {P(ui)}, {c0}, v[60:61]{n2}\nv_pk_fma_f32 {P(vi)}, {P(vi)}, {c0}, v[62:63]{n2}")
    def wmul(e):
        L = []
        for i in range(0, 16, 2):
            w = WW + 16 * e + i; t = 60 + (i & 2)
            xr, xi, yr, yi = acc(D0,0,e)+i, acc(D0,1,e)+i, acc(D1,0,e)+i, acc(D1,1,e)+i
            L += [f"v_lshlrev_b32 v{t}, 16, v{w}", f"v_lshlrev_b32 v{t+1}, 16, v{w+1}", f"v_and_b32 v{w}, 0xffff0000, v{w}", f"v_and_b32 v{w+1}, 0xffff0000, v{w+1}",
                  ]
            if C.cfpk and not (C.cfpk == 2 and i < 6):
                L += [f"v_pk_mul_f32 {P(yr)}, {P(xr)}, {P(t)}", f"v_pk_mul_f32 {P(yi)}, {P(xi)}, {P(t)}",
                      f"v_pk_fma_f32 {P(yr)}, {P(xi)}, {P(w)}, {P(yr)}{NEG(0)}", f"v_pk_fma_f32 {P(yi)}, {P(xr)}, {P(w)}, {P(yi)}"]
            else:
                for z in range(2): L += [f"v_mul_f32 v{yr+z}, v{xr+z}, v{t+z}", f"v_mul_f32 v{yi+z}, v{xi+z}, v{t+z}"]
                for z in range(2): L += [f"v_fma_f32 v{yr+z}, -v{xi+z}, v{w+z}, v{yr+z}", f"v_fmac_f32 v{yi+z}, v{xr+z}, v{w+z}"]
        return L
    def E(L):
        for l in L: A(l)
    E(load_frags(FC, FS, 0) + load_frags(OC, OS, 2) + tw_load())
    A("s_waitcnt lgkmcnt(8)")
    E(neg_frags(FS, FN) + neg_frags(OS, ON))
    A(f"s_lshl_b32 s52, s{W}, 16\ns_lshl_b32 s53, s44, 9\ns_add_u32 s52, s52, s53\ns_add_u32 s47, s52, {WS_ZP}")
    A(f"s_lshl_b32 s57, s44, 7\ns_add_u32 s57, s57, {FL_C}")
    A("s_waitcnt vmcnt(0)\ns_barrier")
    stamp(A, "go")
    for mu in range(2):
        for c in range(2):
            for m in range(2):
                A(f"ds_read_b128 v[{pk(mu,c,m)}:{pk(mu,c,m)+3}], v{58+c} offset:{ZL + mu*32768 + m*512}")
    wp = dma64(WS_WP, WL)
    def wcheck():
        L = A.label("L_cf_ok")
        A(f"s_waitcnt vmcnt(0)\nv_cmp_ne_u32 vcc, s{S_TAG}, v5\ns_cmp_eq_u64 vcc, 0\ns_cbranch_scc1 {L}")
        poll(A, [(6, "s53")], 5)
        A(f"s_mov_b32 s{S_RDY}, 1\n{L}:")
    if C.wpz:
        A("s_waitcnt lgkmcnt(4)")
        weave(A, cstage(D0, 0, True, FC, FS, FN), wp[:4])
        A("s_waitcnt lgkmcnt(0)")
        weave(A, cstage(D0, 1, True, OC, OS, ON), wp[4:])
        E(load_frags(OC, OS, 1))
        radix2_tw(False)
    else:
        A(f"s_lshl_b32 s53, s{W}, 12\ns_add_u32 s53, s53, {FL_W}\nbuffer_load_dword v5, v6, {WSR}, s53 offen sc1")
        A("s_waitcnt lgkmcnt(4)")
        E(cstage(D0, 0, True, FC, FS, FN))
        A("s_waitcnt lgkmcnt(0)")
        m1 = cstage(D0, 1, True, OC, OS, ON)
        E(m1[:4]); wcheck(); weave(A, m1[4:], wp[:4])
        E(load_frags(OC, OS, 1))
        radix2_tw(False, wp[4:])
    E(pack(D1, 0))
    A("s_waitcnt lgkmcnt(0)")
    weave(A, cstage(D0, 0, False, FC, FS, FN), pack(D1, 1) + neg_frags(OS, ON))
    stamp(A, "main")
    A("s_waitcnt vmcnt(0)\ns_barrier")
    wr = [f"ds_read2st64_b32 {P(WW+16*e+4*a+b)}, v7 offset0:{a*64+b*8+e*4} offset1:{a*64+b*8+e*4+8}" for e in range(2) for a in range(4) for b in (0, 2)]
    E(wr[:8])
    m2 = cstage(D0, 1, False, OC, OS, ON)
    weave(A, m2[:2], wr[8:])
    A("s_waitcnt lgkmcnt(8)")
    weave(A, m2[2:], wmul(0))
    stamp(A, "wrdy")
    E(load_frags(OC, OS, 2))
    E(pack(D1, 0))
    g2_setup(A, 58, 59, 5, 6)
    A("s_waitcnt lgkmcnt(4)")
    weave(A, cstage(D0, 0, True, FC, FN, FS), wmul(1) + pack(D1, 1), 1)
    A("s_waitcnt lgkmcnt(0)")
    E(neg_frags(OS, ON) + tw_load())
    weave(A, cstage(D0, 1, True, OC, ON, OS), g2w_ops(0, 58))
    E(load_frags(OC, OS, 1))
    A("s_waitcnt lgkmcnt(4)")
    radix2_tw(True)
    E(pack(D1, 0))
    A("s_waitcnt lgkmcnt(0)")
    weave(A, cstage(D0, 0, True, FC, FN, FS), pack(D1, 1) + neg_frags(OS, ON))
    stamp(A, "epi")
    adr = (f"s_and_b32 s60, s{W}, 1\ns_lshl_b32 s60, s60, 2\nv_lshrrev_b32 v5, 5, v1\nv_or_b32 v5, s60, v5\n"
           "v_and_b32 v6, 7, v1\nv_xor_b32 v5, v5, v6\nv_lshlrev_b32 v5, 4, v5\nv_lshl_add_u32 v5, v3, 11, v5\n"
           f"s_lshr_b32 s60, s{W}, 1\ns_lshl_b32 s60, s60, 7\ns_add_u32 s60, s60, {WL}\nv_add_u32 v56, s60, v5\nv_xor_b32 v57, 32, v56\n"
           "v_bfe_u32 v5, v1, 2, 1\nv_lshlrev_b32 v5, 2, v5\nv_bfe_u32 v6, v1, 4, 1\nv_lshl_add_u32 v5, v6, 1, v5\nv_bfe_u32 v6, v1, 1, 1\nv_add_u32 v5, v5, v6\n"
           f"v_xor_b32 v5, s{W}, v5\nv_lshlrev_b32 v5, 4, v5\nv_and_b32 v6, 1, v1\nv_lshl_add_u32 v5, v6, 3, v5\n"
           "v_bfe_u32 v6, v1, 3, 1\nv_lshl_add_u32 v5, v6, 7, v5\nv_lshrrev_b32 v6, 5, v1\nv_lshl_add_u32 v5, v6, 9, v5\n"
           f"s_lshl_b32 s60, s{W}, 11\ns_add_u32 s60, s60, {WL}\nv_add_u32 v5, s60, v5\n"
           "v_and_b32 v6, 15, v1\nv_lshlrev_b32 v6, 4, v6\nv_lshrrev_b32 v7, 5, v1\nv_lshl_add_u32 v6, v7, 8, v6\n"
           "v_bfe_u32 v7, v1, 4, 1\nv_lshl_add_u32 v6, v7, 14, v6").split("\n")
    def xw(mu): return [f"ds_write_b128 v{56+m}, v[{pk(mu,c,m)}:{pk(mu,c,m)+3}] offset:{mu*1024 + c*512}" for c in range(2) for m in range(2)]
    def xr_store(mu):
        for n in range(4):
            d = D1 + 16 * mu + 4 * n
            A(f"ds_read_b64_tr_b16 v[{d}:{d+1}], v5 offset:{n*16384 + mu*1024}\nds_read_b64_tr_b16 v[{d+2}:{d+3}], v5 offset:{n*16384 + mu*1024 + 256}")
        for n in range(4):
            d = D1 + 16 * mu + 4 * n
            A(f"s_waitcnt lgkmcnt({6-2*n})")
            A(f"buffer_store_dwordx4 v[{d}:{d+3}], v6, {WSR}, s47 offen sc1")
            A(f"s_add_u32 s47, s47, {0x80000 if n < 3 else (0x8000 - 0x180000) & 0xffffffff}")
    m4 = cstage(D0, 1, True, OC, ON, OS)
    weave(A, m4[:4], adr)
    A("s_barrier")
    weave(A, m4[4:], pack(D0, 0) + xw(0))
    A("s_waitcnt lgkmcnt(0)\ns_barrier")
    stamp(A, "c1")
    xr_store(0)
    E(pack(D0, 1) + xw(1))
    A("s_waitcnt lgkmcnt(0)\ns_barrier")
    xr_store(1)
    stamp(A, "c3")
    A(f"v_mov_b32 v{V_G2W}, v58\nv_mov_b32 v{V_G2X}, v59")
    g2_wdma(A, 1)
    A("s_waitcnt vmcnt(4)\ns_barrier")
    stamp(A, "c5")
    set_flag(A, 57, 16)
    stamp(A, "flag2")
    for n in range(2, C.nfast if C.fast else C.nsl): g2_wdma(A, n)

def phase_g2(A):
    W = S_WAVE
    ACT = 64; WF = 128; ACC = 16; NS = 9
    A("; ---- G2")
    setprio(A, C.prio2)
    srd(A, S_X, P_X, 2097152)
    srd(A, S_B, P_OUT, 2097152)
    A("v_lshlrev_b32 v3, 4, v1")
    A(f"s_mul_i32 s54, s50, 57344\ns_mul_i32 s46, s49, {28*1024}\ns_add_u32 s54, s54, s46\ns_add_u32 s54, s54, {WS_H}")
    if C.rot2: A("s_lshl_b32 s46, s53, 12\ns_add_u32 s54, s54, s46")
    A(f"s_lshl_b32 s57, s50, 14\ns_lshl_b32 s46, s49, 13\ns_add_u32 s57, s57, s46\ns_add_u32 s57, s57, {WS_ZP}")
    A("v_lshrrev_b32 v6, 5, v1\nv_lshlrev_b32 v6, 4, v6\nv_bfe_u32 v7, v1, 4, 1\nv_lshl_add_u32 v6, v7, 2, v6\nv_bfe_u32 v4, v1, 2, 2\nv_add_u32 v6, v6, v4")
    A("v_lshlrev_b32 v6, 7, v6\nv_lshrrev_b32 v4, 1, v4\nv_lshl_or_b32 v4, v7, 1, v4")
    A("v_lshl_add_u32 v6, v4, 5, v6\nv_and_b32 v4, 3, v1\nv_lshl_add_u32 v6, v4, 3, v6")
    A("s_lshl_b32 s46, s49, 14\nv_add_u32 v164, s46, v6")
    for nb in range(1, 4): A(f"v_xor_b32 v{164+nb}, {32*nb}, v164")
    for nb in range(4): A(f"v_add_u32 v{160+nb}, 0x10000, v{164+nb}\nv_add_u32 v{180+nb}, 0x20000, v{164+nb}")
    A("v_bfe_u32 v4, v1, 4, 2\nv_lshlrev_b32 v4, 5, v4\nv_xor_b32 v173, v3, v4")
    A(f"s_lshl_b32 s58, s45, 16\ns_lshl_b32 s46, s49, 15\ns_add_u32 s58, s58, s46\ns_lshl_b32 s46, s48, 12\ns_add_u32 s58, s58, s46\ns_add_u32 s58, s58, {WS_G}")
    A("v_min_u32 v170, 27, v1\nv_lshlrev_b32 v170, 7, v170\nv_and_b32 v172, 3, v1\nv_lshlrev_b32 v172, 7, v172")
    A(f"s_lshr_b32 s59, s44, 2\ns_lshl_b32 s59, s59, 12\ns_add_u32 s59, s59, {FL_H}\ns_lshl_b32 s47, s{W}, 9\ns_add_u32 s47, s47, {FL_C}")
    vm = []
    def act_ops(n):
        L = []
        for k in range(4):
            d = ACT + 16 * (n & 3) + 4 * k
            L.append((("a", n), ("s_mov_b32 s54, s57\n" if (n == 7 and k == 0) else "") +
                      f"buffer_load_dwordx4 v[{d}:{d+3}], v3, {WSR}, s54 offen offset:{1024*k} sc1 {C.nt_h}" + ("\ns_add_u32 s54, s54, 4096" if k == 3 else "") +
                      (f"\ns_add_u32 s53, s53, 1\ns_cmp_eq_u32 s53, 7\ns_cselect_b32 s46, {7*4096}, 0\ns_sub_u32 s54, s54, s46" if (k == 3 and C.rot2 and n < 7) else "")))
        return L
    def w_ops(n): return [(("w", n), o) for o in g2w_ops(n)]
    def emit(op):
        A(op[1]); vm.extend([op[0]] * (op[2] if len(op) > 2 else 1))
    def w_or_dummy(n):
        L = A.label("L_wd"); Le = A.label("L_wd")
        return [(("w", n), f"s_cmp_eq_u32 s63, 0\ns_cbranch_scc1 {L}\n" + "\n".join(g2w_ops(n)) + f"\ns_branch {Le}\n{L}:\n" +
                 "\n".join([f"buffer_load_dword v177, v178, {WSR}, 0 offen"] * 4) + f"\n{Le}:", 4)]
    L = A.label("L_g2_np")
    if C.fast:
        A(f"v_mov_b32 v178, 0\nv_mov_b32 v179, 163836\ns_cmp_lg_u32 s{W}, 0\ns_cbranch_scc1 {L}")
        poll(A, [(170, "s59")], 177, once=True)
        A(f"v_mov_b32 v177, s{S_RDY}\nds_write_b32 v179, v177\ns_waitcnt lgkmcnt(0)")
        A(f"{L}:\ns_barrier\nds_read_b32 v177, v179\ns_waitcnt lgkmcnt(0)\nv_readfirstlane_b32 s63, v177")
        L = A.label("L_g2_np")
        A(f"s_cmp_lg_u32 s63, 0\ns_cbranch_scc1 {L}\ns_barrier")
        for n in range(C.nfast, C.nsl): g2_wdma(A, n)
        L3 = A.label("L_g2_np")
        A(f"s_cmp_lg_u32 s{W}, 0\ns_cbranch_scc1 {L3}\ns_waitcnt vmcnt(0)")
        poll(A, [(170, "s59")], 177)
        A(f"{L3}:\ns_barrier\n{L}:")
    else:
        A(f"s_cmp_lg_u32 s{W}, 0\ns_cbranch_scc1 {L}\ns_waitcnt vmcnt(0)")
        poll(A, [(170, "s59")], 177)
        A(f"{L}:\ns_barrier")
    stamp(A, "hrdy")
    for op in act_ops(0): emit(op)
    A("s_barrier")
    for op in act_ops(1): emit(op)
    def reads(n, k, st):
        slot = n % C.nsl
        va = (164, 164, 160, 160, 180)[slot]
        off = (slot & 1) * 32768 + k * 4096
        r = []
        for nb in range(4):
            d = WF + 16 * st + 4 * nb
            r.append(f"ds_read_b64_tr_b16 v[{d}:{d+1}], v{va+nb} offset:{off}")
            r.append(f"ds_read_b64_tr_b16 v[{d+2}:{d+3}], v{va+nb} offset:{off+1024}")
        return r
    SCHED = {"A": "a2 a3|w4 a4|w5 a5|w6 a6|w7 a7|w8 a8|||", "B": "a2|w4 a3|w5 a4|w6 a5|w7 a6|w8 a7|a8||",
             "C": "a2|a3 w4l|a4 w4h w5l|a5 w5h w6l|a6 w6h|w7 a7|w8 a8||", "D": "a2|a3 w4|a4 w5l|a5 w5h w6l|a6 w6h w7l|a7 w7h w8l|a8 w8h||",
             "P": "a2|a3 w5l|a4 w5h|a5 w6|a6 w7l|a7 w7h w8l|a8 w8h||", "Q": "a2|a3|a4 w5|a5 w6|a6 w7|a7 w8|a8||", "R": "a2|a3 w5l|a4 w5h w6l|a5 w6h|a6 w7|a7 w8l|a8 w8h||",
             "S": "a2|a3 w5l|a4 w5h|a5 w6|a6 w7l|a7 w7h|a8 w8l|w8h|", "T": "a2|a3 w5l|a4 w5h w6l|a5 w6h|a6 w7l|a7 w7h|w8l a8|w8h|",
             "U": "a2 a3l|a3h a4l w5l|a4h a5l w5h|a5h w6|a6 w7l|a7 w7h|a8 w8l|w8h|", "V": "a2|a3 w5l|a4 w5h w6l|a5 w6h|a6 w7|a7 w8l|w8h a8l|a8h|",
             "E": "|a2 w4|a3 w5l|a4 w5h w6l|a5 w6h|a6 w7|a7 w8l|a8 w8h|"}[C.sched]
    SCHED = [x.split() for x in SCHED.split("|")]
    NZ = min(n for n in range(NS) if any(t[1] in "78" for t in SCHED[n]))
    fill = []
    EX = (4 % C.nsl) * 32768 if C.nsl == 5 else 131072
    TB = 0 if C.nsl == 5 else 69632
    A(f"s_lshl_b32 s46, s{W}, 12\ns_add_u32 s46, s46, {EX}\nv_add_u32 v6, s46, v3\nv_xor_b32 v7, 0x4000, v6")
    tail_adr = (f"v_and_b32 v4, 15, v1\nv_mul_u32_u24 v4, 144, v4\nv_lshrrev_b32 v5, 4, v1\nv_lshl_add_u32 v4, v5, 3, v4\n"
                f"s_mul_i32 s60, s48, {16*144}\ns_lshl_b32 s46, s49, 6\ns_add_u32 s60, s60, s46\ns_add_u32 s60, s60, {TB}\nv_add_u32 v4, s60, v4\n"
                f"v_lshrrev_b32 v5, 3, v1\nv_mul_u32_u24 v5, 144, v5\nv_and_b32 v8, 7, v1\nv_lshl_add_u32 v5, v8, 4, v5\ns_mul_i32 s60, s{W}, {8*144}\ns_add_u32 s60, s60, {TB}\nv_add_u32 v5, s60, v5").split("\n")
    for n in range(NS):
        need = [i for i, o in enumerate(vm) if o in (("a", n), ("w", n), ("f", n))]
        A(f"s_waitcnt vmcnt({len(vm) - 1 - max(need)})")
        if n == NZ:
            L = A.label("L_g2_ok")
            A(f"v_cmp_ne_u32 vcc, s{S_TAG}, v176\ns_cmp_eq_u64 vcc, 0\ns_cbranch_scc1 {L}")
            poll(A, [(172, "s47")], 176)
            A(f"s_mov_b32 s{S_RDY}, 1\n{L}:")
        A("s_barrier")
        stamp(A, f"st{n}")
        for r in reads(n, 0, 0): A(r)
        ops = []
        if n == NZ - 1: ops.append((("f", NZ), f"buffer_load_dword v176, v172, {WSR}, s47 offen sc1"))
        if C.fast and C.nfast + n < C.nsl: ops += w_or_dummy(C.nfast + n)
        for tok in SCHED[n]:
            o = w_ops(int(tok[1])) if tok[0] == "w" else act_ops(int(tok[1]))
            if len(tok) == 3: o = o[:2] if tok[2] == "l" else o[2:]
            ops += o
        if n == C.xst:
            ops.append((("x", 0), f"buffer_load_dwordx4 v[240:243], v{V_G2X}, {XR}, s56 offen {C.nt_x2}"))
        if n == 7 and C.ytail:
            for q in range(2): A(f"ds_read_b128 v[{48+4*q}:{51+4*q}], v7 offset:{1024*q}")
            for i in range(8): fill.append(f"v_add_f32 v{48+i}, v{48+i}, v{184+i}")
            for i in range(8): fill.append(f"v_mul_f32 v{192+i}, {fhex(-1.4426950408889634)}, v{48+i}")
            for i in range(8): fill.append(f"v_exp_f32 v{192+i}, v{192+i}")
            for i in range(8): fill.append(f"v_add_f32 v{192+i}, 1.0, v{192+i}")
            for i in range(8): fill.append(f"v_rcp_f32 v{192+i}, v{192+i}")
            for i in range(8): fill.append(f"v_mul_f32 v{48+i}, v{48+i}, v{192+i}")
            fill += tail_adr
        slots = [[] for _ in range(16)]
        for i, op in enumerate(ops): slots[(i * 16) // max(len(ops), 8) if len(ops) > 8 else 2 * i].append(op)
        for k in range(4):
            st = k & 1
            nxt = reads(n, k + 1, st ^ 1) if k < 3 else []
            for nb in range(4):
                if nb % 2 == 0: A(f"s_waitcnt lgkmcnt({4 - 2*nb + len(nxt[0:2*nb])})")
                d = WF + 16 * st + 4 * nb; a = ACT + 16 * (n & 3) + 4 * k
                cb = ACC + (16 if n >= 7 else 0) + 4 * nb
                c = f"v[{cb}:{cb+3}]"
                A(f"v_mfma_f32_16x16x32_bf16 {c}, v[{d}:{d+3}], v[{a}:{a+3}], {0 if (n in (0, 7) and k == 0) else c}")
                for r in nxt[2*nb:2*nb+2]: A(r)
                for op in slots[4 * k + nb]: emit(op)
                if k or n == 8:
                    for _ in range(3):
                        if fill: A(fill.pop(0))
        if n == 6 and C.ytail:
            L1 = A.label("L_g2_y1"); L2 = A.label("L_g2_yj")
            A(f"s_cmp_eq_u32 s49, 1\ns_cbranch_scc1 {L1}")
            for (lab, keep) in ((None, 0), (L1, 8)):
                if lab: A(f"{lab}:")
                for q in range(2): A(f"ds_write_b128 v6, v[{ACC+8-keep+4*q}:{ACC+11-keep+4*q}] offset:{1024*q}")
                for i in range(0, 8, 2): A(f"v_mov_b64 v[{184+i}:{185+i}], v[{ACC+keep+i}:{ACC+keep+i+1}]")
                if not lab: A(f"s_branch {L2}")
            A(f"{L2}:\ns_waitcnt lgkmcnt(0)")
    assert not fill
    stamp(A, "g2m")
    P = lambda r: f"v[{r}:{r+1}]"
    L1 = A.label("L_g2_k1"); L2 = A.label("L_g2_j")
    A(f"s_cmp_eq_u32 s49, 1\ns_cbranch_scc1 {L1}")
    for (lab, keep) in ((None, 0), (L1, 8)):
        if lab: A(f"{lab}:")
        send = 8 - keep
        regs = (ACC + send, ACC + send + 4, ACC + 16 + send, ACC + 20 + send)
        for q in range(2 if C.ytail else 0, 4): A(f"ds_write_b128 v6, v[{regs[q]}:{regs[q]+3}] offset:{1024*q}")
        A("s_waitcnt lgkmcnt(0)\ns_barrier")
        for q in range(2 if C.ytail else 0, 4): A(f"ds_read_b128 v[{48+4*q}:{51+4*q}], v7 offset:{1024*q}")
        if not C.ytail:
            A("s_waitcnt lgkmcnt(2)")
            for i in range(0, 8, 2): A(f"v_pk_add_f32 {P(48+i)}, {P(48+i)}, {P(ACC+keep+i)}")
        A("s_waitcnt lgkmcnt(0)")
        for i in range(0, 8, 2): A(f"v_pk_add_f32 {P(56+i)}, {P(56+i)}, {P(ACC+16+keep+i)}")
        if not lab: A(f"s_branch {L2}")
    A(f"{L2}:")
    if not C.ytail:
        for i in range(8): A(f"v_mul_f32 v{64+i}, {fhex(-1.4426950408889634)}, v{48+i}")
        for i in range(8): A(f"v_exp_f32 v{64+i}, v{64+i}")
        for l in tail_adr: A(l)
        for i in range(8): A(f"v_add_f32 v{64+i}, 1.0, v{64+i}")
        for i in range(8): A(f"v_rcp_f32 v{64+i}, v{64+i}")
        for i in range(0, 8, 2): A(f"v_pk_mul_f32 {P(48+i)}, {P(48+i)}, {P(64+i)}")
    for i in range(0, 8, 2): A(f"v_pk_mul_f32 {P(56+i)}, {P(56+i)}, {P(48+i)}")
    for q in range(4): A(f"v_cvt_pk_bf16_f32 v{8+q}, v{56+2*q}, v{57+2*q}")
    A("ds_write_b64 v4, v[8:9]\nds_write_b64 v4, v[10:11] offset:32")
    A("s_waitcnt vmcnt(0)")
    for q in range(4): A(f"v_lshlrev_b32 v{72+2*q}, 16, v{240+q}\nv_and_b32 v{73+2*q}, 0xffff0000, v{240+q}")
    A("s_waitcnt lgkmcnt(0)\ns_barrier\nds_read_b128 v[8:11], v5\ns_waitcnt lgkmcnt(0)")
    for q in range(4): A(f"v_lshlrev_b32 v{64+2*q}, 16, v{8+q}\nv_and_b32 v{65+2*q}, 0xffff0000, v{8+q}")
    for i in range(0, 8, 2): A(f"v_pk_add_f32 {P(72+i)}, {P(72+i)}, {P(64+i)}")
    for q in range(4): A(f"v_cvt_pk_bf16_f32 v{8+q}, v{72+2*q}, v{73+2*q}")
    A(f"buffer_store_dwordx4 v[8:11], v{V_G2X}, {BR}, s56 offen {C.outf}")
    L = A.label("L_ep")
    A(f"s_cmp_lg_u32 s{S_WG}, 0\ns_cbranch_scc1 {L}\ns_mov_b32 s57, 0")
    set_flag(A, 57, 16)
    A(f"{L}:")

HDR = open("recurrent_scan__spectral_gfnet__geglu_ffn__prompt.s.ref").read().split("; Override")[0]
DOC = r'''; ======================================================================================================
;    makes zero, so the 256 columns that are carried are bins 1..256.
;    (-mean x column sums of the weights) and 1/den is folded into the gelu constants; writes h (bf16).
; CF (32 workgroups, one bin per wave): 2048-point column FFT (32 x 2 x 32), times W, inverse FFT, all in
; Hand-offs between workgroups go through d_ws: write-through (sc1) stores, s_waitcnt vmcnt, barrier, then one
; workgroup 0 stores the tag to ws[0] at the end, so flags of an earlier launch never match.  Spins are bounded.
; ======================================================================================================
'''
def gen(**kw):
    for k, v in kw.items(): setattr(C, k, v)
    A = Asm()
    A(HDR.rstrip())
    A("; @launch grid=(256,1,1) block=(512,1,1) lds=163840")
    A(DOC.rstrip())
    A('.amdgcn_target "amdgcn-amd-amdhsa--gfx950"\n.text')
    kernel_begin(A, KN)
    prologue(A)
    phase_p0(A)
    phase_g1(A)
    A("s_branch L_g2\nL_cf:")
    phase_cf(A)
    A("L_g2:")
    phase_g2(A)
    if C.delay:
        A(f"s_memtime s[70:71]\ns_waitcnt lgkmcnt(0)\nL_dly:\ns_memtime s[72:73]\ns_waitcnt lgkmcnt(0)\ns_sub_u32 s72, s72, s70\ns_cmp_lt_u32 s72, {C.delay}\ns_cbranch_scc1 L_dly")
    if C.echo:
        A(f"s_memrealtime s[72:73]\ns_waitcnt lgkmcnt(0)")
        if C.echo == "end": A("s_mov_b32 s84, s72")
        A(f"s_sub_u32 s84, s84, s82\ns_mul_i32 s84, s84, {C.echo_k}")
        A(f"L_echo:\ns_memrealtime s[74:75]\ns_waitcnt lgkmcnt(0)\ns_sub_u32 s74, s74, s72\ns_cmp_lt_u32 s74, s84\ns_cbranch_scc1 L_echo")
    if C.skew >= 0:
        A(f"s_cmp_lg_u32 s{S_XCD}, {C.skew}\ns_cbranch_scc1 L_done\nv_mov_b32 v2, 0\nbuffer_load_dword v3, v2, {WSR}, 0 offen offset:512 sc1\ns_waitcnt vmcnt(0)\nv_readfirstlane_b32 s84, v3")
        A(f"s_memrealtime s[72:73]\ns_waitcnt lgkmcnt(0)\ns_sub_u32 s84, s82, s84\ns_add_u32 s84, s84, 50\ns_max_i32 s84, s84, 0\ns_min_u32 s84, s84, 1000\ns_mul_i32 s84, s84, 4")
        A(f"L_sk:\ns_memrealtime s[74:75]\ns_waitcnt lgkmcnt(0)\ns_sub_u32 s74, s74, s72\ns_cmp_lt_u32 s74, s84\ns_cbranch_scc1 L_sk")
    if C.dbgclk:
        A(f"s_cmp_lg_u32 s{S_WG}, 0\ns_cbranch_scc1 L_done\ns_cmp_lg_u32 s{S_WAVE}, 0\ns_cbranch_scc1 L_done")
        A("s_memtime s[74:75]\ns_memrealtime s[76:77]\ns_waitcnt lgkmcnt(0)\ns_sub_u32 s74, s74, s80\ns_sub_u32 s76, s76, s82")
        srd(A, S_A, P_DBG, 256)
        A(f"v_mov_b32 v2, 0\nv_mov_b32 v4, s74\nv_mov_b32 v5, s76\nbuffer_store_dwordx2 v[4:5], v2, {AR}, 0 offen")
    diag_end(A)
    A("L_done:\ns_endpgm")
    A('.section .rodata,"a"\n.p2align 6')
    A(descriptor(KN, 256, 102, 256))
    return hazard.fix(A.text(), verbose=False)
if __name__ == "__main__":
    kw = dict(a.split("=") for a in sys.argv[2:])
    kw = {k: (int(v) if v.isdigit() and k not in ("perm", "g2map") else v.replace("_", "")) for k, v in kw.items()}
    open(sys.argv[1], "w").write(gen(**kw))
```

```python
import struct, sys
from asmgen import *
import hazard

WS_FL = 0x0
FL_W = 0x1000
FL_B = 0x40000
FL_H = 0x11000
FL_C = 0x19000
WS_ST = 0x0100000
WS_Z  = 0x0300000
WS_WP = 0x0500000
WS_G  = 0x0700000
WS_ZP = 0x0800000
WS_H  = 0x0A00000
WS_DIAG = 0x1200000
WS_SIZE = 0x1400000
TAGK = 0x3C6EF35F

def fhex(x): return "0x%08x" % struct.unpack("<I", struct.pack("<f", x))[0]
S_WS, S_X, S_A, S_B = 4, 8, 12, 16
S_WAVE, S_WG, S_TAG, S_SLOT = 20, 21, 22, 23
S_PTR = 24
P_X, P_WR, P_WI, P_BX, P_WG, P_WU, P_WD, P_OUT, P_DBG, P_WS = [S_PTR + 2 * i for i in range(10)]
S_RT, S_CT, S_WOFF, S_RDY, S_XCD, S_SPIN = 64, 65, 66, 67, 68, 69
S_WLDS = 3
WSR = f"s[{S_WS}:{S_WS+3}]"; XR = f"s[{S_X}:{S_X+3}]"; AR = f"s[{S_A}:{S_A+3}]"; BR = f"s[{S_B}:{S_B+3}]"
S_C = 96; CR = f"s[{S_C}:{S_C+3}]"
LDS_P0 = 98304
SLOT = 49152
LDS_CS = 147456
LDS_SINK = 152576
LDS_ST = 160768

class Cfg:
    diag = False
    g1map = "col"
    g2map = "84"
    nt_x = ""; nt_x2 = ""; nt_w = ""; nt_a = ""; nt_z = ""; nt_h = ""; nt_g1w = ""; nt_g1w0 = ""
    E1, E2 = 2, 3
    D = 8
    xst = 6
    rep = 0
    npre = 2
    cfw2 = 0
    cfx = 1
    zsplit = 0
    dly1 = 0
    dly2 = 0
    early = 0
    stage = 0
    stk = 5
    wpz = 1
    skew = -1
    fast = 0
    nfast = 2
    onepass = 0
    prio = 9
    prio0 = 9
    prioe = 9
    prio2 = 9
    prioc = 9
    psleep = 0
    nsl = 5
    ytail = 0
    csm = "m"
    rt = 0
    fbgo = 1
    a0pos = 1
    g1pos = 2
    halfpf = 0
    cfpk = 0
    wmax = 0
    sched = "R"
    sj = 4
    wj = 0
    wd = 2
    outf = ""
    cfstage = 0
    cfw0 = 1
    zfirst = 1
    fbj = 0
    a0early = 0
    bulk = 1
    cpf = 1
    rotc = 0
    rotr = 1
    perm = "01452367"
    j0early = 1
    delay = 0
    echo = ""
    echo_k = 1
    dbgclk = 0
    la2 = 3
    dbg = ""
    sc_act = "sc1"
    rot2 = 0
    nepi = 0
    pf_start, pf_step = 24, 2
    stamps = "x,p0end,go,main,epi,flag2,hrdy,st0,st8"
C = Cfg()

def stamp(A, name):
    if C.echo == name: A("s_memrealtime s[84:85]")
    if not C.diag: return
    names = ["entry"] + C.stamps.split(",") + ["end"]
    assert len(names) <= 11
    if name in names:
        n = names.index(name)
        A(f"{'s_memrealtime' if C.rt else 's_memtime'} s[{74+2*n}:{75+2*n}]")
def diag_end(A):
    if not C.diag: return
    A("s_waitcnt vmcnt(0)")
    stamp(A, "end")
    A("s_memrealtime s[72:73]\ns_waitcnt lgkmcnt(0)")
    A(f"s_lshl_b32 s3, s{S_WG}, 10\ns_lshl_b32 s44, s{S_WAVE}, 7\ns_add_u32 s3, s3, s44\ns_add_u32 s3, s3, {WS_DIAG}")
    A("v_mov_b32 v2, 0")
    for i, sreg in enumerate([70, 72, S_RDY] + [74 + 2*k for k in range(11)]):
        A(f"v_mov_b32 v3, s{sreg}\nbuffer_store_dword v3, v2, {WSR}, s3 offen offset:{4*i}")

def srd(A, s, ptr, nbytes):
    A(f"s_mov_b32 s{s}, s{ptr}\ns_and_b32 s{s+1}, s{ptr+1}, 0xffff\ns_mov_b32 s{s+2}, {nbytes}\ns_mov_b32 s{s+3}, 0x00020000")
def cos_batch(A, regs, mask, scale):
    for r in regs: A(f"v_and_b32 v{r}, {mask}, v{r}")
    for r in regs: A(f"v_cvt_f32_u32 v{r}, v{r}")
    for r in regs: A(f"v_mul_f32 v{r}, {fhex(scale)}, v{r}")
    for r in regs: A(f"v_cos_f32 v{r}, v{r}")
def wave_sum(A, v, sdst):
    for mod in ("row_shr:1 row_mask:0xf", "row_shr:2 row_mask:0xf", "row_shr:4 row_mask:0xf", "row_shr:8 row_mask:0xf",
                "row_bcast:15 row_mask:0xa", "row_bcast:31 row_mask:0xc"):
        A(f"v_add_f32_dpp v{v}, v{v}, v{v} {mod} bank_mask:0xf")
    A(f"v_readlane_b32 s{sdst}, v{v}, 63")
def set_flag(A, soff_expr_sreg, vt=3, anywave=False):
    L = A.label("L_fl")
    if not anywave: A(f"s_cmp_lg_u32 s{S_WAVE}, 0\ns_cbranch_scc1 {L}")
    A(f"v_mov_b32 v{vt}, s{S_TAG}\nv_lshlrev_b32 v{vt+1}, 2, v1\ns_mov_b32 exec_hi, 0")
    A(f"buffer_store_dword v{vt}, v{vt+1}, {WSR}, s{soff_expr_sreg} offen sc1")
    A("s_mov_b64 exec, -1")
    A(f"{L}:")
def set_flag8(A, sreg, vt):
    if not C.rep: return set_flag(A, sreg, vt)
    L = A.label("L_fl")
    A(f"s_cmp_lg_u32 s{S_WAVE}, 0\ns_cbranch_scc1 {L}")
    A(f"v_lshrrev_b32 v{vt+4}, 3, v1\nv_lshlrev_b32 v{vt+4}, 15, v{vt+4}\nv_and_b32 v{vt}, 7, v1\nv_lshl_or_b32 v{vt+4}, v{vt}, 4, v{vt+4}")
    for q in range(4): A(f"v_mov_b32 v{vt+q}, s{S_TAG}")
    A(f"buffer_store_dwordx4 v[{vt}:{vt+3}], v{vt+4}, {WSR}, s{sreg} offen sc1\n{L}:")
def poll(A, groups, vt, once=False):
    L = A.label("L_poll"); Lx = A.label("L_pollx")
    if not once: A(f"s_mov_b32 s{S_SPIN}, 0\n{L}:")
    for n, (va, so) in enumerate(groups):
        A(f"buffer_load_dword v{vt+n}, v{va}, {WSR}, {so} offen sc1")
    A("s_waitcnt vmcnt(0)")
    for n in range(1, len(groups)):
        A(f"v_xor_b32 v{vt+n}, s{S_TAG}, v{vt+n}")
    A(f"v_xor_b32 v{vt}, s{S_TAG}, v{vt}")
    for n in range(1, len(groups)):
        A(f"v_or_b32 v{vt}, v{vt}, v{vt+n}")
    A(f"v_cmp_ne_u32 vcc, 0, v{vt}")
    if once:
        A(f"s_cmp_eq_u64 vcc, 0\ns_cselect_b32 s{S_RDY}, 1, 0")
    else:
        A(f"s_cmp_eq_u64 vcc, 0\ns_cbranch_scc1 {Lx}")
        if C.psleep: A(f"s_sleep {C.psleep}")
        A(f"s_add_u32 s{S_SPIN}, s{S_SPIN}, 1\ns_cmp_lt_u32 s{S_SPIN}, 0x200000\ns_cbranch_scc1 {L}")
        A(f"{Lx}:")

V_WDMA, V_ADE, V_ADO = 146, 147, 148
S_ST0 = 2
S_AOFF = 58
def g1_stage(A, j, sreg):
    A(f"s_add_u32 s{sreg}, s{S_ST0}, {int(C.perm[j])}\ns_and_b32 s{sreg}, s{sreg}, 7")
def g1w_ops(j):
    sl = (j % 3) * SLOT
    nt = C.nt_g1w0 if j == 0 else C.nt_g1w
    if "W" in C.dbg: j = 0
    return [f"s_add_u32 s60, s{S_ST0}, {int(C.perm[j])}\ns_and_b32 s60, s60, 7\ns_mul_i32 s60, s60, {64*3584}\ns_add_u32 s60, s60, s{S_WOFF}\n"
            f"s_add_u32 m0, s{S_WLDS}, {sl}\nbuffer_load_dwordx4 v{V_WDMA}, {AR}, s60 offen {nt} lds",
            f"s_add_u32 m0, s{S_WLDS}, {sl + 8192}\nbuffer_load_dwordx4 v{V_WDMA}, {BR}, s60 offen {nt} lds"]
def g1a_ops(j):
    sl = (j % 3) * SLOT + 16384
    if "A" in C.dbg: j = 0
    L = []
    for i in range(4):
        pre = (f"s_add_u32 s61, s{S_ST0}, {int(C.perm[j])}\ns_and_b32 s61, s61, 7\ns_lshl_b32 s61, s61, 7\ns_add_u32 s61, s61, s{S_AOFF}\ns_lshl_b32 s59, s{S_WLDS}, 2\n" if i == 0
               else f"s_add_u32 s61, s61, {(4 if i & 1 else 12) * 1024}\n")
        L.append(pre + f"s_add_u32 m0, s59, {sl + i*1024}\nbuffer_load_dwordx4 v{V_ADO if i & 1 else V_ADE}, {XR}, s61 offen {C.nt_a} lds")
    return L

def prologue(A):
    if C.dbgclk or C.echo or C.skew >= 0: A("s_memtime s[80:81]\ns_memrealtime s[82:83]\ns_memrealtime s[84:85]")
    if C.diag:
        for k in range(11): A(f"s_mov_b32 s{74+2*k}, 0")
        A("s_memrealtime s[70:71]"); stamp(A, "entry")
    A("s_cmp_ge_u32 s2, 256\ns_cbranch_scc1 L_done")
    A(f"s_load_dwordx16 s[{S_PTR}:{S_PTR+15}], s[0:1], 0")
    A(f"s_load_dwordx4 s[{S_PTR+16}:{S_PTR+19}], s[0:1], 64")
    A("v_lshrrev_b32 v2, 6, v0\nv_and_b32 v1, 63, v0")
    A(f"v_readfirstlane_b32 s{S_WAVE}, v2")
    A(f"s_mov_b32 s{S_WG}, s2\ns_and_b32 s{S_XCD}, s2, 7\ns_lshr_b32 s{S_SLOT}, s2, 3\ns_mov_b32 s{S_RDY}, 0")
    code_prefetch(A, KN, "L_done", 112)
    if C.g1map == "col":
        A(f"s_mul_i32 s44, s{S_XCD}, 28\ns_add_u32 s44, s44, s{S_SLOT}\ns_and_b32 s{S_RT}, s44, 7\ns_lshr_b32 s{S_CT}, s44, 3")
    else:
        A(f"s_and_b32 s44, s{S_XCD}, 1\ns_lshl_b32 s44, s44, 2\ns_and_b32 s45, s{S_SLOT}, 3\ns_add_u32 s{S_RT}, s44, s45")
        A(f"s_lshr_b32 s44, s{S_XCD}, 1\ns_mul_i32 s44, s44, 7\ns_lshr_b32 s45, s{S_SLOT}, 2\ns_add_u32 s{S_CT}, s44, s45")
    A(f"s_mul_i32 s44, s{S_CT}, {C.rotc}\ns_mul_i32 s45, s{S_RT}, {C.rotr}\ns_add_u32 s44, s44, s45\ns_and_b32 s{S_ST0}, s44, 7")
    W = S_WAVE
    A(f"s_lshr_b32 s44, s{S_WG}, 2          ; r2")
    A(f"s_and_b32 s45, s{S_WG}, 3           ; mh")
    A(f"s_lshr_b32 s46, s45, 1\ns_lshl_b32 s46, s46, 4")
    A(f"s_and_b32 s47, s45, 1\ns_lshl_b32 s47, s47, 2\ns_add_u32 s46, s46, s47")
    A(f"s_lshr_b32 s47, s{W}, 2\ns_lshl_b32 s47, s47, 3\ns_add_u32 s46, s46, s47")
    A(f"s_and_b32 s47, s{W}, 3\ns_add_u32 s46, s46, s47     ; r1")
    A("s_lshl_b32 s46, s46, 6\ns_add_u32 s46, s46, s44\ns_lshl_b32 s56, s46, 10")
    A("v_lshlrev_b32 v2, 4, v1")
    A("s_waitcnt lgkmcnt(0)")
    srd(A, S_X, P_X, 2097152)
    A(f"buffer_load_dwordx4 v[4:7], v2, {XR}, s56 offen {C.nt_x}")
    A(f"s_load_dword s{S_TAG}, s[{P_WS}:{P_WS+1}], 0")
    srd(A, S_WS, P_WS, WS_SIZE)
    if C.skew >= 0:
        A(f"s_cmp_lg_u32 s{S_WG}, 0\ns_cbranch_scc1 L_sk0\nv_mov_b32 v8, s82\nv_mov_b32 v9, 0\nbuffer_store_dword v8, v9, {WSR}, 0 offen offset:512 sc1\ns_waitcnt vmcnt(0)\nL_sk0:")

def code_prefetch(A, start, end, vt):
    Lh = A.label("L_cph")
    A(f"s_getpc_b64 s[60:61]\n{Lh}:")
    A(f"s_mul_i32 s59, s{S_SLOT}, 1280\ns_mul_i32 s57, s{S_WAVE}, 160\ns_add_u32 s59, s59, s57\nv_and_b32 v{vt}, 15, v1\nv_lshl_add_u32 v{vt}, v{vt}, 4, s59\nv_min_u32 v{vt}, {end} - {start} - 16, v{vt}")
    A(f"s_add_u32 s60, s60, {start} - {Lh}\ns_addc_u32 s61, s61, {'-1' if start == KN else '0'}")
    A(f"v_mov_b32 v{vt+1}, s61\nv_add_co_u32 v{vt}, vcc, s60, v{vt}\nv_addc_co_u32 v{vt+1}, vcc, 0, v{vt+1}, vcc")
    A(f"global_load_dwordx4 v[{vt+2}:{vt+5}], v[{vt}:{vt+1}], off")

def gemm_only(A, fn):
    L = A.label("L_go")
    A(f"s_cmp_ge_u32 s{S_SLOT}, 28\ns_cbranch_scc1 {L}")
    fn()
    A(f"{L}:")
def wait_role(A, n_gemm, n_cf):
    L = A.label("L_wr"); L2 = A.label("L_wr")
    A(f"s_cmp_ge_u32 s{S_SLOT}, 28\ns_cbranch_scc1 {L}\ns_waitcnt vmcnt({n_gemm})\ns_branch {L2}\n{L}:\ns_waitcnt vmcnt({n_cf})\n{L2}:")

def setprio(A, mode):
    if mode == 9: return
    A("s_setprio 0")
    if mode:
        L = A.label("L_pr")
        A(f"s_cmp_{'lt' if mode == 1 else 'ge'}_u32 s{S_WAVE}, 4\ns_cbranch_scc1 {L}\ns_setprio 1\n{L}:")

def wd_stage(n, first, lds):
    B = Asm(); srd(B, S_C, P_WD, 1792 * 1024)
    L = ["\n".join(B.lines) + f"\n{first}\ns_add_u32 m0, s{S_WLDS}, {lds}\nbuffer_load_dwordx4 v2, {CR}, s60 offen lds"]
    for k in range(1, n): L.append(f"s_add_u32 s60, s60, 1024\nbuffer_load_dwordx4 v2, {CR}, s60 offen lds")
    return L
WD_ALL = f"s_mul_i32 s60, s{S_WG}, 7168\ns_min_u32 s61, s{S_WAVE}, 6\ns_lshl_b32 s61, s61, 10\ns_add_u32 s60, s60, s61"

def phase_p0(A):
    setprio(A, C.prio0)
    W = S_WAVE
    ZL = 2 * SLOT; XNL = 2 * SLOT + 16384; CL = XNL + 8192; WL = 151552; STL = WL + 8320
    B1RE, B1IM, A2RE, A2IM, S2RE, S2IM, TWC, TWS = 64, 68, 72, 76, 80, 84, 88, 92
    T = 32
    srd(A, S_A, P_WG, 512 * 3584)
    srd(A, S_B, P_WU, 512 * 3584)
    A("v_lshrrev_b32 v8, 3, v1")
    A("v_bfe_u32 v9, v1, 4, 1\nv_lshlrev_b32 v9, 2, v9\nv_and_b32 v10, 7, v1\nv_xor_b32 v9, v9, v10")
    A(f"v_mul_u32_u24 v11, 3584, v8\nv_lshl_add_u32 v{V_WDMA}, v9, 4, v11")
    A(f"s_mul_i32 s47, s{W}, {8*3584}\ns_lshl_b32 s52, s{S_CT}, 7\ns_add_u32 s{S_WOFF}, s47, s52\ns_lshl_b32 s{S_WLDS}, s{W}, 10")
    def w_flat():
        A(f"s_cmp_lt_u32 s{W}, 4\ns_cselect_b32 s{S_C}, s{P_WR}, s{P_WI}\ns_cselect_b32 s{S_C+1}, s{P_WR+1}, s{P_WI+1}")
        A(f"s_and_b32 s{S_C+1}, s{S_C+1}, 0xffff\ns_mov_b32 s{S_C+2}, {2048*514}\ns_mov_b32 s{S_C+3}, 0x00020000")
        A(f"s_mul_i32 s53, s{S_WG}, 4112\ns_and_b32 s54, s{W}, 3\ns_lshl_b32 s54, s54, 10\ns_add_u32 s55, s53, s54")
        A(f"s_lshr_b32 s61, s{W}, 2\ns_mul_i32 s61, s61, 4160\ns_add_u32 s61, s61, {WL}\ns_add_u32 m0, s61, s54")
        A(f"buffer_load_dwordx4 v2, {CR}, s55 offen {C.nt_w} lds")
        A("s_add_u32 m0, s61, 4096\ns_add_u32 s53, s53, 4096\ns_mov_b64 exec, 1")
        A(f"buffer_load_dwordx4 v2, {CR}, s53 offen {C.nt_w} lds")
        A("s_mov_b64 exec, -1")
    def bulk():
        L = A.label("L_bk"); L2 = A.label("L_bk")
        A(f"s_cmp_ge_u32 s{S_SLOT}, 28\ns_cbranch_scc1 {L}")
        for o in g1w_ops(0): A(o)
        A(f"{L}:")
        w_flat()
    if C.bulk == 0: bulk()
    A("v_lshrrev_b32 v9, 2, v8\nv_lshlrev_b32 v9, 3, v9\nv_and_b32 v8, 3, v8\nv_add_u32 v8, v8, v9\nv_lshlrev_b32 v8, 10, v8")
    A(f"v_lshrrev_b32 v9, 4, v1\nv_xor_b32 v9, v9, v10\nv_lshl_add_u32 v{V_ADE}, v9, 4, v8\nv_xor_b32 v{V_ADO}, 64, v{V_ADE}")
    A(f"s_lshl_b32 s47, s{S_RT}, 3\ns_add_u32 s47, s47, s{W}\ns_lshl_b32 s{S_AOFF}, s47, 15")
    if C.a0early == 1: gemm_only(A, lambda: [A(o) for o in g1a_ops(0)])
    M0 = "s[62:63]"
    A("v_and_b32 v30, 15, v1\nv_lshrrev_b32 v29, 4, v1")
    A(f"v_cmp_eq_u32 {M0}, 0, v30\nv_cmp_gt_u32 vcc, 8, v30")
    A("v_cvt_f32_u32 v26, v30\nv_cvt_f32_u32 v27, v29\nv_mul_f32 v27, 4.0, v27      ; k, 4g")
    Lc = A.label("L_c"); cases = [A.label("L_c") for _ in range(7)]
    A("s_mov_b32 s47, 0")
    for n in range(1, 7):
        A(f"s_cmp_eq_u32 s{W}, {n}\ns_cbranch_scc1 {cases[n]}")
    A(f"; wave 0 (and 7): B1RE\nv_mul_f32 v20, {fhex(1/32)}, v26\nv_mov_b32 v22, 0\ns_mov_b32 s47, {fhex(16.0)}\nv_mov_b32 v21, v20\nv_mov_b32 v23, 0\ns_branch {Lc}")
    A(f"{cases[1]}:\nv_mul_f32 v20, {fhex(1/32)}, v26\nv_mov_b32 v22, {fhex(0.25)}\nv_cndmask_b32 v20, v20, 0.5, {M0}\nv_cndmask_b32 v22, v22, 0, {M0}")
    A(f"s_mov_b32 s47, {fhex(16.0)}\nv_mov_b32 v21, v20\nv_mov_b32 v23, v22\ns_branch {Lc}")
    A(f"{cases[2]}:\nv_mul_f32 v20, {fhex(1/16)}, v26\nv_mov_b32 v22, 0\nv_mov_b32 v23, {fhex(0.75)}\nv_mov_b32 v21, v20\ns_branch {Lc}")
    A(f"{cases[3]}:\nv_mul_f32 v20, {fhex(1/16)}, v26\nv_cndmask_b32 v23, 0.5, 0, vcc\nv_add_f32 v22, {fhex(0.25)}, v23\nv_mov_b32 v21, v20\ns_branch {Lc}")
    for n in (4, 5):
        A(f"{cases[n]}:\nv_mul_f32 v20, {fhex(1/16)}, v26\nv_cndmask_b32 v21, v20, 0.5, {M0}\nv_sub_f32 v24, {fhex(31/32)}, v20")
        A("v_cndmask_b32 v20, 0, v21, vcc\nv_cndmask_b32 v21, v24, 0, vcc")
        if n == 4: A(f"v_mov_b32 v24, {fhex(0.25)}\nv_cndmask_b32 v22, v24, 0, vcc\nv_cndmask_b32 v23, 0, v24, vcc")
        else: A(f"v_mov_b32 v22, {fhex(0.25)}\nv_mov_b32 v23, v22")
        A(f"s_branch {Lc}")
    A(f"{cases[6]}:\nv_mul_f32 v20, {fhex(1/512)}, v26\nv_mov_b32 v22, 0\nv_mov_b32 v23, {fhex(0.75)}\nv_mov_b32 v21, v20")
    A(f"{Lc}:")
    A("v_fma_f32 v22, v27, v20, v22\nv_add_f32 v24, s47, v27\nv_fma_f32 v23, v24, v21, v23")
    for (b, v, o) in ((22, 20, T), (23, 21, T + 4)):
        A(f"v_cos_f32 v{o}, v{b}\nv_add_f32 v{o+1}, v{b}, v{v}\nv_fma_f32 v{o+2}, v{v}, 2.0, v{b}\nv_fmamk_f32 v{o+3}, v{v}, {fhex(3.0)}, v{b}")
        for q in (1, 2, 3): A(f"v_cos_f32 v{o+q}, v{o+q}")
    A(f"s_add_u32 s47, s{S_WLDS}, {CL}\nv_add_u32 v24, s47, v2")
    L6 = A.label("L_c6"); L7 = A.label("L_c7")
    A(f"s_cmp_eq_u32 s{W}, 6\ns_cbranch_scc1 {L6}\ns_cmp_eq_u32 s{W}, 7\ns_cbranch_scc1 {L7}")
    for q in range(4): A(f"v_cvt_pk_bf16_f32 v{T+q}, v{T+2*q}, v{T+2*q+1}")
    A(f"ds_write_b128 v24, v[{T}:{T+3}]\ns_branch {L7}")
    A(f"{L6}:\nds_write_b128 v24, v[{T}:{T+3}]\nds_write_b128 v24, v[{T+4}:{T+7}] offset:1024\n{L7}:")
    A(f"s_add_u32 s61, s{S_WLDS}, {XNL}")
    A("v_add_u32 v96, s61, v2\nv_lshl_add_u32 v97, v1, 3, s61")
    A(f"v_add_u32 v108, {CL}, v2")
    A(f"v_lshlrev_b32 v100, 11, v29\nv_lshl_add_u32 v100, v30, 5, v100\ns_lshl_b32 s61, s{W}, 1\ns_add_u32 s61, s61, {ZL}")
    A("v_add_u32 v100, s61, v100")
    A(f"s_waitcnt lgkmcnt(0)\ns_barrier\ns_add_u32 s{S_TAG}, s{S_TAG}, {TAGK}")
    for n in range(8): A(f"ds_read_b128 v[{64+4*n}:{67+4*n}], v108 offset:{1024*n}")
    if C.a0early == 2: gemm_only(A, lambda: [A(o) for o in g1a_ops(0)])
    if C.bulk == 1: bulk()
    A(f"v_lshlrev_b32 v101, 4, v0\nv_add_u32 v101, {ZL}, v101")
    A("s_and_b32 s61, s44, 15\nv_and_b32 v103, 15, v0\nv_xor_b32 v102, s61, v103\nv_lshlrev_b32 v102, 4, v102")
    A("v_lshrrev_b32 v12, 4, v0             ; cg")
    A("v_lshl_add_u32 v102, v12, 16, v102")
    A(f"s_lshl_b32 s46, s{S_WG}, 8\ns_add_u32 s45, s46, {WS_Z}\ns_add_u32 s46, s46, {WS_WP}")
    A("v_bfe_u32 v13, v0, 4, 4\nv_and_b32 v12, 15, v0\nv_lshlrev_b32 v14, 5, v13\nv_add_u32 v20, v14, v12\nv_sub_u32 v15, 0x200, v14")
    A("v_cmp_eq_u32 vcc, 0, v12\nv_cndmask_b32 v21, v12, 16, vcc\nv_sub_u32 v15, v15, v21\nv_cmp_gt_u32 vcc, 8, v13\nv_cndmask_b32 v20, v15, v20, vcc")
    A("v_and_b32 v12, 255, v0\nv_mov_b32 v15, 0x100\nv_cmp_eq_u32 vcc, 0, v12\nv_cndmask_b32 v20, v20, v15, vcc      ; bin")
    A(f"s_lshr_b32 s61, s{W}, 2\ns_mul_i32 s60, s61, {4*514}\ns_add_u32 s60, s60, {WL}\nv_lshl_add_u32 v127, v20, 1, s60")
    A(f"s_lshl_b32 s60, s{S_WG}, 1\ns_add_u32 s60, s60, s61\ns_and_b32 s60, s60, 7\nv_and_b32 v13, 7, v0\nv_xor_b32 v13, s60, v13\nv_lshlrev_b32 v13, 4, v13")
    A("v_lshrrev_b32 v12, 3, v12\nv_lshl_add_u32 v103, v12, 16, v13\ns_lshl_b32 s61, s61, 7\ns_add_u32 s46, s46, s61")
    A(f"s_lshl_b32 s57, s{S_WG}, 7\ns_add_u32 s57, s57, {FL_B}")
    A(f"v_lshlrev_b32 v126, 3, v1\nv_and_b32 v13, 63, v126\nv_add_u32 v99, {STL}, v13\ns_lshl_b32 s55, s{S_WG}, 7\ns_add_u32 s55, s55, {WS_ST}")
    A("v_mov_b32 v3, v102")
    if C.g1pos == 0: g1_setup(A)
    A("; ---- P0: layernorm")
    stamp(A, "consts")
    if C.bulk < 2: wait_role(A, 4, 2)
    else:
        A("s_waitcnt vmcnt(0)"); bulk()
    stamp(A, "x")
    if C.stage == 2: A(wd_stage(1, WD_ALL, 131072)[0])
    if C.halfpf:
        L = A.label("L_hp")
        A(f"s_add_u32 s60, s{S_SLOT}, 4\ns_and_b32 s61, s{S_XCD}, 1\ns_cselect_b32 s61, 4, 28\ns_sub_u32 s60, s60, s61\ns_cmp_ge_u32 s60, 4\ns_cbranch_scc1 {L}")
        A(f"s_add_u32 s60, s{S_ST0}, 4\ns_and_b32 s60, s60, 7\ns_mul_i32 s60, s60, {64*3584}\ns_add_u32 s60, s60, s{S_WOFF}\ns_add_u32 m0, s{S_WLDS}, 131072")
        A(f"buffer_load_dwordx4 v{V_WDMA}, {AR}, s60 offen {C.nt_g1w0} lds\nbuffer_load_dwordx4 v{V_WDMA}, {BR}, s60 offen {C.nt_g1w0} lds\n{L}:")
    for q in range(4):
        A(f"v_lshlrev_b32 v{T+2*q}, 16, v{4+q}\nv_and_b32 v{T+2*q+1}, 0xffff0000, v{4+q}")
    if C.onepass:
        A(f"v_readfirstlane_b32 s61, v{T}")
        for q in range(8): A(f"v_subrev_f32 v{T+16+q}, s61, v{T+q}")
        A(f"v_pk_add_f32 v[{T+8}:{T+9}], v[{T+16}:{T+17}], v[{T+18}:{T+19}]\nv_pk_add_f32 v[{T+10}:{T+11}], v[{T+20}:{T+21}], v[{T+22}:{T+23}]")
        A(f"v_pk_mul_f32 v[{T+12}:{T+13}], v[{T+16}:{T+17}], v[{T+16}:{T+17}]\nv_pk_mul_f32 v[{T+14}:{T+15}], v[{T+18}:{T+19}], v[{T+18}:{T+19}]")
        A(f"v_pk_add_f32 v[{T+8}:{T+9}], v[{T+8}:{T+9}], v[{T+10}:{T+11}]")
        A(f"v_pk_fma_f32 v[{T+12}:{T+13}], v[{T+20}:{T+21}], v[{T+20}:{T+21}], v[{T+12}:{T+13}]\nv_pk_fma_f32 v[{T+14}:{T+15}], v[{T+22}:{T+23}], v[{T+22}:{T+23}], v[{T+14}:{T+15}]")
        A(f"v_add_f32 v{T+8}, v{T+8}, v{T+9}\nv_pk_add_f32 v[{T+12}:{T+13}], v[{T+12}:{T+13}], v[{T+14}:{T+15}]\nv_mov_b32 v{T+9}, {fhex(1.0/512)}\nv_add_f32 v{T+12}, v{T+12}, v{T+13}")
        for mod in ("row_shr:1 row_mask:0xf", "row_shr:2 row_mask:0xf", "row_shr:4 row_mask:0xf", "row_shr:8 row_mask:0xf", "row_bcast:15 row_mask:0xa", "row_bcast:31 row_mask:0xc"):
            A(f"v_add_f32_dpp v{T+8}, v{T+8}, v{T+8} {mod} bank_mask:0xf\nv_add_f32_dpp v{T+12}, v{T+12}, v{T+12} {mod} bank_mask:0xf")
        A(f"v_readlane_b32 s60, v{T+8}, 63\nv_readlane_b32 s53, v{T+12}, 63")
        A(f"v_mul_f32 v{T+11}, s60, v{T+9}\nv_mul_f32 v{T+9}, s53, v{T+9}\nv_add_f32 v{T+10}, s61, v{T+11}\nv_fma_f32 v{T+9}, -v{T+11}, v{T+11}, v{T+9}\nv_max_f32 v{T+9}, 0, v{T+9}")
        A(f"v_cvt_pk_bf16_f32 v{T+10}, v{T+10}, v{T+10}\nv_lshlrev_b32 v{T+10}, 16, v{T+10}")
        for q in range(8): A(f"v_sub_f32 v{T+q}, v{T+q}, v{T+10}")
        for q in range(4): A(f"v_cvt_pk_bf16_f32 v{T+16+q}, v{T+2*q}, v{T+2*q+1}")
    else:
        A(f"v_pk_add_f32 v[{T+8}:{T+9}], v[{T}:{T+1}], v[{T+2}:{T+3}]\nv_pk_add_f32 v[{T+10}:{T+11}], v[{T+4}:{T+5}], v[{T+6}:{T+7}]")
        A(f"v_pk_add_f32 v[{T+8}:{T+9}], v[{T+8}:{T+9}], v[{T+10}:{T+11}]\nv_add_f32 v{T+8}, v{T+8}, v{T+9}")
        wave_sum(A, T + 8, 60)
        A(f"v_mov_b32 v{T+9}, {fhex(1.0/512)}\nv_mul_f32 v{T+9}, s60, v{T+9}")
        A(f"v_cvt_pk_bf16_f32 v{T+10}, v{T+9}, v{T+9}")
        for q in range(8): A(f"v_sub_f32 v{T+16+q}, v{T+q}, v{T+9}")
        A(f"v_lshlrev_b32 v{T+10}, 16, v{T+10}")
        A(f"v_mul_f32 v{T+8}, v{T+16}, v{T+16}\nv_mul_f32 v{T+11}, v{T+17}, v{T+17}")
        for q in range(2, 8, 2):
            A(f"v_fmac_f32 v{T+8}, v{T+16+q}, v{T+16+q}\nv_fmac_f32 v{T+11}, v{T+17+q}, v{T+17+q}")
        A(f"v_add_f32 v{T+8}, v{T+8}, v{T+11}")
        fill = [f"v_sub_f32 v{T+q}, v{T+q}, v{T+10}" for q in range(8)] + [f"v_cvt_pk_bf16_f32 v{T+16+q}, v{T+2*q}, v{T+2*q+1}" for q in range(4)]
        for n, mod in enumerate(("row_shr:1 row_mask:0xf", "row_shr:2 row_mask:0xf", "row_shr:4 row_mask:0xf", "row_shr:8 row_mask:0xf",
                    "row_bcast:15 row_mask:0xa", "row_bcast:31 row_mask:0xc")):
            A(fill[2*n]); A(fill[2*n+1])
            A(f"v_add_f32_dpp v{T+8}, v{T+8}, v{T+8} {mod} bank_mask:0xf")
        A(f"v_mov_b32 v{T+9}, {fhex(1.0/512)}")
        A(f"v_readlane_b32 s60, v{T+8}, 63")
    for q in range(2):
        A(f"v_lshlrev_b32 v{T+2*q}, 16, v{T+16+q}\nv_and_b32 v{T+2*q+1}, 0xffff0000, v{T+16+q}")
    if not C.onepass: A(f"v_mul_f32 v{T+9}, s60, v{T+9}")
    A(f"v_cvt_pk_bf16_f32 v{T+9}, v{T+9}, v{T+9}\nv_lshlrev_b32 v{T+9}, 16, v{T+9}")
    A(f"v_add_f32 v{T+9}, {fhex(1e-5)}, v{T+9}")
    A(f"v_cvt_pk_bf16_f32 v{T+9}, v{T+9}, v{T+9}\nv_lshlrev_b32 v{T+9}, 16, v{T+9}")
    A(f"v_sqrt_f32 v{T+9}, v{T+9}")
    A(f"v_lshlrev_b32 v{T+4}, 16, v{T+18}")
    A(f"v_cvt_pk_bf16_f32 v{T+9}, v{T+9}, v{T+9}\nv_lshlrev_b32 v{T+9}, 16, v{T+9}")
    A(f"v_rcp_f32 v{T+9}, v{T+9}")
    A(f"v_and_b32 v{T+5}, 0xffff0000, v{T+18}\nv_lshlrev_b32 v{T+6}, 16, v{T+19}\nv_and_b32 v{T+7}, 0xffff0000, v{T+19}")
    for q in range(8): A(f"v_mul_f32 v{T+q}, v{T+9}, v{T+q}")
    for q in range(4): A(f"v_cvt_pk_bf16_f32 v{4+q}, v{T+2*q}, v{T+2*q+1}")
    stamp(A, "ln")
    A("ds_write_b128 v96, v[4:7]")
    A(f"v_lshrrev_b32 v18, 16, v{T+10}\nv_or_b32 v18, v18, v{T+10}\nv_xor_b32 v18, 0x80008000, v18\nv_mov_b32 v19, v{T+9}")
    A(f"s_lshl_b32 s61, s{W}, 3\ns_add_u32 s61, s61, {STL}\nv_mov_b32 v14, s61\nds_write_b64 v14, v[18:19]")
    A("s_waitcnt lgkmcnt(0)")
    A("ds_read_b64_tr_b16 v[8:9], v97\nds_read_b64_tr_b16 v[10:11], v97 offset:512")
    if C.a0pos == 0: gemm_only(A, lambda: [A(o) for o in g1a_ops(0)])
    stamp(A, "iss1")
    A("s_waitcnt lgkmcnt(0)")
    A(f"v_mfma_f32_16x16x32_bf16 v[{T}:{T+3}], v[8:11], v[{B1RE}:{B1RE+3}], 0")
    A(f"v_mfma_f32_16x16x32_bf16 v[{T+4}:{T+7}], v[8:11], v[{B1IM}:{B1IM+3}], 0")
    for i in range(0, 4, 2):
        A(f"v_pk_mul_f32 v[{T+8+i}:{T+9+i}], v[{T+i}:{T+i+1}], v[{TWC+i}:{TWC+i+1}]\nv_pk_mul_f32 v[{T+12+i}:{T+13+i}], v[{T+4+i}:{T+5+i}], v[{TWC+i}:{TWC+i+1}]")
    for i in range(0, 4, 2):
        A(f"v_pk_fma_f32 v[{T+8+i}:{T+9+i}], v[{T+4+i}:{T+5+i}], v[{TWS+i}:{TWS+i+1}], v[{T+8+i}:{T+9+i}]")
        A(f"v_pk_fma_f32 v[{T+12+i}:{T+13+i}], v[{T+i}:{T+i+1}], v[{TWS+i}:{TWS+i+1}], v[{T+12+i}:{T+13+i}] neg_lo:[1,0,0] neg_hi:[1,0,0]")
    for q in range(4): A(f"v_cvt_pk_bf16_f32 v{8+q}, v{T+8+2*q}, v{T+9+2*q}")
    A(f"v_mfma_f32_16x16x32_bf16 v[{T}:{T+3}], v[{A2RE}:{A2RE+3}], v[8:11], 0")
    A(f"v_mfma_f32_16x16x32_bf16 v[{T+4}:{T+7}], v[{A2IM}:{A2IM+3}], v[8:11], 0")
    A(f"v_mfma_f32_16x16x32_bf16 v[{T+8}:{T+11}], v[{S2RE}:{S2RE+3}], v[8:11], 0")
    A(f"v_mfma_f32_16x16x32_bf16 v[{T+12}:{T+15}], v[{S2IM}:{S2IM+3}], v[8:11], 0")
    for i in range(8): A(f"v_cndmask_b32 v{T+i}, v{T+i}, v{T+8+i}, {M0}")
    for i in range(4): A(f"v_cvt_pk_bf16_f32 v{T+i}, v{T+i}, v{T+4+i}")
    for i in range(4):
        A(f"ds_write_b16 v100, v{T+i} offset:{512*i}\nds_write_b16_d16_hi v100, v{T+i} offset:{512*i+16}")
    stamp(A, "fft")
    A("s_mov_b32 s62, s46\ns_mov_b32 s63, s55\nv_mov_b32 v30, v127\nv_mov_b32 v17, v126\nv_mov_b32 v28, v103")
    if C.a0pos == 1: gemm_only(A, lambda: [A(o) for o in g1a_ops(0) + (g1w_ops(1) + g1a_ops(1) if C.early == 1 else [])])
    if C.g1pos == 1: g1_setup(A)
    if C.early == 2: gemm_only(A, lambda: [A(o) for o in g1w_ops(1) + g1a_ops(1)])
    stamp(A, "pre2")
    wait_role(A, 6 if C.early else 4 if C.wpz else 63, 0)
    A("s_waitcnt lgkmcnt(0)\ns_barrier")
    stamp(A, "b2")
    A("ds_read_b128 v[20:23], v101\nds_read_b64 v[18:19], v99")
    if C.a0pos == 2: gemm_only(A, lambda: [A(o) for o in g1a_ops(0)])
    if C.wpz:
        for o in wp_gather(): A(o)
    if C.early:
        A(f"s_cmp_ge_u32 s{S_SLOT}, 28\ns_cbranch_scc1 L_cf")
        return
    A(f"s_waitcnt lgkmcnt({8 if C.wpz else 0})")
    zs = p0_stores(A)
    A(zs[0]); A(zs[2])
    if C.wpz:
        A("s_waitcnt lgkmcnt(0)"); A(zs[1])
    stamp(A, "p0end")
    A(f"s_cmp_ge_u32 s{S_SLOT}, 28\ns_cbranch_scc1 L_cf")
    if C.a0pos == 3:
        for o in g1a_ops(0): A(o)
        if C.g1pos == 3: g1_setup(A)
    pre = g1w_ops(1) + g1a_ops(1)
    for o in pre[:C.npre]: A(o)
    if C.g1pos == 2: g1_setup(A)
    if C.fbgo:
        A(f"s_waitcnt vmcnt({C.npre})\ns_barrier")
        set_flag8(A, 57, 8)
        for o in pre[C.npre:]: A(o)
        A(f"s_sub_u32 s57, s57, {FL_B - FL_W}")
    else:
        L = A.label("L_w0"); L2 = A.label("L_w0")
        A(f"s_cmp_eq_u32 s{W}, 0\ns_cbranch_scc1 {L}\ns_waitcnt vmcnt(7)\ns_branch {L2}\n{L}:\ns_waitcnt vmcnt(8)\n{L2}:\ns_barrier")

def wp_gather():
    return [f"ds_read_u16 v{24+q}, v30 offset:{514*q}\nds_read_u16 v{4+q}, v30 offset:{4160+514*q}" for q in range(4)]
def p0_stores(A):
    a = f"buffer_store_dwordx4 v[20:23], v3, {WSR}, s45 offen sc1"
    L = A.label("L_p0_st")
    c = f"s_cmp_lg_u32 s{S_WAVE}, 0\ns_cbranch_scc1 {L}\ns_mov_b64 exec, 0xffff\nbuffer_store_dwordx2 v[18:19], v17, {WSR}, s63 offen sc1\ns_mov_b64 exec, -1\n{L}:"
    b = "\n".join(f"v_lshl_or_b32 v{24+q}, v{4+q}, 16, v{24+q}" for q in range(4)) + f"\nbuffer_store_dwordx4 v[24:27], v28, {WSR}, s62 offen sc1"
    if "z" in C.dbg: return [f"buffer_load_dword v20, v2, {WSR}, 0 offen", f"buffer_load_dword v20, v2, {WSR}, 0 offen", c]
    if "y" in C.dbg: return [a, f"buffer_load_dword v20, v2, {WSR}, 0 offen"]
    return [a, b, c]

def wd_prefetch_ops(A):
    srd(A, S_C, P_WD, 1792 * 1024)
    A(f"s_lshl_b32 s100, s{S_SLOT}, 16\ns_lshl_b32 s101, s{S_WAVE}, 13\ns_add_u32 s100, s100, s101")
    if C.g2map == "48":
        A(f"v_mov_b32 v159, v2\ns_mov_b32 s101, s{S_XCD}"); n, sh = 8, 10
    else:
        A(f"v_and_b32 v159, 31, v1\nv_lshlrev_b32 v159, 4, v159\nv_lshrrev_b32 v158, 5, v1\nv_lshl_add_u32 v159, v158, 10, v159")
        A(f"s_and_b32 s101, s{S_XCD}, 1\ns_lshl_b32 s101, s101, 9\ns_add_u32 s100, s100, s101\ns_lshr_b32 s101, s{S_XCD}, 1"); n, sh = 4, 11
    return [f"s_add_u32 m0, s{S_WLDS}, {LDS_SINK}\ns_lshl_b32 s60, s101, {sh}\ns_add_u32 s60, s60, s100\n"
            f"buffer_load_dwordx4 v159, {CR}, s60 offen lds\ns_add_u32 s101, s101, 1\ns_and_b32 s101, s101, {n-1}"] * n

V_G2W = 13
V_G2X = 244
def g2_setup(A, vw=V_G2W, vx=V_G2X, t0=14, t1=15):
    W = S_WAVE
    if C.g2map == "48":
        A(f"s_lshl_b32 s44, s{S_XCD}, 2\ns_and_b32 s45, s{S_SLOT}, 3\ns_add_u32 s44, s44, s45\ns_lshr_b32 s45, s{S_SLOT}, 2")
    else:
        A(f"s_lshr_b32 s44, s{S_XCD}, 1\ns_lshl_b32 s44, s44, 3\ns_and_b32 s45, s{S_SLOT}, 7\ns_add_u32 s44, s44, s45")
        A(f"s_and_b32 s45, s{S_XCD}, 1\ns_lshl_b32 s45, s45, 2\ns_lshr_b32 s46, s{S_SLOT}, 3\ns_add_u32 s45, s45, s46")
    A(f"s_and_b32 s48, s{W}, 3\ns_lshr_b32 s49, s{W}, 2")
    A("s_lshl_b32 s50, s44, 2\ns_add_u32 s50, s50, s48       ; rb16")
    srd(A, S_A, P_WD, 1792 * 1024)
    A(f"v_lshrrev_b32 v{vw}, 3, v1\nv_bfe_u32 v{t0}, v1, 4, 2\nv_lshlrev_b32 v{t0}, 1, v{t0}\nv_and_b32 v{t1}, 7, v1\nv_xor_b32 v{t0}, v{t0}, v{t1}")
    A(f"v_lshlrev_b32 v{vw}, 10, v{vw}\nv_lshl_add_u32 v{vw}, v{t0}, 4, v{vw}")
    A(f"s_lshl_b32 s46, s48, 15\ns_lshl_b32 s51, s45, 7\ns_add_u32 s51, s51, s46\ns_mul_i32 s55, s49, {896*1024}\ns_add_u32 s51, s51, s55")
    A("s_lshl_b32 s46, s48, 12\ns_lshl_b32 s55, s49, 14\ns_add_u32 s55, s55, s46")
    if C.rot2:
        if C.g2map == "48": A("s_cmp_eq_u32 s45, 7\ns_cselect_b32 s52, 0, s45")
        else: A(f"s_and_b32 s52, s45, 3\ns_mul_i32 s52, s52, {C.rot2}")
        A("s_mov_b32 s53, s52\ns_lshl_b32 s46, s52, 17\ns_add_u32 s51, s51, s46")
    A(f"v_lshrrev_b32 v{t0}, 3, v1\nv_and_b32 v{vx}, 3, v{t0}\nv_lshrrev_b32 v{t0}, 2, v{t0}\nv_lshl_or_b32 v{vx}, v{t0}, 3, v{vx}")
    A(f"v_lshlrev_b32 v{vx}, 10, v{vx}\nv_and_b32 v{t1}, 7, v1\nv_lshl_add_u32 v{vx}, v{t1}, 4, v{vx}")
    A(f"s_and_b32 s56, s{W}, 6\ns_lshl_b32 s56, s56, 3\ns_and_b32 s46, s{W}, 1\ns_lshl_b32 s46, s46, 2\ns_add_u32 s56, s56, s46")
    A("s_lshl_b32 s46, s44, 6\ns_add_u32 s56, s56, s46\ns_lshl_b32 s56, s56, 10\ns_lshl_b32 s46, s45, 7\ns_add_u32 s56, s56, s46")
def g2w_ops(n, vw=V_G2W):
    L = []
    for k in range(4):
        if n < 7:
            L.append(f"s_add_u32 m0, s55, {(n % C.nsl)*32768 + k*1024}\ns_add_u32 s52, s51, {n*131072 + k*8192}\nbuffer_load_dwordx4 v{vw}, {AR}, s52 offen lds")
        else:
            L.append(f"s_add_u32 m0, s55, {(n % C.nsl)*32768}\n" + f"buffer_load_dwordx4 v173, {WSR}, s58 offen offset:{1024*k} sc1 lds" + ("\ns_add_u32 s58, s58, 16384" if k == 3 else ""))
    return L
def g2_wdma(A, n):
    for o in g2w_ops(n): A(o)
def weave(A, mf, fill, skip=0):
    if C.wmax and len(fill) > C.wmax * (len(mf) - skip):
        k = 0
        for i, m in enumerate(mf):
            A(m)
            if i >= skip:
                for f in fill[k:k + C.wmax]: A(f)
                k += C.wmax
        for f in fill[k:]: A(f)
        return
    n = len(mf) - skip; k = 0
    for i, m in enumerate(mf):
        A(m)
        if i >= skip:
            e = (len(fill) * (i - skip + 1) + n - 1) // n
            for f in fill[k:e]: A(f)
            k = e

def gelu_block(g, u, T, K):
    P = lambda r: f"v[{r}:{r+1}]"
    L = []
    for n in range(0, 8, 2): L.append(f"v_pk_mul_f32 {P(T+n)}, {P(g+n)}, {P(g+n)}")
    for n in range(0, 8, 2): L.append(f"v_pk_fma_f32 {P(T+n)}, {P(T+n)}, {P(K)}, {P(K+2)}")
    for n in range(0, 8, 2): L.append(f"v_pk_mul_f32 {P(T+n)}, {P(T+n)}, {P(g+n)}")
    for n in range(8): L.append(f"v_exp_f32 v{T+n}, v{T+n}")
    for n in range(0, 8, 2): L.append(f"v_pk_mul_f32 {P(T+8+n)}, {P(g+n)}, {P(u+n)}")
    for n in range(0, 8, 2): L.append(f"v_pk_fma_f32 {P(T+n)}, {P(T+n)}, {P(K+4)}, {P(K+4)}")
    for n in range(8): L.append(f"v_rcp_f32 v{T+n}, v{T+n}")
    for n in range(0, 8, 2): L.append(f"v_pk_mul_f32 {P(T+n)}, {P(T+n)}, {P(T+8+n)}")
    for q in range(4): L.append(f"v_cvt_pk_bf16_f32 v{T+8+q}, v{T+2*q}, v{T+2*q+1}")
    return L

def g1_setup(A):
    W = S_WAVE; AD = 208
    A(f"s_and_b32 s48, s{W}, 3\ns_lshr_b32 s49, s{W}, 2")
    A("v_lshrrev_b32 v8, 5, v1\nv_lshlrev_b32 v11, 3, v8\nv_bfe_u32 v9, v1, 2, 2\nv_add_u32 v11, v11, v9\nv_lshlrev_b32 v11, 7, v11")
    A("v_and_b32 v10, 3, v1\nv_lshl_add_u32 v11, v10, 3, v11\nv_bfe_u32 v10, v1, 4, 1\nv_lshl_add_u32 v11, v10, 5, v11")
    A(f"v_lshrrev_b32 v9, 1, v9\nv_xor_b32 v9, s49, v9\nv_lshl_add_u32 v12, v9, 6, v11")
    A("v_and_b32 v9, 31, v1\nv_bfe_u32 v10, v1, 1, 3\nv_xor_b32 v10, v10, v8\nv_lshlrev_b32 v10, 4, v10\nv_lshl_add_u32 v10, v9, 7, v10")
    A(f"s_lshl_b32 s50, s48, 13\ns_add_u32 s50, s50, 16384\nv_add_u32 v10, s50, v10")
    for k in range(4):
        A(f"s_add_u32 s50, s48, {k}\ns_and_b32 s50, s50, 3\ns_lshl_b32 s52, s50, 5\nv_xor_b32 v{AD+4+k}, s52, v10\ns_lshl_b32 s52, s50, 11\nv_add_u32 v{AD+k}, s52, v12")
    for sl in (1, 2):
        for n in range(8): A(f"v_add_u32 v{AD+8*sl+n}, {sl*SLOT}, v{AD+n}")
    if C.csm == "v":
        for q in range(4): A(f"v_mov_b32 v{128+q}, 0")
    else:
        A("v_and_b32 v12, 15, v1\nv_bfe_u32 v11, v1, 4, 1\nv_mov_b32 v233, 0x3f803f80\nv_cmp_eq_u32 vcc, v11, v12\nv_cndmask_b32 v232, 0, v233, vcc")
        for q in range(1, 4): A(f"v_mov_b32 v{232+q}, v232")
        for q in range(8): A(f"v_mov_b32 v{128+q}, 0")
    A("v_and_b32 v157, 15, v1\nv_lshlrev_b32 v157, 4, v157\nv_lshl_add_u32 v157, v8, 8, v157")
    A("v_bfe_u32 v11, v1, 4, 1\nv_mul_u32_u24 v11, 57344, v11\nv_add_u32 v157, v157, v11")
    A(f"s_lshl_b32 s50, s{S_RT}, 3\ns_lshl_b32 s51, s48, 1\ns_add_u32 s50, s50, s51")
    A(f"s_mul_i32 s47, s50, {2*57344}\ns_lshl_b32 s52, s{S_CT}, 11\ns_add_u32 s47, s47, s52\ns_lshl_b32 s52, s49, 10\ns_add_u32 s47, s47, s52\ns_add_u32 s47, s47, {WS_H}")
    A(f"s_lshr_b32 s51, s{S_RT}, 2\ns_lshl_b32 s51, s51, 1\ns_and_b32 s52, s{S_RT}, 1\ns_add_u32 s51, s51, s52\ns_lshl_b32 s51, s51, 7\ns_add_u32 s51, s51, {FL_B}")
    A(f"s_lshl_b32 s52, s{W}, 12\ns_add_u32 s51, s51, s52\ns_lshl_b32 s50, s{S_RT}, 4\ns_and_b32 s50, s50, 32\ns_add_u32 s50, s50, s51\ns_add_u32 s50, s50, {WS_ST - FL_B}")
    if C.rep: A(f"s_lshl_b32 s52, s{S_XCD}, 15\ns_add_u32 s51, s51, s52")
    A("v_and_b32 v149, 7, v1\nv_lshlrev_b32 v149, 9, v149\nv_bfe_u32 v153, v1, 1, 3\nv_lshlrev_b32 v153, 9, v153\nv_and_b32 v11, 1, v1\nv_lshl_or_b32 v153, v11, 4, v153")
    A("v_and_b32 v154, 0x13, v9\nv_bfe_u32 v11, v9, 2, 1\nv_lshl_or_b32 v154, v11, 3, v154\nv_bfe_u32 v11, v9, 3, 1\nv_lshl_or_b32 v154, v11, 2, v154")
    A(f"s_lshl_b32 s52, s48, 3\ns_add_u32 s52, s52, {LDS_ST}\nv_lshl_add_u32 v154, v154, 5, s52")
    if C.csm == "v": A(f"s_lshl_b32 s52, s49, 11\ns_add_u32 s52, s52, {LDS_CS}\nv_add_u32 v155, s52, v2\ns_lshl_b32 s52, s48, 2\nv_add_u32 v156, s52, v155")
    else: A(f"s_lshl_b32 s52, s49, 11\ns_add_u32 s52, s52, {LDS_CS}\nv_lshl_add_u32 v155, v9, 4, s52\ns_lshl_b32 s52, s48, 2\nv_add_u32 v156, s52, v155")

def phase_g1(A):
    W = S_WAVE
    ACC = 64; WF = 32; AD = 208
    vm = [("w", 1)] * 2 + [("a", 1)] * 4
    wps = p0_stores(A)[1]
    zst = p0_stores(A); zst = [zst[2] + "\n" + zst[0], zst[1]]
    zst = zst + []
    def reads(kk, st):
        j, k = kk // 4, kk % 4
        wa = AD + 8 * (j % 3) + k; aa = wa + 4; d = WF + 16 * st
        return [f"ds_read_b64_tr_b16 v[{d}:{d+1}], v{wa} offset:0", f"ds_read_b64_tr_b16 v[{d+2}:{d+3}], v{wa} offset:512",
                f"ds_read_b128 v[{d+8}:{d+11}], v{aa}",
                f"ds_read_b64_tr_b16 v[{d+4}:{d+5}], v{wa} offset:8192", f"ds_read_b64_tr_b16 v[{d+6}:{d+7}], v{wa} offset:8704",
                f"ds_read_b128 v[{d+12}:{d+15}], v{aa} offset:4096"]
    def younger(ops):
        return len(vm) - 1 - max(i for i, o in enumerate(vm) if o in ops)
    for _ in range(C.dly1): A("s_sleep 16")
    stamp(A, "go")
    setprio(A, C.prio)
    if C.wj == 0 and not C.wpz:
        for o in wp_gather(): A(o)
    for r in reads(0, 0): A(r)
    pfo = wd_prefetch_ops(A); npf = len(pfo)
    pf = 0
    fill = []
    K1 = -2.0 * 0.7978845608028654 * 1.4426950408889634
    for kk in range(32):
        j, k = kk // 4, kk % 4
        st = kk & 1
        if k == 3 and kk < 31:
            A(f"s_waitcnt vmcnt({younger([('w', j + 1), ('a', j + 1), ('f', j + 1)])}) lgkmcnt(0)\ns_barrier")
            stamp(A, f"g{j+1}")
            if C.early and j == C.fbj: set_flag8(A, 57, 8)
            if j == 0 and not C.fbgo and not C.early:
                set_flag(A, 57, 16)
                A(f"s_sub_u32 s57, s57, {FL_B - FL_W}")
            if j + 1 == C.wj and not C.wpz:
                for o in wp_gather(): A(o)
            if j + 1 == C.wj + C.wd and not C.wpz: set_flag(A, 57, 16)
        if kk == 4 * C.sj - 1:
            L = A.label("L_g1_ok")
            A(f"v_cmp_ne_u32 vcc, s{S_TAG}, v16\ns_cmp_eq_u64 vcc, 0\ns_cbranch_scc1 {L}")
            poll(A, [(149, "s51")], 16)
            A(f"{L}:")
            A(f"s_lshl_b32 s52, s{W}, 8\ns_add_u32 m0, s52, {LDS_ST}\ns_mov_b64 exec, 0xffff\nbuffer_load_dwordx4 v153, {WSR}, s50 offen sc1 lds\ns_mov_b64 exec, -1")
            vm.append(("f", C.sj + 2))
        if kk == 27:
            A("ds_read_b64 v[150:151], v154\nds_read_b64 v[152:153], v154 offset:1024")
        if kk == 28:
            for b in range(2):
                m, r, K = 150 + 2 * b, 151 + 2 * b, 160 + 8 * b
                if C.csm == "m": fill += ["v_cmp_gt_u32 vcc, 32, v1", "s_nop 0", f"v_cndmask_b32 v{m}, 0, v{m}, vcc"]
                fill += [f"v_mov_b32 v{136+4*b+q}, v{m}" for q in range(4)]
                fill += (f"v_mul_f32 v{K+6}, v{r}, v{r}\nv_mul_f32 v{K+2}, {fhex(K1)}, v{r}\nv_rcp_f32 v{K+4}, v{K+6}\nv_mul_f32 v{K}, {fhex(0.044715)}, v{K+6}\n"
                         f"v_mul_f32 v{K}, v{K}, v{K+2}\nv_mov_b32 v{K+3}, v{K+2}\nv_mov_b32 v{K+5}, v{K+4}\nv_mov_b32 v{K+1}, v{K}").split("\n")
        if kk == C.stk + 1 and C.stage == 3: pass
        if kk == 24:
            B = Asm(); g2_setup(B); fill += [l for l in B.lines if not l.startswith(";")]
        if kk == 30 and C.csm == "m":
            for r in (128, 129, 132, 133): fill += f"v_cvt_pk_bf16_f32 v16, v{r}, v{r}\nv_lshlrev_b32 v16, 16, v16\nv_sub_f32 v16, v{r}, v16\nv_cvt_pk_bf16_f32 v{r}, v{r}, v16".split("\n")
        nxt = reads(kk + 1, st ^ 1) if kk < 31 else []
        ops = []
        full = lambda jj: [(("w", jj), o) for o in g1w_ops(jj)] + [(("a", jj), o) for o in g1a_ops(jj)]
        if C.early and j == 0:
            allo = [(("f", C.fbj + 1), o) for o in zst] + full(2)[2:]
            ops += (allo[:2], allo[2:4], allo[4:5], allo[5:])[k]
        elif C.early and j == 1:
            ops += (full(2)[:2] + full(3))[2 * k:2 * k + 2]
        elif j + 2 < 8:
            if k == 0: ops += [(("w", j + 2), o) for o in g1w_ops(j + 2)]
            ops.append((("a", j + 2), g1a_ops(j + 2)[k]))
        if kk == 4 * C.wj and not C.wpz: ops.insert(0, (("f", C.wj + C.wd), wps))
        if kk == C.stk and C.stage == 3: ops.append((("p", 0), wd_stage(1, WD_ALL.replace("s61", "s53"), LDS_SINK)[0]))
        if kk == 4 * C.sj - 5:
            ops.append((("f", C.sj), f"buffer_load_dword v16, v149, {WSR}, s51 offen sc1"))
        d = WF + 16 * st
        for m, (wo, ao) in enumerate(((0, 8), (4, 8), (0, 12), (4, 12))):
            if m < 3 and not (k == 3 and kk < 31):
                A(f"s_waitcnt lgkmcnt({(3, 1, 0)[m] + len(nxt[0:2*m])})")
            c = f"v[{ACC+16*m}:{ACC+16*m+15}]"
            if "S" in C.dbg:
                for z in range(2):
                    cc = f"v[{ACC+16*m+8*(kk&1)+4*z}:{ACC+16*m+8*(kk&1)+4*z+3}]"
                    A(f"v_mfma_f32_16x16x32_bf16 {cc}, v[{d+wo}:{d+wo+3}], v[{d+ao}:{d+ao+3}], {cc if kk > 1 else 0}")
            else:
                A(f"v_mfma_f32_32x32x16_bf16 {c}, v[{d+wo}:{d+wo+3}], v[{d+ao}:{d+ao+3}], {c if kk else 0}")
            for r in nxt[2*m:2*m+2]: A(r)
            if ops and (m >= 1 or len(ops) > 3):
                tag, o = ops.pop(0); A(o); vm.append(tag)
            if "c" not in C.dbg and C.csm == "m" and k == 0 and m in (1, 3):
                z = m >> 1
                A(f"v_mfma_f32_16x16x32_bf16 v[{128+4*z}:{131+4*z}], v[232:235], v[{d+4*z}:{d+4*z+3}], v[{128+4*z}:{131+4*z}]")
            if "c" not in C.dbg and C.csm == "v":
                src = d + 4 * (m & 1) + k
                if m < 2: A(f"v_lshlrev_b32 v{132+m}, 16, v{src}\nv_and_b32 v{134+m}, 0xffff0000, v{src}")
                else: A(f"v_add_f32 v{128+(m&1)}, v{128+(m&1)}, v{132+(m&1)}\nv_add_f32 v{130+(m&1)}, v{130+(m&1)}, v{134+(m&1)}")
            cnt = 0
            while fill and cnt < (2 if C.csm == 'v' else 4):
                l = fill.pop(0); A(l); cnt += 0.34 if l.startswith("s_") else 1
            if m == 2 and pf < npf and kk >= C.pf_start and (kk - C.pf_start) % C.pf_step == 0:
                A(pfo[pf]); vm.append(("p", pf)); pf += 1
        assert not ops
    assert (pf == npf or C.pf_start > 31) and not fill
    stamp(A, "main")
    setprio(A, C.prioe)
    if C.csm == "m": A("s_mov_b64 exec, 0xffff\nds_write_b32 v156, v128\nds_write_b32 v156, v129 offset:256\nds_write_b32 v156, v132 offset:1024\nds_write_b32 v156, v133 offset:1280\ns_mov_b64 exec, -1")
    def split(r): return f"v_cvt_pk_bf16_f32 v16, v{r}, v{r}\nv_lshlrev_b32 v16, 16, v16\nv_sub_f32 v16, v{r}, v16\nv_cvt_pk_bf16_f32 v{r}, v{r}, v16"
    if C.csm == "v":
        for r in (128, 129): A(f"v_add_f32 v{r}, v{r}, v{r+2}\n" + split(r))
        A("ds_write_b32 v156, v128\nds_write_b32 v156, v129 offset:1024")
    A("s_waitcnt lgkmcnt(0)\ns_barrier")
    A(f"ds_read_b128 v[{WF}:{WF+3}], v155\nds_read_b128 v[{WF+4}:{WF+7}], v155 offset:1024")
    A("s_waitcnt lgkmcnt(0)")
    for m in range(4):
        c = f"v[{ACC+16*m}:{ACC+16*m+15}]"
        A(f"v_mfma_f32_32x32x16_bf16 {c}, v[{WF+4*(m&1)}:{WF+4*(m&1)+3}], v[{136+4*(m>>1)}:{139+4*(m>>1)}], {c}")
    for b in range(2):
        for half in range(2):
            n = 2 * b + half
            T = 176 + 16 * (n & 1)
            for l in gelu_block(ACC + 32 * b + 8 * half, ACC + 32 * b + 16 + 8 * half, T, 160 + 8 * b): A(l)
            if n == 2: A(f"s_add_u32 s47, s47, {2*57344}")
            A(f"buffer_store_dwordx4 v[{T+8}:{T+11}], v157, {WSR}, s47 offen offset:{512*half} sc1")
    stamp(A, "epi")
    A("s_waitcnt vmcnt(0)\ns_barrier")
    A(f"s_lshl_b32 s57, s{S_RT}, 5\ns_add_u32 s57, s57, s{S_CT}\ns_lshl_b32 s57, s57, 7\ns_add_u32 s57, s57, {FL_H}")
    set_flag(A, 57, 16)
    stamp(A, "flag2")
    for n in range(C.nfast if C.fast else C.nsl): g2_wdma(A, n)

def phase_cf(A):
    W = S_WAVE
    ZL = 0; WL = 65536; TW = 131072; FR = TW + 8192
    D0 = 64; D1 = 128; PK = 192; WW = 224
    FC, FS, FN = 8, 16, 24
    OC, OS, ON = 32, 40, 48
    A("; ---- CF")
    setprio(A, C.prioc)
    if C.early:
        A("s_waitcnt lgkmcnt(0)")
        for o in p0_stores(A): A(o)
    A(f"s_lshl_b32 s44, s{S_XCD}, 2\ns_add_u32 s44, s44, s{S_SLOT}\ns_sub_u32 s44, s44, 28    ; cg")
    if not C.wpz:
        for o in wp_gather(): A(o)
        A("s_waitcnt lgkmcnt(0)")
        A(p0_stores(A)[1])
    if C.stage == 1:
        for o in wd_stage(7, f"s_mul_i32 s60, s44, 57344\ns_mul_i32 s61, s{W}, 7168\ns_add_u32 s60, s60, s61", 122880): A(o)
    if C.stage == 3: A(wd_stage(1, WD_ALL, 122880)[0])
    A(f"s_lshl_b32 s46, s{W}, 1\nv_lshrrev_b32 v8, 5, v1\nv_add_u32 v8, s46, v8")
    A("v_and_b32 v9, 3, v8\nv_bfe_u32 v10, v8, 3, 1\nv_lshl_or_b32 v9, v10, 2, v9      ; beta")
    A("s_and_b32 s46, s44, 1\ns_lshl_b32 s46, s46, 3\nv_or_b32 v9, s46, v9         ; k1")
    A("s_lshr_b32 s46, s44, 1\ns_lshl_b32 s47, s46, 5\ns_sub_u32 s48, 0x200, s47\ns_cmp_lt_u32 s46, 8")
    A(f"s_cselect_b32 s49, s47, s48\ns_cselect_b32 s50, 1, -1\ns_sub_u32 s48, s48, 16\ns_cmp_lt_u32 s46, 8\ns_cselect_b32 s48, s47, s48")
    A("s_cmp_eq_u32 s46, 0\ns_cselect_b32 s48, 0x100, s48")
    A("v_mov_b32 v11, s49\nv_mad_i32_i24 v10, v9, s50, v11\nv_mov_b32 v11, s48\nv_cmp_eq_u32 vcc, 0, v9\nv_cndmask_b32 v10, v10, v11, vcc   ; bin")
    A(f"v_mov_b32 v11, {fhex(2.0**-19)}\nv_mov_b32 v12, {fhex(2.0**-20)}\nv_cmp_eq_u32 vcc, 0x100, v10\nv_cndmask_b32 v12, v11, v12, vcc\nv_mov_b32 v13, v12")
    A(f"v_cvt_f32_u32 v10, v10\nv_mul_f32 v10, {fhex(1/512)}, v10")
    A(f"v_bfe_u32 v11, v8, 2, 1\nv_cvt_f32_u32 v11, v11\nv_mul_f32 v11, {fhex(0.25)}, v11")
    A("v_and_b32 v14, 31, v1\nv_lshlrev_b32 v15, 3, v14\nv_cvt_f32_u32 v15, v15\nv_fma_f32 v64, v15, v10, v11")
    A(f"v_fmamk_f32 v72, v10, {fhex(256.0)}, v64\nv_fract_f32 v72, v72")
    for b in (64, 72):
        for j in range(1, 8): A(f"v_fmamk_f32 v{b+j}, v10, {fhex(float(j))}, v{b}")
    for j in range(16): A(f"v_cos_f32 v{64+j}, v{64+j}")
    for j in range(0, 16, 2): A(f"v_pk_mul_f32 v[{64+j}:{65+j}], v[{64+j}:{65+j}], v[12:13]")
    for q in range(8): A(f"v_cvt_pk_bf16_f32 v{64+q}, v{64+2*q}, v{65+2*q}")
    A(f"v_lshrrev_b32 v15, 3, v14\nv_and_b32 v14, 7, v14\nv_lshlrev_b32 v14, 4, v14\nv_lshl_add_u32 v14, v8, 7, v14\nv_lshl_add_u32 v14, v15, 16, v14")
    A(f"s_lshl_b32 s46, s44, 11\ns_add_u32 s46, s46, {WS_G}\ns_add_u32 s47, s46, 0x40000")
    A(f"buffer_store_dwordx4 v[64:67], v14, {WSR}, s46 offen sc1\nbuffer_store_dwordx4 v[68:71], v14, {WSR}, s47 offen sc1")
    A("v_and_b32 v3, 31, v1\nv_lshrrev_b32 v4, 5, v1\nv_lshlrev_b32 v4, 2, v4")
    A(f"s_and_b32 s52, s{W}, 3\ns_lshl_b32 s52, s52, 3\ns_lshr_b32 s53, s{W}, 2\ns_mul_i32 s53, s53, 1536")
    A("v_add_u32 v5, s52, v4")
    for b in range(4):
        A(f"v_add_u32 v6, {b}, v5\nv_mad_u32_u24 v{64+b}, v6, v3, s53")
    def frag(dst, matsel):
        A(f"s_and_b32 s54, s{W}, 1\ns_lshl_b32 s54, s54, 4")
        A(f"s_lshr_b32 s55, s{W}, 1\ns_and_b32 s55, s55, 1\ns_mul_i32 s55, s55, 48")
        if matsel == 0: A(f"s_lshr_b32 s56, s{W}, 2\nv_lshl_add_u32 v7, v3, 1, s56")
        for j in range(8):
            A(f"v_add_u32 v6, s54, v4\nv_add_u32 v6, {8*(j>>2) + (j&3)}, v6")
            if matsel == 0: A(f"v_mad_u32_u24 v{dst+j}, v6, v7, s55")
            else: A(f"v_lshl_add_u32 v6, v6, 1, 1\nv_mad_u32_u24 v{dst+j}, v6, v3, s55")
    frag(80, 0); frag(88, 1)
    cos_batch(A, range(64, 68), 2047, 1.0 / 2048)
    cos_batch(A, range(80, 96), 63, 1.0 / 64)
    A(f"s_lshl_b32 s52, s52, 8\ns_lshr_b32 s53, s{W}, 2\ns_lshl_b32 s53, s53, 10\ns_add_u32 s52, s52, s53\ns_add_u32 s52, s52, {TW}")
    A("v_add_u32 v5, s52, v2\nds_write_b128 v5, v[64:67]")
    for q in range(8): A(f"v_cvt_pk_bf16_f32 v{80+q}, v{80+2*q}, v{81+2*q}")
    A(f"s_lshl_b32 s52, s{W}, 10\ns_add_u32 s52, s52, {FR}\nv_add_u32 v5, s52, v2")
    A("ds_write_b128 v5, v[80:83]")
    Ls = A.label("L_cf_skip")
    A(f"s_cmp_ge_u32 s{W}, 4\ns_cbranch_scc1 {Ls}\nds_write_b128 v5, v[84:87] offset:8192\n{Ls}:")
    A(f"v_add_u32 v56, {TW}, v2\nv_add_u32 v57, {FR}, v2")
    A(f"s_lshl_b32 s52, s{W}, 1\nv_and_b32 v6, 15, v1\nv_xor_b32 v6, s52, v6\nv_lshlrev_b32 v6, 4, v6")
    A("v_lshl_add_u32 v6, v3, 10, v6\nv_lshl_add_u32 v58, v4, 6, v6\nv_xor_b32 v59, 16, v58")
    A(f"v_lshrrev_b32 v5, 2, v3\nv_xor_b32 v6, s{W}, v5\nv_lshlrev_b32 v6, 4, v6\nv_lshl_add_u32 v6, v5, 7, v6\nv_and_b32 v5, 3, v3\nv_lshl_add_u32 v6, v5, 2, v6\nv_lshl_add_u32 v6, v4, 11, v6\nv_add_u32 v7, {WL}, v6")
    A(f"s_waitcnt vmcnt({2 + {1: 7, 3: 1}.get(C.stage, 0)}) lgkmcnt(0)\ns_barrier")
    set_flag8(A, 57, 8)
    if not C.wpz:
        A(f"s_sub_u32 s57, s57, {FL_B - FL_W}")
        set_flag(A, 57, 16)
    stamp(A, "fd")
    if C.zsplit: A(f"v_and_b32 v6, 15, v1\nv_bfe_u32 v5, v1, 4, 1\nv_lshl_or_b32 v6, v5, 7, v6\nv_lshlrev_b32 v6, 7, v6\ns_lshl_b32 s57, s{W}, 11\ns_add_u32 s57, s57, {FL_B}")
    else: A(f"v_lshlrev_b32 v6, 7, v3\ns_lshl_b32 s57, s{W}, 12\ns_add_u32 s57, s57, {FL_B}")
    if C.rep: A(f"s_lshl_b32 s46, s{S_XCD}, 15\ns_add_u32 s57, s57, s46")
    poll(A, [(6, "s57")], 64)
    stamp(A, "rdy1")
    A(f"s_lshl_b32 s48, s44, 16\ns_lshl_b32 s49, s{W}, 13\ns_add_u32 s50, s48, s49")
    def dma64(base, lb):
        return [(f"s_add_u32 s51, s50, {base}\n" if k == 0 else "s_add_u32 s51, s51, 1024\n") +
                f"s_add_u32 m0, s49, {lb + k*1024}\nbuffer_load_dwordx4 v2, {WSR}, s51 offen sc1 {C.nt_z} lds" for k in range(8)]
    def dma_split(base, lb):
        L = []
        for k in range(8):
            o = (k >> 2) * 32768 + (k & 3) * 1024
            L.append((f"s_lshl_b32 s46, s{W}, 12\ns_add_u32 s51, s48, s46\ns_add_u32 s51, s51, {base}\n" if k == 0 else "") +
                     f"s_add_u32 m0, s46, {lb + o}\ns_add_u32 s53, s51, {o}\nbuffer_load_dwordx4 v2, {WSR}, s53 offen sc1 lds")
        return L
    for o in (dma_split if C.zsplit else dma64)(WS_Z, ZL): A(o)
    P = lambda r: f"v[{r}:{r+1}]"
    def load_frags(Cc, S, mat):
        return [f"ds_read_b128 v[{R+4*m}:{R+4*m+3}], v57 offset:{(mat*4+o+m)*1024}" for m in range(2) for (R, o) in ((Cc, 0), (S, 2))]
    def neg_frags(S, N): return [f"v_xor_b32 v{N+q}, 0x80008000, v{S+q}" for q in range(8)]
    def pk(blk, c, m): return PK + 16 * blk + 8 * c + 4 * m
    def acc(D, c, blk): return D + 32 * c + 16 * blk
    def cstage(D, blk, data_is_A, Cc, Sre, Sim):
        L = []
        for (c, seq) in ((0, ((0, Cc), (1, Sre))), (1, ((1, Cc), (0, Sim)))):
            d = acc(D, c, blk); first = True
            for (cc, K) in seq:
                for m in range(2):
                    dat = f"v[{pk(blk,cc,m)}:{pk(blk,cc,m)+3}]"; con = f"v[{K+4*m}:{K+4*m+3}]"
                    a, b = (dat, con) if data_is_A else (con, dat)
                    L.append(f"v_mfma_f32_32x32x16_bf16 v[{d}:{d+15}], {a}, {b}, {0 if first else f'v[{d}:{d+15}]'}")
                    first = False
        return L
    def pack(D, blk):
        return [f"v_cvt_pk_bf16_f32 v{pk(blk,c,0)+q}, v{acc(D,c,blk)+2*q}, v{acc(D,c,blk)+2*q+1}" for c in range(2) for q in range(8)]
    def tw_load():
        return [f"ds_read_b128 v[{WW+16*comp+4*a}:{WW+16*comp+4*a+3}], v56 offset:{a*2048 + comp*1024}" for a in range(4) for comp in range(2)]
    NEG = lambda i: " neg_lo:[%s] neg_hi:[%s]" % ((",".join("1" if j == i else "0" for j in range(3)),) * 2)
    def radix2_tw(conj, extra=()):
        for i in range(0, 16, 2):
            if i % 4 == 2 and extra: A(extra[i // 4])
            er, ei, o_r, oi = acc(D0,0,0)+i, acc(D0,1,0)+i, acc(D0,0,1)+i, acc(D0,1,1)+i
            ur, ui, vr_, vi = acc(D1,0,0)+i, acc(D1,1,0)+i, acc(D1,0,1)+i, acc(D1,1,1)+i
            c0, s0 = P(WW + i), P(WW + 16 + i)
            A(f"v_pk_add_f32 {P(ur)}, {P(er)}, {P(o_r)}\nv_pk_add_f32 {P(vr_)}, {P(er)}, {P(o_r)} neg_lo:[0,1] neg_hi:[0,1]")
            A(f"v_pk_add_f32 {P(ui)}, {P(ei)}, {P(oi)}\nv_pk_add_f32 {P(vi)}, {P(ei)}, {P(oi)} neg_lo:[0,1] neg_hi:[0,1]")
            A(f"v_pk_mul_f32 v[60:61], {P(ur)}, {s0}\nv_pk_mul_f32 v[62:63], {P(vr_)}, {s0}")
            A(f"v_pk_mul_f32 {P(ur)}, {P(ur)}, {c0}\nv_pk_mul_f32 {P(vr_)}, {P(vr_)}, {c0}")
            n0 = NEG(0) if conj else ""; n2 = "" if conj else NEG(2)
            A(f"v_pk_fma_f32 {P(ur)}, {P(ui)}, {s0}, {P(ur)}{n0}\nv_pk_fma_f32 {P(vr_)}, {P(vi)}, {s0}, {P(vr_)}{n0}")
            A(f"v_pk_fma_f32 {P(ui)}, {P(ui)}, {c0}, v[60:61]{n2}\nv_pk_fma_f32 {P(vi)}, {P(vi)}, {c0}, v[62:63]{n2}")
    def wmul(e):
        L = []
        for i in range(0, 16, 2):
            w = WW + 16 * e + i; t = 60 + (i & 2)
            xr, xi, yr, yi = acc(D0,0,e)+i, acc(D0,1,e)+i, acc(D1,0,e)+i, acc(D1,1,e)+i
            L += [f"v_lshlrev_b32 v{t}, 16, v{w}", f"v_lshlrev_b32 v{t+1}, 16, v{w+1}", f"v_and_b32 v{w}, 0xffff0000, v{w}", f"v_and_b32 v{w+1}, 0xffff0000, v{w+1}",
                  ]
            if C.cfpk and not (C.cfpk == 2 and i < 6):
                L += [f"v_pk_mul_f32 {P(yr)}, {P(xr)}, {P(t)}", f"v_pk_mul_f32 {P(yi)}, {P(xi)}, {P(t)}",
                      f"v_pk_fma_f32 {P(yr)}, {P(xi)}, {P(w)}, {P(yr)}{NEG(0)}", f"v_pk_fma_f32 {P(yi)}, {P(xr)}, {P(w)}, {P(yi)}"]
            else:
                for z in range(2): L += [f"v_mul_f32 v{yr+z}, v{xr+z}, v{t+z}", f"v_mul_f32 v{yi+z}, v{xi+z}, v{t+z}"]
                for z in range(2): L += [f"v_fma_f32 v{yr+z}, -v{xi+z}, v{w+z}, v{yr+z}", f"v_fmac_f32 v{yi+z}, v{xr+z}, v{w+z}"]
        return L
    def E(L):
        for l in L: A(l)
    E(load_frags(FC, FS, 0) + load_frags(OC, OS, 2) + tw_load())
    A("s_waitcnt lgkmcnt(8)")
    E(neg_frags(FS, FN) + neg_frags(OS, ON))
    A(f"s_lshl_b32 s52, s{W}, 16\ns_lshl_b32 s53, s44, 9\ns_add_u32 s52, s52, s53\ns_add_u32 s47, s52, {WS_ZP}")
    A(f"s_lshl_b32 s57, s44, 7\ns_add_u32 s57, s57, {FL_C}")
    zr = [f"ds_read_b128 v[{pk(mu,c,m)}:{pk(mu,c,m)+3}], v{58+c} offset:{ZL + mu*32768 + m*512}" for mu in range(2) for c in range(2) for m in range(2)]
    wp = (dma_split if C.zsplit else dma64)(WS_WP, WL)
    A(f"s_waitcnt vmcnt({4 if C.zsplit else 0})\ns_barrier")
    stamp(A, "go")
    E(zr[:4] if C.zsplit else zr)
    def wcheck():
        L = A.label("L_cf_ok")
        A(f"s_waitcnt vmcnt(0)\nv_cmp_ne_u32 vcc, s{S_TAG}, v5\ns_cmp_eq_u64 vcc, 0\ns_cbranch_scc1 {L}")
        poll(A, [(6, "s53")], 5)
        A(f"s_mov_b32 s{S_RDY}, 1\n{L}:")
    if C.wpz:
        if C.zsplit:
            A("s_waitcnt lgkmcnt(0)")
            m1 = cstage(D0, 0, True, FC, FS, FN)
            E(m1[:5]); A("s_waitcnt vmcnt(0)\ns_barrier"); E(zr[4:]); weave(A, m1[5:], wp[:2])
            A("s_waitcnt lgkmcnt(0)")
            weave(A, cstage(D0, 1, True, OC, OS, ON), wp[2:])
        else:
            A("s_waitcnt lgkmcnt(4)")
            weave(A, cstage(D0, 0, True, FC, FS, FN), wp[:4])
            A("s_waitcnt lgkmcnt(0)")
            weave(A, cstage(D0, 1, True, OC, OS, ON), wp[4:])
        E(load_frags(OC, OS, 1))
        radix2_tw(False)
    else:
        A(f"s_lshl_b32 s53, s{W}, 12\ns_add_u32 s53, s53, {FL_W}\nbuffer_load_dword v5, v6, {WSR}, s53 offen sc1")
        A("s_waitcnt lgkmcnt(4)")
        E(cstage(D0, 0, True, FC, FS, FN))
        A("s_waitcnt lgkmcnt(0)")
        m1 = cstage(D0, 1, True, OC, OS, ON)
        E(m1[:4]); wcheck(); weave(A, m1[4:], wp[:4])
        E(load_frags(OC, OS, 1))
        radix2_tw(False, wp[4:])
    E(pack(D1, 0))
    A("s_waitcnt lgkmcnt(0)")
    weave(A, cstage(D0, 0, False, FC, FS, FN), pack(D1, 1) + neg_frags(OS, ON))
    stamp(A, "main")
    A("s_waitcnt vmcnt(0)\ns_barrier")
    wr = [f"ds_read2st64_b32 {P(WW+16*e+4*a+b)}, v7 offset0:{a*64+b*8+e*4} offset1:{a*64+b*8+e*4+8}" for e in range(2) for a in range(4) for b in (0, 2)]
    E(wr[:8])
    m2 = cstage(D0, 1, False, OC, OS, ON)
    weave(A, m2[:2], wr[8:])
    A("s_waitcnt lgkmcnt(8)")
    weave(A, m2[2:], wmul(0))
    stamp(A, "wrdy")
    E(load_frags(OC, OS, 2))
    E(pack(D1, 0))
    g2_setup(A, 58, 59, 5, 6)
    A("s_waitcnt lgkmcnt(4)")
    weave(A, cstage(D0, 0, True, FC, FN, FS), wmul(1) + pack(D1, 1), 1)
    A("s_waitcnt lgkmcnt(0)")
    E(neg_frags(OS, ON) + tw_load())
    weave(A, cstage(D0, 1, True, OC, ON, OS), [] if C.cfx else g2w_ops(0, 58))
    E(load_frags(OC, OS, 1))
    A("s_waitcnt lgkmcnt(4)")
    radix2_tw(True)
    E(pack(D1, 0))
    A("s_waitcnt lgkmcnt(0)")
    XB = ZL if C.cfx else WL
    adr = (f"s_and_b32 s60, s{W}, 1\ns_lshl_b32 s60, s60, 2\nv_lshrrev_b32 v5, 5, v1\nv_or_b32 v5, s60, v5\n"
           "v_and_b32 v6, 7, v1\nv_xor_b32 v5, v5, v6\nv_lshlrev_b32 v5, 4, v5\nv_lshl_add_u32 v5, v3, 11, v5\n"
           f"s_lshr_b32 s60, s{W}, 1\ns_lshl_b32 s60, s60, 7\ns_add_u32 s60, s60, {XB}\nv_add_u32 v56, s60, v5\nv_xor_b32 v57, 32, v56\n"
           "v_bfe_u32 v5, v1, 2, 1\nv_lshlrev_b32 v5, 2, v5\nv_bfe_u32 v6, v1, 4, 1\nv_lshl_add_u32 v5, v6, 1, v5\nv_bfe_u32 v6, v1, 1, 1\nv_add_u32 v5, v5, v6\n"
           f"v_xor_b32 v5, s{W}, v5\nv_lshlrev_b32 v5, 4, v5\nv_and_b32 v6, 1, v1\nv_lshl_add_u32 v5, v6, 3, v5\n"
           "v_bfe_u32 v6, v1, 3, 1\nv_lshl_add_u32 v5, v6, 7, v5\nv_lshrrev_b32 v6, 5, v1\nv_lshl_add_u32 v5, v6, 9, v5\n"
           f"s_lshl_b32 s60, s{W}, 11\ns_add_u32 s60, s60, {XB}\nv_add_u32 v5, s60, v5\n"
           "v_and_b32 v6, 15, v1\nv_lshlrev_b32 v6, 4, v6\nv_lshrrev_b32 v7, 5, v1\nv_lshl_add_u32 v6, v7, 8, v6\n"
           "v_bfe_u32 v7, v1, 4, 1\nv_lshl_add_u32 v6, v7, 14, v6").split("\n")
    weave(A, cstage(D0, 0, True, FC, FN, FS), pack(D1, 1) + neg_frags(OS, ON) + (adr if C.cfx else []))
    stamp(A, "epi")
    def xw(mu): return [f"ds_write_b128 v{56+m}, v[{pk(mu,c,m)}:{pk(mu,c,m)+3}] offset:{mu*1024 + c*512}" for c in range(2) for m in range(2)]
    def xr_store(mu):
        for n in range(4):
            d = D1 + 16 * mu + 4 * n
            A(f"ds_read_b64_tr_b16 v[{d}:{d+1}], v5 offset:{n*16384 + mu*1024}\nds_read_b64_tr_b16 v[{d+2}:{d+3}], v5 offset:{n*16384 + mu*1024 + 256}")
        for n in range(4):
            d = D1 + 16 * mu + 4 * n
            A(f"s_waitcnt lgkmcnt({6-2*n})")
            A(f"buffer_store_dwordx4 v[{d}:{d+3}], v6, {WSR}, s47 offen sc1")
            A(f"s_add_u32 s47, s47, {0x80000 if n < 3 else (0x8000 - 0x180000) & 0xffffffff}")
    m4 = cstage(D0, 1, True, OC, ON, OS)
    if C.cfx: weave(A, m4, pack(D0, 0) + xw(0), 1)
    else:
        weave(A, m4[:4], adr)
        A("s_barrier")
        weave(A, m4[4:], pack(D0, 0) + xw(0))
    A("s_waitcnt lgkmcnt(0)\ns_barrier")
    stamp(A, "c1")
    xr_store(0)
    E(pack(D0, 1) + xw(1))
    A("s_waitcnt lgkmcnt(0)\ns_barrier")
    xr_store(1)
    stamp(A, "c3")
    A(f"v_mov_b32 v{V_G2W}, v58\nv_mov_b32 v{V_G2X}, v59")
    if C.cfx:
        if C.cfw2: g2_wdma(A, 2)
        A(f"s_waitcnt vmcnt({4 * C.cfw2})\ns_barrier")
        set_flag(A, 57, 16)
        stamp(A, "flag2")
        for n in range(C.nsl):
            if n != 2 or not C.cfw2: g2_wdma(A, n)
        A("s_mov_b32 s63, 1")
        return
    g2_wdma(A, 1)
    A("s_waitcnt vmcnt(4)\ns_barrier")
    stamp(A, "c5")
    set_flag(A, 57, 16)
    stamp(A, "flag2")
    for n in range(2, C.nfast if C.fast else C.nsl): g2_wdma(A, n)

def phase_g2(A):
    W = S_WAVE
    ACT = 64; WF = 128; ACC = 16; NS = 9
    A("; ---- G2")
    setprio(A, C.prio2)
    srd(A, S_X, P_X, 2097152)
    srd(A, S_B, P_OUT, 2097152)
    A("v_lshlrev_b32 v3, 4, v1")
    A(f"s_mul_i32 s54, s50, 57344\ns_mul_i32 s46, s49, {28*1024}\ns_add_u32 s54, s54, s46\ns_add_u32 s54, s54, {WS_H}")
    if C.rot2: A("s_lshl_b32 s46, s53, 12\ns_add_u32 s54, s54, s46")
    A(f"s_lshl_b32 s57, s50, 14\ns_lshl_b32 s46, s49, 13\ns_add_u32 s57, s57, s46\ns_add_u32 s57, s57, {WS_ZP}")
    A("v_lshrrev_b32 v6, 5, v1\nv_lshlrev_b32 v6, 4, v6\nv_bfe_u32 v7, v1, 4, 1\nv_lshl_add_u32 v6, v7, 2, v6\nv_bfe_u32 v4, v1, 2, 2\nv_add_u32 v6, v6, v4")
    A("v_lshlrev_b32 v6, 7, v6\nv_lshrrev_b32 v4, 1, v4\nv_lshl_or_b32 v4, v7, 1, v4")
    A("v_lshl_add_u32 v6, v4, 5, v6\nv_and_b32 v4, 3, v1\nv_lshl_add_u32 v6, v4, 3, v6")
    A("s_lshl_b32 s46, s49, 14\nv_add_u32 v164, s46, v6")
    for nb in range(1, 4): A(f"v_xor_b32 v{164+nb}, {32*nb}, v164")
    for nb in range(4): A(f"v_add_u32 v{160+nb}, 0x10000, v{164+nb}\nv_add_u32 v{180+nb}, 0x20000, v{164+nb}")
    A("v_bfe_u32 v4, v1, 4, 2\nv_lshlrev_b32 v4, 5, v4\nv_xor_b32 v173, v3, v4")
    A(f"s_lshl_b32 s58, s45, 16\ns_lshl_b32 s46, s49, 15\ns_add_u32 s58, s58, s46\ns_lshl_b32 s46, s48, 12\ns_add_u32 s58, s58, s46\ns_add_u32 s58, s58, {WS_G}")
    A("v_min_u32 v170, 27, v1\nv_lshlrev_b32 v170, 7, v170\nv_and_b32 v172, 3, v1\nv_lshlrev_b32 v172, 7, v172")
    A(f"s_lshr_b32 s59, s44, 2\ns_lshl_b32 s59, s59, 12\ns_add_u32 s59, s59, {FL_H}\ns_lshl_b32 s47, s{W}, 9\ns_add_u32 s47, s47, {FL_C}")
    vm = []
    def act_ops(n):
        L = []
        for k in range(4):
            d = ACT + 16 * (n & 3) + 4 * k
            L.append((("a", n), ("s_mov_b32 s54, s57\n" if (n == 7 and k == 0) else "") +
                      f"buffer_load_dwordx4 v[{d}:{d+3}], v3, {WSR}, s54 offen offset:{1024*k} sc1 {C.nt_h}" + ("\ns_add_u32 s54, s54, 4096" if k == 3 else "") +
                      (f"\ns_add_u32 s53, s53, 1\ns_cmp_eq_u32 s53, 7\ns_cselect_b32 s46, {7*4096}, 0\ns_sub_u32 s54, s54, s46" if (k == 3 and C.rot2 and n < 7) else "")))
        return L
    def w_ops(n): return [(("w", n), o) for o in g2w_ops(n)]
    def emit(op):
        A(op[1]); vm.extend([op[0]] * (op[2] if len(op) > 2 else 1))
    def w_or_dummy(n):
        L = A.label("L_wd"); Le = A.label("L_wd")
        return [(("w", n), f"s_cmp_eq_u32 s63, 0\ns_cbranch_scc1 {L}\n" + "\n".join(g2w_ops(n)) + f"\ns_branch {Le}\n{L}:\n" +
                 "\n".join([f"buffer_load_dword v177, v178, {WSR}, 0 offen"] * 4) + f"\n{Le}:", 4)]
    L = A.label("L_g2_np")
    if C.fast:
        A(f"v_mov_b32 v178, 0\nv_mov_b32 v179, 163836\ns_cmp_lg_u32 s{W}, 0\ns_cbranch_scc1 {L}")
        poll(A, [(170, "s59")], 177, once=True)
        A(f"v_mov_b32 v177, s{S_RDY}\nds_write_b32 v179, v177\ns_waitcnt lgkmcnt(0)")
        A(f"{L}:\ns_barrier\nds_read_b32 v177, v179\ns_waitcnt lgkmcnt(0)\nv_readfirstlane_b32 s63, v177")
        L = A.label("L_g2_np")
        A(f"s_cmp_lg_u32 s63, 0\ns_cbranch_scc1 {L}\ns_barrier")
        for n in range(C.nfast, C.nsl): g2_wdma(A, n)
        L3 = A.label("L_g2_np")
        A(f"s_cmp_lg_u32 s{W}, 0\ns_cbranch_scc1 {L3}\ns_waitcnt vmcnt(0)")
        poll(A, [(170, "s59")], 177)
        A(f"{L3}:\ns_barrier\n{L}:")
    else:
        A(f"s_cmp_lg_u32 s{W}, 0\ns_cbranch_scc1 {L}\ns_waitcnt vmcnt(0)")
        poll(A, [(170, "s59")], 177)
        A(f"{L}:\ns_barrier")
    for _ in range(C.dly2): A("s_sleep 16")
    stamp(A, "hrdy")
    for op in act_ops(0): emit(op)
    A("s_barrier")
    for op in act_ops(1): emit(op)
    def reads(n, k, st):
        slot = n % C.nsl
        va = (164, 164, 160, 160, 180)[slot]
        off = (slot & 1) * 32768 + k * 4096
        r = []
        for nb in range(4):
            d = WF + 16 * st + 4 * nb
            r.append(f"ds_read_b64_tr_b16 v[{d}:{d+1}], v{va+nb} offset:{off}")
            r.append(f"ds_read_b64_tr_b16 v[{d+2}:{d+3}], v{va+nb} offset:{off+1024}")
        return r
    SCHED = {"A": "a2 a3|w4 a4|w5 a5|w6 a6|w7 a7|w8 a8|||", "B": "a2|w4 a3|w5 a4|w6 a5|w7 a6|w8 a7|a8||",
             "C": "a2|a3 w4l|a4 w4h w5l|a5 w5h w6l|a6 w6h|w7 a7|w8 a8||", "D": "a2|a3 w4|a4 w5l|a5 w5h w6l|a6 w6h w7l|a7 w7h w8l|a8 w8h||",
             "P": "a2|a3 w5l|a4 w5h|a5 w6|a6 w7l|a7 w7h w8l|a8 w8h||", "Q": "a2|a3|a4 w5|a5 w6|a6 w7|a7 w8|a8||", "R": "a2|a3 w5l|a4 w5h w6l|a5 w6h|a6 w7|a7 w8l|a8 w8h||",
             "S": "a2|a3 w5l|a4 w5h|a5 w6|a6 w7l|a7 w7h|a8 w8l|w8h|", "T": "a2|a3 w5l|a4 w5h w6l|a5 w6h|a6 w7l|a7 w7h|w8l a8|w8h|",
             "U": "a2 a3l|a3h a4l w5l|a4h a5l w5h|a5h w6|a6 w7l|a7 w7h|a8 w8l|w8h|", "V": "a2|a3 w5l|a4 w5h w6l|a5 w6h|a6 w7|a7 w8l|w8h a8l|a8h|",
             "E": "|a2 w4|a3 w5l|a4 w5h w6l|a5 w6h|a6 w7|a7 w8l|a8 w8h|"}[C.sched]
    SCHED = [x.split() for x in SCHED.split("|")]
    NZ = min(n for n in range(NS) if any(t[1] in "78" for t in SCHED[n]))
    fill = []
    EX = (4 % C.nsl) * 32768 if C.nsl == 5 else 131072
    TB = 0 if C.nsl == 5 else 69632
    A(f"s_lshl_b32 s46, s{W}, 12\ns_add_u32 s46, s46, {EX}\nv_add_u32 v6, s46, v3\nv_xor_b32 v7, 0x4000, v6")
    tail_adr = (f"v_and_b32 v4, 15, v1\nv_mul_u32_u24 v4, 144, v4\nv_lshrrev_b32 v5, 4, v1\nv_lshl_add_u32 v4, v5, 3, v4\n"
                f"s_mul_i32 s60, s48, {16*144}\ns_lshl_b32 s46, s49, 6\ns_add_u32 s60, s60, s46\ns_add_u32 s60, s60, {TB}\nv_add_u32 v4, s60, v4\n"
                f"v_lshrrev_b32 v5, 3, v1\nv_mul_u32_u24 v5, 144, v5\nv_and_b32 v8, 7, v1\nv_lshl_add_u32 v5, v8, 4, v5\ns_mul_i32 s60, s{W}, {8*144}\ns_add_u32 s60, s60, {TB}\nv_add_u32 v5, s60, v5").split("\n")
    for n in range(NS):
        need = [i for i, o in enumerate(vm) if o in (("a", n), ("w", n), ("f", n))]
        A(f"s_waitcnt vmcnt({len(vm) - 1 - max(need)})")
        if n == NZ:
            L = A.label("L_g2_ok")
            A(f"v_cmp_ne_u32 vcc, s{S_TAG}, v176\ns_cmp_eq_u64 vcc, 0\ns_cbranch_scc1 {L}")
            poll(A, [(172, "s47")], 176)
            A(f"s_mov_b32 s{S_RDY}, 1\n{L}:")
        A("s_barrier")
        stamp(A, f"st{n}")
        for r in reads(n, 0, 0): A(r)
        ops = []
        if n == NZ - 1: ops.append((("f", NZ), f"buffer_load_dword v176, v172, {WSR}, s47 offen sc1"))
        if C.fast and C.nfast + n < C.nsl: ops += w_or_dummy(C.nfast + n)
        for tok in SCHED[n]:
            o = w_ops(int(tok[1])) if tok[0] == "w" else act_ops(int(tok[1]))
            if len(tok) == 3: o = o[:2] if tok[2] == "l" else o[2:]
            ops += o
        if n == C.xst:
            ops.append((("x", 0), f"buffer_load_dwordx4 v[240:243], v{V_G2X}, {XR}, s56 offen {C.nt_x2}"))
        if n == 7 and C.ytail:
            for q in range(2): A(f"ds_read_b128 v[{48+4*q}:{51+4*q}], v7 offset:{1024*q}")
            for i in range(8): fill.append(f"v_add_f32 v{48+i}, v{48+i}, v{184+i}")
            for i in range(8): fill.append(f"v_mul_f32 v{192+i}, {fhex(-1.4426950408889634)}, v{48+i}")
            for i in range(8): fill.append(f"v_exp_f32 v{192+i}, v{192+i}")
            for i in range(8): fill.append(f"v_add_f32 v{192+i}, 1.0, v{192+i}")
            for i in range(8): fill.append(f"v_rcp_f32 v{192+i}, v{192+i}")
            for i in range(8): fill.append(f"v_mul_f32 v{48+i}, v{48+i}, v{192+i}")
            fill += tail_adr
        slots = [[] for _ in range(16)]
        for i, op in enumerate(ops): slots[(i * 16) // max(len(ops), 8) if len(ops) > 8 else 2 * i].append(op)
        for k in range(4):
            st = k & 1
            nxt = reads(n, k + 1, st ^ 1) if k < 3 else []
            for nb in range(4):
                if nb % 2 == 0: A(f"s_waitcnt lgkmcnt({4 - 2*nb + len(nxt[0:2*nb])})")
                d = WF + 16 * st + 4 * nb; a = ACT + 16 * (n & 3) + 4 * k
                cb = ACC + (16 if n >= 7 else 0) + 4 * nb
                c = f"v[{cb}:{cb+3}]"
                A(f"v_mfma_f32_16x16x32_bf16 {c}, v[{d}:{d+3}], v[{a}:{a+3}], {0 if (n in (0, 7) and k == 0) else c}")
                for r in nxt[2*nb:2*nb+2]: A(r)
                for op in slots[4 * k + nb]: emit(op)
                if k or n == 8:
                    for _ in range(3):
                        if fill: A(fill.pop(0))
        if n == 6 and C.ytail:
            L1 = A.label("L_g2_y1"); L2 = A.label("L_g2_yj")
            A(f"s_cmp_eq_u32 s49, 1\ns_cbranch_scc1 {L1}")
            for (lab, keep) in ((None, 0), (L1, 8)):
                if lab: A(f"{lab}:")
                for q in range(2): A(f"ds_write_b128 v6, v[{ACC+8-keep+4*q}:{ACC+11-keep+4*q}] offset:{1024*q}")
                for i in range(0, 8, 2): A(f"v_mov_b64 v[{184+i}:{185+i}], v[{ACC+keep+i}:{ACC+keep+i+1}]")
                if not lab: A(f"s_branch {L2}")
            A(f"{L2}:\ns_waitcnt lgkmcnt(0)")
    assert not fill
    stamp(A, "g2m")
    P = lambda r: f"v[{r}:{r+1}]"
    L1 = A.label("L_g2_k1"); L2 = A.label("L_g2_j")
    A(f"s_cmp_eq_u32 s49, 1\ns_cbranch_scc1 {L1}")
    for (lab, keep) in ((None, 0), (L1, 8)):
        if lab: A(f"{lab}:")
        send = 8 - keep
        regs = (ACC + send, ACC + send + 4, ACC + 16 + send, ACC + 20 + send)
        for q in range(2 if C.ytail else 0, 4): A(f"ds_write_b128 v6, v[{regs[q]}:{regs[q]+3}] offset:{1024*q}")
        A("s_waitcnt lgkmcnt(0)\ns_barrier")
        for q in range(2 if C.ytail else 0, 4): A(f"ds_read_b128 v[{48+4*q}:{51+4*q}], v7 offset:{1024*q}")
        if not C.ytail:
            A("s_waitcnt lgkmcnt(2)")
            for i in range(0, 8, 2): A(f"v_pk_add_f32 {P(48+i)}, {P(48+i)}, {P(ACC+keep+i)}")
        A("s_waitcnt lgkmcnt(0)")
        for i in range(0, 8, 2): A(f"v_pk_add_f32 {P(56+i)}, {P(56+i)}, {P(ACC+16+keep+i)}")
        if not lab: A(f"s_branch {L2}")
    A(f"{L2}:")
    if not C.ytail:
        for i in range(8): A(f"v_mul_f32 v{64+i}, {fhex(-1.4426950408889634)}, v{48+i}")
        for i in range(8): A(f"v_exp_f32 v{64+i}, v{64+i}")
        for l in tail_adr: A(l)
        for i in range(8): A(f"v_add_f32 v{64+i}, 1.0, v{64+i}")
        for i in range(8): A(f"v_rcp_f32 v{64+i}, v{64+i}")
        for i in range(0, 8, 2): A(f"v_pk_mul_f32 {P(48+i)}, {P(48+i)}, {P(64+i)}")
    for i in range(0, 8, 2): A(f"v_pk_mul_f32 {P(56+i)}, {P(56+i)}, {P(48+i)}")
    for q in range(4): A(f"v_cvt_pk_bf16_f32 v{8+q}, v{56+2*q}, v{57+2*q}")
    A("ds_write_b64 v4, v[8:9]\nds_write_b64 v4, v[10:11] offset:32")
    A("s_waitcnt vmcnt(0)")
    for q in range(4): A(f"v_lshlrev_b32 v{72+2*q}, 16, v{240+q}\nv_and_b32 v{73+2*q}, 0xffff0000, v{240+q}")
    A("s_waitcnt lgkmcnt(0)\ns_barrier\nds_read_b128 v[8:11], v5\ns_waitcnt lgkmcnt(0)")
    for q in range(4): A(f"v_lshlrev_b32 v{64+2*q}, 16, v{8+q}\nv_and_b32 v{65+2*q}, 0xffff0000, v{8+q}")
    for i in range(0, 8, 2): A(f"v_pk_add_f32 {P(72+i)}, {P(72+i)}, {P(64+i)}")
    for q in range(4): A(f"v_cvt_pk_bf16_f32 v{8+q}, v{72+2*q}, v{73+2*q}")
    A(f"buffer_store_dwordx4 v[8:11], v{V_G2X}, {BR}, s56 offen {C.outf}")
    L = A.label("L_ep")
    A(f"s_cmp_lg_u32 s{S_WG}, 0\ns_cbranch_scc1 {L}\ns_mov_b32 s57, 0")
    set_flag(A, 57, 16)
    A(f"{L}:")

HDR = open("recurrent_scan__spectral_gfnet__geglu_ffn__prompt.s.ref").read().split("; Override")[0]
DOC = r'''; ======================================================================================================
;    makes zero, so the 256 columns that are carried are bins 1..256.
;    (-mean x column sums of the weights) and 1/den is folded into the gelu constants; writes h (bf16).
; CF (32 workgroups, one bin per wave): 2048-point column FFT (32 x 2 x 32), times W, inverse FFT, all in
; Hand-offs between workgroups go through d_ws: write-through (sc1) stores, s_waitcnt vmcnt, barrier, then one
; workgroup 0 stores the tag to ws[0] at the end, so flags of an earlier launch never match.  Spins are bounded.
; ======================================================================================================
'''
def gen(**kw):
    for k, v in kw.items(): setattr(C, k, v)
    A = Asm()
    A(HDR.rstrip())
    A("; @launch grid=(256,1,1) block=(512,1,1) lds=163840")
    A(DOC.rstrip())
    A('.amdgcn_target "amdgcn-amd-amdhsa--gfx950"\n.text')
    kernel_begin(A, KN)
    prologue(A)
    phase_p0(A)
    phase_g1(A)
    A("s_branch L_g2\nL_cf:")
    phase_cf(A)
    A("L_g2:")
    phase_g2(A)
    if C.delay:
        A(f"s_memtime s[70:71]\ns_waitcnt lgkmcnt(0)\nL_dly:\ns_memtime s[72:73]\ns_waitcnt lgkmcnt(0)\ns_sub_u32 s72, s72, s70\ns_cmp_lt_u32 s72, {C.delay}\ns_cbranch_scc1 L_dly")
    if C.echo:
        A(f"s_memrealtime s[72:73]\ns_waitcnt lgkmcnt(0)")
        if C.echo == "end": A("s_mov_b32 s84, s72")
        A(f"s_sub_u32 s84, s84, s82\ns_mul_i32 s84, s84, {C.echo_k}")
        A(f"L_echo:\ns_memrealtime s[74:75]\ns_waitcnt lgkmcnt(0)\ns_sub_u32 s74, s74, s72\ns_cmp_lt_u32 s74, s84\ns_cbranch_scc1 L_echo")
    if C.skew >= 0:
        A(f"s_cmp_lg_u32 s{S_XCD}, {C.skew}\ns_cbranch_scc1 L_done\nv_mov_b32 v2, 0\nbuffer_load_dword v3, v2, {WSR}, 0 offen offset:512 sc1\ns_waitcnt vmcnt(0)\nv_readfirstlane_b32 s84, v3")
        A(f"s_memrealtime s[72:73]\ns_waitcnt lgkmcnt(0)\ns_sub_u32 s84, s82, s84\ns_add_u32 s84, s84, 50\ns_max_i32 s84, s84, 0\ns_min_u32 s84, s84, 1000\ns_mul_i32 s84, s84, 4")
        A(f"L_sk:\ns_memrealtime s[74:75]\ns_waitcnt lgkmcnt(0)\ns_sub_u32 s74, s74, s72\ns_cmp_lt_u32 s74, s84\ns_cbranch_scc1 L_sk")
    if C.dbgclk:
        A(f"s_cmp_lg_u32 s{S_WG}, 0\ns_cbranch_scc1 L_done\ns_cmp_lg_u32 s{S_WAVE}, 0\ns_cbranch_scc1 L_done")
        A("s_memtime s[74:75]\ns_memrealtime s[76:77]\ns_waitcnt lgkmcnt(0)\ns_sub_u32 s74, s74, s80\ns_sub_u32 s76, s76, s82")
        srd(A, S_A, P_DBG, 256)
        A(f"v_mov_b32 v2, 0\nv_mov_b32 v4, s74\nv_mov_b32 v5, s76\nbuffer_store_dwordx2 v[4:5], v2, {AR}, 0 offen")
    diag_end(A)
    A("L_done:\ns_endpgm")
    A('.section .rodata,"a"\n.p2align 6')
    A(descriptor(KN, 256, 102, 256))
    return hazard.fix(A.text(), verbose=False)
if __name__ == "__main__":
    kw = dict(a.split("=") for a in sys.argv[2:])
    kw = {k: (int(v) if v.isdigit() and k not in ("perm", "g2map") else v.replace("_", "")) for k, v in kw.items()}
    open(sys.argv[1], "w").write(gen(**kw))
```

```python
import struct, sys
from asmgen import *
import hazard

WS_FL = 0x0
FL_W = 0x1000
FL_B = 0x40000
FL_H = 0x11000
FL_C = 0x19000
WS_ST = 0x0100000
WS_Z  = 0x0300000
WS_WP = 0x0500000
WS_G  = 0x0700000
WS_ZP = 0x0800000
WS_H  = 0x0A00000
WS_DIAG = 0x1200000
WS_SIZE = 0x1400000
TAGK = 0x3C6EF35F

def fhex(x): return "0x%08x" % struct.unpack("<I", struct.pack("<f", x))[0]
S_WS, S_X, S_A, S_B = 4, 8, 12, 16
S_WAVE, S_WG, S_TAG, S_SLOT = 20, 21, 22, 23
S_PTR = 24
P_X, P_WR, P_WI, P_BX, P_WG, P_WU, P_WD, P_OUT, P_DBG, P_WS = [S_PTR + 2 * i for i in range(10)]
S_RT, S_CT, S_WOFF, S_RDY, S_XCD, S_SPIN = 64, 65, 66, 67, 68, 69
S_WLDS = 3
WSR = f"s[{S_WS}:{S_WS+3}]"; XR = f"s[{S_X}:{S_X+3}]"; AR = f"s[{S_A}:{S_A+3}]"; BR = f"s[{S_B}:{S_B+3}]"
S_C = 96; CR = f"s[{S_C}:{S_C+3}]"
LDS_P0 = 98304
SLOT = 49152
LDS_CS = 147456
LDS_SINK = 152576
LDS_ST = 160768

class Cfg:
    diag = False
    g1map = "col"
    g2map = "84"
    nt_x = ""; nt_x2 = ""; nt_w = ""; nt_a = ""; nt_z = ""; nt_h = ""; nt_g1w = ""; nt_g1w0 = ""
    E1, E2 = 2, 3
    D = 8
    xst = 6
    shift = 0
    rep = 0
    npre = 2
    cfw2 = 0
    cfx = 1
    zsplit = 0
    dly1 = 0
    dly2 = 0
    early = 0
    stage = 0
    stk = 5
    wpz = 1
    skew = -1
    fast = 0
    nfast = 2
    onepass = 0
    prio = 9
    prio0 = 9
    prioe = 9
    prio2 = 9
    prioc = 9
    psleep = 0
    nsl = 5
    ytail = 1
    csearly = 0
    csm = "m"
    rt = 0
    fbgo = 1
    a0pos = 1
    g1pos = 2
    halfpf = 0
    cfpk = 0
    wmax = 0
    sched = "R"
    sj = 4
    wj = 0
    wd = 2
    outf = ""
    cfstage = 0
    cfw0 = 1
    zfirst = 1
    fbj = 0
    a0early = 0
    bulk = 1
    cpf = 1
    rotc = 0
    rotr = 1
    perm = "01452367"
    j0early = 1
    delay = 0
    echo = ""
    echo_k = 1
    dbgclk = 0
    la2 = 3
    dbg = ""
    sc_act = "sc1"
    rot2 = 0
    nepi = 0
    pf_start, pf_step = 24, 2
    stamps = "x,p0end,go,main,epi,flag2,hrdy,st0,st8"
C = Cfg()

def stamp(A, name):
    if C.echo == name: A("s_memrealtime s[84:85]")
    if not C.diag: return
    names = ["entry"] + C.stamps.split(",") + ["end"]
    assert len(names) <= 11
    if name in names:
        n = names.index(name)
        A(f"{'s_memrealtime' if C.rt else 's_memtime'} s[{74+2*n}:{75+2*n}]")
def diag_end(A):
    if not C.diag: return
    A("s_waitcnt vmcnt(0)")
    stamp(A, "end")
    A("s_memrealtime s[72:73]\ns_waitcnt lgkmcnt(0)")
    A(f"s_lshl_b32 s3, s{S_WG}, 10\ns_lshl_b32 s44, s{S_WAVE}, 7\ns_add_u32 s3, s3, s44\ns_add_u32 s3, s3, {WS_DIAG}")
    A("v_mov_b32 v2, 0")
    for i, sreg in enumerate([70, 72, S_RDY] + [74 + 2*k for k in range(11)]):
        A(f"v_mov_b32 v3, s{sreg}\nbuffer_store_dword v3, v2, {WSR}, s3 offen offset:{4*i}")

def srd(A, s, ptr, nbytes):
    A(f"s_mov_b32 s{s}, s{ptr}\ns_and_b32 s{s+1}, s{ptr+1}, 0xffff\ns_mov_b32 s{s+2}, {nbytes}\ns_mov_b32 s{s+3}, 0x00020000")
def cos_batch(A, regs, mask, scale):
    for r in regs: A(f"v_and_b32 v{r}, {mask}, v{r}")
    for r in regs: A(f"v_cvt_f32_u32 v{r}, v{r}")
    for r in regs: A(f"v_mul_f32 v{r}, {fhex(scale)}, v{r}")
    for r in regs: A(f"v_cos_f32 v{r}, v{r}")
def wave_sum(A, v, sdst):
    for mod in ("row_shr:1 row_mask:0xf", "row_shr:2 row_mask:0xf", "row_shr:4 row_mask:0xf", "row_shr:8 row_mask:0xf",
                "row_bcast:15 row_mask:0xa", "row_bcast:31 row_mask:0xc"):
        A(f"v_add_f32_dpp v{v}, v{v}, v{v} {mod} bank_mask:0xf")
    A(f"v_readlane_b32 s{sdst}, v{v}, 63")
def set_flag(A, soff_expr_sreg, vt=3, anywave=False):
    L = A.label("L_fl")
    if not anywave: A(f"s_cmp_lg_u32 s{S_WAVE}, 0\ns_cbranch_scc1 {L}")
    A(f"v_mov_b32 v{vt}, s{S_TAG}\nv_lshlrev_b32 v{vt+1}, 2, v1\ns_mov_b32 exec_hi, 0")
    A(f"buffer_store_dword v{vt}, v{vt+1}, {WSR}, s{soff_expr_sreg} offen sc1")
    A("s_mov_b64 exec, -1")
    A(f"{L}:")
def set_flag8(A, sreg, vt):
    if not C.rep: return set_flag(A, sreg, vt)
    L = A.label("L_fl")
    A(f"s_cmp_lg_u32 s{S_WAVE}, 0\ns_cbranch_scc1 {L}")
    A(f"v_lshrrev_b32 v{vt+4}, 3, v1\nv_lshlrev_b32 v{vt+4}, 15, v{vt+4}\nv_and_b32 v{vt}, 7, v1\nv_lshl_or_b32 v{vt+4}, v{vt}, 4, v{vt+4}")
    for q in range(4): A(f"v_mov_b32 v{vt+q}, s{S_TAG}")
    A(f"buffer_store_dwordx4 v[{vt}:{vt+3}], v{vt+4}, {WSR}, s{sreg} offen sc1\n{L}:")
def poll(A, groups, vt, once=False):
    L = A.label("L_poll"); Lx = A.label("L_pollx")
    if not once: A(f"s_mov_b32 s{S_SPIN}, 0\n{L}:")
    for n, (va, so) in enumerate(groups):
        A(f"buffer_load_dword v{vt+n}, v{va}, {WSR}, {so} offen sc1")
    A("s_waitcnt vmcnt(0)")
    for n in range(1, len(groups)):
        A(f"v_xor_b32 v{vt+n}, s{S_TAG}, v{vt+n}")
    A(f"v_xor_b32 v{vt}, s{S_TAG}, v{vt}")
    for n in range(1, len(groups)):
        A(f"v_or_b32 v{vt}, v{vt}, v{vt+n}")
    A(f"v_cmp_ne_u32 vcc, 0, v{vt}")
    if once:
        A(f"s_cmp_eq_u64 vcc, 0\ns_cselect_b32 s{S_RDY}, 1, 0")
    else:
        A(f"s_cmp_eq_u64 vcc, 0\ns_cbranch_scc1 {Lx}")
        if C.psleep: A(f"s_sleep {C.psleep}")
        A(f"s_add_u32 s{S_SPIN}, s{S_SPIN}, 1\ns_cmp_lt_u32 s{S_SPIN}, 0x200000\ns_cbranch_scc1 {L}")
        A(f"{Lx}:")

V_WDMA, V_ADE, V_ADO = 146, 147, 148
S_ST0 = 2
S_AOFF = 58
def g1_stage(A, j, sreg):
    A(f"s_add_u32 s{sreg}, s{S_ST0}, {int(C.perm[j])}\ns_and_b32 s{sreg}, s{sreg}, 7")
def g1w_ops(j):
    sl = (j % 3) * SLOT
    nt = C.nt_g1w0 if j == 0 else C.nt_g1w
    if "W" in C.dbg: j = 0
    return [f"s_add_u32 s60, s{S_ST0}, {int(C.perm[j])}\ns_and_b32 s60, s60, 7\ns_mul_i32 s60, s60, {64*3584}\ns_add_u32 s60, s60, s{S_WOFF}\n"
            f"s_add_u32 m0, s{S_WLDS}, {sl}\nbuffer_load_dwordx4 v{V_WDMA}, {AR}, s60 offen {nt} lds",
            f"s_add_u32 m0, s{S_WLDS}, {sl + 8192}\nbuffer_load_dwordx4 v{V_WDMA}, {BR}, s60 offen {nt} lds"]
def g1a_ops(j):
    sl = (j % 3) * SLOT + 16384
    if "A" in C.dbg: j = 0
    L = []
    for i in range(4):
        pre = (f"s_add_u32 s61, s{S_ST0}, {int(C.perm[j])}\ns_and_b32 s61, s61, 7\ns_lshl_b32 s61, s61, 7\ns_add_u32 s61, s61, s{S_AOFF}\ns_lshl_b32 s59, s{S_WLDS}, 2\n" if i == 0
               else f"s_add_u32 s61, s61, {(4 if i & 1 else 12) * 1024}\n")
        L.append(pre + f"s_add_u32 m0, s59, {sl + i*1024}\nbuffer_load_dwordx4 v{V_ADO if i & 1 else V_ADE}, {XR}, s61 offen {C.nt_a} lds")
    return L

def prologue(A):
    if C.dbgclk or C.echo or C.skew >= 0: A("s_memtime s[80:81]\ns_memrealtime s[82:83]\ns_memrealtime s[84:85]")
    if C.diag:
        for k in range(11): A(f"s_mov_b32 s{74+2*k}, 0")
        A("s_memrealtime s[70:71]"); stamp(A, "entry")
    A("s_cmp_ge_u32 s2, 256\ns_cbranch_scc1 L_done")
    A(f"s_load_dwordx16 s[{S_PTR}:{S_PTR+15}], s[0:1], 0")
    A(f"s_load_dwordx4 s[{S_PTR+16}:{S_PTR+19}], s[0:1], 64")
    A("v_lshrrev_b32 v2, 6, v0\nv_and_b32 v1, 63, v0")
    A(f"v_readfirstlane_b32 s{S_WAVE}, v2")
    A(f"s_mov_b32 s{S_WG}, s2\ns_and_b32 s{S_XCD}, s2, 7\ns_lshr_b32 s{S_SLOT}, s2, 3\ns_mov_b32 s{S_RDY}, 0")
    code_prefetch(A, KN, "L_done", 112)
    if C.g1map == "col":
        A(f"s_mul_i32 s44, s{S_XCD}, 28\ns_add_u32 s44, s44, s{S_SLOT}\ns_and_b32 s{S_RT}, s44, 7\ns_lshr_b32 s{S_CT}, s44, 3")
    else:
        A(f"s_and_b32 s44, s{S_XCD}, 1\ns_lshl_b32 s44, s44, 2\ns_and_b32 s45, s{S_SLOT}, 3\ns_add_u32 s{S_RT}, s44, s45")
        A(f"s_lshr_b32 s44, s{S_XCD}, 1\ns_mul_i32 s44, s44, 7\ns_lshr_b32 s45, s{S_SLOT}, 2\ns_add_u32 s{S_CT}, s44, s45")
    A(f"s_mul_i32 s44, s{S_CT}, {C.rotc}\ns_mul_i32 s45, s{S_RT}, {C.rotr}\ns_add_u32 s44, s44, s45\ns_and_b32 s{S_ST0}, s44, 7")
    W = S_WAVE
    A(f"s_lshr_b32 s44, s{S_WG}, 2          ; r2")
    A(f"s_and_b32 s45, s{S_WG}, 3           ; mh")
    A(f"s_lshr_b32 s46, s45, 1\ns_lshl_b32 s46, s46, 4")
    A(f"s_and_b32 s47, s45, 1\ns_lshl_b32 s47, s47, 2\ns_add_u32 s46, s46, s47")
    A(f"s_lshr_b32 s47, s{W}, 2\ns_lshl_b32 s47, s47, 3\ns_add_u32 s46, s46, s47")
    A(f"s_and_b32 s47, s{W}, 3\ns_add_u32 s46, s46, s47     ; r1")
    A("s_lshl_b32 s46, s46, 6\ns_add_u32 s46, s46, s44\ns_lshl_b32 s56, s46, 10")
    A("v_lshlrev_b32 v2, 4, v1")
    A("s_waitcnt lgkmcnt(0)")
    srd(A, S_X, P_X, 2097152)
    A(f"buffer_load_dwordx4 v[4:7], v2, {XR}, s56 offen {C.nt_x}")
    A(f"s_load_dword s{S_TAG}, s[{P_WS}:{P_WS+1}], 0")
    srd(A, S_WS, P_WS, WS_SIZE)
    if C.skew >= 0:
        A(f"s_cmp_lg_u32 s{S_WG}, 0\ns_cbranch_scc1 L_sk0\nv_mov_b32 v8, s82\nv_mov_b32 v9, 0\nbuffer_store_dword v8, v9, {WSR}, 0 offen offset:512 sc1\ns_waitcnt vmcnt(0)\nL_sk0:")

def code_prefetch(A, start, end, vt):
    Lh = A.label("L_cph")
    A(f"s_getpc_b64 s[60:61]\n{Lh}:")
    A(f"s_mul_i32 s59, s{S_SLOT}, 1280\ns_mul_i32 s57, s{S_WAVE}, 160\ns_add_u32 s59, s59, s57\nv_and_b32 v{vt}, 15, v1\nv_lshl_add_u32 v{vt}, v{vt}, 4, s59\nv_min_u32 v{vt}, {end} - {start} - 16, v{vt}")
    A(f"s_add_u32 s60, s60, {start} - {Lh}\ns_addc_u32 s61, s61, {'-1' if start == KN else '0'}")
    A(f"v_mov_b32 v{vt+1}, s61\nv_add_co_u32 v{vt}, vcc, s60, v{vt}\nv_addc_co_u32 v{vt+1}, vcc, 0, v{vt+1}, vcc")
    A(f"global_load_dwordx4 v[{vt+2}:{vt+5}], v[{vt}:{vt+1}], off")

def gemm_only(A, fn):
    L = A.label("L_go")
    A(f"s_cmp_ge_u32 s{S_SLOT}, 28\ns_cbranch_scc1 {L}")
    fn()
    A(f"{L}:")
def wait_role(A, n_gemm, n_cf):
    L = A.label("L_wr"); L2 = A.label("L_wr")
    A(f"s_cmp_ge_u32 s{S_SLOT}, 28\ns_cbranch_scc1 {L}\ns_waitcnt vmcnt({n_gemm})\ns_branch {L2}\n{L}:\ns_waitcnt vmcnt({n_cf})\n{L2}:")

def setprio(A, mode):
    if mode == 9: return
    A("s_setprio 0")
    if mode:
        L = A.label("L_pr")
        A(f"s_cmp_{'lt' if mode == 1 else 'ge'}_u32 s{S_WAVE}, 4\ns_cbranch_scc1 {L}\ns_setprio 1\n{L}:")

def wd_stage(n, first, lds):
    B = Asm(); srd(B, S_C, P_WD, 1792 * 1024)
    L = ["\n".join(B.lines) + f"\n{first}\ns_add_u32 m0, s{S_WLDS}, {lds}\nbuffer_load_dwordx4 v2, {CR}, s60 offen lds"]
    for k in range(1, n): L.append(f"s_add_u32 s60, s60, 1024\nbuffer_load_dwordx4 v2, {CR}, s60 offen lds")
    return L
WD_ALL = f"s_mul_i32 s60, s{S_WG}, 7168\ns_min_u32 s61, s{S_WAVE}, 6\ns_lshl_b32 s61, s61, 10\ns_add_u32 s60, s60, s61"

def phase_p0(A):
    setprio(A, C.prio0)
    W = S_WAVE
    ZL = 2 * SLOT; XNL = 2 * SLOT + 16384; CL = XNL + 8192; WL = 151552; STL = WL + 8320
    B1RE, B1IM, A2RE, A2IM, S2RE, S2IM, TWC, TWS = 64, 68, 72, 76, 80, 84, 88, 92
    T = 32
    srd(A, S_A, P_WG, 512 * 3584)
    srd(A, S_B, P_WU, 512 * 3584)
    A("v_lshrrev_b32 v8, 3, v1")
    A("v_bfe_u32 v9, v1, 4, 1\nv_lshlrev_b32 v9, 2, v9\nv_and_b32 v10, 7, v1\nv_xor_b32 v9, v9, v10")
    A(f"v_mul_u32_u24 v11, 3584, v8\nv_lshl_add_u32 v{V_WDMA}, v9, 4, v11")
    A(f"s_mul_i32 s47, s{W}, {8*3584}\ns_lshl_b32 s52, s{S_CT}, 7\ns_add_u32 s{S_WOFF}, s47, s52\ns_lshl_b32 s{S_WLDS}, s{W}, 10")
    def w_flat():
        A(f"s_cmp_lt_u32 s{W}, 4\ns_cselect_b32 s{S_C}, s{P_WR}, s{P_WI}\ns_cselect_b32 s{S_C+1}, s{P_WR+1}, s{P_WI+1}")
        A(f"s_and_b32 s{S_C+1}, s{S_C+1}, 0xffff\ns_mov_b32 s{S_C+2}, {2048*514}\ns_mov_b32 s{S_C+3}, 0x00020000")
        A(f"s_mul_i32 s53, s{S_WG}, 4112\ns_and_b32 s54, s{W}, 3\ns_lshl_b32 s54, s54, 10\ns_add_u32 s55, s53, s54")
        A(f"s_lshr_b32 s61, s{W}, 2\ns_mul_i32 s61, s61, 4160\ns_add_u32 s61, s61, {WL}\ns_add_u32 m0, s61, s54")
        A(f"buffer_load_dwordx4 v2, {CR}, s55 offen {C.nt_w} lds")
        A("s_add_u32 m0, s61, 4096\ns_add_u32 s53, s53, 4096\ns_mov_b64 exec, 1")
        A(f"buffer_load_dwordx4 v2, {CR}, s53 offen {C.nt_w} lds")
        A("s_mov_b64 exec, -1")
    def bulk():
        L = A.label("L_bk"); L2 = A.label("L_bk")
        A(f"s_cmp_ge_u32 s{S_SLOT}, 28\ns_cbranch_scc1 {L}")
        for o in g1w_ops(0): A(o)
        A(f"{L}:")
        w_flat()
    if C.bulk == 0: bulk()
    A("v_lshrrev_b32 v9, 2, v8\nv_lshlrev_b32 v9, 3, v9\nv_and_b32 v8, 3, v8\nv_add_u32 v8, v8, v9\nv_lshlrev_b32 v8, 10, v8")
    A(f"v_lshrrev_b32 v9, 4, v1\nv_xor_b32 v9, v9, v10\nv_lshl_add_u32 v{V_ADE}, v9, 4, v8\nv_xor_b32 v{V_ADO}, 64, v{V_ADE}")
    A(f"s_lshl_b32 s47, s{S_RT}, 3\ns_add_u32 s47, s47, s{W}\ns_lshl_b32 s{S_AOFF}, s47, 15")
    if C.a0early == 1: gemm_only(A, lambda: [A(o) for o in g1a_ops(0)])
    M0 = "s[62:63]"
    A("v_and_b32 v30, 15, v1\nv_lshrrev_b32 v29, 4, v1")
    A(f"v_cmp_eq_u32 {M0}, 0, v30\nv_cmp_gt_u32 vcc, 8, v30")
    A("v_cvt_f32_u32 v26, v30\nv_cvt_f32_u32 v27, v29\nv_mul_f32 v27, 4.0, v27      ; k, 4g")
    Lc = A.label("L_c"); cases = [A.label("L_c") for _ in range(7)]
    A("s_mov_b32 s47, 0")
    for n in range(1, 7):
        A(f"s_cmp_eq_u32 s{W}, {n}\ns_cbranch_scc1 {cases[n]}")
    A(f"; wave 0 (and 7): B1RE\nv_mul_f32 v20, {fhex(1/32)}, v26\nv_mov_b32 v22, 0\ns_mov_b32 s47, {fhex(16.0)}\nv_mov_b32 v21, v20\nv_mov_b32 v23, 0\ns_branch {Lc}")
    A(f"{cases[1]}:\nv_mul_f32 v20, {fhex(1/32)}, v26\nv_mov_b32 v22, {fhex(0.25)}\nv_cndmask_b32 v20, v20, 0.5, {M0}\nv_cndmask_b32 v22, v22, 0, {M0}")
    A(f"s_mov_b32 s47, {fhex(16.0)}\nv_mov_b32 v21, v20\nv_mov_b32 v23, v22\ns_branch {Lc}")
    A(f"{cases[2]}:\nv_mul_f32 v20, {fhex(1/16)}, v26\nv_mov_b32 v22, 0\nv_mov_b32 v23, {fhex(0.75)}\nv_mov_b32 v21, v20\ns_branch {Lc}")
    A(f"{cases[3]}:\nv_mul_f32 v20, {fhex(1/16)}, v26\nv_cndmask_b32 v23, 0.5, 0, vcc\nv_add_f32 v22, {fhex(0.25)}, v23\nv_mov_b32 v21, v20\ns_branch {Lc}")
    for n in (4, 5):
        A(f"{cases[n]}:\nv_mul_f32 v20, {fhex(1/16)}, v26\nv_cndmask_b32 v21, v20, 0.5, {M0}\nv_sub_f32 v24, {fhex(31/32)}, v20")
        A("v_cndmask_b32 v20, 0, v21, vcc\nv_cndmask_b32 v21, v24, 0, vcc")
        if n == 4: A(f"v_mov_b32 v24, {fhex(0.25)}\nv_cndmask_b32 v22, v24, 0, vcc\nv_cndmask_b32 v23, 0, v24, vcc")
        else: A(f"v_mov_b32 v22, {fhex(0.25)}\nv_mov_b32 v23, v22")
        A(f"s_branch {Lc}")
    A(f"{cases[6]}:\nv_mul_f32 v20, {fhex(1/512)}, v26\nv_mov_b32 v22, 0\nv_mov_b32 v23, {fhex(0.75)}\nv_mov_b32 v21, v20")
    A(f"{Lc}:")
    A("v_fma_f32 v22, v27, v20, v22\nv_add_f32 v24, s47, v27\nv_fma_f32 v23, v24, v21, v23")
    for (b, v, o) in ((22, 20, T), (23, 21, T + 4)):
        A(f"v_cos_f32 v{o}, v{b}\nv_add_f32 v{o+1}, v{b}, v{v}\nv_fma_f32 v{o+2}, v{v}, 2.0, v{b}\nv_fmamk_f32 v{o+3}, v{v}, {fhex(3.0)}, v{b}")
        for q in (1, 2, 3): A(f"v_cos_f32 v{o+q}, v{o+q}")
    A(f"s_add_u32 s47, s{S_WLDS}, {CL}\nv_add_u32 v24, s47, v2")
    L6 = A.label("L_c6"); L7 = A.label("L_c7")
    A(f"s_cmp_eq_u32 s{W}, 6\ns_cbranch_scc1 {L6}\ns_cmp_eq_u32 s{W}, 7\ns_cbranch_scc1 {L7}")
    for q in range(4): A(f"v_cvt_pk_bf16_f32 v{T+q}, v{T+2*q}, v{T+2*q+1}")
    A(f"ds_write_b128 v24, v[{T}:{T+3}]\ns_branch {L7}")
    A(f"{L6}:\nds_write_b128 v24, v[{T}:{T+3}]\nds_write_b128 v24, v[{T+4}:{T+7}] offset:1024\n{L7}:")
    A(f"s_add_u32 s61, s{S_WLDS}, {XNL}")
    A("v_add_u32 v96, s61, v2\nv_lshl_add_u32 v97, v1, 3, s61")
    A(f"v_add_u32 v108, {CL}, v2")
    A(f"v_lshlrev_b32 v100, 11, v29\nv_lshl_add_u32 v100, v30, 5, v100\ns_lshl_b32 s61, s{W}, 1\ns_add_u32 s61, s61, {ZL}")
    A("v_add_u32 v100, s61, v100")
    A(f"s_waitcnt lgkmcnt(0)\ns_barrier\ns_add_u32 s{S_TAG}, s{S_TAG}, {TAGK}")
    for n in range(8): A(f"ds_read_b128 v[{64+4*n}:{67+4*n}], v108 offset:{1024*n}")
    if C.a0early == 2: gemm_only(A, lambda: [A(o) for o in g1a_ops(0)])
    if C.bulk == 1: bulk()
    A(f"v_lshlrev_b32 v101, 4, v0\nv_add_u32 v101, {ZL}, v101")
    A("s_and_b32 s61, s44, 15\nv_and_b32 v103, 15, v0\nv_xor_b32 v102, s61, v103\nv_lshlrev_b32 v102, 4, v102")
    A("v_lshrrev_b32 v12, 4, v0             ; cg")
    A("v_lshl_add_u32 v102, v12, 16, v102")
    A(f"s_lshl_b32 s46, s{S_WG}, 8\ns_add_u32 s45, s46, {WS_Z}\ns_add_u32 s46, s46, {WS_WP}")
    A("v_bfe_u32 v13, v0, 4, 4\nv_and_b32 v12, 15, v0\nv_lshlrev_b32 v14, 5, v13\nv_add_u32 v20, v14, v12\nv_sub_u32 v15, 0x200, v14")
    A("v_cmp_eq_u32 vcc, 0, v12\nv_cndmask_b32 v21, v12, 16, vcc\nv_sub_u32 v15, v15, v21\nv_cmp_gt_u32 vcc, 8, v13\nv_cndmask_b32 v20, v15, v20, vcc")
    A("v_and_b32 v12, 255, v0\nv_mov_b32 v15, 0x100\nv_cmp_eq_u32 vcc, 0, v12\nv_cndmask_b32 v20, v20, v15, vcc      ; bin")
    A(f"s_lshr_b32 s61, s{W}, 2\ns_mul_i32 s60, s61, {4*514}\ns_add_u32 s60, s60, {WL}\nv_lshl_add_u32 v127, v20, 1, s60")
    A(f"s_lshl_b32 s60, s{S_WG}, 1\ns_add_u32 s60, s60, s61\ns_and_b32 s60, s60, 7\nv_and_b32 v13, 7, v0\nv_xor_b32 v13, s60, v13\nv_lshlrev_b32 v13, 4, v13")
    A("v_lshrrev_b32 v12, 3, v12\nv_lshl_add_u32 v103, v12, 16, v13\ns_lshl_b32 s61, s61, 7\ns_add_u32 s46, s46, s61")
    A(f"s_lshl_b32 s57, s{S_WG}, 7\ns_add_u32 s57, s57, {FL_B}")
    A(f"v_lshlrev_b32 v126, 3, v1\nv_and_b32 v13, 63, v126\nv_add_u32 v99, {STL}, v13\ns_lshl_b32 s55, s{S_WG}, 7\ns_add_u32 s55, s55, {WS_ST}")
    A("v_mov_b32 v3, v102")
    if C.g1pos == 0: g1_setup(A)
    A("; ---- P0: layernorm")
    stamp(A, "consts")
    if C.bulk < 2: wait_role(A, 4, 2)
    else:
        A("s_waitcnt vmcnt(0)"); bulk()
    stamp(A, "x")
    if C.stage == 2: A(wd_stage(1, WD_ALL, 131072)[0])
    if C.halfpf:
        L = A.label("L_hp")
        A(f"s_add_u32 s60, s{S_SLOT}, 4\ns_and_b32 s61, s{S_XCD}, 1\ns_cselect_b32 s61, 4, 28\ns_sub_u32 s60, s60, s61\ns_cmp_ge_u32 s60, 4\ns_cbranch_scc1 {L}")
        A(f"s_add_u32 s60, s{S_ST0}, 4\ns_and_b32 s60, s60, 7\ns_mul_i32 s60, s60, {64*3584}\ns_add_u32 s60, s60, s{S_WOFF}\ns_add_u32 m0, s{S_WLDS}, 131072")
        A(f"buffer_load_dwordx4 v{V_WDMA}, {AR}, s60 offen {C.nt_g1w0} lds\nbuffer_load_dwordx4 v{V_WDMA}, {BR}, s60 offen {C.nt_g1w0} lds\n{L}:")
    for q in range(4):
        A(f"v_lshlrev_b32 v{T+2*q}, 16, v{4+q}\nv_and_b32 v{T+2*q+1}, 0xffff0000, v{4+q}")
    if C.onepass:
        A(f"v_readfirstlane_b32 s61, v{T}")
        for q in range(8): A(f"v_subrev_f32 v{T+16+q}, s61, v{T+q}")
        A(f"v_pk_add_f32 v[{T+8}:{T+9}], v[{T+16}:{T+17}], v[{T+18}:{T+19}]\nv_pk_add_f32 v[{T+10}:{T+11}], v[{T+20}:{T+21}], v[{T+22}:{T+23}]")
        A(f"v_pk_mul_f32 v[{T+12}:{T+13}], v[{T+16}:{T+17}], v[{T+16}:{T+17}]\nv_pk_mul_f32 v[{T+14}:{T+15}], v[{T+18}:{T+19}], v[{T+18}:{T+19}]")
        A(f"v_pk_add_f32 v[{T+8}:{T+9}], v[{T+8}:{T+9}], v[{T+10}:{T+11}]")
        A(f"v_pk_fma_f32 v[{T+12}:{T+13}], v[{T+20}:{T+21}], v[{T+20}:{T+21}], v[{T+12}:{T+13}]\nv_pk_fma_f32 v[{T+14}:{T+15}], v[{T+22}:{T+23}], v[{T+22}:{T+23}], v[{T+14}:{T+15}]")
        A(f"v_add_f32 v{T+8}, v{T+8}, v{T+9}\nv_pk_add_f32 v[{T+12}:{T+13}], v[{T+12}:{T+13}], v[{T+14}:{T+15}]\nv_mov_b32 v{T+9}, {fhex(1.0/512)}\nv_add_f32 v{T+12}, v{T+12}, v{T+13}")
        for mod in ("row_shr:1 row_mask:0xf", "row_shr:2 row_mask:0xf", "row_shr:4 row_mask:0xf", "row_shr:8 row_mask:0xf", "row_bcast:15 row_mask:0xa", "row_bcast:31 row_mask:0xc"):
            A(f"v_add_f32_dpp v{T+8}, v{T+8}, v{T+8} {mod} bank_mask:0xf\nv_add_f32_dpp v{T+12}, v{T+12}, v{T+12} {mod} bank_mask:0xf")
        A(f"v_readlane_b32 s60, v{T+8}, 63\nv_readlane_b32 s53, v{T+12}, 63")
        A(f"v_mul_f32 v{T+11}, s60, v{T+9}\nv_mul_f32 v{T+9}, s53, v{T+9}\nv_add_f32 v{T+10}, s61, v{T+11}\nv_fma_f32 v{T+9}, -v{T+11}, v{T+11}, v{T+9}\nv_max_f32 v{T+9}, 0, v{T+9}")
        A(f"v_cvt_pk_bf16_f32 v{T+10}, v{T+10}, v{T+10}\nv_lshlrev_b32 v{T+10}, 16, v{T+10}")
        for q in range(8): A(f"v_sub_f32 v{T+q}, v{T+q}, v{T+10}")
        for q in range(4): A(f"v_cvt_pk_bf16_f32 v{T+16+q}, v{T+2*q}, v{T+2*q+1}")
    else:
        A(f"v_pk_add_f32 v[{T+8}:{T+9}], v[{T}:{T+1}], v[{T+2}:{T+3}]\nv_pk_add_f32 v[{T+10}:{T+11}], v[{T+4}:{T+5}], v[{T+6}:{T+7}]")
        A(f"v_pk_add_f32 v[{T+8}:{T+9}], v[{T+8}:{T+9}], v[{T+10}:{T+11}]\nv_add_f32 v{T+8}, v{T+8}, v{T+9}")
        wave_sum(A, T + 8, 60)
        A(f"v_mov_b32 v{T+9}, {fhex(1.0/512)}\nv_mul_f32 v{T+9}, s60, v{T+9}")
        A(f"v_cvt_pk_bf16_f32 v{T+10}, v{T+9}, v{T+9}")
        for q in range(8): A(f"v_sub_f32 v{T+16+q}, v{T+q}, v{T+9}")
        A(f"v_lshlrev_b32 v{T+10}, 16, v{T+10}")
        A(f"v_mul_f32 v{T+8}, v{T+16}, v{T+16}\nv_mul_f32 v{T+11}, v{T+17}, v{T+17}")
        for q in range(2, 8, 2):
            A(f"v_fmac_f32 v{T+8}, v{T+16+q}, v{T+16+q}\nv_fmac_f32 v{T+11}, v{T+17+q}, v{T+17+q}")
        A(f"v_add_f32 v{T+8}, v{T+8}, v{T+11}")
        fill = [f"v_sub_f32 v{T+q}, v{T+q}, v{T+10}" for q in range(8)] + [f"v_cvt_pk_bf16_f32 v{T+16+q}, v{T+2*q}, v{T+2*q+1}" for q in range(4)]
        for n, mod in enumerate(("row_shr:1 row_mask:0xf", "row_shr:2 row_mask:0xf", "row_shr:4 row_mask:0xf", "row_shr:8 row_mask:0xf",
                    "row_bcast:15 row_mask:0xa", "row_bcast:31 row_mask:0xc")):
            A(fill[2*n]); A(fill[2*n+1])
            A(f"v_add_f32_dpp v{T+8}, v{T+8}, v{T+8} {mod} bank_mask:0xf")
        A(f"v_mov_b32 v{T+9}, {fhex(1.0/512)}")
        A(f"v_readlane_b32 s60, v{T+8}, 63")
    for q in range(2):
        A(f"v_lshlrev_b32 v{T+2*q}, 16, v{T+16+q}\nv_and_b32 v{T+2*q+1}, 0xffff0000, v{T+16+q}")
    if not C.onepass: A(f"v_mul_f32 v{T+9}, s60, v{T+9}")
    A(f"v_cvt_pk_bf16_f32 v{T+9}, v{T+9}, v{T+9}\nv_lshlrev_b32 v{T+9}, 16, v{T+9}")
    A(f"v_add_f32 v{T+9}, {fhex(1e-5)}, v{T+9}")
    A(f"v_cvt_pk_bf16_f32 v{T+9}, v{T+9}, v{T+9}\nv_lshlrev_b32 v{T+9}, 16, v{T+9}")
    A(f"v_sqrt_f32 v{T+9}, v{T+9}")
    A(f"v_lshlrev_b32 v{T+4}, 16, v{T+18}")
    A(f"v_cvt_pk_bf16_f32 v{T+9}, v{T+9}, v{T+9}\nv_lshlrev_b32 v{T+9}, 16, v{T+9}")
    A(f"v_rcp_f32 v{T+9}, v{T+9}")
    A(f"v_and_b32 v{T+5}, 0xffff0000, v{T+18}\nv_lshlrev_b32 v{T+6}, 16, v{T+19}\nv_and_b32 v{T+7}, 0xffff0000, v{T+19}")
    for q in range(8): A(f"v_mul_f32 v{T+q}, v{T+9}, v{T+q}")
    for q in range(4): A(f"v_cvt_pk_bf16_f32 v{4+q}, v{T+2*q}, v{T+2*q+1}")
    stamp(A, "ln")
    A("ds_write_b128 v96, v[4:7]")
    A(f"v_lshrrev_b32 v18, 16, v{T+10}\nv_or_b32 v18, v18, v{T+10}\nv_xor_b32 v18, 0x80008000, v18\nv_mov_b32 v19, v{T+9}")
    A(f"s_lshl_b32 s61, s{W}, 3\ns_add_u32 s61, s61, {STL}\nv_mov_b32 v14, s61\nds_write_b64 v14, v[18:19]")
    A("s_waitcnt lgkmcnt(0)")
    A("ds_read_b64_tr_b16 v[8:9], v97\nds_read_b64_tr_b16 v[10:11], v97 offset:512")
    if C.a0pos == 0: gemm_only(A, lambda: [A(o) for o in g1a_ops(0)])
    stamp(A, "iss1")
    A("s_waitcnt lgkmcnt(0)")
    A(f"v_mfma_f32_16x16x32_bf16 v[{T}:{T+3}], v[8:11], v[{B1RE}:{B1RE+3}], 0")
    A(f"v_mfma_f32_16x16x32_bf16 v[{T+4}:{T+7}], v[8:11], v[{B1IM}:{B1IM+3}], 0")
    for i in range(0, 4, 2):
        A(f"v_pk_mul_f32 v[{T+8+i}:{T+9+i}], v[{T+i}:{T+i+1}], v[{TWC+i}:{TWC+i+1}]\nv_pk_mul_f32 v[{T+12+i}:{T+13+i}], v[{T+4+i}:{T+5+i}], v[{TWC+i}:{TWC+i+1}]")
    for i in range(0, 4, 2):
        A(f"v_pk_fma_f32 v[{T+8+i}:{T+9+i}], v[{T+4+i}:{T+5+i}], v[{TWS+i}:{TWS+i+1}], v[{T+8+i}:{T+9+i}]")
        A(f"v_pk_fma_f32 v[{T+12+i}:{T+13+i}], v[{T+i}:{T+i+1}], v[{TWS+i}:{TWS+i+1}], v[{T+12+i}:{T+13+i}] neg_lo:[1,0,0] neg_hi:[1,0,0]")
    for q in range(4): A(f"v_cvt_pk_bf16_f32 v{8+q}, v{T+8+2*q}, v{T+9+2*q}")
    A(f"v_mfma_f32_16x16x32_bf16 v[{T}:{T+3}], v[{A2RE}:{A2RE+3}], v[8:11], 0")
    A(f"v_mfma_f32_16x16x32_bf16 v[{T+4}:{T+7}], v[{A2IM}:{A2IM+3}], v[8:11], 0")
    A(f"v_mfma_f32_16x16x32_bf16 v[{T+8}:{T+11}], v[{S2RE}:{S2RE+3}], v[8:11], 0")
    A(f"v_mfma_f32_16x16x32_bf16 v[{T+12}:{T+15}], v[{S2IM}:{S2IM+3}], v[8:11], 0")
    for i in range(8): A(f"v_cndmask_b32 v{T+i}, v{T+i}, v{T+8+i}, {M0}")
    for i in range(4): A(f"v_cvt_pk_bf16_f32 v{T+i}, v{T+i}, v{T+4+i}")
    for i in range(4):
        A(f"ds_write_b16 v100, v{T+i} offset:{512*i}\nds_write_b16_d16_hi v100, v{T+i} offset:{512*i+16}")
    stamp(A, "fft")
    A("s_mov_b32 s62, s46\ns_mov_b32 s63, s55\nv_mov_b32 v30, v127\nv_mov_b32 v17, v126\nv_mov_b32 v28, v103")
    if C.a0pos == 1: gemm_only(A, lambda: [A(o) for o in g1a_ops(0) + (g1w_ops(1) + g1a_ops(1) if C.early == 1 else [])])
    if C.g1pos == 1: g1_setup(A)
    if C.early == 2: gemm_only(A, lambda: [A(o) for o in g1w_ops(1) + g1a_ops(1)])
    stamp(A, "pre2")
    wait_role(A, 6 if C.early else 4 if C.wpz else 63, 0)
    A("s_waitcnt lgkmcnt(0)\ns_barrier")
    stamp(A, "b2")
    A("ds_read_b128 v[20:23], v101\nds_read_b64 v[18:19], v99")
    if C.a0pos == 2: gemm_only(A, lambda: [A(o) for o in g1a_ops(0)])
    if C.wpz:
        for o in wp_gather(): A(o)
    if C.early:
        A(f"s_cmp_ge_u32 s{S_SLOT}, 28\ns_cbranch_scc1 L_cf")
        return
    A(f"s_waitcnt lgkmcnt({8 if C.wpz else 0})")
    zs = p0_stores(A)
    A(zs[0]); A(zs[2])
    if C.wpz:
        A("s_waitcnt lgkmcnt(0)"); A(zs[1])
    stamp(A, "p0end")
    A(f"s_cmp_ge_u32 s{S_SLOT}, 28\ns_cbranch_scc1 L_cf")
    if C.a0pos == 3:
        for o in g1a_ops(0): A(o)
        if C.g1pos == 3: g1_setup(A)
    pre = g1w_ops(1) + g1a_ops(1)
    for o in pre[:C.npre]: A(o)
    if C.g1pos == 2: g1_setup(A)
    if C.fbgo:
        A(f"s_waitcnt vmcnt({C.npre})\ns_barrier")
        set_flag8(A, 57, 8)
        for o in pre[C.npre:]: A(o)
        A(f"s_sub_u32 s57, s57, {FL_B - FL_W}")
    else:
        L = A.label("L_w0"); L2 = A.label("L_w0")
        A(f"s_cmp_eq_u32 s{W}, 0\ns_cbranch_scc1 {L}\ns_waitcnt vmcnt(7)\ns_branch {L2}\n{L}:\ns_waitcnt vmcnt(8)\n{L2}:\ns_barrier")

def wp_gather():
    return [f"ds_read_u16 v{24+q}, v30 offset:{514*q}\nds_read_u16 v{4+q}, v30 offset:{4160+514*q}" for q in range(4)]
def p0_stores(A):
    a = f"buffer_store_dwordx4 v[20:23], v3, {WSR}, s45 offen sc1"
    L = A.label("L_p0_st")
    c = f"s_cmp_lg_u32 s{S_WAVE}, 0\ns_cbranch_scc1 {L}\ns_mov_b64 exec, 0xffff\nbuffer_store_dwordx2 v[18:19], v17, {WSR}, s63 offen sc1\ns_mov_b64 exec, -1\n{L}:"
    b = "\n".join(f"v_lshl_or_b32 v{24+q}, v{4+q}, 16, v{24+q}" for q in range(4)) + f"\nbuffer_store_dwordx4 v[24:27], v28, {WSR}, s62 offen sc1"
    if "z" in C.dbg: return [f"buffer_load_dword v20, v2, {WSR}, 0 offen", f"buffer_load_dword v20, v2, {WSR}, 0 offen", c]
    if "y" in C.dbg: return [a, f"buffer_load_dword v20, v2, {WSR}, 0 offen"]
    return [a, b, c]

def wd_prefetch_ops(A):
    srd(A, S_C, P_WD, 1792 * 1024)
    A(f"s_lshl_b32 s100, s{S_SLOT}, 16\ns_lshl_b32 s101, s{S_WAVE}, 13\ns_add_u32 s100, s100, s101")
    if C.g2map == "48":
        A(f"v_mov_b32 v159, v2\ns_mov_b32 s101, s{S_XCD}"); n, sh = 8, 10
    else:
        A(f"v_and_b32 v159, 31, v1\nv_lshlrev_b32 v159, 4, v159\nv_lshrrev_b32 v158, 5, v1\nv_lshl_add_u32 v159, v158, 10, v159")
        A(f"s_and_b32 s101, s{S_XCD}, 1\ns_lshl_b32 s101, s101, 9\ns_add_u32 s100, s100, s101\ns_lshr_b32 s101, s{S_XCD}, 1"); n, sh = 4, 11
    return [f"s_add_u32 m0, s{S_WLDS}, {LDS_SINK}\ns_lshl_b32 s60, s101, {sh}\ns_add_u32 s60, s60, s100\n"
            f"buffer_load_dwordx4 v159, {CR}, s60 offen lds\ns_add_u32 s101, s101, 1\ns_and_b32 s101, s101, {n-1}"] * n

V_G2W = 13
V_G2X = 244
def g2_setup(A, vw=V_G2W, vx=V_G2X, t0=14, t1=15):
    W = S_WAVE
    if C.g2map == "48":
        A(f"s_lshl_b32 s44, s{S_XCD}, 2\ns_and_b32 s45, s{S_SLOT}, 3\ns_add_u32 s44, s44, s45\ns_lshr_b32 s45, s{S_SLOT}, 2")
    else:
        A(f"s_lshr_b32 s44, s{S_XCD}, 1\ns_lshl_b32 s44, s44, 3\ns_and_b32 s45, s{S_SLOT}, 7\ns_add_u32 s44, s44, s45")
        A(f"s_and_b32 s45, s{S_XCD}, 1\ns_lshl_b32 s45, s45, 2\ns_lshr_b32 s46, s{S_SLOT}, 3\ns_add_u32 s45, s45, s46")
    A(f"s_and_b32 s48, s{W}, 3\ns_lshr_b32 s49, s{W}, 2")
    A("s_lshl_b32 s50, s44, 2\ns_add_u32 s50, s50, s48       ; rb16")
    srd(A, S_A, P_WD, 1792 * 1024)
    A(f"v_lshrrev_b32 v{vw}, 3, v1\nv_bfe_u32 v{t0}, v1, 4, 2\nv_lshlrev_b32 v{t0}, 1, v{t0}\nv_and_b32 v{t1}, 7, v1\nv_xor_b32 v{t0}, v{t0}, v{t1}")
    A(f"v_lshlrev_b32 v{vw}, 10, v{vw}\nv_lshl_add_u32 v{vw}, v{t0}, 4, v{vw}")
    A(f"s_lshl_b32 s46, s48, 15\ns_lshl_b32 s51, s45, 7\ns_add_u32 s51, s51, s46\ns_mul_i32 s55, s49, {896*1024}\ns_add_u32 s51, s51, s55")
    A("s_lshl_b32 s46, s48, 12\ns_lshl_b32 s55, s49, 14\ns_add_u32 s55, s55, s46")
    if C.rot2:
        if C.g2map == "48": A("s_cmp_eq_u32 s45, 7\ns_cselect_b32 s52, 0, s45")
        else: A(f"s_and_b32 s52, s45, 3\ns_mul_i32 s52, s52, {C.rot2}")
        A("s_mov_b32 s53, s52\ns_lshl_b32 s46, s52, 17\ns_add_u32 s51, s51, s46")
    A(f"v_lshrrev_b32 v{t0}, 3, v1\nv_and_b32 v{vx}, 3, v{t0}\nv_lshrrev_b32 v{t0}, 2, v{t0}\nv_lshl_or_b32 v{vx}, v{t0}, 3, v{vx}")
    A(f"v_lshlrev_b32 v{vx}, 10, v{vx}\nv_and_b32 v{t1}, 7, v1\nv_lshl_add_u32 v{vx}, v{t1}, 4, v{vx}")
    A(f"s_and_b32 s56, s{W}, 6\ns_lshl_b32 s56, s56, 3\ns_and_b32 s46, s{W}, 1\ns_lshl_b32 s46, s46, 2\ns_add_u32 s56, s56, s46")
    A("s_lshl_b32 s46, s44, 6\ns_add_u32 s56, s56, s46\ns_lshl_b32 s56, s56, 10\ns_lshl_b32 s46, s45, 7\ns_add_u32 s56, s56, s46")
def g2w_ops(n, vw=V_G2W):
    L = []
    for k in range(4):
        if n < 7 or "H" in C.dbg:
            L.append(f"s_add_u32 m0, s55, {(n % C.nsl)*32768 + k*1024}\ns_add_u32 s52, s51, {min(n, 6)*131072 + k*8192}\nbuffer_load_dwordx4 v{vw}, {AR}, s52 offen lds")
        else:
            L.append(f"s_add_u32 m0, s55, {(n % C.nsl)*32768}\n" + f"buffer_load_dwordx4 v2, {WSR}, s58 offen offset:{1024*k} sc1 lds" + ("\ns_add_u32 s58, s58, 16384" if k == 3 else ""))
    return L
def g2_wdma(A, n):
    for o in g2w_ops(n): A(o)
def weave(A, mf, fill, skip=0):
    if C.wmax and len(fill) > C.wmax * (len(mf) - skip):
        k = 0
        for i, m in enumerate(mf):
            A(m)
            if i >= skip:
                for f in fill[k:k + C.wmax]: A(f)
                k += C.wmax
        for f in fill[k:]: A(f)
        return
    n = len(mf) - skip; k = 0
    for i, m in enumerate(mf):
        A(m)
        if i >= skip:
            e = (len(fill) * (i - skip + 1) + n - 1) // n
            for f in fill[k:e]: A(f)
            k = e

def gelu_block(g, u, T, K):
    P = lambda r: f"v[{r}:{r+1}]"
    L = []
    for n in range(0, 8, 2): L.append(f"v_pk_mul_f32 {P(T+n)}, {P(g+n)}, {P(g+n)}")
    for n in range(0, 8, 2): L.append(f"v_pk_fma_f32 {P(T+n)}, {P(T+n)}, {P(K)}, {P(K+2)}")
    for n in range(0, 8, 2): L.append(f"v_pk_mul_f32 {P(T+n)}, {P(T+n)}, {P(g+n)}")
    for n in range(8): L.append(f"v_exp_f32 v{T+n}, v{T+n}")
    for n in range(0, 8, 2): L.append(f"v_pk_mul_f32 {P(T+8+n)}, {P(g+n)}, {P(u+n)}")
    for n in range(0, 8, 2): L.append(f"v_pk_fma_f32 {P(T+n)}, {P(T+n)}, {P(K+4)}, {P(K+4)}")
    for n in range(8): L.append(f"v_rcp_f32 v{T+n}, v{T+n}")
    for n in range(0, 8, 2): L.append(f"v_pk_mul_f32 {P(T+n)}, {P(T+n)}, {P(T+8+n)}")
    for q in range(4): L.append(f"v_cvt_pk_bf16_f32 v{T+8+q}, v{T+2*q}, v{T+2*q+1}")
    return L

def g1_setup(A):
    W = S_WAVE; AD = 208
    A(f"s_and_b32 s48, s{W}, 3\ns_lshr_b32 s49, s{W}, 2")
    A("v_lshrrev_b32 v8, 5, v1\nv_lshlrev_b32 v11, 3, v8\nv_bfe_u32 v9, v1, 2, 2\nv_add_u32 v11, v11, v9\nv_lshlrev_b32 v11, 7, v11")
    A("v_and_b32 v10, 3, v1\nv_lshl_add_u32 v11, v10, 3, v11\nv_bfe_u32 v10, v1, 4, 1\nv_lshl_add_u32 v11, v10, 5, v11")
    A(f"v_lshrrev_b32 v9, 1, v9\nv_xor_b32 v9, s49, v9\nv_lshl_add_u32 v12, v9, 6, v11")
    A("v_and_b32 v9, 31, v1\nv_bfe_u32 v10, v1, 1, 3\nv_xor_b32 v10, v10, v8\nv_lshlrev_b32 v10, 4, v10\nv_lshl_add_u32 v10, v9, 7, v10")
    A(f"s_lshl_b32 s50, s48, 13\ns_add_u32 s50, s50, 16384\nv_add_u32 v10, s50, v10")
    for k in range(4):
        A(f"s_add_u32 s50, s48, {k}\ns_and_b32 s50, s50, 3\ns_lshl_b32 s52, s50, 5\nv_xor_b32 v{AD+4+k}, s52, v10\ns_lshl_b32 s52, s50, 11\nv_add_u32 v{AD+k}, s52, v12")
    for sl in (1, 2):
        for n in range(8): A(f"v_add_u32 v{AD+8*sl+n}, {sl*SLOT}, v{AD+n}")
    if C.csm == "v":
        for q in range(4): A(f"v_mov_b32 v{128+q}, 0")
    else:
        A("v_and_b32 v12, 15, v1\nv_bfe_u32 v11, v1, 4, 1\nv_mov_b32 v233, 0x3f803f80\nv_cmp_eq_u32 vcc, v11, v12\nv_cndmask_b32 v232, 0, v233, vcc")
        for q in range(1, 4): A(f"v_mov_b32 v{232+q}, v232")
        for q in range(8): A(f"v_mov_b32 v{128+q}, 0")
    A("v_and_b32 v157, 15, v1\nv_lshlrev_b32 v157, 4, v157\nv_lshl_add_u32 v157, v8, 8, v157")
    A("v_bfe_u32 v11, v1, 4, 1\nv_mul_u32_u24 v11, 57344, v11\nv_add_u32 v157, v157, v11")
    A(f"s_lshl_b32 s50, s{S_RT}, 3\ns_lshl_b32 s51, s48, 1\ns_add_u32 s50, s50, s51")
    A(f"s_mul_i32 s47, s50, {2*57344}\ns_lshl_b32 s52, s{S_CT}, 11\ns_add_u32 s47, s47, s52\ns_lshl_b32 s52, s49, 10\ns_add_u32 s47, s47, s52\ns_add_u32 s47, s47, {WS_H}")
    A(f"s_lshr_b32 s51, s{S_RT}, 2\ns_lshl_b32 s51, s51, 1\ns_and_b32 s52, s{S_RT}, 1\ns_add_u32 s51, s51, s52\ns_lshl_b32 s51, s51, 7\ns_add_u32 s51, s51, {FL_B}")
    A(f"s_lshl_b32 s52, s{W}, 12\ns_add_u32 s51, s51, s52\ns_lshl_b32 s50, s{S_RT}, 4\ns_and_b32 s50, s50, 32\ns_add_u32 s50, s50, s51\ns_add_u32 s50, s50, {WS_ST - FL_B}")
    if C.rep: A(f"s_lshl_b32 s52, s{S_XCD}, 15\ns_add_u32 s51, s51, s52")
    A("v_and_b32 v149, 7, v1\nv_lshlrev_b32 v149, 9, v149\nv_bfe_u32 v153, v1, 1, 3\nv_lshlrev_b32 v153, 9, v153\nv_and_b32 v11, 1, v1\nv_lshl_or_b32 v153, v11, 4, v153")
    A("v_and_b32 v154, 0x13, v9\nv_bfe_u32 v11, v9, 2, 1\nv_lshl_or_b32 v154, v11, 3, v154\nv_bfe_u32 v11, v9, 3, 1\nv_lshl_or_b32 v154, v11, 2, v154")
    A(f"s_lshl_b32 s52, s48, 3\ns_add_u32 s52, s52, {LDS_ST}\nv_lshl_add_u32 v154, v154, 5, s52")
    if C.csm == "v": A(f"s_lshl_b32 s52, s49, 11\ns_add_u32 s52, s52, {LDS_CS}\nv_add_u32 v155, s52, v2\ns_lshl_b32 s52, s48, 2\nv_add_u32 v156, s52, v155")
    else: A(f"s_lshl_b32 s52, s49, 11\ns_add_u32 s52, s52, {LDS_CS}\nv_lshl_add_u32 v155, v9, 4, s52\ns_lshl_b32 s52, s48, 2\nv_add_u32 v156, s52, v155")

def phase_g1(A):
    W = S_WAVE
    ACC = 64; WF = 32; AD = 208
    vm = [("w", 1)] * 2 + [("a", 1)] * 4
    wps = p0_stores(A)[1]
    zst = p0_stores(A); zst = [zst[2] + "\n" + zst[0], zst[1]]
    zst = zst + []
    def reads(kk, st):
        j, k = kk // 4, kk % 4
        wa = AD + 8 * (j % 3) + k; aa = wa + 4; d = WF + 16 * st
        return [f"ds_read_b64_tr_b16 v[{d}:{d+1}], v{wa} offset:0", f"ds_read_b64_tr_b16 v[{d+2}:{d+3}], v{wa} offset:512",
                f"ds_read_b128 v[{d+8}:{d+11}], v{aa}",
                f"ds_read_b64_tr_b16 v[{d+4}:{d+5}], v{wa} offset:8192", f"ds_read_b64_tr_b16 v[{d+6}:{d+7}], v{wa} offset:8704",
                f"ds_read_b128 v[{d+12}:{d+15}], v{aa} offset:4096"]
    def younger(ops):
        return len(vm) - 1 - max(i for i, o in enumerate(vm) if o in ops)
    for _ in range(C.dly1): A("s_sleep 16")
    stamp(A, "go")
    setprio(A, C.prio)
    if C.wj == 0 and not C.wpz:
        for o in wp_gather(): A(o)
    for r in reads(0, 0): A(r)
    pfo = wd_prefetch_ops(A); npf = len(pfo)
    pf = 0
    fill = []
    K1 = -2.0 * 0.7978845608028654 * 1.4426950408889634
    for kk in range(32):
        j, k = kk // 4, kk % 4
        st = kk & 1
        if k == 3 and kk < 31:
            A(f"s_waitcnt vmcnt({younger([('w', j + 1), ('a', j + 1), ('f', j + 1)])}) lgkmcnt(0)\ns_barrier")
            stamp(A, f"g{j+1}")
            if C.early and j == C.fbj: set_flag8(A, 57, 8)
            if j == 0 and not C.fbgo and not C.early:
                set_flag(A, 57, 16)
                A(f"s_sub_u32 s57, s57, {FL_B - FL_W}")
            if j + 1 == C.wj and not C.wpz:
                for o in wp_gather(): A(o)
            if j + 1 == C.wj + C.wd and not C.wpz: set_flag(A, 57, 16)
        if kk == 4 * C.sj - 1:
            L = A.label("L_g1_ok")
            A(f"v_cmp_ne_u32 vcc, s{S_TAG}, v16\ns_cmp_eq_u64 vcc, 0\ns_cbranch_scc1 {L}")
            poll(A, [(149, "s51")], 16)
            A(f"{L}:")
            A(f"s_lshl_b32 s52, s{W}, 8\ns_add_u32 m0, s52, {LDS_ST}\ns_mov_b64 exec, 0xffff\nbuffer_load_dwordx4 v153, {WSR}, s50 offen sc1 lds\ns_mov_b64 exec, -1")
            vm.append(("f", C.sj + 2))
        if kk == 27:
            A("ds_read_b64 v[150:151], v154\nds_read_b64 v[152:153], v154 offset:1024")
        if kk == 28:
            for b in range(2):
                m, r, K = 150 + 2 * b, 151 + 2 * b, 160 + 8 * b
                if C.csm == "m": fill += ["v_cmp_gt_u32 vcc, 32, v1", "s_nop 0", f"v_cndmask_b32 v{m}, 0, v{m}, vcc"]
                fill += [f"v_mov_b32 v{136+4*b+q}, v{m}" for q in range(4)]
                fill += (f"v_mul_f32 v{K+6}, v{r}, v{r}\nv_mul_f32 v{K+2}, {fhex(K1)}, v{r}\nv_rcp_f32 v{K+4}, v{K+6}\nv_mul_f32 v{K}, {fhex(0.044715)}, v{K+6}\n"
                         f"v_mul_f32 v{K}, v{K}, v{K+2}\nv_mov_b32 v{K+3}, v{K+2}\nv_mov_b32 v{K+5}, v{K+4}\nv_mov_b32 v{K+1}, v{K}").split("\n")
        if kk == C.stk + 1 and C.stage == 3: pass
        if kk == 24:
            B = Asm(); g2_setup(B); fill += [l for l in B.lines if not l.startswith(";")]
        if kk == 31 and C.csearly:
            assert not fill
            A("s_mov_b64 exec, 0xffff\nds_write_b32 v156, v128\nds_write_b32 v156, v129 offset:256\nds_write_b32 v156, v132 offset:1024\nds_write_b32 v156, v133 offset:1280\ns_mov_b64 exec, -1")
            A(f"s_waitcnt lgkmcnt(0)\ns_barrier\nds_read_b128 v[{WF}:{WF+3}], v155\nds_read_b128 v[{WF+4}:{WF+7}], v155 offset:1024")
        if kk == (29 if C.csearly else 30) and C.csm == "m":
            for r in (128, 129, 132, 133): fill += f"v_cvt_pk_bf16_f32 v16, v{r}, v{r}\nv_lshlrev_b32 v16, 16, v16\nv_sub_f32 v16, v{r}, v16\nv_cvt_pk_bf16_f32 v{r}, v{r}, v16".split("\n")
        nxt = reads(kk + 1, st ^ 1) if kk < 31 else []
        ops = []
        full = lambda jj: [(("w", jj), o) for o in g1w_ops(jj)] + [(("a", jj), o) for o in g1a_ops(jj)]
        if C.early and j == 0:
            allo = [(("f", C.fbj + 1), o) for o in zst] + full(2)[2:]
            ops += (allo[:2], allo[2:4], allo[4:5], allo[5:])[k]
        elif C.early and j == 1:
            ops += (full(2)[:2] + full(3))[2 * k:2 * k + 2]
        elif j + 2 < 8:
            if k == 0: ops += [(("w", j + 2), o) for o in g1w_ops(j + 2)]
            ops.append((("a", j + 2), g1a_ops(j + 2)[k]))
        if kk == 4 * C.wj and not C.wpz: ops.insert(0, (("f", C.wj + C.wd), wps))
        if kk == C.stk and C.stage == 3: ops.append((("p", 0), wd_stage(1, WD_ALL.replace("s61", "s53"), LDS_SINK)[0]))
        if kk == 4 * C.sj - 5:
            ops.append((("f", C.sj), f"buffer_load_dword v16, v149, {WSR}, s51 offen sc1"))
        d = WF + 16 * st
        for m, (wo, ao) in enumerate(((0, 8), (4, 8), (0, 12), (4, 12))):
            if m < 3 and not (k == 3 and (kk < 31 or C.csearly)):
                A(f"s_waitcnt lgkmcnt({(3, 1, 0)[m] + len(nxt[0:2*m])})")
            c = f"v[{ACC+16*m}:{ACC+16*m+15}]"
            if "S" in C.dbg:
                for z in range(2):
                    cc = f"v[{ACC+16*m+8*(kk&1)+4*z}:{ACC+16*m+8*(kk&1)+4*z+3}]"
                    A(f"v_mfma_f32_16x16x32_bf16 {cc}, v[{d+wo}:{d+wo+3}], v[{d+ao}:{d+ao+3}], {cc if kk > 1 else 0}")
            else:
                A(f"v_mfma_f32_32x32x16_bf16 {c}, v[{d+wo}:{d+wo+3}], v[{d+ao}:{d+ao+3}], {c if kk else 0}")
            for r in nxt[2*m:2*m+2]: A(r)
            if ops and (m >= 1 or len(ops) > 3):
                tag, o = ops.pop(0); A(o); vm.append(tag)
            if "c" not in C.dbg and C.csm == "m" and k == 0 and m in (1, 3):
                z = m >> 1
                A(f"v_mfma_f32_16x16x32_bf16 v[{128+4*z}:{131+4*z}], v[232:235], v[{d+4*z}:{d+4*z+3}], v[{128+4*z}:{131+4*z}]")
            if "c" not in C.dbg and C.csm == "v":
                src = d + 4 * (m & 1) + k
                if m < 2: A(f"v_lshlrev_b32 v{132+m}, 16, v{src}\nv_and_b32 v{134+m}, 0xffff0000, v{src}")
                else: A(f"v_add_f32 v{128+(m&1)}, v{128+(m&1)}, v{132+(m&1)}\nv_add_f32 v{130+(m&1)}, v{130+(m&1)}, v{134+(m&1)}")
            cnt = 0
            while fill and cnt < (2 if C.csm == 'v' else 5):
                l = fill.pop(0); A(l); cnt += 0.34 if l.startswith("s_") else 1
            if m == 2 and pf < npf and kk >= C.pf_start and (kk - C.pf_start) % C.pf_step == 0:
                A(pfo[pf]); vm.append(("p", pf)); pf += 1
        assert not ops
    assert (pf == npf or C.pf_start > 31) and not fill
    stamp(A, "main")
    setprio(A, C.prioe)
    if C.csm == "m" and not C.csearly: A("s_mov_b64 exec, 0xffff\nds_write_b32 v156, v128\nds_write_b32 v156, v129 offset:256\nds_write_b32 v156, v132 offset:1024\nds_write_b32 v156, v133 offset:1280\ns_mov_b64 exec, -1")
    def split(r): return f"v_cvt_pk_bf16_f32 v16, v{r}, v{r}\nv_lshlrev_b32 v16, 16, v16\nv_sub_f32 v16, v{r}, v16\nv_cvt_pk_bf16_f32 v{r}, v{r}, v16"
    if C.csm == "v":
        for r in (128, 129): A(f"v_add_f32 v{r}, v{r}, v{r+2}\n" + split(r))
        A("ds_write_b32 v156, v128\nds_write_b32 v156, v129 offset:1024")
    if not C.csearly:
        A("s_waitcnt lgkmcnt(0)\ns_barrier")
        A(f"ds_read_b128 v[{WF}:{WF+3}], v155\nds_read_b128 v[{WF+4}:{WF+7}], v155 offset:1024")
    A("s_waitcnt lgkmcnt(0)")
    for m in range(4):
        c = f"v[{ACC+16*m}:{ACC+16*m+15}]"
        A(f"v_mfma_f32_32x32x16_bf16 {c}, v[{WF+4*(m&1)}:{WF+4*(m&1)+3}], v[{136+4*(m>>1)}:{139+4*(m>>1)}], {c}")
    for b in range(2):
        for half in range(2):
            n = 2 * b + half
            T = 176 + 16 * (n & 1)
            for l in gelu_block(ACC + 32 * b + 8 * half, ACC + 32 * b + 16 + 8 * half, T, 160 + 8 * b): A(l)
            if n == 2: A(f"s_add_u32 s47, s47, {2*57344}")
            A(f"buffer_store_dwordx4 v[{T+8}:{T+11}], v157, {WSR}, s47 offen offset:{512*half} sc1")
    stamp(A, "epi")
    A("s_waitcnt vmcnt(0)\ns_barrier")
    A(f"s_lshl_b32 s57, s{S_RT}, 5\ns_add_u32 s57, s57, s{S_CT}\ns_lshl_b32 s57, s57, 7\ns_add_u32 s57, s57, {FL_H}")
    set_flag(A, 57, 16)
    stamp(A, "flag2")
    for n in range(C.nfast if C.fast else C.nsl): g2_wdma(A, n)

def phase_cf(A):
    W = S_WAVE
    ZL = 0; WL = 65536; TW = 131072; FR = TW + 8192
    D0 = 64; D1 = 128; PK = 192; WW = 224
    FC, FS, FN = 8, 16, 24
    OC, OS, ON = 32, 40, 48
    A("; ---- CF")
    setprio(A, C.prioc)
    if C.early:
        A("s_waitcnt lgkmcnt(0)")
        for o in p0_stores(A): A(o)
    A(f"s_lshl_b32 s44, s{S_XCD}, 2\ns_add_u32 s44, s44, s{S_SLOT}\ns_sub_u32 s44, s44, 28    ; cg")
    if not C.wpz:
        for o in wp_gather(): A(o)
        A("s_waitcnt lgkmcnt(0)")
        A(p0_stores(A)[1])
    if C.stage == 1:
        for o in wd_stage(7, f"s_mul_i32 s60, s44, 57344\ns_mul_i32 s61, s{W}, 7168\ns_add_u32 s60, s60, s61", 122880): A(o)
    if C.stage == 3: A(wd_stage(1, WD_ALL, 122880)[0])
    A("; G fragments of this bin group: thread -> column d = tid, both parts c; 8 bins each")
    A("s_lshr_b32 s46, s44, 1\ns_lshl_b32 s47, s46, 5\ns_and_b32 s49, s44, 1\ns_lshl_b32 s49, s49, 3\ns_add_u32 s47, s47, s49      ; 32 k2 + k1(beta = 0)")
    A("s_sub_u32 s48, 0x200, s47\ns_cmp_lt_u32 s46, 8\ns_cselect_b32 s47, s47, s48\ns_cselect_b32 s50, 1.0, -1.0\ns_cselect_b32 s51, 0, 16")
    A("s_cmp_eq_u32 s49, 0\ns_cselect_b32 s51, s51, 0\ns_sub_u32 s51, s47, s51\ns_cmp_eq_u32 s44, 0\ns_cselect_b32 s51, 0x100, s51")
    A(f"s_mov_b32 s52, {fhex(2.0**-19)}\ns_cselect_b32 s53, {fhex(2.0**-20)}, s52")
    A(f"v_cvt_f32_u32 v8, v0\nv_mul_f32 v8, {fhex(1/512)}, v8\nv_cvt_f32_u32 v9, s47\nv_cvt_f32_u32 v10, s51\nv_mul_f32 v9, v9, v8\nv_mul_f32 v64, v10, v8\nv_mul_f32 v8, s50, v8")
    A("v_fract_f32 v9, v9\nv_fract_f32 v64, v64")
    for j in range(1, 8): A(f"v_fmamk_f32 v{64+j}, v8, {fhex(float(j))}, v9")
    for j in range(8): A(f"v_add_f32 v{72+j}, {fhex(0.25)}, v{64+j}")
    for j in range(16): A(f"v_cos_f32 v{64+j}, v{64+j}")
    for j in range(16): A(f"v_mul_f32 v{64+j}, s{53 if j % 8 == 0 else 52}, v{64+j}")
    for q in range(8): A(f"v_cvt_pk_bf16_f32 v{64+q}, v{64+2*q}, v{65+2*q}")
    A(f"v_and_b32 v14, 15, v1\nv_lshlrev_b32 v14, 4, v14\nv_lshrrev_b32 v15, 4, v1\nv_lshl_add_u32 v14, v15, 10, v14")
    A(f"s_lshl_b32 s46, s46, 12\ns_lshl_b32 s49, s49, 6\ns_add_u32 s46, s46, s49\ns_lshl_b32 s47, s{W}, 16\ns_add_u32 s46, s46, s47\ns_add_u32 s46, s46, {WS_G}")
    A(f"buffer_store_dwordx4 v[64:67], v14, {WSR}, s46 offen sc1\nbuffer_store_dwordx4 v[68:71], v14, {WSR}, s46 offen offset:256 sc1")
    A("v_and_b32 v3, 31, v1\nv_lshrrev_b32 v4, 5, v1\nv_lshlrev_b32 v4, 2, v4")
    A(f"s_and_b32 s52, s{W}, 3\ns_lshl_b32 s52, s52, 3\ns_lshr_b32 s53, s{W}, 2\ns_mul_i32 s53, s53, 1536")
    A("v_add_u32 v5, s52, v4")
    for b in range(4):
        A(f"v_add_u32 v6, {b}, v5\nv_mad_u32_u24 v{64+b}, v6, v3, s53")
    def frag(dst, matsel):
        A(f"s_and_b32 s54, s{W}, 1\ns_lshl_b32 s54, s54, 4")
        A(f"s_lshr_b32 s55, s{W}, 1\ns_and_b32 s55, s55, 1\ns_mul_i32 s55, s55, 48")
        if matsel == 0: A(f"s_lshr_b32 s56, s{W}, 2\nv_lshl_add_u32 v7, v3, 1, s56")
        for j in range(8):
            A(f"v_add_u32 v6, s54, v4\nv_add_u32 v6, {8*(j>>2) + (j&3)}, v6")
            if matsel == 0: A(f"v_mad_u32_u24 v{dst+j}, v6, v7, s55")
            else: A(f"v_lshl_add_u32 v6, v6, 1, 1\nv_mad_u32_u24 v{dst+j}, v6, v3, s55")
    frag(80, 0); frag(88, 1)
    cos_batch(A, range(64, 68), 2047, 1.0 / 2048)
    cos_batch(A, range(80, 96), 63, 1.0 / 64)
    A(f"s_lshl_b32 s52, s52, 8\ns_lshr_b32 s53, s{W}, 2\ns_lshl_b32 s53, s53, 10\ns_add_u32 s52, s52, s53\ns_add_u32 s52, s52, {TW}")
    A("v_add_u32 v5, s52, v2\nds_write_b128 v5, v[64:67]")
    for q in range(8): A(f"v_cvt_pk_bf16_f32 v{80+q}, v{80+2*q}, v{81+2*q}")
    A(f"s_lshl_b32 s52, s{W}, 10\ns_add_u32 s52, s52, {FR}\nv_add_u32 v5, s52, v2")
    A("ds_write_b128 v5, v[80:83]")
    Ls = A.label("L_cf_skip")
    A(f"s_cmp_ge_u32 s{W}, 4\ns_cbranch_scc1 {Ls}\nds_write_b128 v5, v[84:87] offset:8192\n{Ls}:")
    A(f"v_add_u32 v56, {TW}, v2\nv_add_u32 v57, {FR}, v2")
    A(f"s_lshl_b32 s52, s{W}, 1\nv_and_b32 v6, 15, v1\nv_xor_b32 v6, s52, v6\nv_lshlrev_b32 v6, 4, v6")
    A("v_lshl_add_u32 v6, v3, 10, v6\nv_lshl_add_u32 v58, v4, 6, v6\nv_xor_b32 v59, 16, v58")
    A(f"v_lshrrev_b32 v5, 2, v3\nv_xor_b32 v6, s{W}, v5\nv_lshlrev_b32 v6, 4, v6\nv_lshl_add_u32 v6, v5, 7, v6\nv_and_b32 v5, 3, v3\nv_lshl_add_u32 v6, v5, 2, v6\nv_lshl_add_u32 v6, v4, 11, v6\nv_add_u32 v7, {WL}, v6")
    A(f"s_waitcnt vmcnt({2 + {1: 7, 3: 1}.get(C.stage, 0)}) lgkmcnt(0)\ns_barrier")
    set_flag8(A, 57, 8)
    if not C.wpz:
        A(f"s_sub_u32 s57, s57, {FL_B - FL_W}")
        set_flag(A, 57, 16)
    stamp(A, "fd")
    if C.zsplit: A(f"v_and_b32 v6, 15, v1\nv_bfe_u32 v5, v1, 4, 1\nv_lshl_or_b32 v6, v5, 7, v6\nv_lshlrev_b32 v6, 7, v6\ns_lshl_b32 s57, s{W}, 11\ns_add_u32 s57, s57, {FL_B}")
    else: A(f"v_lshlrev_b32 v6, 7, v3\ns_lshl_b32 s57, s{W}, 12\ns_add_u32 s57, s57, {FL_B}")
    if C.rep: A(f"s_lshl_b32 s46, s{S_XCD}, 15\ns_add_u32 s57, s57, s46")
    poll(A, [(6, "s57")], 64)
    stamp(A, "rdy1")
    A(f"s_lshl_b32 s48, s44, 16\ns_lshl_b32 s49, s{W}, 13\ns_add_u32 s50, s48, s49")
    def dma64(base, lb):
        return [(f"s_add_u32 s51, s50, {base}\n" if k == 0 else "s_add_u32 s51, s51, 1024\n") +
                f"s_add_u32 m0, s49, {lb + k*1024}\nbuffer_load_dwordx4 v2, {WSR}, s51 offen sc1 {C.nt_z} lds" for k in range(8)]
    def dma_split(base, lb):
        L = []
        for k in range(8):
            o = (k >> 2) * 32768 + (k & 3) * 1024
            L.append((f"s_lshl_b32 s46, s{W}, 12\ns_add_u32 s51, s48, s46\ns_add_u32 s51, s51, {base}\n" if k == 0 else "") +
                     f"s_add_u32 m0, s46, {lb + o}\ns_add_u32 s53, s51, {o}\nbuffer_load_dwordx4 v2, {WSR}, s53 offen sc1 lds")
        return L
    for o in (dma_split if C.zsplit else dma64)(WS_Z, ZL): A(o)
    P = lambda r: f"v[{r}:{r+1}]"
    def load_frags(Cc, S, mat):
        return [f"ds_read_b128 v[{R+4*m}:{R+4*m+3}], v57 offset:{(mat*4+o+m)*1024}" for m in range(2) for (R, o) in ((Cc, 0), (S, 2))]
    def neg_frags(S, N): return [f"v_xor_b32 v{N+q}, 0x80008000, v{S+q}" for q in range(8)]
    def pk(blk, c, m): return PK + 16 * blk + 8 * c + 4 * m
    def acc(D, c, blk): return D + 32 * c + 16 * blk
    def cstage(D, blk, data_is_A, Cc, Sre, Sim):
        L = []
        for (c, seq) in ((0, ((0, Cc), (1, Sre))), (1, ((1, Cc), (0, Sim)))):
            d = acc(D, c, blk); first = True
            for (cc, K) in seq:
                for m in range(2):
                    dat = f"v[{pk(blk,cc,m)}:{pk(blk,cc,m)+3}]"; con = f"v[{K+4*m}:{K+4*m+3}]"
                    a, b = (dat, con) if data_is_A else (con, dat)
                    L.append(f"v_mfma_f32_32x32x16_bf16 v[{d}:{d+15}], {a}, {b}, {0 if first else f'v[{d}:{d+15}]'}")
                    first = False
        return L
    def pack(D, blk):
        return [f"v_cvt_pk_bf16_f32 v{pk(blk,c,0)+q}, v{acc(D,c,blk)+2*q}, v{acc(D,c,blk)+2*q+1}" for c in range(2) for q in range(8)]
    def tw_load():
        return [f"ds_read_b128 v[{WW+16*comp+4*a}:{WW+16*comp+4*a+3}], v56 offset:{a*2048 + comp*1024}" for a in range(4) for comp in range(2)]
    NEG = lambda i: " neg_lo:[%s] neg_hi:[%s]" % ((",".join("1" if j == i else "0" for j in range(3)),) * 2)
    def radix2_tw(conj, extra=()):
        for i in range(0, 16, 2):
            if i % 4 == 2 and extra: A(extra[i // 4])
            er, ei, o_r, oi = acc(D0,0,0)+i, acc(D0,1,0)+i, acc(D0,0,1)+i, acc(D0,1,1)+i
            ur, ui, vr_, vi = acc(D1,0,0)+i, acc(D1,1,0)+i, acc(D1,0,1)+i, acc(D1,1,1)+i
            c0, s0 = P(WW + i), P(WW + 16 + i)
            A(f"v_pk_add_f32 {P(ur)}, {P(er)}, {P(o_r)}\nv_pk_add_f32 {P(vr_)}, {P(er)}, {P(o_r)} neg_lo:[0,1] neg_hi:[0,1]")
            A(f"v_pk_add_f32 {P(ui)}, {P(ei)}, {P(oi)}\nv_pk_add_f32 {P(vi)}, {P(ei)}, {P(oi)} neg_lo:[0,1] neg_hi:[0,1]")
            A(f"v_pk_mul_f32 v[60:61], {P(ur)}, {s0}\nv_pk_mul_f32 v[62:63], {P(vr_)}, {s0}")
            A(f"v_pk_mul_f32 {P(ur)}, {P(ur)}, {c0}\nv_pk_mul_f32 {P(vr_)}, {P(vr_)}, {c0}")
            n0 = NEG(0) if conj else ""; n2 = "" if conj else NEG(2)
            A(f"v_pk_fma_f32 {P(ur)}, {P(ui)}, {s0}, {P(ur)}{n0}\nv_pk_fma_f32 {P(vr_)}, {P(vi)}, {s0}, {P(vr_)}{n0}")
            A(f"v_pk_fma_f32 {P(ui)}, {P(ui)}, {c0}, v[60:61]{n2}\nv_pk_fma_f32 {P(vi)}, {P(vi)}, {c0}, v[62:63]{n2}")
    def wmul(e):
        L = []
        for i in range(0, 16, 2):
            w = WW + 16 * e + i; t = 60 + (i & 2)
            xr, xi, yr, yi = acc(D0,0,e)+i, acc(D0,1,e)+i, acc(D1,0,e)+i, acc(D1,1,e)+i
            L += [f"v_lshlrev_b32 v{t}, 16, v{w}", f"v_lshlrev_b32 v{t+1}, 16, v{w+1}", f"v_and_b32 v{w}, 0xffff0000, v{w}", f"v_and_b32 v{w+1}, 0xffff0000, v{w+1}",
                  ]
            if C.cfpk and not (C.cfpk == 2 and i < 6):
                L += [f"v_pk_mul_f32 {P(yr)}, {P(xr)}, {P(t)}", f"v_pk_mul_f32 {P(yi)}, {P(xi)}, {P(t)}",
                      f"v_pk_fma_f32 {P(yr)}, {P(xi)}, {P(w)}, {P(yr)}{NEG(0)}", f"v_pk_fma_f32 {P(yi)}, {P(xr)}, {P(w)}, {P(yi)}"]
            else:
                for z in range(2): L += [f"v_mul_f32 v{yr+z}, v{xr+z}, v{t+z}", f"v_mul_f32 v{yi+z}, v{xi+z}, v{t+z}"]
                for z in range(2): L += [f"v_fma_f32 v{yr+z}, -v{xi+z}, v{w+z}, v{yr+z}", f"v_fmac_f32 v{yi+z}, v{xr+z}, v{w+z}"]
        return L
    def E(L):
        for l in L: A(l)
    E(load_frags(FC, FS, 0) + load_frags(OC, OS, 2) + tw_load())
    A("s_waitcnt lgkmcnt(8)")
    E(neg_frags(FS, FN) + neg_frags(OS, ON))
    A(f"s_lshl_b32 s52, s{W}, 16\ns_lshl_b32 s53, s44, 9\ns_add_u32 s52, s52, s53\ns_add_u32 s47, s52, {WS_ZP}")
    A(f"s_lshl_b32 s57, s44, 7\ns_add_u32 s57, s57, {FL_C}")
    zr = [f"ds_read_b128 v[{pk(mu,c,m)}:{pk(mu,c,m)+3}], v{58+c} offset:{ZL + mu*32768 + m*512}" for mu in range(2) for c in range(2) for m in range(2)]
    wp = (dma_split if C.zsplit else dma64)(WS_WP, WL)
    A(f"s_waitcnt vmcnt({4 if C.zsplit else 0})\ns_barrier")
    stamp(A, "go")
    E(zr[:4] if C.zsplit else zr)
    def wcheck():
        L = A.label("L_cf_ok")
        A(f"s_waitcnt vmcnt(0)\nv_cmp_ne_u32 vcc, s{S_TAG}, v5\ns_cmp_eq_u64 vcc, 0\ns_cbranch_scc1 {L}")
        poll(A, [(6, "s53")], 5)
        A(f"s_mov_b32 s{S_RDY}, 1\n{L}:")
    if C.wpz:
        if C.zsplit:
            A("s_waitcnt lgkmcnt(0)")
            m1 = cstage(D0, 0, True, FC, FS, FN)
            E(m1[:5]); A("s_waitcnt vmcnt(0)\ns_barrier"); E(zr[4:]); weave(A, m1[5:], wp[:2])
            A("s_waitcnt lgkmcnt(0)")
            weave(A, cstage(D0, 1, True, OC, OS, ON), wp[2:])
        else:
            A("s_waitcnt lgkmcnt(4)")
            weave(A, cstage(D0, 0, True, FC, FS, FN), wp[:4])
            A("s_waitcnt lgkmcnt(0)")
            weave(A, cstage(D0, 1, True, OC, OS, ON), wp[4:])
        E(load_frags(OC, OS, 1))
        radix2_tw(False)
    else:
        A(f"s_lshl_b32 s53, s{W}, 12\ns_add_u32 s53, s53, {FL_W}\nbuffer_load_dword v5, v6, {WSR}, s53 offen sc1")
        A("s_waitcnt lgkmcnt(4)")
        E(cstage(D0, 0, True, FC, FS, FN))
        A("s_waitcnt lgkmcnt(0)")
        m1 = cstage(D0, 1, True, OC, OS, ON)
        E(m1[:4]); wcheck(); weave(A, m1[4:], wp[:4])
        E(load_frags(OC, OS, 1))
        radix2_tw(False, wp[4:])
    E(pack(D1, 0))
    A("s_waitcnt lgkmcnt(0)")
    weave(A, cstage(D0, 0, False, FC, FS, FN), pack(D1, 1) + neg_frags(OS, ON))
    stamp(A, "main")
    A("s_waitcnt vmcnt(0)\ns_barrier")
    wr = [f"ds_read2st64_b32 {P(WW+16*e+4*a+b)}, v7 offset0:{a*64+b*8+e*4} offset1:{a*64+b*8+e*4+8}" for e in range(2) for a in range(4) for b in (0, 2)]
    E(wr[:8])
    m2 = cstage(D0, 1, False, OC, OS, ON)
    weave(A, m2[:2], wr[8:])
    A("s_waitcnt lgkmcnt(8)")
    weave(A, m2[2:], wmul(0))
    stamp(A, "wrdy")
    E(load_frags(OC, OS, 2))
    E(pack(D1, 0))
    g2_setup(A, 58, 59, 5, 6)
    A("s_waitcnt lgkmcnt(4)")
    weave(A, cstage(D0, 0, True, FC, FN, FS), wmul(1) + pack(D1, 1), 1)
    A("s_waitcnt lgkmcnt(0)")
    E(neg_frags(OS, ON) + tw_load())
    weave(A, cstage(D0, 1, True, OC, ON, OS), [] if C.cfx else g2w_ops(0, 58))
    E(load_frags(OC, OS, 1))
    A("s_waitcnt lgkmcnt(4)")
    radix2_tw(True)
    E(pack(D1, 0))
    A("s_waitcnt lgkmcnt(0)")
    XB = ZL if C.cfx else WL
    adr = (f"s_and_b32 s60, s{W}, 1\ns_lshl_b32 s60, s60, 2\nv_lshrrev_b32 v5, 5, v1\nv_or_b32 v5, s60, v5\n"
           "v_and_b32 v6, 7, v1\nv_xor_b32 v5, v5, v6\nv_lshlrev_b32 v5, 4, v5\nv_lshl_add_u32 v5, v3, 11, v5\n"
           f"s_lshr_b32 s60, s{W}, 1\ns_lshl_b32 s60, s60, 7\ns_add_u32 s60, s60, {XB}\nv_add_u32 v56, s60, v5\nv_xor_b32 v57, 32, v56\n"
           "v_bfe_u32 v5, v1, 2, 1\nv_lshlrev_b32 v5, 2, v5\nv_bfe_u32 v6, v1, 4, 1\nv_lshl_add_u32 v5, v6, 1, v5\nv_bfe_u32 v6, v1, 1, 1\nv_add_u32 v5, v5, v6\n"
           f"v_xor_b32 v5, s{W}, v5\nv_lshlrev_b32 v5, 4, v5\nv_and_b32 v6, 1, v1\nv_lshl_add_u32 v5, v6, 3, v5\n"
           "v_bfe_u32 v6, v1, 3, 1\nv_lshl_add_u32 v5, v6, 7, v5\nv_lshrrev_b32 v6, 5, v1\nv_lshl_add_u32 v5, v6, 9, v5\n"
           f"s_lshl_b32 s60, s{W}, 11\ns_add_u32 s60, s60, {XB}\nv_add_u32 v5, s60, v5\n"
           "v_and_b32 v6, 15, v1\nv_lshlrev_b32 v6, 4, v6\nv_lshrrev_b32 v7, 5, v1\nv_lshl_add_u32 v6, v7, 8, v6\n"
           "v_bfe_u32 v7, v1, 4, 1\nv_lshl_add_u32 v6, v7, 14, v6").split("\n")
    weave(A, cstage(D0, 0, True, FC, FN, FS), pack(D1, 1) + neg_frags(OS, ON) + (adr if C.cfx else []))
    stamp(A, "epi")
    def xw(mu): return [f"ds_write_b128 v{56+m}, v[{pk(mu,c,m)}:{pk(mu,c,m)+3}] offset:{mu*1024 + c*512}" for c in range(2) for m in range(2)]
    def xr_store(mu):
        for n in range(4):
            d = D1 + 16 * mu + 4 * n
            A(f"ds_read_b64_tr_b16 v[{d}:{d+1}], v5 offset:{n*16384 + mu*1024}\nds_read_b64_tr_b16 v[{d+2}:{d+3}], v5 offset:{n*16384 + mu*1024 + 256}")
        for n in range(4):
            d = D1 + 16 * mu + 4 * n
            A(f"s_waitcnt lgkmcnt({6-2*n})")
            A(f"buffer_store_dwordx4 v[{d}:{d+3}], v6, {WSR}, s47 offen sc1")
            A(f"s_add_u32 s47, s47, {0x80000 if n < 3 else (0x8000 - 0x180000) & 0xffffffff}")
    m4 = cstage(D0, 1, True, OC, ON, OS)
    if C.cfx: weave(A, m4, pack(D0, 0) + xw(0), 1)
    else:
        weave(A, m4[:4], adr)
        A("s_barrier")
        weave(A, m4[4:], pack(D0, 0) + xw(0))
    A("s_waitcnt lgkmcnt(0)\ns_barrier")
    stamp(A, "c1")
    xr_store(0)
    E(pack(D0, 1) + xw(1))
    A("s_waitcnt lgkmcnt(0)\ns_barrier")
    xr_store(1)
    stamp(A, "c3")
    A(f"v_mov_b32 v{V_G2W}, v58\nv_mov_b32 v{V_G2X}, v59")
    if C.cfx:
        if C.cfw2: g2_wdma(A, 2)
        A(f"s_waitcnt vmcnt({4 * C.cfw2})\ns_barrier")
        set_flag(A, 57, 16)
        stamp(A, "flag2")
        for n in range(C.nsl):
            if n != 2 or not C.cfw2: g2_wdma(A, n)
        A("s_mov_b32 s63, 1")
        return
    g2_wdma(A, 1)
    A("s_waitcnt vmcnt(4)\ns_barrier")
    stamp(A, "c5")
    set_flag(A, 57, 16)
    stamp(A, "flag2")
    for n in range(2, C.nfast if C.fast else C.nsl): g2_wdma(A, n)

def phase_g2(A):
    W = S_WAVE
    ACT = 64; WF = 128; ACC = 16; NS = 9
    A("; ---- G2")
    setprio(A, C.prio2)
    srd(A, S_X, P_X, 2097152)
    srd(A, S_B, P_OUT, 2097152)
    A("v_lshlrev_b32 v3, 4, v1")
    A(f"s_mul_i32 s54, s50, 57344\ns_mul_i32 s46, s49, {28*1024}\ns_add_u32 s54, s54, s46\ns_add_u32 s54, s54, {WS_H}")
    if C.rot2: A("s_lshl_b32 s46, s53, 12\ns_add_u32 s54, s54, s46")
    A(f"s_lshl_b32 s57, s50, 14\ns_lshl_b32 s46, s49, 13\ns_add_u32 s57, s57, s46\ns_add_u32 s57, s57, {WS_ZP}")
    A("v_lshrrev_b32 v6, 5, v1\nv_lshlrev_b32 v6, 4, v6\nv_bfe_u32 v7, v1, 4, 1\nv_lshl_add_u32 v6, v7, 2, v6\nv_bfe_u32 v4, v1, 2, 2\nv_add_u32 v6, v6, v4")
    A("v_lshlrev_b32 v6, 7, v6\nv_lshrrev_b32 v4, 1, v4\nv_lshl_or_b32 v4, v7, 1, v4")
    A("v_lshl_add_u32 v6, v4, 5, v6\nv_and_b32 v4, 3, v1\nv_lshl_add_u32 v6, v4, 3, v6")
    A("s_lshl_b32 s46, s49, 14\nv_add_u32 v164, s46, v6")
    for nb in range(1, 4): A(f"v_xor_b32 v{164+nb}, {32*nb}, v164")
    for nb in range(4): A(f"v_add_u32 v{160+nb}, 0x10000, v{164+nb}\nv_add_u32 v{180+nb}, 0x20000, v{164+nb}")
    A("s_lshl_b32 s46, s49, 14\ns_add_u32 s46, s46, 0x10000\nv_add_u32 v173, s46, v3")
    A(f"s_lshl_b32 s58, s45, 16\ns_lshl_b32 s46, s49, 15\ns_add_u32 s58, s58, s46\ns_lshl_b32 s46, s48, 12\ns_add_u32 s58, s58, s46\ns_add_u32 s58, s58, {WS_G}")
    A("v_min_u32 v170, 27, v1\nv_lshlrev_b32 v170, 7, v170\nv_and_b32 v172, 3, v1\nv_lshlrev_b32 v172, 7, v172")
    A(f"s_lshr_b32 s59, s44, 2\ns_lshl_b32 s59, s59, 12\ns_add_u32 s59, s59, {FL_H}\ns_lshl_b32 s47, s{W}, 9\ns_add_u32 s47, s47, {FL_C}")
    vm = []
    def act_ops(n):
        L = []
        for k in range(4):
            d = ACT + 16 * (n & 3) + 4 * k
            L.append((("a", n), ("s_mov_b32 s54, s57\n" if (n == 7 and k == 0 and "H" not in C.dbg) else "") +
                      f"buffer_load_dwordx4 v[{d}:{d+3}], v3, {WSR}, s54 offen offset:{1024*k} sc1 {C.nt_h}" + ("\ns_add_u32 s54, s54, 4096" if (k == 3 and "H" not in C.dbg) else "") +
                      (f"\ns_add_u32 s53, s53, 1\ns_cmp_eq_u32 s53, 7\ns_cselect_b32 s46, {7*4096}, 0\ns_sub_u32 s54, s54, s46" if (k == 3 and C.rot2 and n < 7) else "")))
        return L
    def w_ops(n): return [(("w", n), o) for o in g2w_ops(n)]
    def emit(op):
        A(op[1]); vm.extend([op[0]] * (op[2] if len(op) > 2 else 1))
    def w_or_dummy(n):
        L = A.label("L_wd"); Le = A.label("L_wd")
        return [(("w", n), f"s_cmp_eq_u32 s63, 0\ns_cbranch_scc1 {L}\n" + "\n".join(g2w_ops(n)) + f"\ns_branch {Le}\n{L}:\n" +
                 "\n".join([f"buffer_load_dword v177, v178, {WSR}, 0 offen"] * 4) + f"\n{Le}:", 4)]
    L = A.label("L_g2_np")
    if C.fast:
        A(f"v_mov_b32 v178, 0\nv_mov_b32 v179, 163836\ns_cmp_lg_u32 s{W}, 0\ns_cbranch_scc1 {L}")
        poll(A, [(170, "s59")], 177, once=True)
        A(f"v_mov_b32 v177, s{S_RDY}\nds_write_b32 v179, v177\ns_waitcnt lgkmcnt(0)")
        A(f"{L}:\ns_barrier\nds_read_b32 v177, v179\ns_waitcnt lgkmcnt(0)\nv_readfirstlane_b32 s63, v177")
        L = A.label("L_g2_np")
        A(f"s_cmp_lg_u32 s63, 0\ns_cbranch_scc1 {L}\ns_barrier")
        for n in range(C.nfast, C.nsl): g2_wdma(A, n)
        L3 = A.label("L_g2_np")
        A(f"s_cmp_lg_u32 s{W}, 0\ns_cbranch_scc1 {L3}\ns_waitcnt vmcnt(0)")
        poll(A, [(170, "s59")], 177)
        A(f"{L3}:\ns_barrier\n{L}:")
    else:
        A(f"s_cmp_lg_u32 s{W}, 0\ns_cbranch_scc1 {L}\ns_waitcnt vmcnt(0)")
        poll(A, [(170, "s59")], 177)
        A(f"{L}:\ns_barrier")
    for _ in range(C.dly2): A("s_sleep 16")
    stamp(A, "hrdy")
    for op in act_ops(0): emit(op)
    A("s_barrier")
    for op in act_ops(1): emit(op)
    def reads(n, k, st):
        slot = n % C.nsl
        va = (164, 164, 160, 160, 180)[slot]
        off = (slot & 1) * 32768 + k * 4096
        r = []
        if n >= 7:
            assert slot in (2, 3)
            return [f"ds_read_b128 v[{WF+16*st+4*nb}:{WF+16*st+4*nb+3}], v173 offset:{off + 1024*nb}" for nb in range(4)]
        for nb in range(4):
            d = WF + 16 * st + 4 * nb
            r.append(f"ds_read_b64_tr_b16 v[{d}:{d+1}], v{va+nb} offset:{off}")
            r.append(f"ds_read_b64_tr_b16 v[{d+2}:{d+3}], v{va+nb} offset:{off+1024}")
        return r
    SCHED = {"A": "a2 a3|w4 a4|w5 a5|w6 a6|w7 a7|w8 a8|||", "B": "a2|w4 a3|w5 a4|w6 a5|w7 a6|w8 a7|a8||",
             "C": "a2|a3 w4l|a4 w4h w5l|a5 w5h w6l|a6 w6h|w7 a7|w8 a8||", "D": "a2|a3 w4|a4 w5l|a5 w5h w6l|a6 w6h w7l|a7 w7h w8l|a8 w8h||",
             "P": "a2|a3 w5l|a4 w5h|a5 w6|a6 w7l|a7 w7h w8l|a8 w8h||", "Q": "a2|a3|a4 w5|a5 w6|a6 w7|a7 w8|a8||", "R": "a2|a3 w5l|a4 w5h w6l|a5 w6h|a6 w7|a7 w8l|a8 w8h||",
             "S": "a2|a3 w5l|a4 w5h|a5 w6|a6 w7l|a7 w7h|a8 w8l|w8h|", "T": "a2|a3 w5l|a4 w5h w6l|a5 w6h|a6 w7l|a7 w7h|w8l a8|w8h|",
             "U": "a2 a3l|a3h a4l w5l|a4h a5l w5h|a5h w6|a6 w7l|a7 w7h|a8 w8l|w8h|", "V": "a2|a3 w5l|a4 w5h w6l|a5 w6h|a6 w7|a7 w8l|w8h a8l|a8h|",
             "W": "a2 a3|a4 w5l|a5 w5h|a6 w6|a7 w7|a8 w8|||", "X": "a2 a3|a4|a5 w5|a6 w6|w7 a7|w8 a8|||", "Y": "a2 a3|a4 w5l|a5 w5h w6l|a6 w6h|w7 a7l|a7h w8|a8||",
             "E": "|a2 w4|a3 w5l|a4 w5h w6l|a5 w6h|a6 w7|a7 w8l|a8 w8h|"}[C.sched]
    SCHED = [x.split() for x in SCHED.split("|")]
    NZ = min(n for n in range(NS) if any(t[1] in "78" for t in SCHED[n]))
    fill = []
    EX = (4 % C.nsl) * 32768 if C.nsl == 5 else 131072
    TB = 0 if C.nsl == 5 else 69632
    A(f"s_lshl_b32 s46, s{W}, 12\ns_add_u32 s46, s46, {EX}\nv_add_u32 v6, s46, v3\nv_xor_b32 v7, 0x4000, v6")
    tail_adr = (f"v_and_b32 v4, 15, v1\nv_mul_u32_u24 v4, 144, v4\nv_lshrrev_b32 v5, 4, v1\nv_lshl_add_u32 v4, v5, 3, v4\n"
                f"s_mul_i32 s60, s48, {16*144}\ns_lshl_b32 s46, s49, 6\ns_add_u32 s60, s60, s46\ns_add_u32 s60, s60, {TB}\nv_add_u32 v4, s60, v4\n"
                f"v_lshrrev_b32 v5, 3, v1\nv_mul_u32_u24 v5, 144, v5\nv_and_b32 v8, 7, v1\nv_lshl_add_u32 v5, v8, 4, v5\ns_mul_i32 s60, s{W}, {8*144}\ns_add_u32 s60, s60, {TB}\nv_add_u32 v5, s60, v5").split("\n")
    def sync(n):
        need = [i for i, o in enumerate(vm) if o in (("a", n), ("w", n), ("f", n))] or [0]
        A(f"s_waitcnt vmcnt({len(vm) - 1 - max(need)})" + (" lgkmcnt(0)" if C.shift else ""))
        if n == NZ:
            L = A.label("L_g2_ok")
            A(f"v_cmp_ne_u32 vcc, s{S_TAG}, v176\ns_cmp_eq_u64 vcc, 0\ns_cbranch_scc1 {L}")
            poll(A, [(172, "s47")], 176)
            A(f"s_mov_b32 s{S_RDY}, 1\n{L}:")
        A("s_barrier")
        stamp(A, f"st{n}")
    for n in range(NS):
        if n == 0 or not C.shift:
            sync(n)
            for r in reads(n, 0, 0): A(r)
        ops = []
        if n == NZ - 1: ops.append((("f", NZ), f"buffer_load_dword v176, v172, {WSR}, s47 offen sc1"))
        if C.fast and C.nfast + n < C.nsl: ops += w_or_dummy(C.nfast + n)
        for tok in SCHED[n]:
            o = w_ops(int(tok[1])) if tok[0] == "w" else act_ops(int(tok[1]))
            if len(tok) == 3: o = o[:2] if tok[2] == "l" else o[2:]
            ops += o
        if n == C.xst:
            ops.append((("x", 0), f"buffer_load_dwordx4 v[240:243], v{V_G2X}, {XR}, s56 offen {C.nt_x2}"))
        if n == 7 and C.ytail:
            for q in range(2): A(f"ds_read_b128 v[{48+4*q}:{51+4*q}], v7 offset:{1024*q}")
            for i in range(8): fill.append(f"v_add_f32 v{48+i}, v{48+i}, v{184+i}")
            for i in range(8): fill.append(f"v_mul_f32 v{192+i}, {fhex(-1.4426950408889634)}, v{48+i}")
            for i in range(8): fill.append(f"v_exp_f32 v{192+i}, v{192+i}")
            for i in range(8): fill.append(f"v_add_f32 v{192+i}, 1.0, v{192+i}")
            for i in range(8): fill.append(f"v_rcp_f32 v{192+i}, v{192+i}")
            for i in range(8): fill.append(f"v_mul_f32 v{48+i}, v{48+i}, v{192+i}")
            fill += tail_adr
        if "L" in C.dbg: ops = [o for o in ops if o[0][0] not in ("a", "w")]
        slots = [[] for _ in range(16)]
        lim = 12 if C.shift else 16
        for i, op in enumerate(ops): slots[(i * lim) // max(len(ops), lim // 2)].append(op)
        for k in range(4):
            st = k & 1
            nxt = reads(n, k + 1, st ^ 1) if k < 3 else []
            early = C.shift and k == 3 and n < NS - 1
            if early:
                sync(n + 1); nxt = reads(n + 1, 0, 0)
            for nb in range(4):
                rp = 1 if n >= 7 else 2
                if nb % 2 == 0 and not early: A(f"s_waitcnt lgkmcnt({rp*(2 - nb) + len(nxt[0:rp*nb])})")
                d = WF + 16 * st + 4 * nb; a = ACT + 16 * (n & 3) + 4 * k
                cb = ACC + (16 if n >= 7 else 0) + 4 * nb
                c = f"v[{cb}:{cb+3}]"
                A(f"v_mfma_f32_16x16x32_bf16 {c}, v[{d}:{d+3}], v[{a}:{a+3}], {0 if (n in (0, 7) and k == 0) else c}")
                for r in nxt[rp*nb:rp*nb+rp]: A(r)
                for op in slots[4 * k + nb]: emit(op)
                if k or n == 8:
                    for _ in range(3):
                        if fill: A(fill.pop(0))
        if n == 6 and C.ytail:
            L1 = A.label("L_g2_y1"); L2 = A.label("L_g2_yj")
            A(f"s_cmp_eq_u32 s49, 1\ns_cbranch_scc1 {L1}")
            for (lab, keep) in ((None, 0), (L1, 8)):
                if lab: A(f"{lab}:")
                for q in range(2): A(f"ds_write_b128 v6, v[{ACC+8-keep+4*q}:{ACC+11-keep+4*q}] offset:{1024*q}")
                for i in range(0, 8, 2): A(f"v_mov_b64 v[{184+i}:{185+i}], v[{ACC+keep+i}:{ACC+keep+i+1}]")
                if not lab: A(f"s_branch {L2}")
            A(f"{L2}:\ns_waitcnt lgkmcnt(0)")
    assert not fill
    stamp(A, "g2m")
    P = lambda r: f"v[{r}:{r+1}]"
    L1 = A.label("L_g2_k1"); L2 = A.label("L_g2_j")
    A(f"s_cmp_eq_u32 s49, 1\ns_cbranch_scc1 {L1}")
    for (lab, keep) in ((None, 0), (L1, 8)):
        if lab: A(f"{lab}:")
        send = 8 - keep
        regs = (ACC + send, ACC + send + 4, ACC + 16 + send, ACC + 20 + send)
        for q in range(2 if C.ytail else 0, 4): A(f"ds_write_b128 v6, v[{regs[q]}:{regs[q]+3}] offset:{1024*q}")
        A("s_waitcnt lgkmcnt(0)\ns_barrier")
        for q in range(2 if C.ytail else 0, 4): A(f"ds_read_b128 v[{48+4*q}:{51+4*q}], v7 offset:{1024*q}")
        if not C.ytail:
            A("s_waitcnt lgkmcnt(2)")
            for i in range(0, 8, 2): A(f"v_pk_add_f32 {P(48+i)}, {P(48+i)}, {P(ACC+keep+i)}")
        A("s_waitcnt lgkmcnt(0)")
        for i in range(0, 8, 2): A(f"v_pk_add_f32 {P(56+i)}, {P(56+i)}, {P(ACC+16+keep+i)}")
        if not lab: A(f"s_branch {L2}")
    A(f"{L2}:")
    if not C.ytail:
        for i in range(8): A(f"v_mul_f32 v{64+i}, {fhex(-1.4426950408889634)}, v{48+i}")
        for i in range(8): A(f"v_exp_f32 v{64+i}, v{64+i}")
        for l in tail_adr: A(l)
        for i in range(8): A(f"v_add_f32 v{64+i}, 1.0, v{64+i}")
        for i in range(8): A(f"v_rcp_f32 v{64+i}, v{64+i}")
        for i in range(0, 8, 2): A(f"v_pk_mul_f32 {P(48+i)}, {P(48+i)}, {P(64+i)}")
    for i in range(0, 8, 2): A(f"v_pk_mul_f32 {P(56+i)}, {P(56+i)}, {P(48+i)}")
    for q in range(4): A(f"v_cvt_pk_bf16_f32 v{8+q}, v{56+2*q}, v{57+2*q}")
    A("ds_write_b64 v4, v[8:9]\nds_write_b64 v4, v[10:11] offset:32")
    A("s_waitcnt vmcnt(0)")
    for q in range(4): A(f"v_lshlrev_b32 v{72+2*q}, 16, v{240+q}\nv_and_b32 v{73+2*q}, 0xffff0000, v{240+q}")
    A("s_waitcnt lgkmcnt(0)\ns_barrier\nds_read_b128 v[8:11], v5\ns_waitcnt lgkmcnt(0)")
    for q in range(4): A(f"v_lshlrev_b32 v{64+2*q}, 16, v{8+q}\nv_and_b32 v{65+2*q}, 0xffff0000, v{8+q}")
    for i in range(0, 8, 2): A(f"v_pk_add_f32 {P(72+i)}, {P(72+i)}, {P(64+i)}")
    for q in range(4): A(f"v_cvt_pk_bf16_f32 v{8+q}, v{72+2*q}, v{73+2*q}")
    A(f"buffer_store_dwordx4 v[8:11], v{V_G2X}, {BR}, s56 offen {C.outf}")
    L = A.label("L_ep")
    A(f"s_cmp_lg_u32 s{S_WG}, 0\ns_cbranch_scc1 {L}\ns_mov_b32 s57, 0")
    set_flag(A, 57, 16)
    A(f"{L}:")

HDR = open("recurrent_scan__spectral_gfnet__geglu_ffn__prompt.s.ref").read().split("; Override")[0]
DOC = r'''; ======================================================================================================
;    makes zero, so the 256 columns that are carried are bins 1..256.
;    (-mean x column sums of the weights) and 1/den is folded into the gelu constants; writes h (bf16).
; CF (32 workgroups, one bin per wave): 2048-point column FFT (32 x 2 x 32), times W, inverse FFT, all in
; Hand-offs between workgroups go through d_ws: write-through (sc1) stores, s_waitcnt vmcnt, barrier, then one
; workgroup 0 stores the tag to ws[0] at the end, so flags of an earlier launch never match.  Spins are bounded.
; ======================================================================================================
'''
def gen(**kw):
    for k, v in kw.items(): setattr(C, k, v)
    A = Asm()
    A(HDR.rstrip())
    A("; @launch grid=(256,1,1) block=(512,1,1) lds=163840")
    A(DOC.rstrip())
    A('.amdgcn_target "amdgcn-amd-amdhsa--gfx950"\n.text')
    kernel_begin(A, KN)
    prologue(A)
    phase_p0(A)
    phase_g1(A)
    A("s_branch L_g2\nL_cf:")
    phase_cf(A)
    A("L_g2:")
    phase_g2(A)
    if C.delay:
        A(f"s_memtime s[70:71]\ns_waitcnt lgkmcnt(0)\nL_dly:\ns_memtime s[72:73]\ns_waitcnt lgkmcnt(0)\ns_sub_u32 s72, s72, s70\ns_cmp_lt_u32 s72, {C.delay}\ns_cbranch_scc1 L_dly")
    if C.echo:
        A(f"s_memrealtime s[72:73]\ns_waitcnt lgkmcnt(0)")
        if C.echo == "end": A("s_mov_b32 s84, s72")
        A(f"s_sub_u32 s84, s84, s82\ns_mul_i32 s84, s84, {C.echo_k}")
        A(f"L_echo:\ns_memrealtime s[74:75]\ns_waitcnt lgkmcnt(0)\ns_sub_u32 s74, s74, s72\ns_cmp_lt_u32 s74, s84\ns_cbranch_scc1 L_echo")
    if C.skew >= 0:
        A(f"s_cmp_lg_u32 s{S_XCD}, {C.skew}\ns_cbranch_scc1 L_done\nv_mov_b32 v2, 0\nbuffer_load_dword v3, v2, {WSR}, 0 offen offset:512 sc1\ns_waitcnt vmcnt(0)\nv_readfirstlane_b32 s84, v3")
        A(f"s_memrealtime s[72:73]\ns_waitcnt lgkmcnt(0)\ns_sub_u32 s84, s82, s84\ns_add_u32 s84, s84, 50\ns_max_i32 s84, s84, 0\ns_min_u32 s84, s84, 1000\ns_mul_i32 s84, s84, 4")
        A(f"L_sk:\ns_memrealtime s[74:75]\ns_waitcnt lgkmcnt(0)\ns_sub_u32 s74, s74, s72\ns_cmp_lt_u32 s74, s84\ns_cbranch_scc1 L_sk")
    if C.dbgclk:
        A(f"s_cmp_lg_u32 s{S_WG}, 0\ns_cbranch_scc1 L_done\ns_cmp_lg_u32 s{S_WAVE}, 0\ns_cbranch_scc1 L_done")
        A("s_memtime s[74:75]\ns_memrealtime s[76:77]\ns_waitcnt lgkmcnt(0)\ns_sub_u32 s74, s74, s80\ns_sub_u32 s76, s76, s82")
        srd(A, S_A, P_DBG, 256)
        A(f"v_mov_b32 v2, 0\nv_mov_b32 v4, s74\nv_mov_b32 v5, s76\nbuffer_store_dwordx2 v[4:5], v2, {AR}, 0 offen")
    diag_end(A)
    A("L_done:\ns_endpgm")
    A('.section .rodata,"a"\n.p2align 6')
    A(descriptor(KN, 256, 102, 256))
    return hazard.fix(A.text(), verbose=False)
if __name__ == "__main__":
    kw = dict(a.split("=") for a in sys.argv[2:])
    kw = {k: (int(v) if v.isdigit() and k not in ("perm", "g2map") else v.replace("_", "")) for k, v in kw.items()}
    open(sys.argv[1], "w").write(gen(**kw))
```
